```python
import torch

def _softmax(x, axis=-1):
    return torch.softmax(x, dim=axis)
def _gelu(x):
    return torch.nn.functional.gelu(x, approximate="tanh")
def _silu(x):
    return torch.nn.functional.silu(x)
def _sigmoid(x):
    return torch.sigmoid(x)
def _layernorm(x, axis=-1, eps=1e-5):
    m = x.mean(dim=axis, keepdim=True)
    v = x.var(dim=axis, keepdim=True, unbiased=False)
    return (x - m) / torch.sqrt(v + eps)
def _scatter_add(tgt, idx, src, axis=0):
    return tgt.clone().index_add_(axis, idx, src)
def _segment_sum(src, seg, n):
    out = torch.zeros((n,) + src.shape[1:], dtype=src.dtype)
    return out.index_add_(0, seg, src)
def _pad(x, pw):
    flat = tuple(v for pair in reversed(pw) for v in pair)
    return torch.nn.functional.pad(x, flat)

kernel_name = 'concat_heads__spectral_fnet__sliding_block__prompt'

def setup_inputs():

    _w = (lambda a: (lambda t: t.to(torch.bfloat16) if t.is_floating_point() else t)(torch.as_tensor(a)))
    def _A_setup():
        B, S, D = 1, 2048, 448
        ns = torch.arange(S)[:, None] * torch.arange(S)[None, :]
        nd = torch.arange(D)[:, None] * torch.arange(D)[None, :]
        Ws_re = torch.cos(-2.0 * torch.pi * ns / S).to(float)
        Ws_im = torch.sin(-2.0 * torch.pi * ns / S).to(float)
        Wd_re = torch.cos(-2.0 * torch.pi * nd / D).to(float)
        Wd_im = torch.sin(-2.0 * torch.pi * nd / D).to(float)
        return {
            "x": _w((lambda *s: torch.randn(*s, dtype=torch.bfloat16) * 0.05)(B, S, D)),
            "dft_seq_re": _w(Ws_re),
            "dft_seq_im": _w(Ws_im),
            "dft_hid_re": _w(Wd_re),
            "dft_hid_im": _w(Wd_im),
        }
    _A_in = _A_setup()

    def _B_setup():
        B, S, D = 1, 2048, 448
        return {
            "x": _w((lambda *s: torch.randn(*s, dtype=torch.bfloat16) * 0.2)(B, S, D)),
            "wqkv": _w((lambda *s: torch.randn(*s, dtype=torch.bfloat16) * 0.8)(D, 3 * D)),
            "wo": _w((lambda *s: torch.randn(*s, dtype=torch.bfloat16) * 0.2)(D, D)),
        }
    _B_in = _B_setup()

    return {
        "A_x": _A_in["x"],
        "A_dft_seq_re": _A_in["dft_seq_re"],
        "A_dft_seq_im": _A_in["dft_seq_im"],
        "A_dft_hid_re": _A_in["dft_hid_re"],
        "A_dft_hid_im": _A_in["dft_hid_im"],
        "B_x": _B_in["x"],
        "B_wqkv": _B_in["wqkv"],
        "B_wo": _B_in["wo"],
    }

def reference(A_x, A_dft_seq_re, A_dft_seq_im, A_dft_hid_re, A_dft_hid_im, B_x, B_wqkv, B_wo):
    def _A_ref(x, dft_seq_re, dft_seq_im, dft_hid_re, dft_hid_im):
        a = torch.einsum("bsd,ed->bse", x, dft_hid_re)
        b = torch.einsum("bsd,ed->bse", x, dft_hid_im)
        y = torch.einsum("ts,bse->bte", dft_seq_re, a) - torch.einsum("ts,bse->bte", dft_seq_im, b)
        return y

    def _B_ref(x, wqkv, wo):
        B, S, D = x.shape
        H = 16; Dh = D // H; W = 256
        qkv = (lambda x, *d: x.permute(*d))((x @ wqkv).reshape(B, S, 3, H, Dh), 2, 0, 3, 1, 4)
        q, k, v = qkv[0], qkv[1], qkv[2]
        scores = torch.einsum("bhqd,bhkd->bhqk", q, k) * (Dh ** -0.5)
        idx = torch.arange(S)
        mask = (idx[:, None] - idx[None, :] >= 0) & (idx[:, None] - idx[None, :] < W)
        scores = torch.where(mask[None, None], scores, -1e9)
        p = _softmax(scores, axis=-1)
        o = torch.einsum("bhqk,bhkd->bhqd", p, v)
        return (lambda x, *d: x.permute(*d))(o, 0, 2, 1, 3).reshape(B, S, D) @ wo

    a = _A_ref(A_x, A_dft_seq_re, A_dft_seq_im, A_dft_hid_re, A_dft_hid_im)
    b = _B_ref(B_x, B_wqkv, B_wo)
    return torch.concatenate([a, b], axis=-1)
```

```python
import re

class Prog:
    def __init__(self):
        self.lines = []
        self._lab = 0
    def __call__(self, s):
        for l in s.split("\n"):
            l = l.strip()
            if l: self.lines.append(l)
    def label(self, base="L"):
        self._lab += 1
        return f"{base}_{self._lab}"
    def extend(self, ls):
        for l in ls: self(l)

def vr(a, n=1):
    return f"v{a}" if n == 1 else f"v[{a}:{a+n-1}]"
def sr(a, n=1):
    return f"s{a}" if n == 1 else f"s[{a}:{a+n-1}]"

_reg = re.compile(r"^-?(?:abs\()?([vs])(?:(\d+)|\[(\d+):(\d+)\])\)?$")
def regs(op):
    op = op.strip()
    if op in ("vcc",): return {("s", "vcc")}
    if op in ("vcc_lo", "vcc_hi"): return {("s", "vcc")}
    if op in ("exec", "exec_lo", "exec_hi"): return {("s", "exec")}
    if op == "m0": return {("s", "m0")}
    m = _reg.match(op)
    if not m: return set()
    k = m.group(1)
    if m.group(2) is not None: return {(k, int(m.group(2)))}
    return {(k, i) for i in range(int(m.group(3)), int(m.group(4)) + 1)}

TRANS = ("v_exp_f32", "v_log_f32", "v_rcp_f32", "v_rsq_f32", "v_sqrt_f32", "v_sin_f32", "v_cos_f32")

class Ins:
    def __init__(self, line):
        self.line = line
        code = line.split(";")[0].strip()
        self.is_label = code.endswith(":")
        self.is_dir = code.startswith((".", "@"))
        self.op = ""; self.w = set(); self.r = set(); self.kind = "none"
        self.A = self.B = self.C = set(); self.data = set()
        if not code or self.is_label or self.is_dir: return
        parts = code.split(None, 1)
        self.op = op = parts[0]
        rest = parts[1] if len(parts) > 1 else ""
        ops = [o.strip() for o in re.split(r",(?![^\[]*\])", rest)] if rest else []
        if ops:
            toks = ops[-1].split()
            self.mods = toks[1:]; ops[-1] = toks[0] if toks else ""
        else: self.mods = []
        R = [regs(o) for o in ops]
        U = lambda xs: set().union(*xs) if xs else set()
        if op.startswith("v_mfma"):
            self.kind = "mfma"; self.passes = 8 if "32x32" in op else 4
            self.w = R[0]; self.A, self.B, self.C = R[1], R[2], R[3]; self.r = R[1] | R[2] | R[3]
        elif op.startswith("v_"):
            self.kind = "valu"
            if op.startswith("v_permlane"):
                self.w = R[0] | R[1]; self.r = R[0] | R[1]
            elif op.startswith(("v_add_co", "v_addc_co", "v_sub_co")):
                self.w = R[0] | R[1]; self.r = U(R[2:])
            else:
                self.w = R[0]; self.r = U(R[1:])
                if op.startswith(("v_fmac", "v_writelane")): self.r |= R[0]
        elif op.startswith("ds_"):
            self.kind = "ds"
            if op.startswith(("ds_read", "ds_bpermute")) or "_rtn" in op:
                self.w = R[0]; self.r = U(R[1:])
            else:
                self.r = U(R)
        elif op.startswith(("buffer_", "global_")):
            self.kind = "vmem"
            if "lds" in self.mods:
                self.r = U(R) | {("s", "m0")}; self.isdma = True
            elif "_load" in op:
                self.w = R[0]; self.r = U(R[1:])
            elif op.startswith("buffer_store") or op.startswith("buffer_atomic"):
                self.r = U(R); self.data = R[0]
            elif op.startswith("global_store"):
                self.r = U(R); self.data = R[1]
            else:
                self.r = U(R)
        elif op.startswith("s_"):
            self.kind = "salu"
            if op.startswith(("s_cmp", "s_cbranch", "s_branch", "s_waitcnt", "s_barrier", "s_nop", "s_endpgm", "s_setprio", "s_sleep", "s_bitcmp")):
                self.r = U(R)
            else:
                self.w = R[0] if R else set(); self.r = U(R[1:])
                if "saveexec" in op: self.w = self.w | {("s", "exec")}
    def states(self):
        if self.op == "s_nop":
            return int(self.line.split(";")[0].split()[1], 0) + 1
        return 0 if (self.is_label or self.is_dir or not self.op) else 1

def need(p, c):
    n = 0
    vw = {x for x in p.w if x[0] == "v"}; sw = {x for x in p.w if x[0] == "s"}
    if p.kind == "valu":
        if c.kind == "mfma" and vw & c.r: n = max(n, 2)
        if c.kind == "mfma" and ("s", "exec") in sw: n = max(n, 4)
        if c.op.startswith("v_permlane") and vw & c.r: n = max(n, 2)
        if c.op.startswith(("v_readlane", "v_readfirstlane")) and vw & c.r: n = max(n, 1)
        if c.kind == "valu" and ("dpp" in c.op or "quad_perm" in c.line or "row_" in c.line) and vw & c.r: n = max(n, 2)
        if p.op in TRANS and c.kind in ("valu", "mfma") and c.op not in TRANS and vw & c.r: n = max(n, 1)
        if sw:
            rr = set(c.r)
            if c.op.startswith("v_cndmask") and "vcc" in c.line: rr |= {("s", "vcc")}
            if c.kind == "valu" and sw & rr: n = max(n, 4 if c.op.startswith(("v_readlane", "v_writelane")) else 2)
            if c.kind == "vmem" and sw & rr: n = max(n, 5)
            if c.kind == "salu" and (sw & rr or (c.op.startswith("s_cbranch_vcc") and ("s", "vcc") in sw)): n = max(n, 1)
    if p.kind == "mfma":
        big = {4: 8, 8: 12}[p.passes]
        if c.kind == "mfma":
            if vw & (c.A | c.B): n = max(n, big)
            if vw & c.C and not (vw == c.C and p.passes == c.passes): n = max(n, big - 2)
            if vw & c.w and not (vw == c.C and p.passes == c.passes): n = max(n, big - 2)
        elif c.kind in ("valu", "ds", "vmem"):
            if vw & (c.r | c.w): n = max(n, big)
            if c.kind == "valu" and p.C & c.w: n = max(n, {4: 3, 8: 7}[p.passes])
            if c.kind in ("ds", "vmem") and p.C & c.w: n = max(n, {4: 3, 8: 7}[p.passes])
    if p.kind == "salu":
        if ("s", "m0") in sw and getattr(c, "isdma", False): n = max(n, 1)
    if p.kind == "vmem" and len(p.data) >= 3:
        if c.kind in ("valu", "mfma") and p.data & c.w: n = max(n, 2)
        elif p.data & c.w: n = max(n, 1)
    if p.kind == "ds" and p.op.startswith("ds_write") and c.kind in ("valu", "mfma") and len(p.r) >= 4 and p.r & c.w: n = max(n, 1)
    return n

def pad_hazards(lines, verbose=False):
    out = []; hist = []
    padded = 0
    for l in lines:
        c = Ins(l)
        if c.op:
            dist = 0; req = 0
            for p in reversed(hist):
                k = need(p, c)
                if k > dist: req = max(req, k - dist)
                dist += p.states()
                if dist >= 20: break
            while req > 0:
                n = min(req, 16)
                nop = Ins(f"s_nop {n-1}")
                out.append(nop.line); hist.append(nop); req -= n; padded += n
                if verbose: print("pad", n, "before", l)
            hist.append(c)
            if c.op in ("s_branch", "s_endpgm", "s_setpc_b64"): hist = []
            hist = hist[-40:]
        out.append(l)
    return out, padded

class LdsAddr:
    def __init__(self, prog, reg, base=0):
        self.p = prog; self.reg = reg; self.base = base
    def off(self, absaddr, span=0, emit=None):
        emit = emit or self.p
        if not (0 <= absaddr - self.base and absaddr + span - self.base <= 65535):
            nb = absaddr & ~0x1fff
            d = nb - self.base
            emit(f"v_add_u32 v{self.reg}, {d & 0xffffffff:#x}, v{self.reg}")
            self.base = nb
        return absaddr - self.base
```

```python
import sys, math, struct, os
sys.path.insert(0, os.path.dirname(os.path.abspath(__file__)))
from asmlib import *

NAME = "concat_heads__spectral_fnet__sliding_block__prompt_kernel"

def f2u(x): return struct.unpack("<I", struct.pack("<f", x))[0]
def fl(x): return f"{f2u(x):#x}"

WS_E = 0
WS_KF, WS_VF, WS_OF, WS_TF = 0x10000, 0x18000, 0x20000, 0x28000
WS_K, WS_V, WS_O, WS_T = 0x100000, 0x2C0000, 0x480000, 0x640000
WS_STAMP = 0x900000
WS_SIZE = 0xA00000
PAIR = 64 * 3584
SL = 8192
def L_X(q): return 2 * q * SL
def L_WK(q): return (2 * q + 1) * SL
def L_WV(q): return (14 + q) * SL if q < 6 else 0
L_XA = 1 * SL
def L_WQ(q): return (5 + q) * SL
L_KT = 13 * SL
L_VT = 0
L_FLAG = 13 * SL + 35840
L_TS = 18 * SL
L_OUT = 12 * SL
def L_O(q): return q * SL if q < 5 else (13 + q - 5) * SL
sNONCE = 6
sXB, sW, sWKV, sXA, sWO, sOUT, sWS, sWSKV = 20, 24, 28, 32, 36, 40, 44, 48
sU, sRT, sP, sS2, sEG, sR, sCI, sWV = 52, 53, 54, 55, 56, 57, 58, 59
sSX, sSW = 60, 67
sT0, sT1, sT2, sT3, sT4, sT5 = 74, 75, 76, 77, 78, 79
sSTAMP = 80
NSTAMP = 11
SPIN = 1 << 14
NEG = fl(-1e30)

class Cnt:
    def __init__(self, prog, name, maxn):
        self.p, self.name, self.maxn = prog, name, maxn
        self.q = []
    def add(self, tag=None): self.q.append(tag)
    def wait(self, tag, emit=None):
        idx = [i for i, t in enumerate(self.q) if t == tag]
        if not idx: return
        n = len(self.q) - 1 - idx[-1]
        n = min(n, self.maxn)
        (emit or self.p)(f"s_waitcnt {self.name}({n})")
        self.q = self.q[len(self.q) - n:] if n else []
    def all(self, emit=None):
        (emit or self.p)(f"s_waitcnt {self.name}(0)"); self.q = []

def srd(P, d, lo, nrec):
    P(f"s_mov_b32 s{d}, s{lo}\ns_mov_b32 s{d+1}, s{lo+1}\ns_mov_b32 s{d+2}, {nrec:#x}\ns_mov_b32 s{d+3}, 0x20000")

def MF32(d, a, b, c): return f"v_mfma_f32_32x32x16_bf16 {vr(d,16)}, {vr(a,4)}, {vr(b,4)}, {c if isinstance(c,str) else vr(c,16)}"
def MF16(d, a, b, c): return f"v_mfma_f32_16x16x32_bf16 {vr(d,4)}, {vr(a,4)}, {vr(b,4)}, {c if isinstance(c,str) else vr(c,4)}"

class Gen:
    def __init__(self, **o):
        self.o = dict(stamps=False, win=14, fill0=330, fillk=34, fillv=12, rot=True, codepf=True)
        self.o.update(o)
        self.P = Prog()
        self.tail = Prog()

    def stamp(self, i):
        if self.o["stamps"]: self.P(f"s_memtime {sr(sSTAMP + 2*i, 2)}")

    def stamp_out(self):
        if not self.o["stamps"]: return
        P = self.P
        P(f"s_waitcnt vmcnt(0) lgkmcnt(0)\ns_mov_b64 exec, 1")
        for i in range(NSTAMP): P(f"v_mov_b32 v{4+i}, s{sSTAMP+2*i}")
        P(f"s_getreg_b32 s3, hwreg(HW_REG_XCC_ID)\nv_mov_b32 v15, s3")
        P(f"s_lshl_b32 s3, s2, 3\ns_add_u32 s3, s3, s{sWV}\ns_lshl_b32 s3, s3, 6\ns_add_u32 s3, s3, {WS_STAMP:#x}\nv_mov_b32 v1, 0")
        for k in range(3): P(f"buffer_store_dwordx4 v[{4+4*k}:{7+4*k}], v1, {sr(sWS,4)}, s3 offen offset:{16*k}")

    def tr_addr(self, dst, t0, t1, perm, sbase):
        P = self.P
        P(f"v_bfe_u32 v{t0}, v0, 4, 1\nv_lshlrev_b32 v{t0}, 5, v{t0}")
        if perm:
            P(f"v_and_b32 v{t1}, 1, v0\nv_lshl_add_u32 v{t0}, v{t1}, 4, v{t0}")
            P(f"v_bfe_u32 v{t1}, v0, 1, 1\nv_lshl_add_u32 v{t0}, v{t1}, 3, v{t0}")
        else:
            P(f"v_and_b32 v{t1}, 3, v0\nv_lshl_add_u32 v{t0}, v{t1}, 3, v{t0}")
        P(f"v_add_u32 v{t0}, s{sbase}, v{t0}")
        P(f"v_bfe_u32 v{t1}, v0, 3, 1\nv_lshlrev_b32 v{t1}, 6, v{t1}\nv_xor_b32 v{t0}, v{t0}, v{t1}")
        P(f"v_bfe_u32 v{t1}, v0, 2, 2\nv_lshl_add_u32 v{t0}, v{t1}, 7, v{t0}")
        P(f"v_lshrrev_b32 v{t1}, 5, v0\nv_lshl_add_u32 v{dst}, v{t1}, 10, v{t0}")

    def poll(self, addrs, vt, sbase, first_issued=False, first_wait=None):
        P = self.P
        L, D, C = P.label("poll"), P.label("polld"), P.label("pollc")
        P(f"s_mov_b32 s{sT5}, 0")
        if first_issued:
            P(first_wait); P(f"s_branch {C}")
        P(f"{L}:")
        for k, (va, imm) in enumerate(addrs):
            P(f"buffer_load_dword v{vt+k}, v{va}, {sr(sWS,4)}, s{sbase} offen offset:{imm} sc1")
        P(f"s_add_u32 s{sT5}, s{sT5}, 1\ns_cmp_gt_u32 s{sT5}, {SPIN}\ns_cbranch_scc1 {D}\ns_waitcnt vmcnt(0)")
        P(f"{C}:")
        for k in range(len(addrs)):
            P(f"v_cmp_ne_u32 vcc, s{sNONCE}, v{vt+k}\ns_cbranch_vccnz {L}")
        P(f"{D}:")

    def lds_wait(self, vflag, idx, val, vt):
        P = self.P
        L = P.label("lw")
        P(f"{L}:\nds_read_b32 v{vt}, v{vflag} offset:{4*idx}\ns_waitcnt lgkmcnt(0)\nv_cmp_gt_u32 vcc, {val}, v{vt}\ns_cbranch_vccnz {L}")

    def lds_signal(self, vflag, idx, vt):
        self.P(f"v_mov_b32 v{vt}, 1\ns_mov_b64 exec, 1\nds_add_u32 v{vflag}, v{vt} offset:{4*idx}\ns_mov_b64 exec, -1")

    def flag_store(self, vzero, vnonce, srdn, soff):
        self.P(f"s_mov_b64 exec, 1\nbuffer_store_dword v{vnonce}, v{vzero}, {sr(srdn,4)}, s{soff} offen sc1\ns_mov_b64 exec, -1")

    def kv_poll_addr(self, dst, t0, t1):
        P = self.P
        P(f"v_lshrrev_b32 v{t0}, 3, v0\nv_min_u32 v{t0}, 4, v{t0}\ns_sub_u32 s3, s{sRT}, 4\nv_add_u32 v{t0}, s3, v{t0}\nv_max_i32 v{t0}, 0, v{t0}")
        P(f"v_bfe_u32 v{t1}, v0, 2, 1\ns_sub_u32 s3, s{sP}, 1\nv_add_u32 v{t1}, s3, v{t1}\nv_med3_i32 v{t1}, v{t1}, 0, 6")
        P(f"v_lshl_add_u32 v{t0}, v{t0}, 3, v{t1}\nv_lshlrev_b32 v{t0}, 7, v{t0}\nv_and_b32 v{t1}, 3, v0\nv_lshl_add_u32 v{dst}, v{t1}, 2, v{t0}")

    def out_epilogue(self, acc, pk, vwr, vrd, vg0, vg1, soff, mod):
        P = self.P
        for i in range(8): P(f"v_cvt_pk_bf16_f32 v{pk+i}, v{acc+2*i}, v{acc+2*i+1}")
        P(f"ds_write_b128 v{vwr}, {vr(pk,4)}\nds_write_b128 v{vwr+1}, {vr(pk+4,4)}")
        P(f"s_waitcnt lgkmcnt(0)")
        P(f"ds_read_b128 {vr(pk,4)}, v{vrd}\nds_read_b128 {vr(pk+4,4)}, v{vrd} offset:1024")
        P(f"s_waitcnt lgkmcnt(1)\nbuffer_store_dwordx4 {vr(pk,4)}, v{vg0}, {sr(sOUT,4)}, {soff} offen {mod}")
        P(f"s_waitcnt lgkmcnt(0)\nbuffer_store_dwordx4 {vr(pk+4,4)}, v{vg1}, {sr(sOUT,4)}, {soff} offen {mod}")

    def prologue(self):
        P = self.P
        P(f"s_cmp_ge_u32 s2, 256\ns_cbranch_scc1 L_end")
        P(f"s_load_dwordx8 s[8:15], s[0:1], 40\ns_load_dwordx4 s[16:19], s[0:1], 72\ns_load_dwordx2 s[4:5], s[0:1], 0")
        if self.o["stamps"]:
            P(f"s_memrealtime {sr(sSTAMP + 2*(NSTAMP-1), 2)}")
        self.stamp(0)
        P(f"v_lshrrev_b32 v1, 6, v0\nv_and_b32 v0, 63, v0\nv_readfirstlane_b32 s{sWV}, v1")
        P(f"s_and_b32 s3, s2, 7\ns_lshr_b32 s7, s2, 3\ns_and_b32 s{sP}, s7, 7\ns_lshr_b32 s{sT0}, s7, 3")
        P(f"s_lshl_b32 s{sRT}, s3, 2\ns_add_u32 s{sRT}, s{sRT}, s{sT0}")
        P(f"s_and_b32 s{sU}, s{sWV}, 3\ns_and_b32 s{sR}, s{sU}, 1\ns_lshr_b32 s{sCI}, s{sU}, 1")
        P(f"s_cmp_lt_u32 s{sWV}, 4\ns_cbranch_scc1 L_g2")
        if self.o["codepf"]:
            P(f"s_getpc_b64 s[{sT2}:{sT3}]\nL_pc:")
            P(f"s_lshl_b32 s{sT1}, s{sU}, 13\nv_lshl_add_u32 v2, v0, 7, s{sT1}\nv_min_u32 v2, L_codeend-L_pc-4, v2")
            P(f"v_mov_b32 v3, s{sT3}\nv_add_co_u32 v2, vcc, s{sT2}, v2\nv_addc_co_u32 v3, vcc, 0, v3, vcc")
            P(f"global_load_dword v46, v[2:3], off")
        P(f"s_branch L_g1")
        P(f"L_g2:")

    def const_stream(self):
        F = []
        vE, vB, vA, vC, vS = 12, 13, 40, 42, 52
        CC, SS = 144, 200
        F += [f"s_lshl_b32 s3, s{sEG}, 6", f"s_lshl_b32 s7, s{sU}, 4", f"s_add_u32 s3, s3, s7",
              f"v_and_b32 v{vA}, 15, v0", f"v_add_u32 v{vA}, s3, v{vA}", f"v_cvt_f32_u32 v{vA}, v{vA}",
              f"v_mul_f32 v{vE}, {fl(1/448)}, v{vA}",
              f"v_lshrrev_b32 v{vA}, 4, v0", f"v_cvt_f32_u32 v{vA+1}, v{vA}", f"v_mul_f32 v14, 4.0, v{vA+1}",
              f"v_add_f32 v{vA+1}, v14, v14", f"v_mul_f32 v{vB}, v{vE}, v{vA+1}"]
        for ks in range(7):
            for j in range(9):
                a = vA + (j & 1)
                F.append(f"v_fmamk_f32 v{a}, v{vE}, {fl(32*ks+j)}, v{vB}")
                F.append(f"v_cos_f32 v{vC+j}, v{a}")
                F.append(f"v_sin_f32 v{vS+j}, v{a}")
            km = 13 - ks
            for jj in range(4):
                F.append(f"v_cvt_pk_bf16_f32 v{CC+4*ks+jj}, v{vC+2*jj}, v{vC+2*jj+1}")
                F.append(f"v_cvt_pk_bf16_f32 v{SS+4*ks+jj}, v{vS+2*jj}, v{vS+2*jj+1}")
            for jj in range(4):
                F.append(f"v_cvt_pk_bf16_f32 v{CC+4*km+jj}, v{vC+8-2*jj}, v{vC+7-2*jj}")
                F.append(f"v_cvt_pk_bf16_f32 v{SS+4*km+jj}, -v{vS+8-2*jj}, -v{vS+7-2*jj}")
        for nt in range(2):
            F += [f"v_and_b32 v{vA}, 15, v0", f"v_add_u32 v{vA}, {16*nt}, v{vA}", f"v_cvt_f32_u32 v{vA}, v{vA}",
                  f"v_mul_f32 v{vE}, {fl(1/32)}, v{vA}", f"v_mul_f32 v{vB}, v{vE}, v14"]
            for j in range(8):
                a = vA + (j & 1)
                F.append(f"v_fmamk_f32 v{a}, v{vE}, {fl(16*(j>>2)+(j&3))}, v{vB}")
                F.append(f"v_cos_f32 v{vC+j}, v{a}")
                F.append(f"v_sin_f32 v{vS+j}, v{a}")
            for jj in range(4):
                F.append(f"v_cvt_pk_bf16_f32 v{96+4*nt+jj}, v{vC+2*jj}, v{vC+2*jj+1}")
                F.append(f"v_cvt_pk_bf16_f32 v{104+4*nt+jj}, v{vS+2*jj}, v{vS+2*jj+1}")
        F += [f"v_and_b32 v{vA}, 15, v0", f"v_lshrrev_b32 v{vA+1}, 1, v{vA}", f"v_lshlrev_b32 v{vA}, 7, v{vA}",
              f"v_add_u32 v{vA}, {L_XA}, v{vA}",
              f"v_lshrrev_b32 v{vC}, 4, v0", f"v_xor_b32 v{vC}, v{vC}, v{vA+1}",
              f"v_lshl_add_u32 v8, v{vC}, 4, v{vA}", f"v_xor_b32 v9, 64, v8", f"v_xor_b32 v10, 48, v8", f"v_xor_b32 v11, 64, v10"]
        F += [f"s_lshl_b32 s3, s{sR}, 10", f"s_add_u32 s3, s3, s{sRT}",
              f"v_and_b32 v{vA}, 31, v0", f"v_lshl_add_u32 v{vA}, v{vA}, 5, s3", f"v_cvt_f32_u32 v{vA}, v{vA}",
              f"v_mul_f32 v{vE}, {fl(1/2048)}, v{vA}",
              f"v_lshrrev_b32 v{vA}, 5, v0", f"v_cvt_f32_u32 v{vA}, v{vA}", f"v_mul_f32 v{vA}, 4.0, v{vA}", f"v_mul_f32 v{vB}, v{vE}, v{vA}"]
        for s in range(8):
            for jj in range(4):
                a = vA + (jj & 1)
                F.append(f"v_fmamk_f32 v{a}, v{vE}, {fl(8*s+jj)}, v{vB}")
                F.append(f"v_cos_f32 v{vC+jj}, v{a}")
                F.append(f"v_sin_f32 v{vS+jj}, v{a}")
            for jj in range(4):
                F.append(f"v_cvt_pk_bf16_f32 v{112+4*s+jj}, v{vC+jj}, -v{vS+jj}")
        return F

    def g2(self):
        P = self.P; o = self.o
        vx0, vx1, vw0, vw1, vq0, vq1, vxa = 1, 2, 3, 4, 5, 6, 7
        P(f"s_lshl_b32 s{sT1}, s{sU}, 3\nv_lshrrev_b32 v16, 3, v0\nv_add_u32 v16, s{sT1}, v16")
        P(f"v_lshrrev_b32 v17, 1, v16\nv_xor_b32 v17, v17, v0\nv_and_b32 v17, 7, v17\nv_lshlrev_b32 v17, 4, v17")
        P(f"v_mul_u32_u24 v{vx0}, 896, v16\nv_add_u32 v{vx0}, v{vx0}, v17\nv_add_u32 v{vx1}, {32*896}, v{vx0}")
        P(f"v_bfe_u32 v18, v0, 4, 1\nv_lshlrev_b32 v18, 2, v18\nv_xor_b32 v18, v18, v0\nv_and_b32 v18, 7, v18")
        P(f"v_mul_u32_u24 v19, 2688, v16\ns_lshl_b32 s{sT1}, s{sP}, 7\ns_add_u32 s{sT1}, s{sT1}, 896")
        P(f"v_lshl_add_u32 v{vw0}, v18, 4, v19\nv_add_u32 v{vw0}, s{sT1}, v{vw0}\nv_add_u32 v{vw1}, {32*2688}, v{vw0}")
        if o["rot"]:
            P(f"s_lshl_b32 s{sT0}, s{sT0}, 1\ns_add_u32 s{sT0}, s{sT0}, s{sP}\ns_sub_u32 s{sT1}, s{sT0}, 7\ns_cselect_b32 s{sT0}, s{sT0}, s{sT1}")
        else:
            P(f"s_mov_b32 s{sT0}, 0")
        P(f"s_mul_i32 s{sT2}, s{sRT}, {64*896}")
        for q in range(7):
            P(f"s_lshl_b32 s{sT1}, s{sT0}, 7\ns_add_u32 s{sSX+q}, s{sT1}, s{sT2}\ns_mul_i32 s{sSW+q}, s{sT0}, {64*2688}")
            if q < 6: P(f"s_add_u32 s{sT0}, s{sT0}, 1\ns_cmp_eq_u32 s{sT0}, 7\ns_cselect_b32 s{sT0}, 0, s{sT0}")
        P(f"s_lshl_b32 s{sT4}, s{sU}, 10")
        P(f"s_lshl_b32 s{sS2}, s3, 3\ns_lshr_b32 s{sT1}, s7, 2\ns_add_u32 s{sS2}, s{sS2}, s{sT1}\ns_and_b32 s{sEG}, s7, 3")
        P(f"s_cmp_eq_u32 s{sP}, 7\ns_cselect_b32 s{sWKV+2}, 0, {448*2688:#x}")
        P(f"s_mov_b32 s{sWKV+3}, 0x20000\ns_mov_b32 s{sXB+2}, {2048*896:#x}\ns_mov_b32 s{sXB+3}, 0x20000")
        P(f"s_waitcnt lgkmcnt(0)")
        P(f"s_mov_b32 s{sXB}, s8\ns_mov_b32 s{sXB+1}, s9\ns_mov_b32 s{sWKV}, s10\ns_mov_b32 s{sWKV+1}, s11")
        dm = []
        def dma(lds, va, srdn, soff, imm=0):
            t = [f"s_add_u32 m0, s{sT4}, {lds - imm}",
                 f"buffer_load_dwordx4 v{va}, {sr(srdn,4)}, s{soff} offen" + (f" offset:{imm}" if imm else "") + " lds"]
            dm.append((lds, t))
        for q in range(7):
            dma(L_X(q), vx0, sXB, sSX + q); dma(L_WK(q), vw0, sWKV, sSW + q)
            dma(L_X(q) + 4096, vx1, sXB, sSX + q); dma(L_WK(q) + 4096, vw1, sWKV, sSW + q)
        for q in range(7):
            dma(L_WV(q), vw0, sWKV, sSW + q); dma(L_WV(q) + 4096, vw1, sWKV, sSW + q)
        for q in range(7):
            dma(L_XA + q * 4096, vxa, sXA, sT3, q * 128)
        for q in range(7):
            dma(L_WQ(q), vq0, sW, sSW + q); dma(L_WQ(q) + 4096, vq1, sW, sSW + q)
        need_ = [4 * (q + 1) for q in range(7)] + [28 + 2 * (q + 1) for q in range(7)] + [49]
        first_read = {}
        for q in range(7): first_read[2 * q] = q; first_read[2 * q + 1] = q
        F = [f"s_load_dword s{sNONCE}, s[18:19], {WS_E}"]
        F += [f"s_mov_b32 s{sW}, s10", f"s_mov_b32 s{sW+1}, s11", f"s_mov_b32 s{sW+2}, {448*2688:#x}", f"s_mov_b32 s{sW+3}, 0x20000",
              f"s_mov_b32 s{sXA}, s4", f"s_mov_b32 s{sXA+1}, s5", f"s_mov_b32 s{sXA+2}, {2048*896:#x}", f"s_mov_b32 s{sXA+3}, 0x20000",
              f"s_mov_b32 s{sWS}, s18", f"s_mov_b32 s{sWS+1}, s19", f"s_mov_b32 s{sWS+2}, {WS_SIZE:#x}", f"s_mov_b32 s{sWS+3}, 0x20000",
              f"s_mov_b32 s{sWO}, s12", f"s_mov_b32 s{sWO+1}, s13", f"s_mov_b32 s{sWO+2}, {448*896:#x}", f"s_mov_b32 s{sWO+3}, 0x20000",
              f"s_mov_b32 s{sOUT}, s14", f"s_mov_b32 s{sOUT+1}, s15", f"s_mov_b32 s{sOUT+2}, {2048*1792:#x}", f"s_mov_b32 s{sOUT+3}, 0x20000",
              f"s_mul_i32 s{sT3}, s{sS2}, 896",
              f"v_mul_u32_u24 v{vxa}, {64*896}, v16", f"v_add_u32 v{vxa}, v{vxa}, v17",
              f"v_min_u32 v20, 6, v18", f"s_mul_i32 s3, s{sP}, 112", f"v_lshl_add_u32 v{vq0}, v20, 4, v19", f"v_add_u32 v{vq0}, s3, v{vq0}",
              f"v_add_u32 v{vq1}, {32*2688}, v{vq0}"]
        F += self.const_stream()
        fi = 0
        def fill(n):
            nonlocal fi
            for l in F[fi:fi + n]: P(l)
            fi = min(len(F), fi + n)
        issued = 0
        for b, nd in enumerate(need_):
            tgt = min(len(dm), nd + o["win"] - (4 if b < 7 else 2))
            if b == len(need_) - 1: tgt = len(dm)
            budget = o["fill0"] if b == 0 else (o["fillk"] if b <= 7 else o["fillv"])
            nnew = tgt - issued
            per = budget // max(nnew, 1) if b > 0 else 0
            while issued < tgt:
                lds, t = dm[issued]
                if issued >= 28 and (lds // SL) in first_read:
                    assert b >= first_read[lds // SL] + 3, ("WAR", issued, b)
                if issued == 28: P(f"v_add_u32 v{vw0}, 896, v{vw0}\nv_add_u32 v{vw1}, 896, v{vw1}")
                P(t[0])
                if per: fill(1)
                P(t[1]); issued += 1
                if per > 1: fill(per - 1)
                budget -= per
            if b == 0: self.stamp(1)
            fill(budget if b < len(need_) - 1 else len(F))
            P(f"s_waitcnt vmcnt({issued - nd})\ns_barrier")
            if b == 0: self.stamp(2)
        assert fi == len(F)
        self.stamp(3)
        CC, SS, ZC, ZS, XF = 144, 200, 64, 72, 40
        lg = Cnt(P, "lgkmcnt", 15)
        P("s_waitcnt lgkmcnt(0)")
        P(f"s_mul_i32 s{sNONCE}, s{sNONCE}, 0x9E3779B1\ns_add_u32 s{sNONCE}, s{sNONCE}, 0x7FEB352D")
        def xread(ks):
            a = 8 + (2 if ks >= 7 else 0) + (ks & 1)
            for mt in range(2):
                P(f"ds_read_b128 {vr(XF + 8*(ks%3) + 4*mt, 4)}, v{a} offset:{(ks>>1)*4096 + mt*2048}"); lg.add(("x", ks))
        xread(0); xread(1)
        for ks in range(14):
            lg.wait(("x", ks))
            x = XF + 8 * (ks % 3)
            c = (lambda r: "0" if ks == 0 else r)
            P(MF16(ZC, x, CC + 4*ks, c(ZC)))
            P(MF16(ZS, x, SS + 4*ks, c(ZS)))
            if ks + 2 < 14: xread(ks + 2)
            P(MF16(ZC + 4, x + 4, CC + 4*ks, c(ZC + 4)))
            P(MF16(ZS + 4, x + 4, SS + 4*ks, c(ZS + 4)))
        P(f"s_waitcnt vmcnt(6)\ns_barrier")
        self.stamp(4)
        vFL, vNON, vZ = 15, 16, 17
        P(f"v_mov_b32 v{vFL}, {L_FLAG}\nv_mov_b32 v{vNON}, s{sNONCE}\nv_mov_b32 v{vZ}, 0")
        P(f"v_and_b32 v18, 15, v0\nv_lshrrev_b32 v19, 4, v0\nv_lshlrev_b32 v20, 8, v18\nv_lshl_add_u32 v20, v19, 4, v20")
        P(f"s_lshl_b32 s3, s{sU}, 6\ns_add_u32 s3, s3, {L_TS}\nv_add_u32 v20, s3, v20")
        ZR, ZP, ZN, TA = 80, 84, 88, 40
        for i in range(4): P(f"v_cvt_pk_bf16_f32 v{ZR+i}, v{ZC+2*i}, v{ZC+2*i+1}")
        for i in range(4): P(f"v_cvt_pk_bf16_f32 v{ZP+i}, v{ZS+2*i}, v{ZS+2*i+1}")
        for i in range(4): P(f"v_cvt_pk_bf16_f32 v{ZN+i}, -v{ZS+2*i}, -v{ZS+2*i+1}")
        for nt in range(2):
            P(MF16(TA + 8*nt, ZR, 96 + 4*nt, "0")); P(MF16(TA + 8*nt + 4, ZR, 104 + 4*nt, "0"))
        for nt in range(2):
            P(MF16(TA + 8*nt, ZN, 104 + 4*nt, TA + 8*nt)); P(MF16(TA + 8*nt + 4, ZP, 96 + 4*nt, TA + 8*nt + 4))
        self.kv_poll_addr(21, 22, 23)
        for nt in range(2):
            for r_ in range(4): P(f"v_cvt_pk_bf16_f32 v{56+4*nt+r_}, v{TA+8*nt+r_}, v{TA+8*nt+4+r_}")
            P(f"ds_write_b128 v20, {vr(56+4*nt,4)} offset:{4096*nt}")
        P(f"s_waitcnt vmcnt(0) lgkmcnt(0)\ns_barrier")
        self.stamp(5)
        P(f"s_cmp_eq_u32 s{sU}, 0\ns_cbranch_scc1 L_roleT\ns_cmp_eq_u32 s{sU}, 2\ns_cbranch_scc1 L_roleW")
        P(f"s_mov_b32 s{sT0}, {WS_VF:#x}")
        P(f"buffer_load_dword v22, v21, {sr(sWS,4)}, s{sT0} offen sc1")
        P(f"v_mov_b32 v24, 0x3f803f80\nv_mov_b32 v25, v24\nv_mov_b32 v26, v24\nv_mov_b32 v27, v24")
        P(f"v_min_u32 v23, 39, v0\nv_lshlrev_b32 v23, 10, v23\ns_lshl_b32 s3, s{sCI}, 6\nv_add_u32 v23, s3, v23")
        P(f"ds_write_b128 v23, v[24:27] offset:{L_VT + 896}")
        P(f"s_mul_i32 s3, s{sCI}, 3584\nv_lshl_add_u32 v23, v0, 4, s3\ns_lshl_b32 s{sT4}, s{sCI}, 12")
        P(f"s_mul_i32 s{sT1}, s{sP}, {PAIR}\ns_add_u32 s{sT1}, s{sT1}, {WS_V:#x}")
        for n in range(5):
            P(f"s_sub_i32 s3, s{sRT}, {4-n}\ns_max_i32 s3, s3, 0\ns_mul_i32 s3, s3, 7168\ns_add_u32 s{sSX+n}, s3, s{sT1}")
        self.poll([(21, 0)], 22, sT0, True, "s_waitcnt vmcnt(0)")
        self.stamp(6)
        P(f"s_mov_b32 exec_hi, 0x00ffffff")
        for n in (4, 0, 1, 2, 3):
            for z in range(4):
                P(f"s_add_u32 m0, s{sT4}, {L_VT + n*8192 + z*128}")
                P(f"buffer_load_dwordx4 v23, {sr(sWS,4)}, s{sSX+n} offen offset:{896*z} sc1 lds")
        P(f"s_mov_b64 exec, -1\ns_waitcnt vmcnt(0) lgkmcnt(0)")
        self.lds_signal(vFL, 1, 22)
        P(f"s_branch L_rolesdone")
        P(f"L_roleW:")
        P(f"s_cmp_eq_u32 s{sP}, 7\ns_cbranch_scc1 L_g2end")
        P(f"v_lshrrev_b32 v22, 3, v0\nv_mul_u32_u24 v22, 896, v22\nv_bfe_u32 v23, v0, 4, 1\nv_lshlrev_b32 v23, 2, v23\nv_xor_b32 v23, v23, v0\nv_and_b32 v23, 7, v23")
        P(f"v_lshl_add_u32 v22, v23, 4, v22\ns_lshl_b32 s{sT0}, s{sP}, 7\ns_mov_b32 s{sT1}, {L_WQ(0)}")
        self.lds_wait(vFL, 0, 4, 23)
        self.stamp(6)
        Lw = P.label("wo")
        P(f"{Lw}:")
        for z in range(8):
            P(f"s_add_u32 m0, s{sT1}, {z*1024}\ns_nop 0\nbuffer_load_dwordx4 v22, {sr(sWO,4)}, s{sT0} offen lds\ns_add_u32 s{sT0}, s{sT0}, 7168")
        P(f"s_add_u32 s{sT1}, s{sT1}, {SL}\ns_cmp_lt_u32 s{sT1}, {L_WQ(7)}\ns_cbranch_scc1 {Lw}")
        P(f"s_waitcnt vmcnt(0)")
        self.lds_signal(vFL, 2, 22)
        P(f"s_branch L_rolesdone")
        P(f"L_roleT:")
        P(f"v_lshlrev_b32 v22, 4, v0\nv_add_u32 v22, {L_TS}, v22")
        for n in range(8): P(f"ds_read_b128 {vr(40+4*n,4)}, v22 offset:{1024*n}")
        P(f"v_lshlrev_b32 v23, 4, v18\nv_lshl_add_u32 v24, v19, 16, v23\nv_lshl_add_u32 v25, v19, 10, v23")
        P(f"s_lshl_b32 s{sT0}, s{sS2}, 10\ns_lshl_b32 s3, s{sEG}, 8\ns_add_u32 s{sT0}, s{sT0}, s3\ns_add_u32 s{sT0}, s{sT0}, {WS_T:#x}")
        for n in range(8):
            P(f"s_waitcnt lgkmcnt({7-n})\nbuffer_store_dwordx4 {vr(40+4*n,4)}, v24, {sr(sWS,4)}, s{sT0} offen sc1\ns_add_u32 s{sT0}, s{sT0}, {4*65536}")
        P(f"s_lshl_b32 s3, s{sEG}, 3\ns_lshr_b32 s7, s{sS2}, 3\ns_add_u32 s3, s3, s7\ns_lshl_b32 s3, s3, 7\ns_and_b32 s7, s{sS2}, 7\ns_lshl_b32 s7, s7, 2")
        P(f"s_add_u32 s3, s3, s7\ns_add_u32 s{sT0}, s3, {WS_TF:#x}")
        P(f"v_lshrrev_b32 v26, 3, v0\nv_lshlrev_b32 v26, 7, v26\nv_and_b32 v27, 7, v0\nv_lshl_add_u32 v26, v27, 2, v26")
        P(f"s_waitcnt vmcnt(0)")
        self.flag_store(vZ, vNON, sWS, sT0)
        self.stamp(6)
        P(f"s_cmp_eq_u32 s{sP}, 7\ns_cbranch_scc1 L_epoch")
        P(f"s_lshr_b32 s3, s{sP}, 1\ns_lshl_b32 s3, s3, 10\ns_add_u32 s{sT0}, s3, {WS_TF:#x}")
        P(f"s_and_b32 s3, s{sP}, 1\ns_lshl_b32 s3, s3, 10\nv_add_u32 v27, s3, v26")
        P(f"s_lshl_b32 s{sT1}, s{sRT}, 16\ns_lshl_b32 s3, s{sP}, 7\ns_add_u32 s{sT1}, s{sT1}, s3\ns_add_u32 s{sT1}, s{sT1}, {WS_T:#x}")
        P(f"s_waitcnt vmcnt(0)")
        self.poll([(26, 0), (27, 0)], 28, sT0)
        for n in range(16):
            P(f"s_mov_b32 m0, {L_TS + n*1024}\ns_nop 0\nbuffer_load_dwordx4 v25, {sr(sWS,4)}, s{sT1} offen sc1 lds\ns_add_u32 s{sT1}, s{sT1}, 4096")
        P(f"s_waitcnt vmcnt(0)")
        self.lds_signal(vFL, 3, 22)
        P(f"L_rolesdone:")
        P(f"s_cmp_eq_u32 s{sP}, 7\ns_cbranch_scc1 L_g2end")
        self.stamp(7)
        vTR, vWR, vRD, vGA0, vGA1, vGB0, vGB1, vTA, vOR = 1, 2, 4, 5, 6, 7, 8, 9, 10
        P(f"s_lshl_b32 s{sT0}, s{sCI}, 6")
        self.tr_addr(vTR, 22, 23, True, sT0)
        P(f"v_add_u32 v{vTR}, {L_WQ(0)}, v{vTR}")
        P(f"s_lshl_b32 s3, s{sU}, 11\ns_add_u32 s3, s3, {L_OUT}")
        P(f"v_and_b32 v22, 31, v0\nv_lshrrev_b32 v23, 5, v0\nv_bfe_u32 v24, v0, 1, 2\nv_xor_b32 v24, v24, v23")
        P(f"v_lshl_add_u32 v25, v22, 6, s3\nv_lshl_add_u32 v{vWR}, v24, 4, v25\nv_xor_b32 v{vWR+1}, 32, v{vWR}")
        P(f"v_lshl_add_u32 v{vRD}, v0, 4, s3")
        P(f"s_lshl_b32 s3, s{sR}, 12\nv_lshl_add_u32 v{vOR}, v22, 3, s3\nv_lshl_add_u32 v{vOR}, v23, 9, v{vOR}")
        P(f"v_and_b32 v24, 19, v0\nv_bfe_u32 v25, v0, 2, 1\nv_lshl_add_u32 v24, v25, 3, v24\nv_bfe_u32 v25, v0, 3, 1\nv_lshl_add_u32 v24, v25, 2, v24")
        P(f"v_sub_u32 v25, 32, v24\ns_cmp_eq_u32 s{sCI}, 1\ns_cselect_b64 vcc, -1, 0\nv_cndmask_b32 v24, v24, v25, vcc")
        P(f"v_lshlrev_b32 v24, 2, v24\nv_lshl_add_u32 v24, v23, 10, v24\nv_add_u32 v{vTA}, {L_TS}, v24")
        P(f"v_lshrrev_b32 v24, 2, v0\nv_bfe_u32 v25, v0, 3, 2\nv_xor_b32 v25, v25, v0\nv_and_b32 v25, 3, v25\nv_lshlrev_b32 v25, 4, v25")
        P(f"v_mul_u32_u24 v{vGB0}, 1792, v24\nv_add_u32 v{vGB0}, v{vGB0}, v25\nv_add_u32 v{vGB1}, {16*1792}, v{vGB0}")
        P(f"s_lshl_b32 s3, s{sR}, 10\ns_add_u32 s3, s3, s{sRT}\nv_lshl_add_u32 v26, v24, 5, s3\nv_add_u32 v27, 512, v26")
        for src, dst in ((26, vGA0), (27, vGA1)):
            P(f"v_sub_u32 v28, 0, v{src}\nv_and_b32 v28, 2047, v28\nv_cndmask_b32 v28, v{src}, v28, vcc\nv_mul_u32_u24 v28, 1792, v28\nv_add_u32 v{dst}, v28, v25")
        P(f"s_lshl_b32 s3, s{sP}, 6\ns_sub_u32 s7, 832, s3\ns_cmp_eq_u32 s{sCI}, 1\ns_cselect_b32 s{sT1}, s7, s3")
        P(f"s_lshl_b32 s3, s{sRT}, 1\ns_add_u32 s3, s3, s{sR}\ns_mul_i32 s3, s3, {32*1792}\ns_lshl_b32 s7, s{sP}, 7\ns_add_u32 s3, s3, s7")
        P(f"s_add_u32 s3, s3, s{sT0}\ns_add_u32 s{sT2}, s3, 896")
        self.lds_wait(vFL, 2, 1, 22)
        WF = 144
        for ks in range(28):
            for t in range(2):
                P(f"ds_read_b64_tr_b16 {vr(WF+4*ks+2*t,2)}, v{vTR} offset:{ks*2048 + t*512}")
        self.lds_wait(vFL, 3, 1, 22)
        self.stamp(8)
        lg = Cnt(P, "lgkmcnt", 15)
        for s in range(8):
            if s == 7: lg.wait(0); P(MF32(64, 32, 112, "0"))
            for t in range(2):
                P(f"ds_read2st64_b32 {vr(32+4*s+2*t,2)}, v{vTA} offset0:{8*s+2*t} offset1:{8*s+2*t+1}"); lg.add(s)
        for s in range(1, 8):
            lg.wait(s); P(MF32(64, 32 + 4*s, 112 + 4*s, 64))
        self.out_epilogue(64, 24, vWR, vRD, vGA0, vGA1, f"s{sT1}", "sc1")
        lg = Cnt(P, "lgkmcnt", 15)
        oa = LdsAddr(P, vOR)
        OF = 32
        for q in range(8):
            if q < 7: P("s_barrier")
            if q == 0: self.stamp(9)
            for s in range(4):
                if q > 0:
                    ks = 4 * (q - 1) + s
                    lg.wait((q - 1, s))
                    P(MF32(64, WF + 4*ks, OF + 16*((q-1) & 1) + 4*s, "0" if ks == 0 else 64))
                if q < 7:
                    for t in range(2):
                        off = oa.off(L_O(q) + (4*s + t) * 256)
                        P(f"ds_read_b64 {vr(OF + 16*(q&1) + 4*s + 2*t, 2)}, v{vOR} offset:{off}"); lg.add((q, s))
        self.out_epilogue(64, 24, vWR, vRD, vGB0, vGB1, f"s{sT2}", "sc1")
        P(f"L_g2end:")
        self.stamp_out()
        P("s_endpgm")
        P(f"L_epoch:")
        P(f"s_cmp_lg_u32 s{sRT}, 31\ns_cbranch_scc1 L_g2end")
        P(f"s_mov_b32 s{sT0}, {WS_TF:#x}")
        self.poll([(26, 0), (26, 1024), (26, 2048), (26, 3072)], 28, sT0)
        P(f"s_mov_b32 s{sT0}, {WS_E}")
        self.flag_store(vZ, vNON, sWS, sT0)
        P(f"s_branch L_g2end")

    def g1(self):
        P = self.P; o = self.o
        vXA, vWK, vWV, vWQ, vKS, vVS, vZ, vKP, vDA, vKR, vVR, vOS, vOP, vNON, vFL, vDB = 1, 5, 6, 7, 8, 10, 11, 12, 13, 14, 15, 16, 17, 18, 19, 20
        vSA, vSB = 21, 22
        QF, ONE, NM = 24, 32, 36
        AK, AV, AQ, CD, WF, XF = 48, 64, 80, 96, 112, 144
        P("L_g1:")
        P("s_setprio 1")
        P(f"s_waitcnt lgkmcnt(0)\ns_load_dword s{sNONCE}, s[18:19], {WS_E}")
        srd(P, sWS, 18, WS_SIZE)
        P(f"s_mov_b32 s{sWSKV}, s18\ns_mov_b32 s{sWSKV+1}, s19\ns_cmp_eq_u32 s{sP}, 7\ns_cselect_b32 s{sWSKV+2}, 0, {WS_SIZE:#x}\ns_mov_b32 s{sWSKV+3}, 0x20000")
        P(f"v_and_b32 v40, 31, v0\nv_lshrrev_b32 v41, 5, v0\nv_bfe_u32 v42, v0, 1, 3\nv_xor_b32 v42, v42, v41")
        P(f"s_lshl_b32 s3, s{sR}, 12\nv_lshl_add_u32 v43, v40, 7, s3\nv_lshl_add_u32 v{vXA}, v42, 4, v43")
        for s in range(1, 4): P(f"v_xor_b32 v{vXA+s}, {32*s}, v{vXA}")
        P(f"s_lshl_b32 s{sT0}, s{sCI}, 6")
        self.tr_addr(vWK, 42, 43, True, sT0)
        self.tr_addr(vWV, 42, 43, False, sT0)
        P(f"s_mul_i32 s{sT0}, s{sCI}, 48")
        self.tr_addr(vWQ, 42, 43, True, sT0)
        sG = sSW
        P(f"s_lshl_b32 s{sG}, s{sRT}, 1\ns_add_u32 s{sG}, s{sG}, s{sR}")
        P(f"s_lshl_b32 s3, s{sP}, 3\ns_lshl_b32 s7, s{sCI}, 2\ns_add_u32 s3, s3, s7\ns_mov_b32 s7, {PAIR - 7*512}")
        for s in range(2):
            P(f"v_add_u32 v42, s3, v41\nv_add_u32 v42, {2*s}, v42\nv_mul_u32_u24 v43, 37, v42\nv_lshrrev_b32 v43, 8, v43")
            P(f"v_mul_lo_u32 v43, v43, s7\nv_lshl_add_u32 v43, v42, 9, v43\nv_lshl_add_u32 v{vKS+s}, v40, 4, v43")
        P(f"s_lshl_b32 s3, s3, 3\nv_add_u32 v42, s3, v40\nv_mul_u32_u24 v43, 1171, v42\nv_lshrrev_b32 v43, 16, v43\ns_mov_b32 s7, {PAIR - 896}")
        P(f"v_mul_lo_u32 v43, v43, s7\nv_lshl_add_u32 v43, v42, 4, v43\nv_mul_u32_u24 v42, 896, v41\nv_add_u32 v{vVS}, v42, v43")
        sKO, sVO, sKFo, sVFo, sOFo, sOO = sSW + 1, sSW + 2, sSW + 3, sSW + 4, sSW + 5, sSW + 6
        P(f"s_mul_i32 s3, s{sG}, 3584\ns_add_u32 s{sKO}, s3, {WS_K:#x}\ns_add_u32 s{sVO}, s3, {WS_V:#x}")
        P(f"s_lshl_b32 s3, s{sRT}, 3\ns_add_u32 s3, s3, s{sP}\ns_lshl_b32 s3, s3, 7\ns_lshl_b32 s7, s{sU}, 2\ns_add_u32 s3, s3, s7")
        P(f"s_add_u32 s{sKFo}, s3, {WS_KF:#x}\ns_add_u32 s{sVFo}, s3, {WS_VF:#x}\ns_add_u32 s{sOFo}, s3, {WS_OF:#x}")
        P(f"v_mov_b32 v{vZ}, 0\nv_mov_b32 v{vFL}, {L_FLAG}")
        self.kv_poll_addr(vKP, 42, 43)
        P(f"s_lshl_b32 s{sT4}, s{sU}, 10\nv_lshl_add_u32 v{vDA}, v0, 4, s{sT4}\nv_add_u32 v{vDB}, 4096, v{vDA}")
        P(f"s_mul_i32 s{sT1}, s{sP}, {PAIR}\ns_add_u32 s{sT1}, s{sT1}, {WS_K:#x}")
        for n in range(5):
            P(f"s_sub_i32 s3, s{sRT}, {4-n}\ns_max_i32 s3, s3, 0\ns_mul_i32 s3, s3, 7168\ns_add_u32 s{sSX+n}, s3, s{sT1}")
        P(f"s_mul_i32 s3, s{sR}, 3584\ns_mul_i32 s7, s{sCI}, 1536\ns_add_u32 s3, s3, s7\ns_add_u32 s3, s3, {L_KT}\nv_lshl_add_u32 v{vKR}, v0, 4, s3")
        P(f"s_mul_i32 s3, s{sCI}, 28\nv_add_u32 v42, s3, v40\ns_lshl_b32 s7, s{sCI}, 2\ns_sub_u32 s7, 60, s7\nv_mov_b32 v43, s7")
        P(f"v_cmp_gt_u32 vcc, 28, v40\nv_cndmask_b32 v42, v43, v42, vcc\nv_lshlrev_b32 v42, 4, v42\nv_lshl_add_u32 v42, v41, 10, v42")
        P(f"s_lshl_b32 s3, s{sR}, 12\ns_add_u32 s3, s3, {L_VT}\nv_add_u32 v{vVR}, s3, v42")
        P(f"v_lshlrev_b32 v42, 3, v40\nv_lshl_add_u32 v{vOS}, v41, 8, v42")
        P(f"s_lshl_b32 s3, s{sP}, 1\ns_add_u32 s3, s3, s{sCI}\ns_mul_i32 s3, s3, 1792\ns_mul_i32 s7, s{sG}, 28672\ns_add_u32 s3, s3, s7\ns_add_u32 s{sOO}, s3, {WS_O:#x}")
        P(f"v_bfe_u32 v42, v0, 2, 3\nv_lshlrev_b32 v42, 7, v42\nv_and_b32 v43, 3, v0\nv_lshl_add_u32 v42, v43, 2, v42\ns_lshl_b32 s3, s{sRT}, 10\nv_add_u32 v{vOP}, s3, v42")
        c = math.log2(math.e) / math.sqrt(28)
        P(f"v_mov_b32 v42, {fl(c)}\nv_cmp_gt_u32 vcc, s{sCI}, v41\nv_cndmask_b32 v{vSA}, v42, v{vZ}, vcc\nv_cmp_lt_u32 vcc, s{sCI}, v41\nv_cndmask_b32 v{vSB}, v42, v{vZ}, vcc")
        P(f"v_cmp_eq_u32 vcc, 0, v41\nv_mov_b32 v42, 0x3f803f80\nv_mov_b32 v43, 0x3f80\nv_cndmask_b32 v{ONE}, v{vZ}, v42, vcc\nv_cndmask_b32 v{ONE+1}, v{vZ}, v43, vcc")
        P(f"v_mov_b32 v{ONE+2}, 0\nv_mov_b32 v{ONE+3}, 0\nv_mov_b32 v{NM+2}, 0\nv_mov_b32 v{NM+3}, 0")
        P(f"s_cmp_lt_u32 s{sG}, 7\ns_cselect_b32 s3, {NEG}, 0")
        for i in range(16): P(f"v_mov_b32 v{CD+i}, s3")
        P(f"v_lshlrev_b32 v42, 2, v41\nv_sub_u32 v23, v40, v42")
        P(f"s_waitcnt vmcnt(0) lgkmcnt(0)")
        P(f"s_mul_i32 s{sNONCE}, s{sNONCE}, 0x9E3779B1\ns_add_u32 s{sNONCE}, s{sNONCE}, 0x7FEB352D\nv_mov_b32 v{vNON}, s{sNONCE}")
        self.stamp(1)
        lg = Cnt(P, "lgkmcnt", 15); vm = Cnt(P, "vmcnt", 63)
        xa = [LdsAddr(P, vXA + s) for s in range(4)]
        wa = {"K": LdsAddr(P, vWK), "V": LdsAddr(P, vWV), "Q": LdsAddr(P, vWQ)}
        wl = {"K": L_WK, "V": L_WV, "Q": L_WQ}
        acc = {"K": AK, "V": AV, "Q": AQ}
        def reads(ph, kind, q, s):
            if kind == "K":
                off = xa[s].off(L_X(q), 8192)
                P(f"ds_read_b128 {vr(XF + 16*q + 4*s, 4)}, v{vXA+s} offset:{off}"); lg.add((ph, s))
            for t in range(2):
                off = wa[kind].off(wl[kind](q) + s*2048 + t*512, 2048)
                P(f"ds_read_b64_tr_b16 {vr(WF + 16*(ph&1) + 4*s + 2*t, 2)}, v{wa[kind].reg} offset:{off}"); lg.add((ph, s))
        def mf(ph, kind, q, s):
            lg.wait((ph, s))
            w, x, a = WF + 16*(ph & 1) + 4*s, XF + 16*q + 4*s, acc[kind]
            cc = "0" if (q == 0 and s == 0) else a
            P(MF32(a, x, w, cc) if kind == "V" else MF32(a, w, x, cc))
        def pack(a, half, emit=P):
            for i in range(4): emit(f"v_cvt_pk_bf16_f32 v{QF+4*half+i}, v{a+8*half+2*i}, v{a+8*half+2*i+1}")
        phases = [("K", q) for q in range(7)] + [("V", q) for q in range(7)]
        for ph in range(15):
            if ph < 14: P("s_barrier")
            if ph == 0: self.stamp(2)
            for s in range(4):
                if ph > 0: mf(ph - 1, *phases[ph - 1], s)
                if ph < 14: reads(ph, *phases[ph], s)
                if ph == 8 and s >= 2:
                    pack(AK, s - 2)
                    P(f"buffer_store_dwordx4 {vr(QF+4*(s-2),4)}, v{vKS+s-2}, {sr(sWSKV,4)}, s{sKO} offen sc1"); vm.add("K")
                    if s == 3: self.stamp(3)
        P(f"s_cmp_lt_u32 s{sG}, 8\ns_cselect_b32 s3, 64, 0\nv_add_u32 v42, s3, v23\nv_mov_b32 v43, {NEG}")
        for i in range(16):
            P(f"v_cmp_gt_i32 vcc, {8*(i>>2)+(i&3)}, v42\nv_cndmask_b32 v{AK+i}, v43, v{vZ}, vcc")
            if i == 3:
                for h in range(2):
                    pack(AV, h)
                    P(f"buffer_store_dwordx4 {vr(QF+4*h,4)}, v{vVS}, {sr(sWSKV,4)}, s{sVO} offen offset:{1792*h} sc1"); vm.add("V")
                vm.wait("K"); self.flag_store(vZ, vNON, sWSKV, sKFo); vm.add("KF")
                self.stamp(4)
        for i in range(16):
            P(f"v_cmp_le_i32 vcc, {8*(i>>2)+(i&3)}, v23\nv_cndmask_b32 v{AV+i}, v43, v{vZ}, vcc")
        P("s_barrier")
        P(f"s_mov_b32 s{sT0}, {WS_KF:#x}")
        P(f"buffer_load_dword v44, v{vKP}, {sr(sWS,4)}, s{sT0} offen sc1"); vm.add("poll")
        P(f"v_mov_b32 v40, 0\nv_mov_b32 v41, 0\nv_mov_b32 v42, 0\nv_mov_b32 v43, 0\nds_write_b128 v{vFL}, v[40:43]")
        vm.wait("V"); self.flag_store(vZ, vNON, sWSKV, sVFo); vm.add("VF")
        self.poll([(vKP, 0)], 44, sT0, True, "s_waitcnt vmcnt(1)")
        self.stamp(5)
        for n in (4, 0, 1, 2, 3):
            P(f"s_add_u32 m0, s{sT4}, {L_KT + n*7168}\ns_nop 0\nbuffer_load_dwordx4 v{vDA}, {sr(sWS,4)}, s{sSX+n} offen sc1 lds")
        Ls = P.label("ksk")
        P(f"s_cmp_eq_u32 s{sU}, 3\ns_cbranch_scc1 {Ls}")
        for n in (4, 0, 1, 2, 3):
            P(f"s_add_u32 m0, s{sT4}, {L_KT + n*7168 + 4096}\ns_nop 0\nbuffer_load_dwordx4 v{vDB}, {sr(sWS,4)}, s{sSX+n} offen sc1 lds")
        P(f"{Ls}:")
        P("s_waitcnt lgkmcnt(0)")
        lg.q = []
        for ph in range(8):
            if ph in (0, 4): P("s_barrier")
            for s in range(4):
                if ph > 0: mf(ph - 1, "Q", ph - 1, s)
                if ph < 7: reads(ph, "Q", ph, s)
        P(f"s_waitcnt vmcnt(0)")
        self.lds_signal(vFL, 0, 40)
        P(f"s_mov_b32 s3, {fl(c)}")
        for i in range(16):
            sc = f"v{vSA}" if i < 4 else (f"v{vSB}" if i >= 12 else "s3")
            P(f"v_mul_f32 v{AQ+i}, {sc}, v{AQ+i}")
        pack(AQ, 0); pack(AQ, 1)
        self.stamp(6)
        self.lds_wait(vFL, 0, 4, 40)
        self.stamp(7)
        order = [8, 0, 1, 2, 3, 4, 5, 6, 7]
        S = lambda n: AK if n == 0 else (AV if n == 8 else XF + 16 * (n - 1))
        lg.q = []
        def kread(i):
            n = order[i]
            for s in range(2):
                P(f"ds_read_b128 {vr(WF + 8*(i&3) + 4*s, 4)}, v{vKR} offset:{n*3584 + s*1024}"); lg.add(("k", i, s))
        def vread(i):
            n = order[i]
            for s in range(2):
                P(f"ds_read_b128 {vr(WF + 8*(i&3) + 4*s, 4)}, v{vVR} offset:{n*4096 + s*2048}"); lg.add(("v", i, s))
        vM = 40
        def maxes(i, half):
            b = S(order[i]) + 8 * half
            for k in range(4):
                m = vM + (k & 1)
                if i == 0 and half == 0 and k < 2: P(f"v_max_f32 v{m}, v{b+2*k}, v{b+2*k+1}")
                else: P(f"v_max3_f32 v{m}, v{m}, v{b+2*k}, v{b+2*k+1}")
        for i in range(3): kread(i)
        for i in range(9):
            n = order[i]
            if 2 <= n <= 7:
                Lf, Lb = P.label("flip"), P.label("flipb")
                P(f"s_cmp_eq_u32 s{sG}, {8-n}\ns_cbranch_scc1 {Lf}\n{Lb}:")
                T = self.tail
                T(f"{Lf}:\ns_nop 7")
                for k in range(16): T(f"v_mov_b32 v{CD+k}, 0")
                T(f"s_nop 1\ns_branch {Lb}")
            for s in range(2):
                lg.wait(("k", i, s))
                cc = S(n) if (s == 1 or n in (0, 8)) else CD
                P(MF32(S(n), WF + 8*(i & 3) + 4*s, QF + 4*s, cc))
                if s == 0 and i + 3 < 9: kread(i + 3)
                if i >= 2: maxes(i - 2, s)
        P(f"ds_read_b32 v44, v{vFL} offset:4")
        maxes(7, 0); maxes(7, 1); maxes(8, 0); maxes(8, 1)
        P(f"v_max_f32 v{vM}, v{vM}, v{vM+1}\nv_mov_b32 v{vM+1}, v{vM}\nv_permlane32_swap_b32 v{vM}, v{vM+1}\nv_max_f32 v{vM}, v{vM}, v{vM+1}")
        P(f"v_and_b32 v42, 0xffff0000, v{vM}\nv_sub_f32 v43, v42, v{vM}\nv_xor_b32 v42, 0x80000000, v42\nv_and_b32 v45, 0xffff0000, v43")
        P(f"v_sub_f32 v43, v43, v45\nv_lshrrev_b32 v42, 16, v42\nv_or_b32 v{NM}, v42, v45\nv_lshrrev_b32 v{NM+1}, 16, v43")
        b0 = S(order[0])
        for k in range(8): P(f"v_sub_f32 v{b0+k}, v{b0+k}, v{vM}")
        P(MF32(S(order[1]), ONE, NM, S(order[1])))
        for k in range(8, 16): P(f"v_sub_f32 v{b0+k}, v{b0+k}, v{vM}")
        Lv, Lvb = P.label("vw"), P.label("vwb")
        P(f"s_waitcnt lgkmcnt(0)\nv_cmp_gt_u32 vcc, 2, v44\ns_cbranch_vccnz {Lv}\n{Lvb}:")
        self.tail(f"{Lv}:\nds_read_b32 v44, v{vFL} offset:4\ns_waitcnt lgkmcnt(0)\nv_cmp_gt_u32 vcc, 2, v44\ns_nop 0\ns_cbranch_vccnz {Lv}\ns_branch {Lvb}")
        self.stamp(8)
        lg.q = []
        vread(0); vread(1)
        first = True
        def pv(i, s):
            nonlocal first
            lg.wait(("v", i, s))
            P(MF32(AQ, WF + 8*(i & 3) + 4*s, S(order[i]) + 8*s, "0" if first else AQ)); first = False
        for i in range(9):
            b = S(order[i])
            for h in range(2):
                for k in range(8):
                    P(f"v_exp_f32 v{b+8*h+k}, v{b+8*h+k}")
                    if k == 1:
                        if h == 0 and i > 0: pv(i - 1, 1)
                        if h == 1: pv(i, 0)
                    if k == 5 and h == 0 and i + 2 < 9:
                        P(MF32(S(order[i+2]), ONE, NM, S(order[i+2])))
                    if k == 5 and h == 1 and i + 2 < 9: vread(i + 2)
                for k in range(4): P(f"v_cvt_pk_bf16_f32 v{b+8*h+k}, v{b+8*h+2*k}, v{b+8*h+2*k+1}")
        pv(8, 1)
        P(f"v_mov_b32 v40, v{AQ+12}\nv_mov_b32 v41, v{AQ+12}\nv_permlane32_swap_b32 v40, v41\nv_rcp_f32 v41, v41")
        for a in range(4):
            for k in range(4): P(f"v_mul_f32 v{AQ+4*a+k}, v{AQ+4*a+k}, v41")
            for k in range(2): P(f"v_cvt_pk_bf16_f32 v{QF+2*a+k}, v{AQ+4*a+2*k}, v{AQ+4*a+2*k+1}")
            if a == 3: P("s_mov_b32 exec_hi, 0")
            P(f"buffer_store_dwordx2 {vr(QF+2*a,2)}, v{vOS}, {sr(sWS,4)}, s{sOO} offen offset:{512*a} sc1")
        self.stamp(9)
        P(f"s_mov_b32 s{sT0}, {WS_OF:#x}\ns_mul_i32 s{sT1}, s{sRT}, {2*28672}\ns_add_u32 s{sT1}, s{sT1}, {WS_O:#x}\ns_add_u32 s{sT2}, s{sT1}, 28672")
        P(f"s_waitcnt vmcnt(0)")
        self.flag_store(vZ, vNON, sWS, sOFo)
        P(f"s_cmp_eq_u32 s{sP}, 7\ns_cbranch_scc1 L_g1end")
        self.poll([(vOP, 0)], 44, sT0)
        for q in range(7):
            for r_ in range(2):
                P(f"s_add_u32 m0, s{sT4}, {L_O(q) + r_*4096}\ns_nop 0\nbuffer_load_dwordx4 v{vDA}, {sr(sWS,4)}, s{sT1+r_} offen sc1 lds\ns_add_u32 s{sT1+r_}, s{sT1+r_}, 4096")
        for q in range(7):
            P(f"s_waitcnt vmcnt({12-2*q})\ns_barrier")
        P("L_g1end:")
        self.stamp_out()
        P("L_end:\ns_endpgm")

    def build(self):
        self.prologue(); self.g2(); self.g1()
        body, pad = pad_hazards(self.P.lines + self.tail.lines)
        hdr = open(os.path.join(os.path.dirname(os.path.abspath(__file__)), "header.txt")).read()
        s = hdr + "; @launch grid=(256,1,1) block=(512,1,1) lds=163840\n"
        s += '.amdgcn_target "amdgcn-amd-amdhsa--gfx950"\n.text\n'
        s += f".globl {NAME}\n.p2align 8\n.type {NAME},@function\n{NAME}:\n"
        s += "\n".join(("" if l.endswith(":") else "    ") + l for l in body) + "\nL_codeend:\n    s_endpgm\n"
        s += f""".section .rodata,"a"
.p2align 6
.amdhsa_kernel {NAME}
  .amdhsa_next_free_vgpr 256
  .amdhsa_next_free_sgpr 102
  .amdhsa_accum_offset 256
  .amdhsa_group_segment_fixed_size 0
  .amdhsa_kernarg_size 88
  .amdhsa_user_sgpr_count 2
  .amdhsa_user_sgpr_kernarg_segment_ptr 1
  .amdhsa_system_sgpr_workgroup_id_x 1
.end_amdhsa_kernel
"""
        return s, pad

if __name__ == "__main__":
    opts = {}
    out = sys.argv[1]
    for a in sys.argv[2:]:
        k, v = a.split("="); opts[k] = eval(v)
    s, pad = Gen(**opts).build()
    open(out, "w").write(s)
    print("written", out, "pad states", pad, "lines", s.count("\n"))
```

```python
import sys, math, struct, os
sys.path.insert(0, os.path.dirname(os.path.abspath(__file__)))
from asmlib import *

NAME = "concat_heads__spectral_fnet__sliding_block__prompt_kernel"

def f2u(x): return struct.unpack("<I", struct.pack("<f", x))[0]
def fl(x): return f"{f2u(x):#x}"

WS_E = 0
WS_KF, WS_VF, WS_OF, WS_TF = 0x10000, 0x18000, 0x20000, 0x28000
WS_K, WS_V, WS_O, WS_T = 0x100000, 0x2C0000, 0x480000, 0x640000
WS_STAMP = 0x900000
WS_SIZE = 0xA00000
PAIR = 64 * 3584
SL = 8192
def L_X(q): return 2 * q * SL
def L_WK(q): return (2 * q + 1) * SL
def L_WV(q): return (14 + q) * SL if q < 6 else 0
L_XA = 1 * SL
def L_WQ(q): return (5 + q) * SL
L_KT = 13 * SL
L_VT = 0
L_FLAG = 13 * SL + 35840
L_TS = 18 * SL
L_OUT = 12 * SL
def L_O(q): return q * SL if q < 5 else (13 + q - 5) * SL
sNONCE = 6
sXB, sW, sWKV, sXA, sWO, sOUT, sWS, sWSKV = 20, 24, 28, 32, 36, 40, 44, 48
sU, sRT, sP, sS2, sEG, sR, sCI, sWV = 52, 53, 54, 55, 56, 57, 58, 59
sSX, sSW = 60, 67
sT0, sT1, sT2, sT3, sT4, sT5 = 74, 75, 76, 77, 78, 79
sSTAMP = 80
NSTAMP = 11
SPIN = 1 << 14
NEG = fl(-1e30)

class Cnt:
    def __init__(self, prog, name, maxn):
        self.p, self.name, self.maxn = prog, name, maxn
        self.q = []
    def add(self, tag=None): self.q.append(tag)
    def wait(self, tag, emit=None):
        idx = [i for i, t in enumerate(self.q) if t == tag]
        if not idx: return
        n = len(self.q) - 1 - idx[-1]
        n = min(n, self.maxn)
        (emit or self.p)(f"s_waitcnt {self.name}({n})")
        self.q = self.q[len(self.q) - n:] if n else []
    def all(self, emit=None):
        (emit or self.p)(f"s_waitcnt {self.name}(0)"); self.q = []

def srd(P, d, lo, nrec):
    P(f"s_mov_b32 s{d}, s{lo}\ns_mov_b32 s{d+1}, s{lo+1}\ns_mov_b32 s{d+2}, {nrec:#x}\ns_mov_b32 s{d+3}, 0x20000")

def MF32(d, a, b, c): return f"v_mfma_f32_32x32x16_bf16 {vr(d,16)}, {vr(a,4)}, {vr(b,4)}, {c if isinstance(c,str) else vr(c,16)}"
def MF16(d, a, b, c): return f"v_mfma_f32_16x16x32_bf16 {vr(d,4)}, {vr(a,4)}, {vr(b,4)}, {c if isinstance(c,str) else vr(c,4)}"

class Gen:
    def __init__(self, **o):
        self.o = dict(stamps=False, win=14, fill0=330, fillk=34, fillv=12, rot=True, codepf=True)
        self.o.update(o)
        self.P = Prog()
        self.tail = Prog()

    def stamp(self, name):
        if not self.o["stamps"]: return
        if name == 0: self.P(f"s_memtime {sr(sSTAMP, 2)}"); return
        for lst in self.o["stamps"].split("|"):
            l = lst.split(",")
            if name in l: self.P(f"s_memtime {sr(sSTAMP + 2*(1+l.index(name)), 2)}")

    def stamp_out(self):
        if not self.o["stamps"]: return
        P = self.P
        P(f"s_waitcnt vmcnt(0)\ns_memtime {sr(sSTAMP+16,2)}\ns_memrealtime {sr(sSTAMP+18,2)}\ns_waitcnt lgkmcnt(0)\ns_mov_b64 exec, 1")
        if self.o.get("enc") is not None:
            k = self.o["enc"]; L = P.label("enc"); D = P.label("encd")
            P(f"s_cmp_lg_u32 s{sWV}, {self.o['encwv']}\ns_cbranch_scc1 {D}\ns_cmp_eq_u32 s{sP}, 7\ns_cbranch_scc1 {D}")
            if self.o.get("encwg", -1) >= 0: P(f"s_cmp_lg_u32 s2, {self.o['encwg']}\ns_cbranch_scc1 {D}")
            if k == 9: P(f"s_sub_u32 s3, s{sSTAMP+18}, s{sSTAMP+20}\ns_lshl_b32 s3, s3, 2")
            else: P(f"s_sub_u32 s3, s{sSTAMP+2*k}, s{sSTAMP}\ns_lshr_b32 s3, s3, 2")
            P(f"s_min_u32 s3, s3, 50000\ns_add_u32 s3, s3, 5000")
            P(f"{L}:\ns_memrealtime s[4:5]\ns_waitcnt lgkmcnt(0)\ns_sub_u32 s4, s4, s{sSTAMP+20}\ns_cmp_lt_u32 s4, s3\ns_cbranch_scc1 {L}\n{D}:")
            return
        for i in range(NSTAMP): P(f"v_mov_b32 v{4+i}, s{sSTAMP+2*i}")
        P(f"s_getreg_b32 s3, hwreg(HW_REG_XCC_ID)\nv_mov_b32 v15, s3")
        P(f"s_lshl_b32 s3, s2, 3\ns_add_u32 s3, s3, s{sWV}\ns_lshl_b32 s3, s3, 6\ns_add_u32 s3, s3, {WS_STAMP:#x}\nv_mov_b32 v1, 0")
        for k in range(3): P(f"buffer_store_dwordx4 v[{4+4*k}:{7+4*k}], v1, {sr(sWS,4)}, s3 offen offset:{16*k}")

    def tr_addr(self, dst, t0, t1, perm, sbase):
        P = self.P
        P(f"v_bfe_u32 v{t0}, v0, 4, 1\nv_lshlrev_b32 v{t0}, 5, v{t0}")
        if perm:
            P(f"v_and_b32 v{t1}, 1, v0\nv_lshl_add_u32 v{t0}, v{t1}, 4, v{t0}")
            P(f"v_bfe_u32 v{t1}, v0, 1, 1\nv_lshl_add_u32 v{t0}, v{t1}, 3, v{t0}")
        else:
            P(f"v_and_b32 v{t1}, 3, v0\nv_lshl_add_u32 v{t0}, v{t1}, 3, v{t0}")
        P(f"v_add_u32 v{t0}, s{sbase}, v{t0}")
        P(f"v_bfe_u32 v{t1}, v0, 3, 1\nv_lshlrev_b32 v{t1}, 6, v{t1}\nv_xor_b32 v{t0}, v{t0}, v{t1}")
        P(f"v_bfe_u32 v{t1}, v0, 2, 2\nv_lshl_add_u32 v{t0}, v{t1}, 7, v{t0}")
        P(f"v_lshrrev_b32 v{t1}, 5, v0\nv_lshl_add_u32 v{dst}, v{t1}, 10, v{t0}")

    def poll(self, addrs, vt, sbase, first_issued=False, first_wait=None):
        P = self.P
        L, D, C = P.label("poll"), P.label("polld"), P.label("pollc")
        P(f"s_mov_b32 s{sT5}, 0")
        if first_issued:
            P(first_wait); P(f"s_branch {C}")
        P(f"{L}:")
        for k, (va, imm) in enumerate(addrs):
            P(f"buffer_load_dword v{vt+k}, v{va}, {sr(sWS,4)}, s{sbase} offen offset:{imm} sc1")
        P(f"s_add_u32 s{sT5}, s{sT5}, 1\ns_cmp_gt_u32 s{sT5}, {SPIN}\ns_cbranch_scc1 {D}\ns_waitcnt vmcnt(0)")
        P(f"{C}:")
        for k in range(len(addrs)):
            P(f"v_cmp_ne_u32 vcc, s{sNONCE}, v{vt+k}\ns_cbranch_vccnz {L}")
        P(f"{D}:")

    def lds_wait(self, vflag, idx, val, vt):
        P = self.P
        L = P.label("lw")
        P(f"{L}:\nds_read_b32 v{vt}, v{vflag} offset:{4*idx}\ns_waitcnt lgkmcnt(0)\nv_cmp_gt_u32 vcc, {val}, v{vt}\ns_cbranch_vccnz {L}")

    def lds_signal(self, vflag, idx, vt):
        self.P(f"v_mov_b32 v{vt}, 1\ns_mov_b64 exec, 1\nds_add_u32 v{vflag}, v{vt} offset:{4*idx}\ns_mov_b64 exec, -1")

    def flag_store(self, vzero, vnonce, srdn, soff):
        self.P(f"s_mov_b64 exec, 1\nbuffer_store_dword v{vnonce}, v{vzero}, {sr(srdn,4)}, s{soff} offen sc1\ns_mov_b64 exec, -1")

    def kv_poll_addr(self, dst, t0, t1):
        P = self.P
        P(f"v_lshrrev_b32 v{t0}, 3, v0\nv_min_u32 v{t0}, 4, v{t0}\ns_sub_u32 s3, s{sRT}, 4\nv_add_u32 v{t0}, s3, v{t0}\nv_max_i32 v{t0}, 0, v{t0}")
        P(f"v_bfe_u32 v{t1}, v0, 2, 1\ns_sub_u32 s3, s{sP}, 1\nv_add_u32 v{t1}, s3, v{t1}\nv_med3_i32 v{t1}, v{t1}, 0, 6")
        P(f"v_lshl_add_u32 v{t0}, v{t0}, 3, v{t1}\nv_lshlrev_b32 v{t0}, 7, v{t0}\nv_and_b32 v{t1}, 3, v0\nv_lshl_add_u32 v{dst}, v{t1}, 2, v{t0}")

    def out_epilogue(self, acc, pk, vwr, vrd, vg0, vg1, soff, mod):
        P = self.P
        for i in range(8): P(f"v_cvt_pk_bf16_f32 v{pk+i}, v{acc+2*i}, v{acc+2*i+1}")
        P(f"ds_write_b128 v{vwr}, {vr(pk,4)}\nds_write_b128 v{vwr+1}, {vr(pk+4,4)}")
        P(f"s_waitcnt lgkmcnt(0)")
        P(f"ds_read_b128 {vr(pk,4)}, v{vrd}\nds_read_b128 {vr(pk+4,4)}, v{vrd} offset:1024")
        P(f"s_waitcnt lgkmcnt(1)\nbuffer_store_dwordx4 {vr(pk,4)}, v{vg0}, {sr(sOUT,4)}, {soff} offen {mod}")
        P(f"s_waitcnt lgkmcnt(0)\nbuffer_store_dwordx4 {vr(pk+4,4)}, v{vg1}, {sr(sOUT,4)}, {soff} offen {mod}")

    def prologue(self):
        P = self.P
        P(f"s_cmp_ge_u32 s2, 256\ns_cbranch_scc1 L_end")
        P(f"s_load_dwordx8 s[8:15], s[0:1], 40\ns_load_dwordx4 s[16:19], s[0:1], 72\ns_load_dwordx2 s[4:5], s[0:1], 0")
        if self.o["stamps"]:
            P(f"s_memrealtime {sr(sSTAMP + 2*(NSTAMP-1), 2)}")
        self.stamp(0)
        P(f"v_lshrrev_b32 v1, 6, v0\nv_and_b32 v0, 63, v0\nv_readfirstlane_b32 s{sWV}, v1")
        P(f"s_and_b32 s3, s2, 7\ns_lshr_b32 s7, s2, 3\ns_and_b32 s{sP}, s7, 7\ns_lshr_b32 s{sT0}, s7, 3")
        P(f"s_lshl_b32 s{sRT}, s3, 2\ns_add_u32 s{sRT}, s{sRT}, s{sT0}")
        P(f"s_and_b32 s{sU}, s{sWV}, 3\ns_and_b32 s{sR}, s{sU}, 1\ns_lshr_b32 s{sCI}, s{sU}, 1")
        P(f"s_cmp_lt_u32 s{sWV}, 4\ns_cbranch_scc1 L_g2")
        if self.o["codepf"]:
            P(f"s_getpc_b64 s[{sT2}:{sT3}]\nL_pc:")
            P(f"s_lshl_b32 s{sT1}, s{sU}, 13\nv_lshl_add_u32 v2, v0, 7, s{sT1}\nv_min_u32 v2, L_codeend-L_pc-4, v2")
            P(f"v_mov_b32 v3, s{sT3}\nv_add_co_u32 v2, vcc, s{sT2}, v2\nv_addc_co_u32 v3, vcc, 0, v3, vcc")
            P(f"global_load_dword v46, v[2:3], off")
        P(f"s_branch L_g1")
        P(f"L_g2:")

    def const_stream(self):
        F = []
        vE, vB, vA, vC, vS = 12, 13, 40, 42, 52
        CC, SS = 144, 200
        F += [f"s_lshl_b32 s3, s{sEG}, 6", f"s_lshl_b32 s7, s{sU}, 4", f"s_add_u32 s3, s3, s7",
              f"v_and_b32 v{vA}, 15, v0", f"v_add_u32 v{vA}, s3, v{vA}", f"v_cvt_f32_u32 v{vA}, v{vA}",
              f"v_mul_f32 v{vE}, {fl(1/448)}, v{vA}",
              f"v_lshrrev_b32 v{vA}, 4, v0", f"v_cvt_f32_u32 v{vA+1}, v{vA}", f"v_mul_f32 v14, 4.0, v{vA+1}",
              f"v_add_f32 v{vA+1}, v14, v14", f"v_mul_f32 v{vB}, v{vE}, v{vA+1}"]
        for ks in range(7):
            for j in range(9):
                a = vA + (j & 1)
                F.append(f"v_fmamk_f32 v{a}, v{vE}, {fl(32*ks+j)}, v{vB}")
                F.append(f"v_cos_f32 v{vC+j}, v{a}")
                F.append(f"v_sin_f32 v{vS+j}, v{a}")
            km = 13 - ks
            for jj in range(4):
                F.append(f"v_cvt_pk_bf16_f32 v{CC+4*ks+jj}, v{vC+2*jj}, v{vC+2*jj+1}")
                F.append(f"v_cvt_pk_bf16_f32 v{SS+4*ks+jj}, v{vS+2*jj}, v{vS+2*jj+1}")
            for jj in range(4):
                F.append(f"v_cvt_pk_bf16_f32 v{CC+4*km+jj}, v{vC+8-2*jj}, v{vC+7-2*jj}")
                F.append(f"v_cvt_pk_bf16_f32 v{SS+4*km+jj}, -v{vS+8-2*jj}, -v{vS+7-2*jj}")
        for nt in range(2):
            F += [f"v_and_b32 v{vA}, 15, v0", f"v_add_u32 v{vA}, {16*nt}, v{vA}", f"v_cvt_f32_u32 v{vA}, v{vA}",
                  f"v_mul_f32 v{vE}, {fl(1/32)}, v{vA}", f"v_mul_f32 v{vB}, v{vE}, v14"]
            for j in range(8):
                a = vA + (j & 1)
                F.append(f"v_fmamk_f32 v{a}, v{vE}, {fl(16*(j>>2)+(j&3))}, v{vB}")
                F.append(f"v_cos_f32 v{vC+j}, v{a}")
                F.append(f"v_sin_f32 v{vS+j}, v{a}")
            for jj in range(4):
                F.append(f"v_cvt_pk_bf16_f32 v{96+4*nt+jj}, v{vC+2*jj}, v{vC+2*jj+1}")
                F.append(f"v_cvt_pk_bf16_f32 v{104+4*nt+jj}, v{vS+2*jj}, v{vS+2*jj+1}")
        F += [f"v_and_b32 v{vA}, 15, v0", f"v_lshrrev_b32 v{vA+1}, 1, v{vA}", f"v_lshlrev_b32 v{vA}, 7, v{vA}",
              f"v_add_u32 v{vA}, {L_XA}, v{vA}",
              f"v_lshrrev_b32 v{vC}, 4, v0", f"v_xor_b32 v{vC}, v{vC}, v{vA+1}",
              f"v_lshl_add_u32 v8, v{vC}, 4, v{vA}", f"v_xor_b32 v9, 64, v8", f"v_xor_b32 v10, 48, v8", f"v_xor_b32 v11, 64, v10"]
        F += [f"s_lshl_b32 s3, s{sR}, 10", f"s_add_u32 s3, s3, s{sRT}",
              f"v_and_b32 v{vA}, 31, v0", f"v_lshl_add_u32 v{vA}, v{vA}, 5, s3", f"v_cvt_f32_u32 v{vA}, v{vA}",
              f"v_mul_f32 v{vE}, {fl(1/2048)}, v{vA}",
              f"v_lshrrev_b32 v{vA}, 5, v0", f"v_cvt_f32_u32 v{vA}, v{vA}", f"v_mul_f32 v{vA}, 4.0, v{vA}", f"v_mul_f32 v{vB}, v{vE}, v{vA}"]
        for s in range(8):
            for jj in range(4):
                a = vA + (jj & 1)
                F.append(f"v_fmamk_f32 v{a}, v{vE}, {fl(8*s+jj)}, v{vB}")
                F.append(f"v_cos_f32 v{vC+jj}, v{a}")
                F.append(f"v_sin_f32 v{vS+jj}, v{a}")
            for jj in range(4):
                F.append(f"v_cvt_pk_bf16_f32 v{112+4*s+jj}, v{vC+jj}, -v{vS+jj}")
        return F

    def g2(self):
        P = self.P; o = self.o
        vx0, vx1, vw0, vw1, vq0, vq1, vxa = 1, 2, 3, 4, 5, 6, 7
        P(f"s_lshl_b32 s{sT1}, s{sU}, 3\nv_lshrrev_b32 v16, 3, v0\nv_add_u32 v16, s{sT1}, v16")
        P(f"v_lshrrev_b32 v17, 1, v16\nv_xor_b32 v17, v17, v0\nv_and_b32 v17, 7, v17\nv_lshlrev_b32 v17, 4, v17")
        P(f"v_mul_u32_u24 v{vx0}, 896, v16\nv_add_u32 v{vx0}, v{vx0}, v17\nv_add_u32 v{vx1}, {32*896}, v{vx0}")
        P(f"v_bfe_u32 v18, v0, 4, 1\nv_lshlrev_b32 v18, 2, v18\nv_xor_b32 v18, v18, v0\nv_and_b32 v18, 7, v18")
        P(f"v_mul_u32_u24 v19, 2688, v16\ns_lshl_b32 s{sT1}, s{sP}, 7\ns_add_u32 s{sT1}, s{sT1}, 896")
        P(f"v_lshl_add_u32 v{vw0}, v18, 4, v19\nv_add_u32 v{vw0}, s{sT1}, v{vw0}\nv_add_u32 v{vw1}, {32*2688}, v{vw0}")
        if o["rot"]:
            P(f"s_lshl_b32 s{sT0}, s{sT0}, 1\ns_add_u32 s{sT0}, s{sT0}, s{sP}\ns_sub_u32 s{sT1}, s{sT0}, 7\ns_cselect_b32 s{sT0}, s{sT0}, s{sT1}")
        else:
            P(f"s_mov_b32 s{sT0}, 0")
        P(f"s_mul_i32 s{sT2}, s{sRT}, {64*896}")
        for q in range(7):
            P(f"s_lshl_b32 s{sT1}, s{sT0}, 7\ns_add_u32 s{sSX+q}, s{sT1}, s{sT2}\ns_mul_i32 s{sSW+q}, s{sT0}, {64*2688}")
            if q < 6: P(f"s_add_u32 s{sT0}, s{sT0}, 1\ns_cmp_eq_u32 s{sT0}, 7\ns_cselect_b32 s{sT0}, 0, s{sT0}")
        P(f"s_lshl_b32 s{sT4}, s{sU}, 10")
        P(f"s_lshl_b32 s{sS2}, s3, 3\ns_lshr_b32 s{sT1}, s7, 2\ns_add_u32 s{sS2}, s{sS2}, s{sT1}\ns_and_b32 s{sEG}, s7, 3")
        P(f"s_cmp_eq_u32 s{sP}, 7\ns_cselect_b32 s{sWKV+2}, 0, {448*2688:#x}")
        P(f"s_mov_b32 s{sWKV+3}, 0x20000\ns_mov_b32 s{sXB+2}, {2048*896:#x}\ns_mov_b32 s{sXB+3}, 0x20000")
        self.stamp("pre")
        P(f"s_waitcnt lgkmcnt(0)")
        self.stamp("karg")
        P(f"s_mov_b32 s{sXB}, s8\ns_mov_b32 s{sXB+1}, s9\ns_mov_b32 s{sWKV}, s10\ns_mov_b32 s{sWKV+1}, s11")
        dm = []
        def dma(lds, va, srdn, soff, imm=0):
            t = [f"s_add_u32 m0, s{sT4}, {lds - imm}",
                 f"buffer_load_dwordx4 v{va}, {sr(srdn,4)}, s{soff} offen" + (f" offset:{imm}" if imm else "") + " lds"]
            dm.append((lds, t))
        for q in range(7):
            dma(L_X(q), vx0, sXB, sSX + q); dma(L_WK(q), vw0, sWKV, sSW + q)
            dma(L_X(q) + 4096, vx1, sXB, sSX + q); dma(L_WK(q) + 4096, vw1, sWKV, sSW + q)
        for q in range(7):
            dma(L_WV(q), vw0, sWKV, sSW + q); dma(L_WV(q) + 4096, vw1, sWKV, sSW + q)
        for q in range(7):
            dma(L_XA + q * 4096, vxa, sXA, sT3, q * 128)
        for q in range(7):
            dma(L_WQ(q), vq0, sW, sSW + q); dma(L_WQ(q) + 4096, vq1, sW, sSW + q)
        need_ = [4 * (q + 1) for q in range(7)] + [28 + 2 * (q + 1) for q in range(7)] + [49]
        first_read = {}
        for q in range(7): first_read[2 * q] = q; first_read[2 * q + 1] = q
        F = [f"s_load_dword s{sNONCE}, s[18:19], {WS_E}"]
        F += [f"s_mov_b32 s{sW}, s10", f"s_mov_b32 s{sW+1}, s11", f"s_mov_b32 s{sW+2}, {448*2688:#x}", f"s_mov_b32 s{sW+3}, 0x20000",
              f"s_mov_b32 s{sXA}, s4", f"s_mov_b32 s{sXA+1}, s5", f"s_mov_b32 s{sXA+2}, {2048*896:#x}", f"s_mov_b32 s{sXA+3}, 0x20000",
              f"s_mov_b32 s{sWS}, s18", f"s_mov_b32 s{sWS+1}, s19", f"s_mov_b32 s{sWS+2}, {WS_SIZE:#x}", f"s_mov_b32 s{sWS+3}, 0x20000",
              f"s_mov_b32 s{sWO}, s12", f"s_mov_b32 s{sWO+1}, s13", f"s_mov_b32 s{sWO+2}, {448*896:#x}", f"s_mov_b32 s{sWO+3}, 0x20000",
              f"s_mov_b32 s{sOUT}, s14", f"s_mov_b32 s{sOUT+1}, s15", f"s_mov_b32 s{sOUT+2}, {2048*1792:#x}", f"s_mov_b32 s{sOUT+3}, 0x20000",
              f"s_mul_i32 s{sT3}, s{sS2}, 896",
              f"v_mul_u32_u24 v{vxa}, {64*896}, v16", f"v_add_u32 v{vxa}, v{vxa}, v17",
              f"v_min_u32 v20, 6, v18", f"s_mul_i32 s3, s{sP}, 112", f"v_lshl_add_u32 v{vq0}, v20, 4, v19", f"v_add_u32 v{vq0}, s3, v{vq0}",
              f"v_add_u32 v{vq1}, {32*2688}, v{vq0}"]
        F += self.const_stream()
        fi = 0
        def fill(n):
            nonlocal fi
            for l in F[fi:fi + n]: P(l)
            fi = min(len(F), fi + n)
        issued = 0
        for b, nd in enumerate(need_):
            tgt = min(len(dm), nd + o["win"] - (4 if b < 7 else 2))
            if b == len(need_) - 1: tgt = len(dm)
            budget = o["fill0"] if b == 0 else (o["fillk"] if b <= 7 else o["fillv"])
            nnew = tgt - issued
            per = budget // max(nnew, 1) if b > 0 else 0
            while issued < tgt:
                lds, t = dm[issued]
                if issued >= 28 and (lds // SL) in first_read:
                    assert b >= first_read[lds // SL] + 3, ("WAR", issued, b)
                if issued == 28: P(f"v_add_u32 v{vw0}, 896, v{vw0}\nv_add_u32 v{vw1}, 896, v{vw1}")
                P(t[0])
                if per: fill(1)
                P(t[1]); issued += 1; self.stamp(f"d{issued}")
                if per > 1: fill(per - 1)
                budget -= per
            if b == 0: self.stamp("dma0")
            fill(budget if b < len(need_) - 1 else len(F))
            self.stamp(f"f{b}")
            P(f"s_waitcnt vmcnt({issued - nd})")
            self.stamp(f"w{b}")
            P("s_barrier")
            self.stamp(f"b{b}")
        assert fi == len(F)
        self.stamp("bx")
        CC, SS, ZC, ZS, XF = 144, 200, 64, 72, 40
        lg = Cnt(P, "lgkmcnt", 15)
        P("s_waitcnt lgkmcnt(0)")
        P(f"s_mul_i32 s{sNONCE}, s{sNONCE}, 0x9E3779B1\ns_add_u32 s{sNONCE}, s{sNONCE}, 0x7FEB352D")
        def xread(ks):
            a = 8 + (2 if ks >= 7 else 0) + (ks & 1)
            for mt in range(2):
                P(f"ds_read_b128 {vr(XF + 8*(ks%3) + 4*mt, 4)}, v{a} offset:{(ks>>1)*4096 + mt*2048}"); lg.add(("x", ks))
        xread(0); xread(1)
        for ks in range(14):
            lg.wait(("x", ks))
            x = XF + 8 * (ks % 3)
            c = (lambda r: "0" if ks == 0 else r)
            P(MF16(ZC, x, CC + 4*ks, c(ZC)))
            P(MF16(ZS, x, SS + 4*ks, c(ZS)))
            if ks + 2 < 14: xread(ks + 2)
            P(MF16(ZC + 4, x + 4, CC + 4*ks, c(ZC + 4)))
            P(MF16(ZS + 4, x + 4, SS + 4*ks, c(ZS + 4)))
        self.stamp("a1")
        P(f"s_waitcnt vmcnt(6)")
        self.stamp("wqa")
        P("s_barrier")
        self.stamp("bqa")
        vFL, vNON, vZ = 15, 16, 17
        P(f"v_mov_b32 v{vFL}, {L_FLAG}\nv_mov_b32 v{vNON}, s{sNONCE}\nv_mov_b32 v{vZ}, 0")
        P(f"v_and_b32 v18, 15, v0\nv_lshrrev_b32 v19, 4, v0\nv_lshlrev_b32 v20, 8, v18\nv_lshl_add_u32 v20, v19, 4, v20")
        P(f"s_lshl_b32 s3, s{sU}, 6\ns_add_u32 s3, s3, {L_TS}\nv_add_u32 v20, s3, v20")
        ZR, ZP, ZN, TA = 80, 84, 88, 40
        for i in range(4): P(f"v_cvt_pk_bf16_f32 v{ZR+i}, v{ZC+2*i}, v{ZC+2*i+1}")
        for i in range(4): P(f"v_cvt_pk_bf16_f32 v{ZP+i}, v{ZS+2*i}, v{ZS+2*i+1}")
        for i in range(4): P(f"v_cvt_pk_bf16_f32 v{ZN+i}, -v{ZS+2*i}, -v{ZS+2*i+1}")
        for nt in range(2):
            P(MF16(TA + 8*nt, ZR, 96 + 4*nt, "0")); P(MF16(TA + 8*nt + 4, ZR, 104 + 4*nt, "0"))
        for nt in range(2):
            P(MF16(TA + 8*nt, ZN, 104 + 4*nt, TA + 8*nt)); P(MF16(TA + 8*nt + 4, ZP, 96 + 4*nt, TA + 8*nt + 4))
        self.kv_poll_addr(21, 22, 23)
        for nt in range(2):
            for r_ in range(4): P(f"v_cvt_pk_bf16_f32 v{56+4*nt+r_}, v{TA+8*nt+r_}, v{TA+8*nt+4+r_}")
            P(f"ds_write_b128 v20, {vr(56+4*nt,4)} offset:{4096*nt}")
        P(f"s_waitcnt vmcnt(0) lgkmcnt(0)\ns_barrier")
        self.stamp("bqb")
        P(f"s_cmp_eq_u32 s{sU}, 0\ns_cbranch_scc1 L_roleT\ns_cmp_eq_u32 s{sU}, 2\ns_cbranch_scc1 L_roleW")
        P(f"s_mov_b32 s{sT0}, {WS_VF:#x}")
        P(f"buffer_load_dword v22, v21, {sr(sWS,4)}, s{sT0} offen sc1")
        P(f"v_mov_b32 v24, 0x3f803f80\nv_mov_b32 v25, v24\nv_mov_b32 v26, v24\nv_mov_b32 v27, v24")
        P(f"v_min_u32 v23, 39, v0\nv_lshlrev_b32 v23, 10, v23\ns_lshl_b32 s3, s{sCI}, 6\nv_add_u32 v23, s3, v23")
        P(f"ds_write_b128 v23, v[24:27] offset:{L_VT + 896}")
        P(f"s_mul_i32 s3, s{sCI}, 3584\nv_lshl_add_u32 v23, v0, 4, s3\ns_lshl_b32 s{sT4}, s{sCI}, 12")
        P(f"s_mul_i32 s{sT1}, s{sP}, {PAIR}\ns_add_u32 s{sT1}, s{sT1}, {WS_V:#x}")
        for n in range(5):
            P(f"s_sub_i32 s3, s{sRT}, {4-n}\ns_max_i32 s3, s3, 0\ns_mul_i32 s3, s3, 7168\ns_add_u32 s{sSX+n}, s3, s{sT1}")
        self.poll([(21, 0)], 22, sT0, True, "s_waitcnt vmcnt(0)")
        self.stamp("role")
        P(f"s_mov_b32 exec_hi, 0x00ffffff")
        for n in (4, 0, 1, 2, 3):
            for z in range(4):
                P(f"s_add_u32 m0, s{sT4}, {L_VT + n*8192 + z*128}")
                P(f"buffer_load_dwordx4 v23, {sr(sWS,4)}, s{sSX+n} offen offset:{896*z} sc1 lds")
        P(f"s_mov_b64 exec, -1\ns_waitcnt vmcnt(0) lgkmcnt(0)")
        self.lds_signal(vFL, 1, 22)
        P(f"s_branch L_rolesdone")
        P(f"L_roleW:")
        P(f"s_cmp_eq_u32 s{sP}, 7\ns_cbranch_scc1 L_g2end")
        P(f"v_lshrrev_b32 v22, 3, v0\nv_mul_u32_u24 v22, 896, v22\nv_bfe_u32 v23, v0, 4, 1\nv_lshlrev_b32 v23, 2, v23\nv_xor_b32 v23, v23, v0\nv_and_b32 v23, 7, v23")
        P(f"v_lshl_add_u32 v22, v23, 4, v22\ns_lshl_b32 s{sT0}, s{sP}, 7\ns_mov_b32 s{sT1}, {L_WQ(0)}")
        self.lds_wait(vFL, 0, 4, 23)
        self.stamp("role")
        Lw = P.label("wo")
        P(f"{Lw}:")
        for z in range(8):
            P(f"s_add_u32 m0, s{sT1}, {z*1024}\ns_nop 0\nbuffer_load_dwordx4 v22, {sr(sWO,4)}, s{sT0} offen lds\ns_add_u32 s{sT0}, s{sT0}, 7168")
        P(f"s_add_u32 s{sT1}, s{sT1}, {SL}\ns_cmp_lt_u32 s{sT1}, {L_WQ(7)}\ns_cbranch_scc1 {Lw}")
        P(f"s_waitcnt vmcnt(0)")
        self.lds_signal(vFL, 2, 22)
        P(f"s_branch L_rolesdone")
        P(f"L_roleT:")
        P(f"v_lshlrev_b32 v22, 4, v0\nv_add_u32 v22, {L_TS}, v22")
        for n in range(8): P(f"ds_read_b128 {vr(40+4*n,4)}, v22 offset:{1024*n}")
        P(f"v_lshlrev_b32 v23, 4, v18\nv_lshl_add_u32 v24, v19, 16, v23\nv_lshl_add_u32 v25, v19, 10, v23")
        P(f"s_lshl_b32 s{sT0}, s{sS2}, 10\ns_lshl_b32 s3, s{sEG}, 8\ns_add_u32 s{sT0}, s{sT0}, s3\ns_add_u32 s{sT0}, s{sT0}, {WS_T:#x}")
        for n in range(8):
            P(f"s_waitcnt lgkmcnt({7-n})\nbuffer_store_dwordx4 {vr(40+4*n,4)}, v24, {sr(sWS,4)}, s{sT0} offen sc1\ns_add_u32 s{sT0}, s{sT0}, {4*65536}")
        P(f"s_lshl_b32 s3, s{sEG}, 3\ns_lshr_b32 s7, s{sS2}, 3\ns_add_u32 s3, s3, s7\ns_lshl_b32 s3, s3, 7\ns_and_b32 s7, s{sS2}, 7\ns_lshl_b32 s7, s7, 2")
        P(f"s_add_u32 s3, s3, s7\ns_add_u32 s{sT0}, s3, {WS_TF:#x}")
        P(f"v_lshrrev_b32 v26, 3, v0\nv_lshlrev_b32 v26, 7, v26\nv_and_b32 v27, 7, v0\nv_lshl_add_u32 v26, v27, 2, v26")
        P(f"s_waitcnt vmcnt(0)")
        self.flag_store(vZ, vNON, sWS, sT0)
        self.stamp("role")
        P(f"s_cmp_eq_u32 s{sP}, 7\ns_cbranch_scc1 L_epoch")
        P(f"s_lshr_b32 s3, s{sP}, 1\ns_lshl_b32 s3, s3, 10\ns_add_u32 s{sT0}, s3, {WS_TF:#x}")
        P(f"s_and_b32 s3, s{sP}, 1\ns_lshl_b32 s3, s3, 10\nv_add_u32 v27, s3, v26")
        P(f"s_lshl_b32 s{sT1}, s{sRT}, 16\ns_lshl_b32 s3, s{sP}, 7\ns_add_u32 s{sT1}, s{sT1}, s3\ns_add_u32 s{sT1}, s{sT1}, {WS_T:#x}")
        P(f"s_waitcnt vmcnt(0)")
        self.poll([(26, 0), (27, 0)], 28, sT0)
        for n in range(16):
            P(f"s_mov_b32 m0, {L_TS + n*1024}\ns_nop 0\nbuffer_load_dwordx4 v25, {sr(sWS,4)}, s{sT1} offen sc1 lds\ns_add_u32 s{sT1}, s{sT1}, 4096")
        P(f"s_waitcnt vmcnt(0)")
        self.lds_signal(vFL, 3, 22)
        P(f"L_rolesdone:")
        P(f"s_cmp_eq_u32 s{sP}, 7\ns_cbranch_scc1 L_g2end")
        self.stamp("roled")
        vTR, vWR, vRD, vGA0, vGA1, vGB0, vGB1, vTA, vOR = 1, 2, 4, 5, 6, 7, 8, 9, 10
        P(f"s_lshl_b32 s{sT0}, s{sCI}, 6")
        self.tr_addr(vTR, 22, 23, True, sT0)
        P(f"v_add_u32 v{vTR}, {L_WQ(0)}, v{vTR}")
        P(f"s_lshl_b32 s3, s{sU}, 11\ns_add_u32 s3, s3, {L_OUT}")
        P(f"v_and_b32 v22, 31, v0\nv_lshrrev_b32 v23, 5, v0\nv_bfe_u32 v24, v0, 1, 2\nv_xor_b32 v24, v24, v23")
        P(f"v_lshl_add_u32 v25, v22, 6, s3\nv_lshl_add_u32 v{vWR}, v24, 4, v25\nv_xor_b32 v{vWR+1}, 32, v{vWR}")
        P(f"v_lshl_add_u32 v{vRD}, v0, 4, s3")
        P(f"s_lshl_b32 s3, s{sR}, 12\nv_lshl_add_u32 v{vOR}, v22, 3, s3\nv_lshl_add_u32 v{vOR}, v23, 9, v{vOR}")
        P(f"v_and_b32 v24, 19, v0\nv_bfe_u32 v25, v0, 2, 1\nv_lshl_add_u32 v24, v25, 3, v24\nv_bfe_u32 v25, v0, 3, 1\nv_lshl_add_u32 v24, v25, 2, v24")
        P(f"v_sub_u32 v25, 32, v24\ns_cmp_eq_u32 s{sCI}, 1\ns_cselect_b64 vcc, -1, 0\nv_cndmask_b32 v24, v24, v25, vcc")
        P(f"v_lshlrev_b32 v24, 2, v24\nv_lshl_add_u32 v24, v23, 10, v24\nv_add_u32 v{vTA}, {L_TS}, v24")
        P(f"v_lshrrev_b32 v24, 2, v0\nv_bfe_u32 v25, v0, 3, 2\nv_xor_b32 v25, v25, v0\nv_and_b32 v25, 3, v25\nv_lshlrev_b32 v25, 4, v25")
        P(f"v_mul_u32_u24 v{vGB0}, 1792, v24\nv_add_u32 v{vGB0}, v{vGB0}, v25\nv_add_u32 v{vGB1}, {16*1792}, v{vGB0}")
        P(f"s_lshl_b32 s3, s{sR}, 10\ns_add_u32 s3, s3, s{sRT}\nv_lshl_add_u32 v26, v24, 5, s3\nv_add_u32 v27, 512, v26")
        for src, dst in ((26, vGA0), (27, vGA1)):
            P(f"v_sub_u32 v28, 0, v{src}\nv_and_b32 v28, 2047, v28\nv_cndmask_b32 v28, v{src}, v28, vcc\nv_mul_u32_u24 v28, 1792, v28\nv_add_u32 v{dst}, v28, v25")
        P(f"s_lshl_b32 s3, s{sP}, 6\ns_sub_u32 s7, 832, s3\ns_cmp_eq_u32 s{sCI}, 1\ns_cselect_b32 s{sT1}, s7, s3")
        P(f"s_lshl_b32 s3, s{sRT}, 1\ns_add_u32 s3, s3, s{sR}\ns_mul_i32 s3, s3, {32*1792}\ns_lshl_b32 s7, s{sP}, 7\ns_add_u32 s3, s3, s7")
        P(f"s_add_u32 s3, s3, s{sT0}\ns_add_u32 s{sT2}, s3, 896")
        self.lds_wait(vFL, 2, 1, 22)
        WF = 144
        for ks in range(28):
            for t in range(2):
                P(f"ds_read_b64_tr_b16 {vr(WF+4*ks+2*t,2)}, v{vTR} offset:{ks*2048 + t*512}")
        self.lds_wait(vFL, 3, 1, 22)
        self.stamp("ft")
        lg = Cnt(P, "lgkmcnt", 15)
        for s in range(8):
            if s == 7: lg.wait(0); P(MF32(64, 32, 112, "0"))
            for t in range(2):
                P(f"ds_read2st64_b32 {vr(32+4*s+2*t,2)}, v{vTA} offset0:{8*s+2*t} offset1:{8*s+2*t+1}"); lg.add(s)
        for s in range(1, 8):
            lg.wait(s); P(MF32(64, 32 + 4*s, 112 + 4*s, 64))
        self.out_epilogue(64, 24, vWR, vRD, vGA0, vGA1, f"s{sT1}", "sc1")
        lg = Cnt(P, "lgkmcnt", 15)
        oa = LdsAddr(P, vOR)
        OF = 32
        for q in range(8):
            if q < 7: P("s_barrier")
            if q == 0: self.stamp("bo0")
            for s in range(4):
                if q > 0:
                    ks = 4 * (q - 1) + s
                    lg.wait((q - 1, s))
                    P(MF32(64, WF + 4*ks, OF + 16*((q-1) & 1) + 4*s, "0" if ks == 0 else 64))
                if q < 7:
                    for t in range(2):
                        off = oa.off(L_O(q) + (4*s + t) * 256)
                        P(f"ds_read_b64 {vr(OF + 16*(q&1) + 4*s + 2*t, 2)}, v{vOR} offset:{off}"); lg.add((q, s))
        self.out_epilogue(64, 24, vWR, vRD, vGB0, vGB1, f"s{sT2}", "sc1")
        P(f"L_g2end:")
        self.stamp_out()
        P("s_endpgm")
        P(f"L_epoch:")
        P(f"s_cmp_lg_u32 s{sRT}, 31\ns_cbranch_scc1 L_g2end")
        P(f"s_mov_b32 s{sT0}, {WS_TF:#x}")
        self.poll([(26, 0), (26, 1024), (26, 2048), (26, 3072)], 28, sT0)
        P(f"s_mov_b32 s{sT0}, {WS_E}")
        self.flag_store(vZ, vNON, sWS, sT0)
        P(f"s_branch L_g2end")

    def g1(self):
        P = self.P; o = self.o
        vXA, vWK, vWV, vWQ, vKS, vVS, vZ, vKP, vDA, vKR, vVR, vOS, vOP, vNON, vFL, vDB = 1, 5, 6, 7, 8, 10, 11, 12, 13, 14, 15, 16, 17, 18, 19, 20
        vSA, vSB = 21, 22
        QF, ONE, NM = 24, 32, 36
        AK, AV, AQ, CD, WF, XF = 48, 64, 80, 96, 112, 144
        P("L_g1:")
        self.stamp("G.in")
        P("s_setprio 1")
        P(f"s_waitcnt lgkmcnt(0)\ns_load_dword s{sNONCE}, s[18:19], {WS_E}")
        srd(P, sWS, 18, WS_SIZE)
        P(f"s_mov_b32 s{sWSKV}, s18\ns_mov_b32 s{sWSKV+1}, s19\ns_cmp_eq_u32 s{sP}, 7\ns_cselect_b32 s{sWSKV+2}, 0, {WS_SIZE:#x}\ns_mov_b32 s{sWSKV+3}, 0x20000")
        P(f"v_and_b32 v40, 31, v0\nv_lshrrev_b32 v41, 5, v0\nv_bfe_u32 v42, v0, 1, 3\nv_xor_b32 v42, v42, v41")
        P(f"s_lshl_b32 s3, s{sR}, 12\nv_lshl_add_u32 v43, v40, 7, s3\nv_lshl_add_u32 v{vXA}, v42, 4, v43")
        for s in range(1, 4): P(f"v_xor_b32 v{vXA+s}, {32*s}, v{vXA}")
        P(f"s_lshl_b32 s{sT0}, s{sCI}, 6")
        self.tr_addr(vWK, 42, 43, True, sT0)
        self.tr_addr(vWV, 42, 43, False, sT0)
        P(f"s_mul_i32 s{sT0}, s{sCI}, 48")
        self.tr_addr(vWQ, 42, 43, True, sT0)
        sG = sSW
        P(f"s_lshl_b32 s{sG}, s{sRT}, 1\ns_add_u32 s{sG}, s{sG}, s{sR}")
        P(f"s_lshl_b32 s3, s{sP}, 3\ns_lshl_b32 s7, s{sCI}, 2\ns_add_u32 s3, s3, s7\ns_mov_b32 s7, {PAIR - 7*512}")
        for s in range(2):
            P(f"v_add_u32 v42, s3, v41\nv_add_u32 v42, {2*s}, v42\nv_mul_u32_u24 v43, 37, v42\nv_lshrrev_b32 v43, 8, v43")
            P(f"v_mul_lo_u32 v43, v43, s7\nv_lshl_add_u32 v43, v42, 9, v43\nv_lshl_add_u32 v{vKS+s}, v40, 4, v43")
        P(f"s_lshl_b32 s3, s3, 3\nv_add_u32 v42, s3, v40\nv_mul_u32_u24 v43, 1171, v42\nv_lshrrev_b32 v43, 16, v43\ns_mov_b32 s7, {PAIR - 896}")
        P(f"v_mul_lo_u32 v43, v43, s7\nv_lshl_add_u32 v43, v42, 4, v43\nv_mul_u32_u24 v42, 896, v41\nv_add_u32 v{vVS}, v42, v43")
        sKO, sVO, sKFo, sVFo, sOFo, sOO = sSW + 1, sSW + 2, sSW + 3, sSW + 4, sSW + 5, sSW + 6
        P(f"s_mul_i32 s3, s{sG}, 3584\ns_add_u32 s{sKO}, s3, {WS_K:#x}\ns_add_u32 s{sVO}, s3, {WS_V:#x}")
        P(f"s_lshl_b32 s3, s{sRT}, 3\ns_add_u32 s3, s3, s{sP}\ns_lshl_b32 s3, s3, 7\ns_lshl_b32 s7, s{sU}, 2\ns_add_u32 s3, s3, s7")
        P(f"s_add_u32 s{sKFo}, s3, {WS_KF:#x}\ns_add_u32 s{sVFo}, s3, {WS_VF:#x}\ns_add_u32 s{sOFo}, s3, {WS_OF:#x}")
        P(f"v_mov_b32 v{vZ}, 0\nv_mov_b32 v{vFL}, {L_FLAG}")
        self.kv_poll_addr(vKP, 42, 43)
        P(f"s_lshl_b32 s{sT4}, s{sU}, 10\nv_lshl_add_u32 v{vDA}, v0, 4, s{sT4}\nv_add_u32 v{vDB}, 4096, v{vDA}")
        P(f"s_mul_i32 s{sT1}, s{sP}, {PAIR}\ns_add_u32 s{sT1}, s{sT1}, {WS_K:#x}")
        for n in range(5):
            P(f"s_sub_i32 s3, s{sRT}, {4-n}\ns_max_i32 s3, s3, 0\ns_mul_i32 s3, s3, 7168\ns_add_u32 s{sSX+n}, s3, s{sT1}")
        P(f"s_mul_i32 s3, s{sR}, 3584\ns_mul_i32 s7, s{sCI}, 1536\ns_add_u32 s3, s3, s7\ns_add_u32 s3, s3, {L_KT}\nv_lshl_add_u32 v{vKR}, v0, 4, s3")
        P(f"s_mul_i32 s3, s{sCI}, 28\nv_add_u32 v42, s3, v40\ns_lshl_b32 s7, s{sCI}, 2\ns_sub_u32 s7, 60, s7\nv_mov_b32 v43, s7")
        P(f"v_cmp_gt_u32 vcc, 28, v40\nv_cndmask_b32 v42, v43, v42, vcc\nv_lshlrev_b32 v42, 4, v42\nv_lshl_add_u32 v42, v41, 10, v42")
        P(f"s_lshl_b32 s3, s{sR}, 12\ns_add_u32 s3, s3, {L_VT}\nv_add_u32 v{vVR}, s3, v42")
        P(f"v_lshlrev_b32 v42, 3, v40\nv_lshl_add_u32 v{vOS}, v41, 8, v42")
        P(f"s_lshl_b32 s3, s{sP}, 1\ns_add_u32 s3, s3, s{sCI}\ns_mul_i32 s3, s3, 1792\ns_mul_i32 s7, s{sG}, 28672\ns_add_u32 s3, s3, s7\ns_add_u32 s{sOO}, s3, {WS_O:#x}")
        P(f"v_bfe_u32 v42, v0, 2, 3\nv_lshlrev_b32 v42, 7, v42\nv_and_b32 v43, 3, v0\nv_lshl_add_u32 v42, v43, 2, v42\ns_lshl_b32 s3, s{sRT}, 10\nv_add_u32 v{vOP}, s3, v42")
        c = math.log2(math.e) / math.sqrt(28)
        P(f"v_mov_b32 v42, {fl(c)}\nv_cmp_gt_u32 vcc, s{sCI}, v41\nv_cndmask_b32 v{vSA}, v42, v{vZ}, vcc\nv_cmp_lt_u32 vcc, s{sCI}, v41\nv_cndmask_b32 v{vSB}, v42, v{vZ}, vcc")
        P(f"v_cmp_eq_u32 vcc, 0, v41\nv_mov_b32 v42, 0x3f803f80\nv_mov_b32 v43, 0x3f80\nv_cndmask_b32 v{ONE}, v{vZ}, v42, vcc\nv_cndmask_b32 v{ONE+1}, v{vZ}, v43, vcc")
        P(f"v_mov_b32 v{ONE+2}, 0\nv_mov_b32 v{ONE+3}, 0\nv_mov_b32 v{NM+2}, 0\nv_mov_b32 v{NM+3}, 0")
        P(f"s_cmp_lt_u32 s{sG}, 7\ns_cselect_b32 s3, {NEG}, 0")
        for i in range(16): P(f"v_mov_b32 v{CD+i}, s3")
        P(f"v_lshlrev_b32 v42, 2, v41\nv_sub_u32 v23, v40, v42")
        P(f"s_waitcnt vmcnt(0) lgkmcnt(0)")
        P(f"s_mul_i32 s{sNONCE}, s{sNONCE}, 0x9E3779B1\ns_add_u32 s{sNONCE}, s{sNONCE}, 0x7FEB352D\nv_mov_b32 v{vNON}, s{sNONCE}")
        self.stamp("G.set")
        lg = Cnt(P, "lgkmcnt", 15); vm = Cnt(P, "vmcnt", 63)
        xa = [LdsAddr(P, vXA + s) for s in range(4)]
        wa = {"K": LdsAddr(P, vWK), "V": LdsAddr(P, vWV), "Q": LdsAddr(P, vWQ)}
        wl = {"K": L_WK, "V": L_WV, "Q": L_WQ}
        acc = {"K": AK, "V": AV, "Q": AQ}
        def reads(ph, kind, q, s):
            if kind == "K":
                off = xa[s].off(L_X(q), 8192)
                P(f"ds_read_b128 {vr(XF + 16*q + 4*s, 4)}, v{vXA+s} offset:{off}"); lg.add((ph, s))
            for t in range(2):
                off = wa[kind].off(wl[kind](q) + s*2048 + t*512, 2048)
                P(f"ds_read_b64_tr_b16 {vr(WF + 16*(ph&1) + 4*s + 2*t, 2)}, v{wa[kind].reg} offset:{off}"); lg.add((ph, s))
        def mf(ph, kind, q, s):
            lg.wait((ph, s))
            w, x, a = WF + 16*(ph & 1) + 4*s, XF + 16*q + 4*s, acc[kind]
            cc = "0" if (q == 0 and s == 0) else a
            P(MF32(a, x, w, cc) if kind == "V" else MF32(a, w, x, cc))
        def pack(a, half, emit=P):
            for i in range(4): emit(f"v_cvt_pk_bf16_f32 v{QF+4*half+i}, v{a+8*half+2*i}, v{a+8*half+2*i+1}")
        phases = [("K", q) for q in range(7)] + [("V", q) for q in range(7)]
        for ph in range(15):
            if ph < 14: P("s_barrier")
            self.stamp(f"G.b{ph}")
            for s in range(4):
                if ph > 0: mf(ph - 1, *phases[ph - 1], s)
                if ph < 14: reads(ph, *phases[ph], s)
                if ph == 8 and s >= 2:
                    pack(AK, s - 2)
                    P(f"buffer_store_dwordx4 {vr(QF+4*(s-2),4)}, v{vKS+s-2}, {sr(sWSKV,4)}, s{sKO} offen sc1"); vm.add("K")
                    if s == 3: self.stamp("G.kst")
        P(f"s_cmp_lt_u32 s{sG}, 8\ns_cselect_b32 s3, 64, 0\nv_add_u32 v42, s3, v23\nv_mov_b32 v43, {NEG}")
        for i in range(16):
            P(f"v_cmp_gt_i32 vcc, {8*(i>>2)+(i&3)}, v42\nv_cndmask_b32 v{AK+i}, v43, v{vZ}, vcc")
            if i == 3:
                for h in range(2):
                    pack(AV, h)
                    P(f"buffer_store_dwordx4 {vr(QF+4*h,4)}, v{vVS}, {sr(sWSKV,4)}, s{sVO} offen offset:{1792*h} sc1"); vm.add("V")
                self.stamp("G.vst")
                vm.wait("K"); self.flag_store(vZ, vNON, sWSKV, sKFo); vm.add("KF")
                self.stamp("G.kf")
        for i in range(16):
            P(f"v_cmp_le_i32 vcc, {8*(i>>2)+(i&3)}, v23\nv_cndmask_b32 v{AV+i}, v43, v{vZ}, vcc")
        P("s_barrier")
        P(f"s_mov_b32 s{sT0}, {WS_KF:#x}")
        P(f"buffer_load_dword v44, v{vKP}, {sr(sWS,4)}, s{sT0} offen sc1"); vm.add("poll")
        P(f"v_mov_b32 v40, 0\nv_mov_b32 v41, 0\nv_mov_b32 v42, 0\nv_mov_b32 v43, 0\nds_write_b128 v{vFL}, v[40:43]")
        self.stamp("G.bx")
        vm.wait("V"); self.flag_store(vZ, vNON, sWSKV, sVFo); vm.add("VF")
        self.stamp("G.vf")
        self.poll([(vKP, 0)], 44, sT0, True, "s_waitcnt vmcnt(1)")
        self.stamp("G.kp")
        for n in (4, 0, 1, 2, 3):
            P(f"s_add_u32 m0, s{sT4}, {L_KT + n*7168}\ns_nop 0\nbuffer_load_dwordx4 v{vDA}, {sr(sWS,4)}, s{sSX+n} offen sc1 lds")
        Ls = P.label("ksk")
        P(f"s_cmp_eq_u32 s{sU}, 3\ns_cbranch_scc1 {Ls}")
        for n in (4, 0, 1, 2, 3):
            P(f"s_add_u32 m0, s{sT4}, {L_KT + n*7168 + 4096}\ns_nop 0\nbuffer_load_dwordx4 v{vDB}, {sr(sWS,4)}, s{sSX+n} offen sc1 lds")
        P(f"{Ls}:")
        P("s_waitcnt lgkmcnt(0)")
        lg.q = []
        for ph in range(8):
            if ph in (0, 4): P("s_barrier")
            for s in range(4):
                if ph > 0: mf(ph - 1, "Q", ph - 1, s)
                if ph < 7: reads(ph, "Q", ph, s)
        P(f"s_waitcnt vmcnt(0)")
        self.lds_signal(vFL, 0, 40)
        P(f"s_mov_b32 s3, {fl(c)}")
        for i in range(16):
            sc = f"v{vSA}" if i < 4 else (f"v{vSB}" if i >= 12 else "s3")
            P(f"v_mul_f32 v{AQ+i}, {sc}, v{AQ+i}")
        pack(AQ, 0); pack(AQ, 1)
        self.stamp("G.q")
        self.lds_wait(vFL, 0, 4, 40)
        self.stamp("G.ck")
        order = [8, 0, 1, 2, 3, 4, 5, 6, 7]
        S = lambda n: AK if n == 0 else (AV if n == 8 else XF + 16 * (n - 1))
        lg.q = []
        def kread(i):
            n = order[i]
            for s in range(2):
                P(f"ds_read_b128 {vr(WF + 8*(i&3) + 4*s, 4)}, v{vKR} offset:{n*3584 + s*1024}"); lg.add(("k", i, s))
        def vread(i):
            n = order[i]
            for s in range(2):
                P(f"ds_read_b128 {vr(WF + 8*(i&3) + 4*s, 4)}, v{vVR} offset:{n*4096 + s*2048}"); lg.add(("v", i, s))
        vM = 40
        def maxes(i, half):
            b = S(order[i]) + 8 * half
            for k in range(4):
                m = vM + (k & 1)
                if i == 0 and half == 0 and k < 2: P(f"v_max_f32 v{m}, v{b+2*k}, v{b+2*k+1}")
                else: P(f"v_max3_f32 v{m}, v{m}, v{b+2*k}, v{b+2*k+1}")
        for i in range(3): kread(i)
        for i in range(9):
            n = order[i]
            if 2 <= n <= 7:
                Lf, Lb = P.label("flip"), P.label("flipb")
                P(f"s_cmp_eq_u32 s{sG}, {8-n}\ns_cbranch_scc1 {Lf}\n{Lb}:")
                T = self.tail
                T(f"{Lf}:\ns_nop 7")
                for k in range(16): T(f"v_mov_b32 v{CD+k}, 0")
                T(f"s_nop 1\ns_branch {Lb}")
            for s in range(2):
                lg.wait(("k", i, s))
                cc = S(n) if (s == 1 or n in (0, 8)) else CD
                P(MF32(S(n), WF + 8*(i & 3) + 4*s, QF + 4*s, cc))
                if s == 0 and i + 3 < 9: kread(i + 3)
                if i >= 2: maxes(i - 2, s)
        P(f"ds_read_b32 v44, v{vFL} offset:4")
        maxes(7, 0); maxes(7, 1); maxes(8, 0); maxes(8, 1)
        P(f"v_max_f32 v{vM}, v{vM}, v{vM+1}\nv_mov_b32 v{vM+1}, v{vM}\nv_permlane32_swap_b32 v{vM}, v{vM+1}\nv_max_f32 v{vM}, v{vM}, v{vM+1}")
        P(f"v_and_b32 v42, 0xffff0000, v{vM}\nv_sub_f32 v43, v42, v{vM}\nv_xor_b32 v42, 0x80000000, v42\nv_and_b32 v45, 0xffff0000, v43")
        P(f"v_sub_f32 v43, v43, v45\nv_lshrrev_b32 v42, 16, v42\nv_or_b32 v{NM}, v42, v45\nv_lshrrev_b32 v{NM+1}, 16, v43")
        b0 = S(order[0])
        for k in range(8): P(f"v_sub_f32 v{b0+k}, v{b0+k}, v{vM}")
        P(MF32(S(order[1]), ONE, NM, S(order[1])))
        for k in range(8, 16): P(f"v_sub_f32 v{b0+k}, v{b0+k}, v{vM}")
        self.stamp("G.p1")
        Lv, Lvb = P.label("vw"), P.label("vwb")
        P(f"s_waitcnt lgkmcnt(0)\nv_cmp_gt_u32 vcc, 2, v44\ns_cbranch_vccnz {Lv}\n{Lvb}:")
        self.tail(f"{Lv}:\nds_read_b32 v44, v{vFL} offset:4\ns_waitcnt lgkmcnt(0)\nv_cmp_gt_u32 vcc, 2, v44\ns_nop 0\ns_cbranch_vccnz {Lv}\ns_branch {Lvb}")
        self.stamp("G.fv")
        lg.q = []
        vread(0); vread(1)
        first = True
        def pv(i, s):
            nonlocal first
            lg.wait(("v", i, s))
            P(MF32(AQ, WF + 8*(i & 3) + 4*s, S(order[i]) + 8*s, "0" if first else AQ)); first = False
        for i in range(9):
            b = S(order[i])
            for h in range(2):
                for k in range(8):
                    P(f"v_exp_f32 v{b+8*h+k}, v{b+8*h+k}")
                    if k == 1:
                        if h == 0 and i > 0: pv(i - 1, 1)
                        if h == 1: pv(i, 0)
                    if k == 5 and h == 0 and i + 2 < 9:
                        P(MF32(S(order[i+2]), ONE, NM, S(order[i+2])))
                    if k == 5 and h == 1 and i + 2 < 9: vread(i + 2)
                for k in range(4): P(f"v_cvt_pk_bf16_f32 v{b+8*h+k}, v{b+8*h+2*k}, v{b+8*h+2*k+1}")
        pv(8, 1)
        P(f"v_mov_b32 v40, v{AQ+12}\nv_mov_b32 v41, v{AQ+12}\nv_permlane32_swap_b32 v40, v41\nv_rcp_f32 v41, v41")
        for a in range(4):
            for k in range(4): P(f"v_mul_f32 v{AQ+4*a+k}, v{AQ+4*a+k}, v41")
            for k in range(2): P(f"v_cvt_pk_bf16_f32 v{QF+2*a+k}, v{AQ+4*a+2*k}, v{AQ+4*a+2*k+1}")
            if a == 3: P("s_mov_b32 exec_hi, 0")
            P(f"buffer_store_dwordx2 {vr(QF+2*a,2)}, v{vOS}, {sr(sWS,4)}, s{sOO} offen offset:{512*a} sc1")
        self.stamp("G.ost")
        P(f"s_mov_b32 s{sT0}, {WS_OF:#x}\ns_mul_i32 s{sT1}, s{sRT}, {2*28672}\ns_add_u32 s{sT1}, s{sT1}, {WS_O:#x}\ns_add_u32 s{sT2}, s{sT1}, 28672")
        P(f"s_waitcnt vmcnt(0)")
        self.stamp("G.oack")
        self.flag_store(vZ, vNON, sWS, sOFo)
        P(f"s_cmp_eq_u32 s{sP}, 7\ns_cbranch_scc1 L_g1end")
        self.poll([(vOP, 0)], 44, sT0)
        self.stamp("G.op")
        for q in range(7):
            for r_ in range(2):
                P(f"s_add_u32 m0, s{sT4}, {L_O(q) + r_*4096}\ns_nop 0\nbuffer_load_dwordx4 v{vDA}, {sr(sWS,4)}, s{sT1+r_} offen sc1 lds\ns_add_u32 s{sT1+r_}, s{sT1+r_}, 4096")
        for q in range(7):
            P(f"s_waitcnt vmcnt({12-2*q})\ns_barrier")
        P("L_g1end:")
        self.stamp_out()
        P("L_end:\ns_endpgm")

    def build(self):
        self.prologue(); self.g2(); self.g1()
        body, pad = pad_hazards(self.P.lines + self.tail.lines)
        hdr = open(os.path.join(os.path.dirname(os.path.abspath(__file__)), "header.txt")).read()
        if self.o["stamps"]: hdr += "; STAMPS " + self.o["stamps"] + "\n"
        s = hdr + "; @launch grid=(256,1,1) block=(512,1,1) lds=163840\n"
        s += '.amdgcn_target "amdgcn-amd-amdhsa--gfx950"\n.text\n'
        s += f".globl {NAME}\n.p2align 8\n.type {NAME},@function\n{NAME}:\n"
        s += "\n".join(("" if l.endswith(":") else "    ") + l for l in body) + "\nL_codeend:\n    s_endpgm\n"
        s += f""".section .rodata,"a"
.p2align 6
.amdhsa_kernel {NAME}
  .amdhsa_next_free_vgpr 256
  .amdhsa_next_free_sgpr 102
  .amdhsa_accum_offset 256
  .amdhsa_group_segment_fixed_size 0
  .amdhsa_kernarg_size 88
  .amdhsa_user_sgpr_count 2
  .amdhsa_user_sgpr_kernarg_segment_ptr 1
  .amdhsa_system_sgpr_workgroup_id_x 1
.end_amdhsa_kernel
"""
        return s, pad

if __name__ == "__main__":
    opts = {}
    out = sys.argv[1]
    for a in sys.argv[2:]:
        k, v = a.split("="); opts[k] = v if k == "stamps" else eval(v)
    s, pad = Gen(**opts).build()
    open(out, "w").write(s)
    print("written", out, "pad states", pad, "lines", s.count("\n"))
```

```python
import sys, math, struct, os
sys.path.insert(0, os.path.dirname(os.path.abspath(__file__)))
from asmlib import *

NAME = "concat_heads__spectral_fnet__sliding_block__prompt_kernel"

def f2u(x): return struct.unpack("<I", struct.pack("<f", x))[0]
def fl(x): return f"{f2u(x):#x}"

WS_E = 0
WS_KF, WS_VF, WS_OF, WS_TF, WS_XF = 0x10000, 0x18000, 0x20000, 0x28000, 0x30000
WS_K, WS_V, WS_O, WS_T = 0x201000, 0x401000, 0x601000, 0x800000
WS_STAMP = 0xA80000
WS_SIZE = 0xB00000
PAIR = 64 * 3584
TST = 65536 + 384
SL = 8192
def L_X(q): return 2 * q * SL
def L_WK(q): return (2 * q + 1) * SL
def L_WV(q): return (18 + q) * SL if q < 2 else (q - 2) * SL
L_XA = 14 * SL
def L_WQ(q): return (5 + q) * SL
L_KT = 13 * SL
L_VT = 0
L_F = 13 * SL
L_FLAG = 18 * SL - 64
L_TS = 12 * SL
L_OUT = 18 * SL
L_M = 19 * SL
L_TT = 15 * SL
def L_O(q): return q * SL if q < 5 else (13 + q - 5) * SL
sNONCE = 6
sXB, sW, sWKV, sXA, sWO, sOUT, sWS = 20, 48, 28, 32, 36, 40, 44
sU, sRT, sP, sS2, sEG, sR, sCI, sWV = 52, 53, 54, 55, 56, 57, 58, 59
sSX, sSW = 60, 67
sT0, sT1, sT2, sT3, sT4, sT5 = 74, 75, 76, 77, 78, 79
sROT, sFO = 8, 9
sSTAMP = 80
NSTAMP = 11
SPIN = 1 << 14
BIG = 2.0 ** 100

class Cnt:
    def __init__(self, prog, name, maxn):
        self.p, self.name, self.maxn = prog, name, maxn
        self.q = []
    def add(self, tag=None): self.q.append(tag)
    def wait(self, tag):
        idx = [i for i, t in enumerate(self.q) if t == tag]
        if not idx: return
        n = min(len(self.q) - 1 - idx[-1], self.maxn)
        self.p(f"s_waitcnt {self.name}({n})")
        self.q = self.q[len(self.q) - n:] if n else []
    def all(self):
        self.p(f"s_waitcnt {self.name}(0)"); self.q = []

def srd(P, d, lo, nrec):
    P(f"s_mov_b64 {sr(d,2)}, {sr(lo,2)}\ns_mov_b32 s{d+2}, {nrec:#x}\ns_mov_b32 s{d+3}, 0x20000")

def MF32(d, a, b, c): return f"v_mfma_f32_32x32x16_bf16 {vr(d,16)}, {vr(a,4)}, {vr(b,4)}, {c if isinstance(c,str) else vr(c,16)}"
def MF16(d, a, b, c): return f"v_mfma_f32_16x16x32_bf16 {vr(d,4)}, {vr(a,4)}, {vr(b,4)}, {c if isinstance(c,str) else vr(c,4)}"
NONCE = f"s_mul_i32 s{sNONCE}, s{sNONCE}, 0x9E3779C1\ns_add_u32 s{sNONCE}, s{sNONCE}, 0x7FEB3560"

STR_OPTS = ("stamps", "sched", "sched7", "schedT", "schedK", "schedV", "ina1", "outmod", "omod")

class Gen:
    def __init__(self, **o):
        self.o = dict(stamps=False, codepf=True, mixed=False, npre=2, outmod="sc1", olocal=True, omod="", pvlag=4, pf7=True,
            otouch=1, force_fb=False, pfwo=0, touch=True, twait=0, a1cut=8,
            sched="f230 p7 K2 bK0 K3 f14 bK1 K4 f14 bK2 K5 f14 bK3 K6 f14 bK4 A0 A1 A2 A3 f10 bK5 A4 A5 A6 nonce bK6 V0 V1 f* fs wA6 join "
                  "bS1 a1a bV1 V5 V6 bV2 kf Q0 bV3 bV4 Q1 bV5 bV6 oad rs bS2 one Q2 Q3 Q4 a1b lva lvb lvc lg0",
            sched7="nonce fs ef f* X2 X3 X4 X5 X6 A0 A1 A2 A3 A4 A5 A6 bK6 lg0",
            ina1="0:V2 2:V3 4:V4", qbars=(0, 3, 5, 6),
            schedT="bQ2 vf Q5 Q6 ts bQ4 bQ5 bQ6 tst",
            schedK="kp bQ2 Q5 Q6 kw bQ4 k4 k3 bQ5 k2 bQ6 k1 k0",
            schedV="bQ2 Q5 Q6 bQ4 bQ5 vp bQ6")
        self.o.update(o)
        self.P = Prog()
        self.tail = Prog()

    def stamp(self, name):
        if not self.o["stamps"]: return
        if name == 0: self.P(f"s_memtime {sr(sSTAMP, 2)}"); return
        for lst in self.o["stamps"].split("|"):
            l = lst.split(",")
            if name in l: self.P(f"s_memtime {sr(sSTAMP + 2*(1+l.index(name)), 2)}")

    def stamp_out(self):
        if not self.o["stamps"]: return
        P = self.P
        P(f"s_waitcnt vmcnt(0)\ns_memtime {sr(sSTAMP+16,2)}\ns_memrealtime {sr(sSTAMP+18,2)}\ns_waitcnt lgkmcnt(0)\ns_mov_b64 exec, 1")
        if self.o.get("enc") is not None:
            k = self.o["enc"]; L = P.label("enc"); D = P.label("encd")
            P(f"s_cmp_lg_u32 s{sWV}, {self.o['encwv']}\ns_cbranch_scc1 {D}\ns_cmp_eq_u32 s{sP}, 7\ns_cbranch_scc1 {D}")
            if self.o.get("encwg", -1) >= 0: P(f"s_cmp_lg_u32 s2, {self.o['encwg']}\ns_cbranch_scc1 {D}")
            if k == 9: P(f"s_sub_u32 s3, s{sSTAMP+18}, s{sSTAMP+20}\ns_lshl_b32 s3, s3, 2")
            else: P(f"s_sub_u32 s3, s{sSTAMP+2*k}, s{sSTAMP}\ns_lshr_b32 s3, s3, 2")
            P(f"s_min_u32 s3, s3, 50000\ns_add_u32 s3, s3, 5000")
            P(f"{L}:\ns_memrealtime s[4:5]\ns_waitcnt lgkmcnt(0)\ns_sub_u32 s4, s4, s{sSTAMP+20}\ns_cmp_lt_u32 s4, s3\ns_cbranch_scc1 {L}\n{D}:")
            return
        for i in range(NSTAMP): P(f"v_mov_b32 v{4+i}, s{sSTAMP+2*i}")
        P(f"s_getreg_b32 s3, hwreg(HW_REG_XCC_ID)\nv_mov_b32 v15, s3")
        P(f"s_lshl_b32 s3, s2, 3\ns_add_u32 s3, s3, s{sWV}\ns_lshl_b32 s3, s3, 6\ns_add_u32 s3, s3, {WS_STAMP:#x}\nv_mov_b32 v1, 0")
        for k in range(3): P(f"buffer_store_dwordx4 v[{4+4*k}:{7+4*k}], v1, {sr(sWS,4)}, s3 offen offset:{16*k}")

    def into(self, prog, f, *a):
        keep = self.P; lab = keep._lab
        self.P = prog; prog._lab = max(prog._lab, lab)
        f(*a)
        keep._lab = max(prog._lab, lab); self.P = keep

    def tr_addr(self, dst, t0, t1, perm, sbase):
        P = self.P
        P(f"v_bfe_u32 v{t0}, v0, 4, 1\nv_lshl_add_u32 v{t0}, v{t0}, 5, s{sbase}")
        if perm:
            P(f"v_and_b32 v{t1}, 1, v0\nv_lshl_add_u32 v{t0}, v{t1}, 4, v{t0}")
            P(f"v_bfe_u32 v{t1}, v0, 1, 1\nv_lshl_add_u32 v{t0}, v{t1}, 3, v{t0}")
        else:
            P(f"v_and_b32 v{t1}, 3, v0\nv_lshl_add_u32 v{t0}, v{t1}, 3, v{t0}")
        P(f"v_and_b32 v{t1}, 8, v0\nv_lshlrev_b32 v{t1}, 3, v{t1}\nv_xor_b32 v{t0}, v{t0}, v{t1}")
        P(f"v_and_b32 v{t1}, 44, v0\nv_lshl_add_u32 v{dst}, v{t1}, 5, v{t0}")

    def inbox_setup(self, base):
        self.P(f"s_lshl3_add_u32 s3, s{sRT}, s{sP}\ns_lshl_b32 s3, s3, 7\ns_add_u32 s{sT3}, s3, {base:#x}")
    def inbox_issue(self, E=None):
        (E or self.P)(f"s_load_dwordx16 s[20:35], s[18:19], s{sT3} glc")
    def inbox_wait(self):
        P = self.P; L = P.label("kvp")
        P(f"s_mov_b32 s{sT5}, {SPIN}\ns_mov_b32 s7, s{sNONCE}\n{L}:\ns_waitcnt lgkmcnt(0)")
        P("s_xor_b64 s[20:21], s[20:21], s[6:7]")
        for n in range(1, 5):
            P(f"s_xor_b64 {sr(20+2*n,2)}, {sr(20+2*n,2)}, s[6:7]\ns_or_b64 s[20:21], s[20:21], {sr(20+2*n,2)}")
        P(f"s_cbranch_scc0 {L}_d")
        self.inbox_issue()
        P(f"s_sub_u32 s{sT5}, s{sT5}, 1\ns_cbranch_scc0 {L}\ns_waitcnt lgkmcnt(0)\n{L}_d:")
    def group_bases(self, base):
        P = self.P
        P(f"s_mul_i32 s{sT1}, s{sP}, {PAIR}\ns_mul_i32 s3, s{sRT}, 7168\ns_add_u32 s3, s3, s{sT1}\ns_add_u32 s{sSX+4}, s3, {base:#x}")
        for n in range(4):
            P(f"s_sub_u32 s3, s{sSX+4}, {7168*(4-n)}\ns_cmp_lt_u32 s{sRT}, {4-n}\ns_cselect_b32 s{sSX+n}, s{sWS+2}, s3")

    def poll(self, addrs, vt, sbase):
        P = self.P
        L = P.label("poll")
        P(f"s_mov_b32 s{sT5}, 0\n{L}:")
        for k, (va, imm) in enumerate(addrs):
            P(f"buffer_load_dword v{vt+k}, v{va}, {sr(sWS,4)}, s{sbase} offen offset:{imm} sc1")
        P(f"s_add_u32 s{sT5}, s{sT5}, 1\ns_cmp_gt_u32 s{sT5}, {SPIN}\ns_cbranch_scc1 {L}_d\ns_waitcnt vmcnt(0)")
        for k in range(len(addrs)):
            P(f"v_cmp_ne_u32 vcc, s{sNONCE}, v{vt+k}\ns_cbranch_vccnz {L}")
        P(f"{L}_d:")

    def lds_wait(self, vflag, idx, val, vt):
        P = self.P
        L = P.label("lw")
        P(f"{L}:\nds_read_b32 v{vt}, v{vflag} offset:{4*idx}\ns_waitcnt lgkmcnt(0)\nv_cmp_gt_u32 vcc, {val}, v{vt}\ns_cbranch_vccnz {L}")
    def lds_signal(self, vflag, idx, vt):
        self.P(f"v_mov_b32 v{vt}, 1\ns_mov_b64 exec, 1\nds_add_u32 v{vflag}, v{vt} offset:{4*idx}\ns_mov_b64 exec, -1")
    def lds_set(self, vflag, idx, vt, val):
        self.P(f"v_mov_b32 v{vt}, {val}\nds_write_b32 v{vflag}, v{vt} offset:{4*idx}")

    def scratch_addr(self, vWR, vRD, base, t):
        P = self.P
        P(f"s_lshl_b32 s3, s{sU}, 11\ns_add_u32 s3, s3, {base}")
        P(f"v_and_b32 v{t}, 31, v0\nv_lshrrev_b32 v{t+1}, 5, v0\nv_bfe_u32 v{t+2}, v0, 1, 2\nv_xor_b32 v{t+2}, v{t+2}, v{t+1}")
        P(f"v_lshl_add_u32 v{t+3}, v{t}, 6, s3\nv_lshl_add_u32 v{vWR}, v{t+2}, 4, v{t+3}\nv_xor_b32 v{vWR+1}, 32, v{vWR}")
        P(f"v_lshl_add_u32 v{vRD}, v0, 4, s3")
        P(f"v_lshrrev_b32 v{t+2}, 2, v0\nv_lshrrev_b32 v{t+3}, 3, v0\nv_xor_b32 v{t+3}, v{t+3}, v0\nv_and_b32 v{t+3}, 3, v{t+3}\nv_lshlrev_b32 v{t+3}, 4, v{t+3}")

    def out_epilogue(self, acc, pk, vwr, vrd, vg0, vg1, soff, mod):
        P = self.P
        for h in range(2):
            for i in range(4): P(f"v_cvt_pk_bf16_f32 v{pk+4*h+i}, v{acc+8*h+2*i}, v{acc+8*h+2*i+1}")
            P(f"ds_write_b128 v{vwr+h}, {vr(pk+4*h,4)}")
        P(f"ds_read_b128 {vr(pk,4)}, v{vrd}\nds_read_b128 {vr(pk+4,4)}, v{vrd} offset:1024")
        P(f"s_waitcnt lgkmcnt(1)\nbuffer_store_dwordx4 {vr(pk,4)}, v{vg0}, {sr(sOUT,4)}, {soff} offen {mod}")
        P(f"s_waitcnt lgkmcnt(0)\nbuffer_store_dwordx4 {vr(pk+4,4)}, v{vg1}, {sr(sOUT,4)}, {soff} offen {mod}")

    def prologue(self):
        P = self.P; o = self.o
        P(f"s_cmpk_ge_u32 s2, 256\ns_cbranch_scc1 L_end")
        P(f"s_load_dwordx2 {sr(sXB,2)}, s[0:1], 40\ns_load_dwordx2 {sr(sWKV,2)}, s[0:1], 48\ns_load_dwordx8 s[12:19], s[0:1], 56\ns_load_dwordx2 {sr(sXA,2)}, s[0:1], 0")
        if o["stamps"]:
            P(f"s_memrealtime {sr(sSTAMP + 2*(NSTAMP-1), 2)}")
        self.stamp(0)
        P(f"v_readfirstlane_b32 s{sWV}, v0\nv_and_b32 v0, 63, v0\ns_and_b32 s3, s2, 7\ns_lshr_b32 s7, s2, 3\ns_lshr_b32 s{sWV}, s{sWV}, 6")
        if o["mixed"]:
            P(f"s_and_b32 s{sP}, s3, 1\ns_lshl_b32 s{sP}, s{sP}, 2\ns_and_b32 s{sT1}, s7, 3\ns_add_u32 s{sP}, s{sP}, s{sT1}\ns_lshr_b32 s{sT0}, s7, 2")
            P(f"s_lshr_b32 s{sRT}, s3, 1\ns_lshl3_add_u32 s{sRT}, s{sRT}, s{sT0}\ns_lshl1_add_u32 s{sT0}, s{sT1}, s{sT0}")
        else:
            P(f"s_and_b32 s{sP}, s7, 7\ns_lshr_b32 s{sT0}, s7, 3\ns_lshl2_add_u32 s{sRT}, s3, s{sT0}\ns_lshl1_add_u32 s{sT0}, s{sT0}, s{sP}")
        P(f"s_and_b32 s{sU}, s{sWV}, 3\ns_and_b32 s{sR}, s{sU}, 1\ns_lshr_b32 s{sCI}, s{sU}, 1\ns_lshl_b32 s{sT4}, s{sU}, 10")
        P(f"s_cmp_lt_u32 s{sWV}, 4\ns_cbranch_scc1 L_g2")
        if o["codepf"]:
            P(f"s_getpc_b64 s[{sT2}:{sT3}]\nL_pc:")
            P(f"s_lshl2_add_u32 s{sT1}, s7, s{sU}\ns_lshl_b32 s{sT1}, s{sT1}, 8\nv_lshl_add_u32 v2, v0, 2, s{sT1}\nv_min_u32 v2, L_codeend-L_pc-4, v2")
            P(f"v_mov_b32 v3, s{sT3}\nv_add_co_u32 v2, vcc, s{sT2}, v2\nv_addc_co_u32 v3, vcc, 0, v3, vcc")
            P(f"global_load_dword v47, v[2:3], off")
        P(f"s_branch L_g1")
        P(f"L_g2:")

    def const_stream(self):
        F = []
        vE, vB, vA, vC, vS = 12, 13, 40, 42, 52
        CC, SS = 144, 200
        F += [f"s_lshl2_add_u32 s3, s{sEG}, s{sU}", f"v_and_b32 v{vA}, 15, v0", f"v_lshl_add_u32 v{vA}, s3, 4, v{vA}", f"v_cvt_f32_u32 v{vA}, v{vA}",
              f"v_mul_f32 v{vE}, {fl(1/448)}, v{vA}", f"v_cos_f32 v15, v{vE}",
              f"v_lshrrev_b32 v{vA}, 1, v0", f"v_and_b32 v{vA}, 24, v{vA}", f"v_cvt_f32_u32 v{vA}, v{vA}", f"v_mul_f32 v{vB}, v{vE}, v{vA}",
              f"v_add_f32 v15, v15, v15"]
        for ks in range(7):
            for j in range(2): F.append(f"v_fmamk_f32 v{vA+j}, v{vE}, {fl(32*ks+j)}, v{vB}")
            for j in range(2): F.append(f"v_cos_f32 v{vC+j}, v{vA+j}")
            for j in range(2): F.append(f"v_sin_f32 v{vS+j}, v{vA+j}")
            for j in range(2, 9):
                F.append(f"v_fma_f32 v{vC+j}, v15, v{vC+j-1}, -v{vC+j-2}")
                F.append(f"v_fma_f32 v{vS+j}, v15, v{vS+j-1}, -v{vS+j-2}")
            km = 13 - ks
            for jj in range(4):
                F.append(f"v_cvt_pk_bf16_f32 v{CC+4*ks+jj}, v{vC+2*jj}, v{vC+2*jj+1}")
                F.append(f"v_cvt_pk_bf16_f32 v{SS+4*ks+jj}, v{vS+2*jj}, v{vS+2*jj+1}")
            for jj in range(4):
                F.append(f"v_cvt_pk_bf16_f32 v{CC+4*km+jj}, v{vC+8-2*jj}, v{vC+7-2*jj}")
                F.append(f"v_cvt_pk_bf16_f32 v{SS+4*km+jj}, -v{vS+8-2*jj}, -v{vS+7-2*jj}")
        F += [f"v_and_b32 v{vA}, 15, v0", f"v_lshrrev_b32 v{vA+1}, 1, v{vA}", f"v_lshlrev_b32 v{vA}, 7, v{vA}",
              f"v_add_u32 v{vA}, {L_XA}, v{vA}",
              f"v_lshrrev_b32 v{vC}, 4, v0", f"v_xor_b32 v{vC}, v{vC}, v{vA+1}",
              f"v_lshl_add_u32 v8, v{vC}, 4, v{vA}", f"v_xor_b32 v9, 64, v8", f"v_xor_b32 v10, 48, v8", f"v_xor_b32 v11, 64, v10",
              f"v_mov_b32 v15, {L_FLAG}"]
        return F

    def g2(self):
        P = self.P; o = self.o; T = self.tail
        vx0, vx1, vw0, vw1, vq0, vq1, vxa = 1, 2, 3, 4, 5, 6, 7
        P(f"v_lshrrev_b32 v16, 3, v0\nv_lshl_add_u32 v16, s{sU}, 3, v16")
        P(f"v_lshrrev_b32 v17, 1, v16\nv_xor_b32 v17, v17, v0\nv_and_b32 v17, 7, v17\nv_lshlrev_b32 v17, 4, v17")
        P(f"v_mul_u32_u24 v{vx0}, 896, v16\nv_add_u32 v{vx0}, v{vx0}, v17\nv_add_u32 v{vx1}, {32*896}, v{vx0}")
        P(f"v_lshrrev_b32 v18, 2, v0\nv_and_b32 v18, 4, v18\nv_xor_b32 v18, v18, v0\nv_and_b32 v18, 7, v18")
        P(f"v_mul_u32_u24 v19, 2688, v16\ns_add_u32 s{sT1}, s{sP}, 7\ns_lshl_b32 s{sT1}, s{sT1}, 7")
        P(f"v_lshl_add_u32 v{vw0}, v18, 4, v19\nv_add_u32 v{vw0}, s{sT1}, v{vw0}\nv_add_u32 v{vw1}, {32*2688}, v{vw0}")
        P(f"s_sub_u32 s{sT1}, s{sT0}, 7\ns_cselect_b32 s{sT0}, s{sT0}, s{sT1}\ns_mov_b32 s{sROT}, s{sT0}")
        P(f"s_mul_i32 s{sT2}, s{sRT}, {64*896}\ns_mov_b32 s{sT3}, s{sT4}")
        P(f"s_cmp_eq_u32 s{sP}, 7\ns_cselect_b32 s{sWKV+2}, 0, {448*2688:#x}")
        P(f"s_mov_b32 s{sWKV+3}, 0x20000\ns_mov_b32 s{sXB+2}, {2048*896:#x}\ns_mov_b32 s{sXB+3}, s{sWKV+3}")
        P(f"s_waitcnt lgkmcnt(0)")
        self.stamp("karg")
        NP = o["npre"]
        P(f"L_pre:")
        P(f"s_mov_b32 m0, s{sT3}\ns_lshl_b32 s{sT1}, s{sT0}, 7\ns_add_u32 s{sT1}, s{sT1}, s{sT2}")
        P(f"buffer_load_dwordx4 v{vx0}, {sr(sXB,4)}, s{sT1} offen lds")
        P(f"s_addk_i32 m0, 8192\ns_mul_i32 s{sT5}, s{sT0}, {64*2688}")
        P(f"buffer_load_dwordx4 v{vw0}, {sr(sWKV,4)}, s{sT5} offen lds")
        P(f"s_addk_i32 m0, -4096\ns_add_u32 s{sT0}, s{sT0}, 1")
        P(f"buffer_load_dwordx4 v{vx1}, {sr(sXB,4)}, s{sT1} offen lds")
        P(f"s_addk_i32 m0, 8192\ns_cmp_eq_u32 s{sT0}, 7")
        P(f"buffer_load_dwordx4 v{vw1}, {sr(sWKV,4)}, s{sT5} offen lds")
        P(f"s_cselect_b32 s{sT0}, 0, s{sT0}\ns_addk_i32 s{sT3}, 16384\ns_cmpk_lt_u32 s{sT3}, {NP*16384}\ns_cbranch_scc1 L_pre")
        self.stamp("dma0")
        P(f"s_load_dword s{sNONCE}, s[18:19], {WS_E}")
        P(f"s_lshr_b32 s{sT1}, s7, 2\ns_lshl3_add_u32 s{sS2}, s3, s{sT1}\ns_and_b32 s{sEG}, s7, 3")
        P(f"s_lshl_b32 s{sT1}, s{sROT}, 7\ns_add_u32 s{sSX}, s{sT1}, s{sT2}\ns_mul_i32 s{sSW}, s{sROT}, {64*2688}")
        for q in range(1, 7):
            P(f"s_add_u32 s{sSX+q}, s{sSX+q-1}, 128\ns_add_u32 s{sSW+q}, s{sSW+q-1}, {64*2688}\ns_cmp_eq_u32 s{sROT}, {7-q}\ns_cselect_b32 s{sSX+q}, s{sT2}, s{sSX+q}\ns_cselect_b32 s{sSW+q}, 0, s{sSW+q}")
        vm = Cnt(P, "vmcnt", 63)
        for q in range(NP):
            for _ in range(4): vm.add(("K", q))
        A = Prog()
        srd(A, sW, sWKV, 448*2688); srd(A, sWS, 18, WS_SIZE); srd(A, sWO, 12, 448*896); srd(A, sOUT, 14, 2048*1792)
        A(f"s_mov_b32 s{sXA+2}, {2048*896:#x}\ns_mov_b32 s{sXA+3}, 0x20000\ns_mul_i32 s3, s{sS2}, 896\ns_lshl_b32 s{sROT}, s{sEG}, 1")
        A(f"v_mul_u32_u24 v{vxa}, {64*896}, v16\nv_add3_u32 v{vxa}, v{vxa}, v17, s3")
        A(f"v_min_u32 v20, 6, v18\ns_mul_i32 s3, s{sP}, 112\nv_lshl_add_u32 v{vq0}, v20, 4, v19\nv_add_u32 v{vq0}, s3, v{vq0}\nv_add_u32 v{vq1}, {32*2688}, v{vq0}")
        A(f"s_cmp_eq_u32 s{sP}, 7\ns_cselect_b32 s{sFO}, 1, 0\ns_cmp_eq_u32 s{sR}, 0\ns_cselect_b32 s{sFO}, s{sFO}, 2")
        F = A.lines + self.const_stream()
        fi = 0
        def fill(n):
            nonlocal fi
            for l in F[fi:fi + n]: P(l)
            fi = min(len(F), fi + n)
        nbar = 0
        slot_rd = {}
        for q in range(7): slot_rd[2 * q] = q; slot_rd[2 * q + 1] = q
        def dma(tag, lds, va, srdn, soff):
            if tag[0] != "K" and (lds // SL) in slot_rd: assert nbar >= min(slot_rd[lds // SL] + 3, 8), ("WAR", tag, nbar)
            P(f"s_add_u32 m0, s{sT4}, {lds}\nbuffer_load_dwordx4 v{va}, {sr(srdn,4)}, s{soff} offen lds"); vm.add(tag)
        def ld(kind, q):
            if kind == "K":
                dma(("K", q), L_X(q), vx0, sXB, sSX + q); dma(("K", q), L_WK(q), vw0, sWKV, sSW + q)
                dma(("K", q), L_X(q) + 4096, vx1, sXB, sSX + q); dma(("K", q), L_WK(q) + 4096, vw1, sWKV, sSW + q)
            elif kind == "X":
                dma(("K", q), L_X(q), vx0, sXB, sSX + q); dma(("K", q), L_X(q) + 4096, vx1, sXB, sSX + q)
            elif kind == "V":
                if q == 0: P(f"v_add_u32 v{vw0}, 896, v{vw0}\nv_add_u32 v{vw1}, 896, v{vw1}")
                dma(("V", q), L_WV(q), vw0, sWKV, sSW + q); dma(("V", q), L_WV(q) + 4096, vw1, sWKV, sSW + q)
            elif kind == "Q":
                dma(("Q", q), L_WQ(q), vq0, sW, sSW + q); dma(("Q", q), L_WQ(q) + 4096, vq1, sW, sSW + q)
            elif kind == "A":
                P(f"s_lshl_b32 s{sT1}, s{sROT}, 12\ns_add_u32 s{sT1}, s{sT1}, s{sT4}\ns_add_u32 m0, s{sT1}, {L_XA}\ns_lshl_b32 s{sT1}, s{sROT}, 7")
                P(f"buffer_load_dwordx4 v{vxa}, {sr(sXA,4)}, s{sT1} offen lds"); vm.add(("A", q))
                P(f"s_add_u32 s{sROT}, s{sROT}, 1\ns_cmp_eq_u32 s{sROT}, 7\ns_cselect_b32 s{sROT}, 0, s{sROT}")
        def bar(name, tag=None):
            nonlocal nbar
            self.stamp("f" + name)
            if tag: vm.wait(tag)
            self.stamp("w" + name)
            P("s_barrier"); nbar += 1
            self.stamp("b" + name)
        def only(cond, f):
            L = P.label("sk")
            P(f"{cond}\ns_cbranch_scc0 {L}"); f(); P(f"{L}:")
        FO = [24, 25, 26, 27, 11]
        def flag_setup(E):
            E(f"s_add_u32 s3, s{sP}, s{sCI}\ns_and_b32 s3, s3, 7\ns_lshl_b32 s3, s3, 5\ns_sub_u32 s3, s3, s{sCI}\ns_lshl2_add_u32 s3, s3, {WS_KF + 4:#x}")
            for d in range(5):
                E(f"s_add_u32 s7, s{sRT}, {d}\ns_and_b32 s7, s7, 31\ns_lshl_b32 s7, s7, 10\ns_add_u32 s{FO[d]}, s7, s3\ns_add_u32 s3, s3, 8")
            E(f"s_add_u32 s4, s18, {WS_VF - WS_KF:#x}\ns_addc_u32 s5, s19, 0")
        def sflag(bases, early):
            def f():
                for bs in bases:
                    for d in range(5): P(f"s_atomic_swap s{sNONCE}, {bs}, s{FO[d]}")
            only(f"s_cmp_eq_u32 s{sFO}, {int(early)}", f)
        CC, SS, ZC, ZS, XF = 144, 200, 64, 72, 24
        vFL = 15
        def a1(k0, k1):
            assert fi == len(F)
            lg = Cnt(P, "lgkmcnt", 15)
            def xread(ks):
                a = 8 + (2 if ks >= 7 else 0) + (ks & 1)
                for mt in range(2):
                    P(f"ds_read_b128 {vr(XF + 8*(ks%5) + 4*mt, 4)}, v{a} offset:{(ks>>1)*4096 + mt*2048}"); lg.add(("x", ks))
            for ks in range(k0, min(k0 + 4, k1)): xread(ks)
            if k1 == 14:
                P(f"v_lshlrev_b32 v20, 4, v0\nv_add_u32 v20, {L_F}, v20")
            inl = dict(t.split(":") for t in o["ina1"].split())
            for ks in range(k0, k1):
                if str(ks) in inl: run(inl[str(ks)].replace(",", " "))
                lg.wait(("x", ks))
                x = XF + 8 * (ks % 5)
                c = (lambda r: "0" if ks == 0 else r)
                P(MF16(ZC, x, CC + 4*ks, c(ZC)))
                P(MF16(ZS, x, SS + 4*ks, c(ZS)))
                if ks + 4 < k1: xread(ks + 4)
                if ks == 11:
                    for k in range(4): P(f"ds_read_b128 {vr(96+4*k,4)}, v20 offset:{1024*k}"); lg.add("F")
                P(MF16(ZC + 4, x + 4, CC + 4*ks, c(ZC + 4)))
                P(MF16(ZS + 4, x + 4, SS + 4*ks, c(ZS + 4)))
            lg.wait("F")
            self.stamp("a1a" if k0 == 0 else "a1b")
        ZR, ZP, ZN, TA = 80, 84, 88, 40
        def lva():
            for i in range(4): P(f"v_cvt_pk_bf16_f32 v{ZR+i}, v{ZC+2*i}, v{ZC+2*i+1}")
            for i in range(4): P(f"v_cvt_pk_bf16_f32 v{ZP+i}, v{ZS+2*i}, v{ZS+2*i+1}")
            for i in range(4): P(f"v_cvt_pk_bf16_f32 v{ZN+i}, -v{ZS+2*i}, -v{ZS+2*i+1}")
            for nt in range(2):
                P(MF16(TA + 8*nt, ZR, 96 + 4*nt, "0")); P(MF16(TA + 8*nt + 4, ZR, 104 + 4*nt, "0"))
            P(f"v_and_b32 v18, 15, v0\nv_lshrrev_b32 v19, 4, v0\nv_lshl_add_u32 v20, s{sU}, 2, v19\nv_and_b32 v21, 7, v0\nv_xor_b32 v20, v20, v21")
            P(f"v_lshl_add_u32 v20, v18, 4, v20\nv_lshlrev_b32 v20, 4, v20\nv_add_u32 v20, {L_TS}, v20")
        def lvb():
            for nt in range(2):
                P(MF16(TA + 8*nt, ZN, 104 + 4*nt, TA + 8*nt)); P(MF16(TA + 8*nt + 4, ZP, 96 + 4*nt, TA + 8*nt + 4))
        def lvc():
            for nt in range(2):
                for r_ in range(4): P(f"v_cvt_pk_bf16_f32 v{56+4*nt+r_}, v{TA+8*nt+r_}, v{TA+8*nt+4+r_}")
                P(f"ds_write_b128 v20, {vr(56+4*nt,4)} offset:{4096*nt}")
        vTR, vWR, vRD, vG0, vG1, vOR = 1, 2, 4, 7, 12, 13
        sOB = 10
        def out_addr():
            self.scratch_addr(vWR, vRD, L_OUT, 112)
            P(f"v_mul_u32_u24 v{vG0}, 1792, v114\nv_add_u32 v{vG0}, v{vG0}, v115\nv_add_u32 v{vG1}, {16*1792}, v{vG0}")
            P(f"s_lshl_b32 s{sT0}, s{sCI}, 6")
            self.tr_addr(vTR, 116, 117, True, sT0)
            P(f"v_add_u32 v{vTR}, {L_WQ(0)}, v{vTR}")
            P(f"s_lshl_b32 s3, s{sR}, 12\nv_lshl_add_u32 v{vOR}, v112, 3, s3\nv_lshl_add_u32 v{vOR}, v113, 9, v{vOR}")
            P(f"s_lshl1_add_u32 s3, s{sRT}, s{sR}\ns_mul_i32 s3, s3, {32*1792}\ns_lshl_b32 s7, s{sP}, 7\ns_add_u32 s3, s3, s7")
            P(f"s_add_u32 s3, s3, s{sT0}\ns_add_u32 s{sOB}, s3, 896")
        vD0, vD1, vWO = 14, 16, 17
        def role_setup():
            P(f"s_mul_i32 s3, s{sCI}, -512\ns_add_u32 s3, s3, 4096\nv_lshlrev_b32 v{vD0}, 4, v0\nv_add_u32 v{vD1}, s3, v{vD0}")
            P(f"s_lshl3_add_u32 s3, s{sRT}, s{sP}\ns_lshl_b32 s3, s3, 7\ns_mul_i32 s7, s{sCI}, {WS_VF - WS_KF:#x}\ns_add_u32 s3, s3, s7\ns_add_u32 s{sT3}, s3, {WS_KF:#x}")
            P(f"s_mul_i32 s{sT1}, s{sP}, {PAIR}\ns_mul_i32 s3, s{sRT}, 7168\ns_add_u32 s3, s3, s{sT1}\ns_mul_i32 s7, s{sCI}, {WS_V - WS_K:#x}\ns_add_u32 s3, s3, s7\ns_add_u32 s{sSX+4}, s3, {WS_K:#x}")
            for n in range(4):
                P(f"s_sub_u32 s3, s{sSX+4}, {7168*(4-n)}\ns_cmp_lt_u32 s{sRT}, {4-n}\ns_cselect_b32 s{sSX+n}, s{sWS+2}, s3")
            P(f"s_mul_i32 s3, s{sU}, 10\nv_lshrrev_b32 v116, 1, v0\nv_add_u32 v116, s3, v116\nv_lshl_add_u32 v117, s{sRT}, 3, v116\nv_cmp_le_u32 vcc, 32, v117")
            P(f"v_mov_b32 v113, 0x3f803f80\nv_and_b32 v117, 1, v0\nv_cndmask_b32 v112, 0, v113, vcc\nv_lshlrev_b32 v117, 6, v117\nv_lshl_add_u32 v116, v116, 10, v117")
            P(f"v_mov_b32 v113, v112\nv_mov_b32 v114, v112\nv_mov_b32 v115, v112")
        def ones():
            P(f"s_mov_b64 exec, 0xfffff\nds_write_b128 v116, v[112:115] offset:{L_VT + 896}\ns_mov_b64 exec, -1")
        p7state = {}
        def run(sched, extra={}):
            for tok in sched.split():
                if tok in extra: extra[tok]()
                elif tok[0] in "KVQAX" and tok[1:].isdigit(): ld(tok[0], int(tok[1:]))
                elif tok[0] == "f" and tok != "fs": fill(len(F) if tok == "f*" else int(tok[1:]))
                elif tok[0] == "w": vm.wait((tok[1], int(tok[2:])))
                elif tok[0] == "b": bar(tok[1:], (tok[1], int(tok[2:])) if tok[1] != "S" else None)
                elif tok == "nonce": P(f"s_waitcnt lgkmcnt(0)\n{NONCE}")
                elif tok == "lg0": P("s_waitcnt lgkmcnt(0)")
                elif tok == "oad": out_addr()
                elif tok == "fs": flag_setup(P)
                elif tok == "kf": sflag(["s[18:19]"], False)
                elif tok == "vf": sflag(["s[4:5]"], False)
                elif tok == "ef": sflag(["s[18:19]", "s[4:5]"], True)
                elif tok == "a1a": a1(0, o["a1cut"])
                elif tok == "a1b": a1(o["a1cut"], 14)
                elif tok == "lva": lva()
                elif tok == "lvb": lvb()
                elif tok == "lvc": lvc()
                elif tok == "rs": role_setup()
                elif tok == "one": ones()
                elif tok == "p7":
                    P(f"s_cmp_eq_u32 s{sP}, 7\ns_cbranch_scc1 L_p7")
                    p7state.update(fi=fi, q=list(vm.q))
                elif tok == "join": P("L_p7join:")
                else: raise ValueError(tok)
        run(o["sched"])
        P(f"s_cmp_eq_u32 s{sU}, 3\ns_cbranch_scc1 L_roleV\ns_cmp_eq_u32 s{sU}, 2\ns_cbranch_scc1 L_roleT\ns_cmp_eq_u32 s{sU}, 0\ns_cbranch_scc1 L_roleN")
        vq_saved = list(vm.q); nb_saved = nbar
        def k_ld(n):
            for z in range(7):
                if z in (0, 4): P(f"s_mov_b32 m0, {L_KT + n*7168 + z*1024}")
                P(f"buffer_load_dwordx4 v{vD0 if z < 4 else vD1}, {sr(sWS,4)}, s{sSX+n} offen offset:{(z&3)*1024} sc1 lds"); vm.add(("k", n))
        ex = {"kp": self.inbox_issue, "kw": lambda: (self.inbox_wait(), self.stamp("r1"))}
        for n in range(5): ex[f"k{n}"] = (lambda n=n: k_ld(n))
        run(o["schedK"], ex)
        P("v_mov_b32 v112, 1\nv_mov_b32 v113, 2")
        vm.wait(("k", 3)); P(f"ds_write_b32 v{vFL}, v112"); self.stamp("r2")
        vm.all(); P(f"ds_write_b32 v{vFL}, v113")
        P("s_branch L_rolesdone")
        P("L_roleN:"); vm.q = list(vq_saved); nbar = nb_saved
        run(" ".join(t for t in o["schedT"].split() if t not in ("ts", "tst")))
        P("s_branch L_rolesdone")
        P("L_roleT:"); vm.q = list(vq_saved); nbar = nb_saved
        def t_setup():
            P(f"v_xor_b32 v21, v19, v0\nv_lshlrev_b32 v21, 4, v21\nv_add_u32 v21, {L_TS}, v21\nv_xor_b32 v22, 64, v21")
            for n in range(8): P(f"ds_read_b128 {vr(24+4*n,4)}, v{21+(n&1)} offset:{1024*n}")
            P(f"v_and_b32 v23, 0x70, v{vD0}\nv_bfe_u32 v22, v0, 3, 1\nv_lshl_add_u32 v23, v22, 13, v23\nv_mul_u32_u24 v22, {TST}, v19\nv_add_u32 v23, v22, v23")
            P(f"s_lshl_b32 s{sT0}, s{sS2}, 7\ns_lshl_b32 s3, s{sEG}, 14\ns_add_u32 s{sT0}, s{sT0}, s3\ns_add_u32 s{sT0}, s{sT0}, {WS_T:#x}")
            P(f"s_lshr_b32 s7, s{sS2}, 3\ns_lshl3_add_u32 s3, s{sEG}, s7\ns_lshl_b32 s3, s3, 7\ns_and_b32 s7, s{sS2}, 7\ns_lshl2_add_u32 s3, s7, s3")
            P(f"s_add_u32 s{sT2}, s3, {WS_TF:#x}")
        def t_store():
            if o["twait"] >= 0: self.lds_wait(vFL, o["twait"], 1, 22)
            else: P("s_waitcnt lgkmcnt(0)")
            for n in range(8):
                P(f"buffer_store_dwordx4 {vr(24+4*n,4)}, v23, {sr(sWS,4)}, s{sT0} offen sc1\ns_add_u32 s{sT0}, s{sT0}, {4*TST}"); vm.add(("T", 0))
        run(o["schedT"], {"ts": t_setup, "tst": t_store})
        P(f"s_waitcnt vmcnt(0)\ns_atomic_swap s{sNONCE}, s[18:19], s{sT2}")
        self.stamp("r1")
        P("s_branch L_rolesdone")
        P("L_roleV:"); vm.q = list(vq_saved); nbar = nb_saved
        run(o["schedV"], {"vp": self.inbox_issue})
        P(f"v_mov_b32 v112, 1\nv_mov_b32 v113, 2\ns_mov_b32 exec_hi, 0x00ffffff")
        self.inbox_wait()
        self.stamp("r1")
        for n in (4, 3, 2, 1, 0):
            for z in range(8):
                P(f"s_mov_b32 m0, {L_VT + n*8192 + (z>>2)*4096 + (z&3)*128}")
                P(f"buffer_load_dwordx4 v{vD1 if z >> 2 else vD0}, {sr(sWS,4)}, s{sSX+n} offen offset:{896*(z&3)} sc1 lds"); vm.add(("v", n))
            if n == o.get("vi", 1): P(f"ds_write_b32 v{vFL}, v112 offset:20")
        P(f"s_mov_b64 exec, -1")
        P(f"v_lshrrev_b32 v{vWO}, 3, v0\nv_mul_u32_u24 v{vWO}, 896, v{vWO}\nv_lshrrev_b32 v28, 2, v0\nv_and_b32 v28, 4, v28\nv_xor_b32 v28, v28, v0\nv_and_b32 v28, 7, v28")
        P(f"s_lshl_b32 s3, s{sP}, 7\nv_lshl_add_u32 v{vWO}, v28, 4, v{vWO}\nv_add_u32 v{vWO}, s3, v{vWO}")
        P(f"s_and_b32 s{sROT}, s{sRT}, 3\ns_lshl_b32 s{sROT}, s{sROT}, 1")
        def wo_loop(nch):
            Lw = P.label("wo")
            P(f"s_mov_b32 s{sT2}, {nch}\n{Lw}:\ns_lshl_b32 s{sT1}, s{sROT}, 13\ns_add_u32 m0, s{sT1}, {L_WQ(0)}\ns_mul_i32 s{sT0}, s{sROT}, {64*896}")
            for z in range(8):
                P(f"buffer_load_dwordx4 v{vWO}, {sr(sWO,4)}, s{sT0} offen lds")
                if z < 7: P(f"s_addk_i32 m0, 1024\ns_addk_i32 s{sT0}, 7168")
            P(f"s_add_u32 s{sROT}, s{sROT}, 1\ns_cmp_eq_u32 s{sROT}, 7\ns_cselect_b32 s{sROT}, 0, s{sROT}\ns_sub_u32 s{sT2}, s{sT2}, 1\ns_cmp_lg_u32 s{sT2}, 0\ns_cbranch_scc1 {Lw}")
            for _ in range(8 * nch): vm.add(("w", 0))
        self.lds_wait(vFL, 2, 4, 25)
        vm.wait(("v", 3)); P(f"ds_write_b32 v{vFL}, v112 offset:4"); self.stamp("r2")
        P(f"s_cmp_eq_u32 s{sP}, 7\ns_cbranch_scc1 L_v7end")
        T(f"L_v7end:\ns_waitcnt vmcnt(0)\nds_write_b32 v{vFL}, v113 offset:4\ns_branch L_g2end")
        nw = o.get("wo1", 1)
        if nw: wo_loop(nw)
        vm.wait(("v", 0)); P(f"ds_write_b32 v{vFL}, v113 offset:4"); self.stamp("r3")
        wo_loop(7 - nw)
        vm.all()
        P(f"L_rolesdone:")
        self.stamp("roled")
        P(f"s_cmp_eq_u32 s{sP}, 7\ns_cbranch_scc1 L_g2end\ns_waitcnt lgkmcnt(0)")
        P("s_barrier")
        self.stamp("bw")
        WF = 144
        for ks in range(28):
            for t in range(2):
                P(f"ds_read_b64_tr_b16 {vr(WF+4*ks+2*t,2)}, v{vTR} offset:{ks*2048 + t*512}")
        P("s_setprio 2\ns_waitcnt lgkmcnt(0)")
        lg = Cnt(P, "lgkmcnt", 15)
        oa = LdsAddr(P, vOR)
        OF = 32
        nm = 0
        def omf():
            nonlocal nm
            q, s = nm >> 2, nm & 3
            lg.wait((q, s))
            P(MF32(64, WF + 4*nm, OF + 16*(q & 1) + 4*s, "0" if nm == 0 else 64)); nm += 1
        for q in range(7):
            P("s_barrier"); self.stamp(f"bo{q}")
            for s in range(4):
                if nm < 4 * q: omf()
                for t in range(2):
                    off = oa.off(L_O(q) + (4*s + t) * 256)
                    P(f"ds_read_b64 {vr(OF + 16*(q&1) + 4*s + 2*t, 2)}, v{vOR} offset:{off}"); lg.add((q, s))
            while nm < 4 * q + 4 - o.get("lago", 3): omf()
        while nm < 28: omf()
        self.out_epilogue(64, 24, vWR, vRD, vG0, vG1, f"s{sOB}", o["outmod"])
        self.stamp("fin")
        P(f"L_g2end:")
        self.stamp_out()
        P("s_endpgm")
        P("L_p7:")
        fi = p7state["fi"]; vm.q = p7state["q"]; nbar = 0
        run(o["sched7"])
        P("s_waitcnt vmcnt(0)\ns_branch L_p7join")

    def g1(self):
        P = self.P; o = self.o; T = self.tail
        vXA, vWK, vWV, vWQ, vKS, vVS, vZ, vDA, vKR, vVR, vOS, vOP, vNON, vFL, vL, vH = 1, 5, 6, 7, 8, 10, 11, 13, 14, 15, 16, 17, 18, 19, 12, 20
        vSA, vSB = 21, 22
        QF, FM = 24, 32
        AK, AV, AQ, CD, WF, XF = 48, 64, 80, 96, 112, 144
        sG, sKO, sVO, sMODE, sFB, sOFo, sOO = sSW, sSW + 1, sSW + 2, sSW + 3, sSW + 4, sSW + 5, sSW + 6
        c = math.log2(math.e) / math.sqrt(28)
        P("L_g1:")
        self.stamp("G.in")
        P(f"s_waitcnt lgkmcnt(0)\ns_load_dword s{sNONCE}, s[18:19], {WS_E}")
        srd(P, sWS, 18, WS_SIZE); srd(P, sWO, 12, 448*896)
        P(f"s_mov_b32 s{sXA+2}, {2048*896:#x}\ns_mov_b32 s{sXA+3}, 0x20000")
        if o["pf7"]:
            Lp = P.label("pf")
            P(f"s_cmp_lg_u32 s{sP}, 7\ns_cbranch_scc1 {Lp}")
            P(f"s_and_b32 s7, s{sRT}, 3\ns_lshl2_add_u32 s7, s7, s{sU}\ns_mul_i32 s10, s7, {128*896}\ns_mul_i32 s11, s3, {8*896}\ns_add_u32 s10, s10, s11")
            P(f"v_lshlrev_b32 v40, 7, v0\ns_mov_b32 exec_hi, 0x00ffffff")
            for seg in range(2):
                P(f"buffer_load_dword v47, v40, {sr(sXA,4)}, s10 offen\ns_add_u32 s10, s10, {64*896}")
            if o["pfwo"]: P(f"s_mul_i32 s10, s7, 25088\ns_mov_b32 exec_hi, 0x0001ffff")
            for k in range(o["pfwo"]):
                P(f"buffer_load_dword v47, v40, {sr(sWO,4)}, s10 offen\ns_add_u32 s10, s10, {49*128}")
            P(f"s_mov_b64 exec, -1\n{Lp}:")
        if o["touch"]:
            Lt = P.label("tch")
            P(f"s_cmp_lg_u32 s{sU}, 0\ns_cbranch_scc1 {Lt}\nv_lshlrev_b32 v40, 21, v0\nv_add_u32 v41, 0x800, v40\ns_mov_b64 exec, 15")
            P(f"buffer_load_dword v47, v41, {sr(sWS,4)}, 0 offen\nbuffer_load_dword v47, v40, {sr(sXA,4)}, 0 offen\nbuffer_load_dword v47, v40, {sr(sWO,4)}, 0 offen")
            P(f"s_mov_b64 exec, -1\ns_lshl3_add_u32 s3, s{sRT}, s{sP}\ns_lshl_b32 s3, s3, 7\ns_add_u32 s7, s3, {WS_KF:#x}\ns_load_dword s10, s[18:19], s7 glc\ns_add_u32 s7, s3, {WS_VF:#x}\ns_load_dword s11, s[18:19], s7 glc")
            P(f"{Lt}:")
        P(f"v_and_b32 v{vL}, 31, v0\nv_lshrrev_b32 v{vH}, 5, v0\nv_bfe_u32 v42, v0, 1, 3\nv_xor_b32 v42, v42, v{vH}")
        P(f"s_lshl_b32 s3, s{sR}, 12\nv_lshl_add_u32 v43, v{vL}, 7, s3\nv_lshl_add_u32 v{vXA}, v42, 4, v43")
        for s in range(1, 4): P(f"v_xor_b32 v{vXA+s}, {32*s}, v{vXA}")
        P(f"s_lshl_b32 s{sT0}, s{sCI}, 6")
        self.tr_addr(vWK, 42, 43, True, sT0)
        P(f"s_lshl1_add_u32 s{sG}, s{sRT}, s{sR}")
        P(f"s_lshl1_add_u32 s3, s{sP}, s{sCI}\ns_mov_b32 s7, {PAIR - 7*512}\nv_lshl_add_u32 v42, s3, 2, v{vH}")
        for s in range(2):
            P(f"v_mul_u32_u24 v43, 37, v42\nv_lshrrev_b32 v43, 8, v43\nv_mul_lo_u32 v43, v43, s7\nv_lshl_add_u32 v43, v42, 9, v43\nv_lshl_add_u32 v{vKS+s}, v{vL}, 4, v43")
            if s == 0: P("v_add_u32 v42, 2, v42")
        P(f"s_mul_i32 s3, s{sG}, 3584\ns_add_u32 s{sKO}, s3, {WS_K:#x}\ns_add_u32 s{sVO}, s3, {WS_V:#x}")
        P(f"v_mov_b32 v{vZ}, 0\nv_mov_b32 v{vFL}, {L_FLAG}\nv_and_b32 v42, 7, v0\nv_lshl_add_u32 v42, v42, 2, v{vFL}\nds_write_b32 v42, v{vZ}")
        P(f"s_getreg_b32 s7, hwreg(HW_REG_XCC_ID, 0, 4)\ns_lshl_b32 s3, s{sRT}, 7\ns_add_u32 s{sT1}, s3, {WS_XF:#x}\ns_lshl2_add_u32 s3, s{sP}, s{sT1}")
        P(f"s_waitcnt lgkmcnt(0)\n{NONCE}\ns_add_u32 s8, s6, s7\ns_mov_b32 s9, s8")
        Lx = P.label("xc")
        P(f"s_cmp_lg_u32 s{sU}, 0\ns_cbranch_scc1 {Lx}\ns_atomic_swap s8, s[18:19], s3\n{Lx}:\ns_setprio 1")
        self.stamp("G.set")
        lg = Cnt(P, "lgkmcnt", 15)
        xa = [LdsAddr(P, vXA + s) for s in range(4)]
        wa = {"K": LdsAddr(P, vWK), "V": LdsAddr(P, vWV, L_WV(0)), "Q": LdsAddr(P, vWQ, L_WQ(0))}
        wl = {"K": L_WK, "V": L_WV, "Q": L_WQ}
        acc = {"K": AK, "V": AV, "Q": AQ}
        def reads(kind, q, s):
            if kind == "K":
                off = xa[s].off(L_X(q))
                P(f"ds_read_b128 {vr(XF + 16*q + 4*s, 4)}, v{vXA+s} offset:{off}"); lg.add((q, s))
            for t in range(2):
                off = wa[kind].off(wl[kind](q) + s*2048 + t*512)
                P(f"ds_read_b64_tr_b16 {vr(WF + 16*(q&1) + 4*s + 2*t, 2)}, v{wa[kind].reg} offset:{off}"); lg.add((q, s))
        def mf(kind, q, s):
            lg.wait((q, s))
            w, x, a = WF + 16*(q & 1) + 4*s, XF + 16*q + 4*s, acc[kind]
            cc = "0" if (q == 0 and s == 0) else a
            P(MF32(a, x, w, cc) if kind == "V" else MF32(a, w, x, cc))
        def pack(a, half):
            for i in range(4): P(f"v_cvt_pk_bf16_f32 v{QF+4*half+i}, v{a+8*half+2*i}, v{a+8*half+2*i+1}")
        def proj(kind, bars, pre={}, lagn=4, slices={}):
            steps = [(q, s) for q in range(7) for s in range(4)]
            nm = 0
            for ph in range(7):
                if ph in pre: pre[ph]()
                if ph in bars: P("s_barrier"); self.stamp(f"G.b{kind}{ph}")
                for s in range(4):
                    if nm < 4 * ph: mf(kind, *steps[nm]); nm += 1
                    reads(kind, ph, s)
                while nm < 4 * ph + 4 - (lagn if isinstance(lagn, int) else lagn[ph]): mf(kind, *steps[nm]); nm += 1
                for l in slices.get(ph, []): P(l)
            if 7 in pre: pre[7]()
            while nm < 28: mf(kind, *steps[nm]); nm += 1
        D = Prog()
        vE, vB, vA, vC, vS = 64, 65, 66, 68, 72
        D(f"v_and_b32 v{vA}, 15, v0\nv_lshl_add_u32 v{vA}, s{sR}, 4, v{vA}\nv_cvt_f32_u32 v{vA}, v{vA}\nv_mul_f32 v{vE}, {fl(1/32)}, v{vA}")
        D(f"v_lshrrev_b32 v{vA}, 2, v0\nv_and_b32 v{vA}, 12, v{vA}\nv_cvt_f32_u32 v{vA}, v{vA}\ns_mul_i32 s3, s{sCI}, {f2u(-0.25):#x}\nv_fma_f32 v{vB}, v{vE}, v{vA}, s3")
        for j in range(8): D(f"v_fmamk_f32 v{vC+j}, v{vE}, {fl(16*(j>>2)+(j&3))}, v{vB}")
        for j in range(8): D(f"v_cos_f32 v{vC+j}, v{vC+j}")
        for jj in range(4): D(f"v_cvt_pk_bf16_f32 v{CD+8+jj}, v{vC+2*jj}, v{vC+2*jj+1}")
        D(f"v_lshl_add_u32 v{vA}, v{vL}, 5, s{sRT}\nv_cvt_f32_u32 v{vA}, v{vA}\nv_mul_f32 v{vE}, {fl(1/2048)}, v{vA}")
        D(f"v_lshl_add_u32 v{vA}, s{sU}, 1, v{vH}\nv_lshlrev_b32 v{vA}, 3, v{vA}\nv_cvt_f32_u32 v{vA}, v{vA}\nv_mul_f32 v{vB}, v{vE}, v{vA}")
        for par in range(2):
            for jj in range(4): D(f"v_fmamk_f32 v{vS+jj}, v{vE}, {fl(2*jj + par)}, v{vB}")
            for jj in range(4): D(f"v_cos_f32 v{vC+jj}, v{vS+jj}")
            for jj in range(4): D(f"v_sin_f32 v{vS+jj}, v{vS+jj}")
            for jj in range(4): D(f"v_cvt_pk_bf16_f32 v{CD+4*par+jj}, v{vC+jj}, -v{vS+jj}")
        n6 = (len(D.lines) + 4) // 5
        P(f"s_cmp_eq_u32 s{sP}, 7\ns_cbranch_scc1 L_x7")
        T("L_x7:"); T.extend(D.lines); T("s_barrier")
        xa7 = [LdsAddr(T, vXA + s) for s in range(4)]
        for q in range(7):
            for s in range(4):
                off = xa7[s].off(L_X(q))
                T(f"ds_read_b128 {vr(XF + 16*q + 4*s, 4)}, v{vXA+s} offset:{off}")
        T("s_waitcnt lgkmcnt(0)\ns_branch L_s1")
        T("L_v7:\n" + "s_barrier\n" * 6 + f"ds_read_b32 v44, v{vFL} offset:12\ns_waitcnt lgkmcnt(0)\ns_branch L_vdone")
        proj("K", range(7), lagn=o.get("lagk", (4, 4, 4, 4, 4, 2, 2)), slices={ph: D.lines[ph*n6:(ph+1)*n6] for ph in range(5)})
        for h in range(2):
            pack(AK, h)
            P(f"buffer_store_dwordx4 {vr(QF+4*h,4)}, v{vKS+h}, {sr(sWS,4)}, s{sKO} offen sc1")
        self.stamp("G.kst")
        P("L_s1:\ns_barrier\ns_setprio 0")
        Ly = P.label("xi")
        P(f"s_cmp_lg_u32 s{sU}, 1\ns_cbranch_scc1 {Ly}\ns_load_dwordx8 s[20:27], s[18:19], s{sT1} glc\n{Ly}:")
        P(f"s_lshl_b32 s{sT0}, s{sCI}, 6\ns_add_u32 s{sT0}, s{sT0}, {L_WV(0)}")
        self.tr_addr(vWV, 42, 43, False, sT0)
        P(f"s_mul_i32 s{sT0}, s{sCI}, 48\ns_add_u32 s{sT0}, s{sT0}, {L_WQ(0)}")
        self.tr_addr(vWQ, 42, 43, True, sT0)
        P(f"s_lshl1_add_u32 s3, s{sP}, s{sCI}\nv_lshl_add_u32 v42, s3, 5, v{vL}\nv_mul_u32_u24 v43, 1171, v42\nv_lshrrev_b32 v43, 16, v43\ns_mov_b32 s7, {PAIR - 896}")
        P(f"v_mul_lo_u32 v43, v43, s7\nv_lshl_add_u32 v43, v42, 4, v43\nv_mul_u32_u24 v42, 896, v{vH}\nv_add_u32 v{vVS}, v42, v43")
        P(f"s_mul_i32 s3, s3, 1792\ns_mul_i32 s7, s{sG}, 28672\ns_add_u32 s3, s3, s7\ns_add_u32 s{sOO}, s3, {WS_O:#x}")
        P(f"s_lshl3_add_u32 s3, s{sRT}, s{sP}\ns_lshl2_add_u32 s3, s3, s{sU}\ns_lshl_b32 s3, s3, 2\ns_add_u32 s{sOFo}, s3, {WS_OF:#x}\ns_mov_b32 s{sFB}, 0")
        P(f"s_lshl_b32 s3, s{sRT}, 7\nv_lshl_add_u32 v{vOP}, v{vL}, 2, s3\nv_lshl_add_u32 v{vDA}, v0, 4, s{sT4}\nv_mov_b32 v{vNON}, s{sNONCE}")
        P(f"v_add_u32 v42, {L_F}, v{vDA}\nds_write_b128 v42, {vr(CD+8,4)}")
        Lx = P.label("xm")
        P(f"s_cmp_lg_u32 s{sU}, 1\ns_cbranch_scc1 {Lx}_e\ns_mov_b32 s{sT5}, {SPIN}\n{Lx}:\ns_waitcnt lgkmcnt(0)")
        for k in range(4): P(f"s_cmp_lg_u64 {sr(20+2*k,2)}, s[8:9]\ns_cbranch_scc1 {Lx}_n")
        self.lds_set(vFL, 3, 44, 1 if o['olocal'] else 0)
        P(f"{Lx}_e:")
        T(f"{Lx}_n:\ns_mov_b32 s3, 0")
        for k in range(8): T(f"s_sub_u32 s7, s{20+k}, s6\ns_max_u32 s3, s3, s7")
        T(f"s_cmp_lt_u32 s3, 16\ns_cbranch_scc1 {Lx}_e\ns_load_dwordx8 s[20:27], s[18:19], s{sT1} glc\ns_sub_u32 s{sT5}, s{sT5}, 1\ns_cbranch_scc0 {Lx}\ns_branch {Lx}_e")
        P(f"s_waitcnt lgkmcnt(0)\ns_setprio 1\ns_cmp_eq_u32 s{sP}, 7\ns_cbranch_scc1 L_v7")
        self.stamp("G.i1")
        proj("V", (0, 2, 3, 4, 5, 6), {2: lambda: P("s_waitcnt vmcnt(0)"), 3: lambda: (P(f"ds_read_b32 v44, v{vFL} offset:12"), lg.add("m"))})
        for h in range(2):
            pack(AV, h)
            P(f"buffer_store_dwordx4 {vr(QF+4*h,4)}, v{vVS}, {sr(sWS,4)}, s{sVO} offen offset:{1792*h} sc1")
        P(f"L_vdone:\nv_readfirstlane_b32 s{sMODE}, v44")
        def otouch():
            Lo = P.label("ot")
            P(f"v_lshlrev_b32 v42, 7, v0\ns_cmp_eq_u32 s{sMODE}, 0\ns_cbranch_scc1 {Lo}\ns_mov_b64 exec, 0x3fff\nbuffer_load_dword v47, v42, {sr(sWS,4)}, s{sOO} offen sc1")
            P(f"s_mov_b64 exec, 1\nbuffer_load_dword v47, v42, {sr(sWS,4)}, s{sOFo} offen sc1\ns_mov_b64 exec, -1\n{Lo}:")
        if o["otouch"] == 1: otouch()
        self.stamp("G.vst")
        P("s_barrier\ns_setprio 0")
        P(f"v_add_u32 v42, {L_M}, v{vDA}\nds_write_b128 v42, {vr(CD,4)}\nds_write_b128 v42, {vr(CD+4,4)} offset:4096")
        P(f"v_lshlrev_b32 v42, 2, v{vH}\nv_sub_u32 v23, v{vL}, v42")
        def mask(E, dst, far):
            E(f"v_cvt_f32_i32 v42, v23\nv_mul_f32 v42, {fl(-BIG if far else BIG)}, v42")
            for i in range(16):
                k = 8*(i >> 2) + (i & 3)
                E(f"v_add_f32 v{dst+i}, {fl((k-1)*BIG if far else -k*BIG)}, v42")
            for i in range(16): E(f"v_min_f32 v{dst+i}, 0, v{dst+i}")
        mask(P, AV, False)
        P(f"s_mov_b32 s3, 0x0b0b0909")
        for k in range(8):
            k0 = 8 * (k >> 1) + 2 * (k & 1)
            P(f"v_subrev_u32 v42, {k0}, v23\nv_subrev_u32 v43, {k0+1}, v23\nv_perm_b32 v{FM+k}, v43, v42, s3")
        P(f"s_mul_i32 s3, s{sR}, 3584\ns_mul_i32 s7, s{sCI}, 1536\ns_add_u32 s3, s3, s7\ns_add_u32 s3, s3, {L_KT}\nv_lshl_add_u32 v{vKR}, v0, 4, s3")
        P(f"v_cmp_gt_u32 vcc, 28, v{vL}\ns_mul_i32 s3, s{sCI}, 28\nv_add_u32 v42, s3, v{vL}\ns_lshl_b32 s7, s{sCI}, 2\ns_sub_u32 s7, 60, s7\nv_mov_b32 v43, s7")
        P(f"v_cndmask_b32 v42, v43, v42, vcc\ns_lshl_b32 s3, s{sR}, 12\nv_lshl_add_u32 v42, v42, 4, s3\nv_lshl_add_u32 v{vVR}, v{vH}, 10, v42")
        P(f"v_cmp_gt_u32 vcc, s{sCI}, v{vH}\nv_cmp_lt_u32 s[8:9], s{sCI}, v{vH}\nv_lshlrev_b32 v42, 3, v{vL}\nv_lshl_add_u32 v{vOS}, v{vH}, 8, v42\nv_mov_b32 v42, {fl(c)}")
        P(f"v_cndmask_b32 v{vSA}, v42, v{vZ}, vcc\nv_cndmask_b32 v{vSB}, v42, v{vZ}, s[8:9]")
        vWR, vRD, vG0, vG1, vTA, MF_, TF_, AE = 1, 3, 4, 5, 8, 176, 144, 64
        self.scratch_addr(vWR, vRD, L_TS, 52)
        P(f"s_lshl_b32 s3, s{sR}, 10\ns_add_u32 s3, s3, s{sRT}\nv_lshl_add_u32 v56, v54, 5, s3\ns_cmp_eq_u32 s{sCI}, 1\ns_cselect_b64 vcc, -1, 0")
        for dst in (vG0, vG1):
            P(f"v_sub_u32 v57, 0, v56\nv_and_b32 v57, 2047, v57\nv_cndmask_b32 v57, v56, v57, vcc\nv_mul_u32_u24 v57, 1792, v57\nv_add_u32 v{dst}, v57, v55")
            if dst == vG0: P("v_add_u32 v56, 512, v56")
        P(f"v_and_b32 v54, 19, v0\nv_bfe_u32 v55, v0, 2, 1\nv_lshl_add_u32 v54, v55, 3, v54\nv_bfe_u32 v55, v0, 3, 1\nv_lshl_add_u32 v54, v55, 2, v54")
        P(f"v_sub_u32 v55, 32, v54\nv_cndmask_b32 v54, v54, v55, vcc\nv_lshrrev_b32 v55, 5, v54\nv_and_b32 v54, 31, v54\nv_lshlrev_b32 v54, 2, v54")
        P(f"v_lshl_add_u32 v54, v55, 13, v54\nv_lshl_add_u32 v54, v{vH}, 10, v54\nv_add_u32 v{vTA}, {L_TT}, v54\nv_add_u32 v{vTA+1}, 128, v{vTA}")
        P(f"s_lshl_b32 s3, s{sP}, 6\ns_sub_u32 s7, 832, s3\ns_cmp_eq_u32 s{sCI}, 1\ns_cselect_b32 s10, s7, s3")
        srd(P, sOUT, 14, 2048*1792)
        vTP = (6, 10)
        P(f"v_lshrrev_b32 v42, 3, v0\nv_lshlrev_b32 v42, 7, v42\nv_and_b32 v43, 7, v0\nv_lshl_add_u32 v42, v43, 2, v42\nv_add_u32 v42, {WS_TF - WS_OF}, v42")
        P(f"s_lshr_b32 s3, s{sP}, 1\ns_and_b32 s7, s{sP}, 1\nv_lshl_add_u32 v{vTP[0]}, s3, 10, v42\nv_lshl_add_u32 v{vTP[1]}, s7, 10, v{vTP[0]}")
        P(f"s_mul_i32 s{sT3}, s{sRT}, {TST}\ns_lshl_b32 s3, s{sP}, 13\ns_add_u32 s{sT3}, s{sT3}, s3\ns_add_u32 s{sT3}, s{sT3}, {WS_T:#x}")
        P(f"s_mov_b32 s{sT0}, {WS_OF:#x}\ns_mul_i32 s{sT1}, s{sRT}, {2*28672}\ns_add_u32 s{sT1}, s{sT1}, {WS_O:#x}\ns_add_u32 s{sT2}, s{sT1}, 28672")
        P(f"s_mov_b32 s11, {fl(c)}\ns_setprio 1")
        self.stamp("G.i2")
        proj("Q", o["qbars"], {o.get("qack", 0): lambda: P("s_waitcnt vmcnt(0)")}, lagn=o.get("lagq", (4, 4, 4, 4, 4, 2, 2)))
        S = lambda n: AK if n == 0 else (AV if n == 8 else XF + 16 * (n - 1))
        vM = 40
        KB, VB = WF, WF + 16
        pend = []
        def kread(i):
            for s in range(2):
                pend.append((f"ds_read_b128 {vr(KB + 8*((i+2)&3) + 4*s, 4)}, v{vKR} offset:{(8-i)*3584 + s*1024}", ("k", i)))
        def vread(i):
            for s in range(2):
                pend.append((f"ds_read_b128 {vr(S(8-i) + 8*s + 4, 4)}, v{vVR} offset:{(8-i)*4096 + s*2048}", ("v", i)))
        def flagrd(idx): pend.append((f"ds_read_b32 v44, v{vFL} offset:{4*idx}", "flag"))
        def drain(n=99):
            while pend and n > 0:
                t, tag = pend.pop(0); P(t); lg.add(tag); n -= 1
        def flagchk(idx, val, name, redo=[]):
            L = P.label("fc")
            lg.wait("flag")
            P(f"v_cmp_gt_u32 vcc, {val}, v44\ns_cbranch_vccnz {L}\n{L}_b:")
            T(f"{L}:\nds_read_b32 v44, v{vFL} offset:{4*idx}")
            for t in redo: T(t)
            T(f"s_waitcnt lgkmcnt(0)\nv_cmp_gt_u32 vcc, {val}, v44\ns_nop 0\ns_cbranch_vccnz {L}\ns_branch {L}_b")
            self.stamp(name)
        self.lds_signal(vFL, 2, 40); lg.add("sig")
        if o["otouch"] == 2: otouch()
        for i in range(16):
            sc = f"v{vSA}" if i < 4 else (f"v{vSB}" if i >= 12 else "s11")
            P(f"v_mul_f32 v{AQ+i}, {sc}, v{AQ+i}")
            if i == 7:
                flagrd(0); kread(0); kread(1); redo = [t for t, _ in pend[1:]]; drain()
        pack(AQ, 0); pack(AQ, 1)
        self.stamp("G.q")
        Lk = P.label("kw")
        lg.wait("flag")
        P(f"v_cmp_gt_u32 vcc, 1, v44\ns_cbranch_vccz {Lk}_d\n{Lk}:\nds_read_b32 v44, v{vFL}")
        P.extend(redo)
        P(f"s_waitcnt lgkmcnt(4)\nv_cmp_gt_u32 vcc, 1, v44\ns_cbranch_vccnz {Lk}\n{Lk}_d:")
        self.stamp("G.ck")
        def qk(i, s, nd=2):
            n = 8 - i
            lg.wait(("k", i))
            P(MF32(S(n), KB + 8*((i+2) & 3) + 4*s, QF + 4*s, S(n) if (s == 1 or n == 8) else CD)); drain(nd)
        npv = 0
        def pv(nd=2):
            nonlocal npv
            i, s = npv >> 1, npv & 1
            assert not any(t == ("v", i) for _, t in pend)
            lg.wait(("v", i))
            P(MF32(AQ, S(8 - i) + 8*s + 4, S(8 - i) + 8*s, "0" if npv == 0 else AQ)); npv += 1; drain(nd)
        def pvl(s):
            lg.wait(("v", 8)); P(MF32(AQ, KB + 4*s, S(0) + 8*s, AQ))
        kread(2)
        qk(0, 0); qk(0, 1)
        b = S(8)
        P(f"s_mov_b32 s3, {fl(-40.0)}\nv_max_f32 v{vM}, v{b}, v{b+1}\nv_max_f32 v{vM+1}, v{b+2}, v{b+3}")
        for k in range(2, 7): P(f"v_max3_f32 v{vM+(k&1)}, v{vM+(k&1)}, v{b+2*k}, v{b+2*k+1}")
        P(f"v_max3_f32 v{vM+1}, v{vM+1}, v{b+14}, v{b+15}\nv_max_f32 v42, v{vM}, v{vM+1}\nv_max_f32 v{vM+1}, v{vM}, v{vM+1}\nv_permlane32_swap_b32 v42, v{vM+1}\nv_max_f32 v{vM}, v42, v{vM+1}")
        for k in range(16): P(f"v_sub_f32 v{CD+k}, s3, v{vM}")
        for k in range(16):
            P(f"v_add_f32 v{b+k}, v{b+k}, v{CD}")
            if k == 1: qk(1, 0)
            if k == 5: flagrd(0)
            if k == 8: qk(1, 1)
        self.stamp("G.p1")
        lag = o["pvlag"]
        vnext = 0
        for i in range(9):
            b = S(8 - i)
            if i == 1: flagchk(0, 2, "G.k2"); kread(3); kread(4)
            if 2 <= i and i + 3 < 9: kread(i + 3)
            if i == lag - 1: flagchk(1, 1, "G.fv")
            if i == lag: flagchk(1, 2, "G.v2")
            if i >= lag - 1:
                lim = min(i, 3 if i == lag - 1 else 9, vnext + (3 if lag > 4 else 2))
                while vnext < lim: vread(vnext); vnext += 1
            if i == 7:
                for s in range(2): pend.append((f"ds_read_b128 {vr(KB + 4*s, 4)}, v{vVR} offset:{s*2048}", ("v", 8)))
            if i in (lag - 2, lag - 1): flagrd(1)
            mfs = []
            if 1 <= i < 8: mfs += [lambda i=i: qk(i + 1, 0, 3), lambda i=i: qk(i + 1, 1, 3)]
            ready = 2 * len([t for t in range(vnext) if not any(tag == ("v", t) for _, tag in pend)])
            k_ = 0
            while npv + k_ < ready and k_ < 4: mfs.append(pv); k_ += 1
            rest = []
            if i == 8:
                mfs = [pv] * (16 - npv) + [lambda: pvl(0)]
                mfs, rest = mfs[:6], mfs[6:]
            slots = {0: [], 1: [1], 2: [0, 5], 3: [0, 5, 11], 4: [0, 4, 8, 12], 5: [0, 4, 8, 11, 14], 6: [0, 3, 6, 8, 11, 14]}[len(mfs)]
            for pos in range(16):
                P(f"v_exp_f32 v{b+pos}, v{b+pos}")
                if pos in slots: mfs.pop(0)()
                if pos in (7, 15):
                    h = pos >> 3
                    for k in range(4): P(f"v_cvt_pk_bf16_f32 v{b+8*h+k}, v{b+8*h+2*k}, v{b+8*h+2*k+1}")
                    if i == 8:
                        for k in range(4): P(f"v_and_b32 v{b+8*h+k}, v{b+8*h+k}, v{FM+4*h+k}")
            drain()
        assert vnext == 8
        for f in rest: f()
        pvl(1)
        P(f"L_onorm:\ns_cmp_eq_u32 s{sMODE}, 0")
        P(f"v_mov_b32 v40, v{AQ+12}\nv_mov_b32 v41, v{AQ+12}\nv_permlane32_swap_b32 v40, v41\nv_rcp_f32 v41, v41\ns_cbranch_scc1 L_oslow")
        def ostore(E, mod):
            for a in range(4):
                for k in range(4): E(f"v_mul_f32 v{CD+4*a+k}, v{AQ+4*a+k}, v41")
                for k in range(2): E(f"v_cvt_pk_bf16_f32 v{VB+2*a+k}, v{CD+4*a+2*k}, v{CD+4*a+2*k+1}")
                if a == 3: E("s_mov_b32 exec_hi, 0")
                E(f"buffer_store_dwordx2 {vr(VB+2*a,2)}, v{vOS}, {sr(sWS,4)}, s{sOO} offen offset:{512*a} {mod}")
            E("s_mov_b64 exec, -1")
        ostore(P, o["omod"])
        P("L_ostored:")
        T("L_oslow:"); ostore(T, "sc1"); T("s_branch L_ostored")
        self.stamp("G.ost")
        P(f"v_mul_f32 v40, 0, v{AQ}\nv_mul_f32 v41, 0, v{AQ+1}")
        for k in range(2, 16): P(f"v_fmac_f32 v{40+(k&1)}, 0, v{AQ+k}")
        P(f"v_cmp_u_f32 vcc, v40, v41")
        if o["force_fb"]: P("s_mov_b64 vcc, -1")
        P(f"v_lshlrev_b32 v42, 4, v0\ns_cbranch_vccnz L_fallback\nL_ochecked:\nv_add_u32 v42, {L_M}, v42")
        for s in range(8): P(f"ds_read_b128 {vr(MF_+4*s,4)}, v42 offset:{1024*s}")
        P(f"s_mov_b64 exec, 1\ns_cmp_eq_u32 s{sMODE}, 0\ns_waitcnt vmcnt(0)\ns_cbranch_scc1 L_ofslow")
        P(f"buffer_store_dword v{vNON}, v{vZ}, {sr(sWS,4)}, s{sOFo} offen\nL_oflagged:\ns_mov_b64 exec, -1")
        T(f"L_ofslow:\nbuffer_store_dword v{vNON}, v{vZ}, {sr(sWS,4)}, s{sOFo} offen sc1\ns_branch L_oflagged")
        self.stamp("G.oack")
        P(f"s_cmp_eq_u32 s{sP}, 7\ns_cbranch_scc1 L_epoch")
        for k in range(2): P(f"buffer_load_dword v{45+k}, v{vTP[k]}, {sr(sWS,4)}, s{sT0} offen sc1")
        P(f"s_barrier")
        self.poll([(vOP, 0)], 44, sT0)
        self.stamp("G.op")
        def odma(q):
            for r_ in range(2):
                P(f"s_add_u32 m0, s{sT4}, {L_O(q) + r_*4096}\ns_nop 0\nbuffer_load_dwordx4 v{vDA}, {sr(sWS,4)}, s{sT1+r_} offen sc1 lds\ns_add_u32 s{sT1+r_}, s{sT1+r_}, 4096")
        def tdma():
            for q in range(4):
                P(f"s_add_u32 m0, s{sT4}, {L_TT + q*4096}\ns_nop 0\nbuffer_load_dwordx4 v{vDA}, {sr(sWS,4)}, s{sT3} offen sc1 lds\ns_add_u32 s{sT3}, s{sT3}, 4096")
        for q in range(4): odma(q)
        P(f"v_cmp_ne_u32 vcc, s{sNONCE}, v45\nv_cmp_ne_u32 s[8:9], s{sNONCE}, v46\ns_waitcnt vmcnt(6)\ns_barrier")
        for q in range(4, 6): odma(q)
        P("s_waitcnt vmcnt(8)\ns_barrier")
        odma(6)
        P(f"s_or_b64 vcc, vcc, s[8:9]\ns_waitcnt vmcnt(8)\ns_barrier\ns_cbranch_scc1 L_tlate")
        tdma()
        for q in range(3, 7):
            P(f"s_waitcnt vmcnt({16-2*q})\ns_barrier")
        P("L_tgo:")
        P(f"s_mul_i32 s3, s{sR}, 0x80008000\ns_waitcnt lgkmcnt(0)")
        for k in range(16): P(f"v_xor_b32 v{MF_+16+k}, s3, v{MF_+16+k}")
        P("s_waitcnt vmcnt(0)")
        self.lds_signal(vFL, 4, 44)
        self.lds_wait(vFL, 4, 4, 44)
        self.stamp("G.tl")
        lg.q = []
        for s in range(8):
            if s == 7: lg.wait(0); P(MF32(AE, TF_, MF_, "0"))
            for t in range(2):
                o0 = 8*(s & 3) + 2*t
                P(f"ds_read2st64_b32 {vr(TF_+4*s+2*t,2)}, v{vTA+(s>>2)} offset0:{o0} offset1:{o0+1}"); lg.add(s)
        for s in range(1, 8):
            lg.wait(s); P(MF32(AE, TF_ + 4*s, MF_ + 4*s, AE))
        self.out_epilogue(AE, 24, vWR, vRD, vG0, vG1, "s10", o["outmod"])
        self.stamp("G.fin")
        P("L_g1end:")
        self.stamp_out()
        P("L_end:\ns_endpgm")
        P("L_tlate:")
        for q in range(3, 7):
            P(f"s_waitcnt vmcnt({12-2*q})\ns_barrier")
        self.poll([(vTP[0], 0), (vTP[1], 0)], 45, sT0)
        tdma()
        P("s_branch L_tgo")
        P("L_epoch:")
        if not o.get("pft", True): P(f"s_cmp_lg_u32 s{sRT}, 31\ns_cbranch_scc1 L_g1end")
        P(f"s_cmp_lg_u32 s{sU}, 0\ns_cbranch_scc1 L_g1end\ns_sub_u32 s{sT0}, s{sT0}, 3072\ns_sub_u32 s{sT3}, s{sT3}, {7*8192}\nv_lshlrev_b32 v42, 7, v0")
        self.poll([(vTP[0], 0), (vTP[0], 1024), (vTP[0], 2048), (vTP[0], 3072)], 50, sT0)
        if o.get("pft", True):
            for k in range(8): P(f"buffer_load_dword v47, v42, {sr(sWS,4)}, s{sT3} offen sc1\ns_add_u32 s{sT3}, s{sT3}, 8192")
        P(f"s_cmp_lg_u32 s{sRT}, 31\ns_cbranch_scc1 L_g1end")
        P(f"s_mov_b64 exec, 1\nbuffer_store_dword v{vNON}, v{vZ}, {sr(sWS,4)}, 0 offen offset:{WS_E} sc1\ns_branch L_g1end")
        P("L_fallback:")
        P(f"s_cmp_lg_u32 s{sFB}, 0\ns_cbranch_scc1 L_ochecked\ns_mov_b32 s{sFB}, 1\ns_waitcnt vmcnt(0)")
        mask(P, AK, True); mask(P, AV, False)
        P(f"v_mov_b32 v{vM}, {fl(-BIG)}")
        for n in range(9):
            P(f"ds_read_b128 {vr(KB,4)}, v{vKR} offset:{n*3584}\nds_read_b128 {vr(KB+4,4)}, v{vKR} offset:{n*3584+1024}")
            if n <= 7:
                P(f"s_cmp_lt_u32 s{sG}, {8-n}\ns_cselect_b32 s3, {fl(-BIG)}, 0")
                for k in range(16): P(f"v_mov_b32 v{S(n)+k}, s3" if n else f"v_min_f32 v{S(n)+k}, s3, v{S(n)+k}")
            P("s_waitcnt lgkmcnt(0)")
            for s in range(2): P(MF32(S(n), KB + 4*s, QF + 4*s, S(n)))
            for k in range(8): P(f"v_max3_f32 v{vM}, v{vM}, v{S(n)+2*k}, v{S(n)+2*k+1}")
        P(f"v_mov_b32 v{vM+1}, v{vM}\nv_permlane32_swap_b32 v{vM}, v{vM+1}\nv_max_f32 v{vM}, v{vM}, v{vM+1}")
        for n in range(9):
            b = S(n)
            P(f"ds_read_b128 {vr(VB,4)}, v{vVR} offset:{n*4096}\nds_read_b128 {vr(VB+4,4)}, v{vVR} offset:{n*4096+2048}")
            for k in range(16): P(f"v_sub_f32 v{b+k}, v{b+k}, v{vM}")
            for k in range(16): P(f"v_exp_f32 v{b+k}, v{b+k}")
            for k in range(8): P(f"v_cvt_pk_bf16_f32 v{b+k}, v{b+2*k}, v{b+2*k+1}")
            P("s_waitcnt lgkmcnt(0)")
            for s in range(2): P(MF32(AQ, VB + 4*s, b + 4*s, "0" if (n == 0 and s == 0) else AQ))
        P("s_nop 11\ns_branch L_onorm")

    def build(self):
        self.prologue(); self.g2()
        self.P.extend(self.tail.lines); self.tail.lines = []
        self.g1()
        fb = self.P.lines.index("L_fallback:")
        lines = self.P.lines[:fb] + self.tail.lines + ["L_codeend:"] + self.P.lines[fb:]
        body, pad = pad_hazards(lines)
        hdr = open(os.path.join(os.path.dirname(os.path.abspath(__file__)), "header.txt")).read()
        if self.o["stamps"]: hdr += "; STAMPS " + self.o["stamps"] + (" MIXED" if self.o["mixed"] else "") + "\n"
        s = hdr + "; @launch grid=(256,1,1) block=(512,1,1) lds=163840\n"
        s += '.amdgcn_target "amdgcn-amd-amdhsa--gfx950"\n.text\n'
        s += f".globl {NAME}\n.p2align 8\n.type {NAME},@function\n{NAME}:\n"
        s += "\n".join(("" if l.endswith(":") else "    ") + l for l in body) + "\n    s_endpgm\n"
        s += f""".section .rodata,"a"
.p2align 6
.amdhsa_kernel {NAME}
  .amdhsa_next_free_vgpr 256
  .amdhsa_next_free_sgpr 102
  .amdhsa_accum_offset 256
  .amdhsa_group_segment_fixed_size 0
  .amdhsa_kernarg_size 88
  .amdhsa_user_sgpr_count 2
  .amdhsa_user_sgpr_kernarg_segment_ptr 1
  .amdhsa_system_sgpr_workgroup_id_x 1
.end_amdhsa_kernel
"""
        return s, pad

if __name__ == "__main__":
    opts = {}
    out = sys.argv[1]
    for a in sys.argv[2:]:
        k, v = a.split("=", 1); opts[k] = v if k in STR_OPTS else eval(v)
    s, pad = Gen(**opts).build()
    open(out, "w").write(s)
    print("written", out, "pad states", pad, "lines", s.count("\n"))
```

```python
import sys, math, struct, os
sys.path.insert(0, os.path.dirname(os.path.abspath(__file__)))
from asmlib import *

NAME = "concat_heads__spectral_fnet__sliding_block__prompt_kernel"

def f2u(x): return struct.unpack("<I", struct.pack("<f", x))[0]
def fl(x): return f"{f2u(x):#x}"

WS_E = 0
WS_KF, WS_VF, WS_OF, WS_TF, WS_XF = 0x10000, 0x18000, 0x20000, 0x28000, 0x30000
WS_K, WS_V, WS_O, WS_T = 0x201000, 0x401000, 0x601000, 0x800000
WS_STAMP = 0xA80000
WS_SIZE = 0xB00000
PAIR = 64 * 3584
TST = 65536 + 384
SL = 8192
def L_X(q): return 2 * q * SL
def L_WK(q): return (2 * q + 1) * SL
def L_WV(q): return (18 + q) * SL if q < 2 else (q - 2) * SL
L_XA = 14 * SL
def L_WQ(q): return (5 + q) * SL
L_KT = 13 * SL
L_VT = 0
L_F = 13 * SL
L_FLAG = 18 * SL - 64
L_TS = 12 * SL
L_OUT = 18 * SL
L_M = 19 * SL
L_TT = 15 * SL
def L_O(q): return q * SL if q < 5 else (13 + q - 5) * SL
sNONCE = 6
sXB, sW, sWKV, sXA, sWO, sOUT, sWS = 20, 48, 28, 32, 36, 40, 44
sU, sRT, sP, sS2, sEG, sR, sCI, sWV = 52, 53, 54, 55, 56, 57, 58, 59
sSX, sSW = 60, 67
sT0, sT1, sT2, sT3, sT4, sT5 = 74, 75, 76, 77, 78, 79
sROT, sFO = 8, 9
sGB = [12, 13, 14, 15, 8]
sSTAMP = 80
NSTAMP = 11
SPIN = 1 << 14
BIG = 2.0 ** 100

class Cnt:
    def __init__(self, prog, name, maxn):
        self.p, self.name, self.maxn = prog, name, maxn
        self.q = []
    def add(self, tag=None): self.q.append(tag)
    def wait(self, tag):
        idx = [i for i, t in enumerate(self.q) if t == tag]
        if not idx: return
        n = min(len(self.q) - 1 - idx[-1], self.maxn)
        self.p(f"s_waitcnt {self.name}({n})")
        self.q = self.q[len(self.q) - n:] if n else []
    def all(self):
        self.p(f"s_waitcnt {self.name}(0)"); self.q = []

def srd(P, d, lo, nrec):
    P(f"s_mov_b64 {sr(d,2)}, {sr(lo,2)}\ns_mov_b32 s{d+2}, {nrec:#x}\ns_mov_b32 s{d+3}, 0x20000")

def MF32(d, a, b, c): return f"v_mfma_f32_32x32x16_bf16 {vr(d,16)}, {vr(a,4)}, {vr(b,4)}, {c if isinstance(c,str) else vr(c,16)}"
def MF16(d, a, b, c): return f"v_mfma_f32_16x16x32_bf16 {vr(d,4)}, {vr(a,4)}, {vr(b,4)}, {c if isinstance(c,str) else vr(c,4)}"
NONCE = f"s_mul_i32 s{sNONCE}, s{sNONCE}, 0x9E3779C1\ns_add_u32 s{sNONCE}, s{sNONCE}, 0x7FEB3560"

STR_OPTS = ("pre", "items", "stamps", "sched", "sched7", "schedT", "schedK", "schedV", "ina1", "outmod", "omod")

class Gen:
    def __init__(self, **o):
        self.o = dict(stamps=False, codepf=True, mixed=False, npre=2, outmod="sc1", olocal=True, omod="", pvlag=4, pf7=True,
            otouch=1, hops=False, align=True, force_fb=False, pfwo=0, touch=False, twait=5, a1cut=8,
            two=True, items="K0b K1b K2b K3b K4b K5b K6b V0b V1 V2b V3b V4b V5b V6b", kst=11, fmw=10, fks=9, pre="X0 W0 X1 W1", rot=0, warm=2,
            g1f0=40, g1cuts={0: 8, 1: 8, 2: 8, 3: 8},
            sched="f188 nonce xt p7 K2 bK0 K3 f16 bK1 K4 f16 bK2 K5 f16 bK3 K6 xa f16 bK4 A0 A1 A2 A3 f16 bK5 A4 A5 A6 bK6 V0 V1 f* xc wA6 bS0 join a1a page bV1 V5 V6 bV2 kf Q0 bV3 bV4 Q1 bV5 bV6 "
                  "a1b lva bQ1 lvb lvc",
            sched7="X2 X3 f* ef X4 X5 X6 xa A0 A1 A2 A3 A4 A5 A6 bK6 xc lg0 wA6 bS0",
            ina1="0:V2 2:V3 4:V4 12:bS1,one,Q2,Q3,Q4", qbars=(0, 2, 3, 5, 6),
            schedT="bQ2 vf Q5 Q6 bQ4 bQ5 bQ6 ts tst",
            schedK="kp bQ2 Q5 Q6 kw bQ4 k4 k3 bQ5 k2 bQ6 k1 k0",
            schedV="bQ2 Q5 Q6 bQ4 bQ5 vp bQ6")
        self.o.update(o)
        self.P = Prog()
        self.tail = Prog()

    def stamp(self, name):
        if not self.o["stamps"]: return
        if name == 0: self.P(f"s_memtime {sr(sSTAMP, 2)}"); return
        for lst in self.o["stamps"].split("|"):
            l = lst.split(",")
            if name in l: self.P(f"{'s_memrealtime' if self.o.get('rt') else 's_memtime'} {sr(sSTAMP + 2*(1+l.index(name)), 2)}")

    def stamp_out(self):
        if not self.o["stamps"]: return
        P = self.P
        P(f"s_waitcnt vmcnt(0)\ns_memtime {sr(sSTAMP+16,2)}\ns_memrealtime {sr(sSTAMP+18,2)}\ns_waitcnt lgkmcnt(0)\ns_mov_b64 exec, 1")
        if self.o.get("enc") is not None:
            k = self.o["enc"]; L = P.label("enc"); D = P.label("encd")
            P(f"s_cmp_lg_u32 s{sWV}, {self.o['encwv']}\ns_cbranch_scc1 {D}\ns_cmp_eq_u32 s{sP}, 7\ns_cbranch_scc1 {D}")
            if self.o.get("encwg", -1) >= 0: P(f"s_cmp_lg_u32 s2, {self.o['encwg']}\ns_cbranch_scc1 {D}")
            if k == 9: P(f"s_sub_u32 s3, s{sSTAMP+18}, s{sSTAMP+20}\ns_lshl_b32 s3, s3, 2")
            else: P(f"s_sub_u32 s3, s{sSTAMP+2*k}, s{sSTAMP}\ns_lshr_b32 s3, s3, 2")
            P(f"s_min_u32 s3, s3, 50000\ns_add_u32 s3, s3, 5000")
            P(f"{L}:\ns_memrealtime s[4:5]\ns_waitcnt lgkmcnt(0)\ns_sub_u32 s4, s4, s{sSTAMP+20}\ns_cmp_lt_u32 s4, s3\ns_cbranch_scc1 {L}\n{D}:")
            return
        for i in range(NSTAMP): P(f"v_mov_b32 v{4+i}, s{sSTAMP+2*i}")
        P(f"s_getreg_b32 s3, hwreg(HW_REG_XCC_ID)\nv_mov_b32 v15, s3")
        P(f"s_lshl_b32 s3, s2, 3\ns_add_u32 s3, s3, s{sWV}\ns_lshl_b32 s3, s3, 6\ns_add_u32 s3, s3, {WS_STAMP:#x}\nv_mov_b32 v1, 0")
        for k in range(3): P(f"buffer_store_dwordx4 v[{4+4*k}:{7+4*k}], v1, {sr(sWS,4)}, s3 offen offset:{16*k}")

    def into(self, prog, f, *a):
        keep = self.P; lab = keep._lab
        self.P = prog; prog._lab = max(prog._lab, lab)
        f(*a)
        keep._lab = max(prog._lab, lab); self.P = keep

    HOPS = (("g2p1", "roleN"), ("roleT", "roleV"), ("g1p1", "fc"), ("g1p2", "done"))
    def pad(self, name, inline=False, E=None):
        E = E or self.P
        if not self.o["hops"]: return
        nxt = "L_hopret"
        for ch in self.HOPS:
            if name in ch[:-1]: nxt = "L_pad_" + ch[ch.index(name) + 1]
        if inline: E(f"s_branch L_over_{name}\nL_pad_{name}:\ns_branch {nxt}\nL_over_{name}:")
        else: E(f"L_pad_{name}:\ns_branch {nxt}")

    def tr_addr(self, dst, t0, t1, perm, sbase):
        P = self.P
        P(f"v_bfe_u32 v{t0}, v0, 4, 1\nv_lshl_add_u32 v{t0}, v{t0}, 5, s{sbase}")
        if perm:
            P(f"v_and_b32 v{t1}, 1, v0\nv_lshl_add_u32 v{t0}, v{t1}, 4, v{t0}")
            P(f"v_bfe_u32 v{t1}, v0, 1, 1\nv_lshl_add_u32 v{t0}, v{t1}, 3, v{t0}")
        else:
            P(f"v_and_b32 v{t1}, 3, v0\nv_lshl_add_u32 v{t0}, v{t1}, 3, v{t0}")
        P(f"v_and_b32 v{t1}, 8, v0\nv_lshlrev_b32 v{t1}, 3, v{t1}\nv_xor_b32 v{t0}, v{t0}, v{t1}")
        P(f"v_and_b32 v{t1}, 44, v0\nv_lshl_add_u32 v{dst}, v{t1}, 5, v{t0}")

    def inbox_setup(self, base):
        self.P(f"s_lshl3_add_u32 s3, s{sRT}, s{sP}\ns_lshl_b32 s3, s3, 7\ns_add_u32 s{sT3}, s3, {base:#x}")
    def inbox_issue(self, E=None):
        (E or self.P)(f"s_load_dwordx16 s[20:35], s[18:19], s{sT3} glc")
    def inbox_wait(self):
        P = self.P; L = P.label("kvp")
        P(f"s_mov_b32 s{sT5}, {SPIN}\ns_mov_b32 s7, s{sNONCE}\n{L}:\ns_waitcnt lgkmcnt(0)")
        P("s_xor_b64 s[20:21], s[20:21], s[6:7]")
        for n in range(1, 5):
            P(f"s_xor_b64 {sr(20+2*n,2)}, {sr(20+2*n,2)}, s[6:7]\ns_or_b64 s[20:21], s[20:21], {sr(20+2*n,2)}")
        P(f"s_cbranch_scc0 {L}_d")
        self.inbox_issue()
        P(f"s_sub_u32 s{sT5}, s{sT5}, 1\ns_cbranch_scc0 {L}\ns_waitcnt lgkmcnt(0)\n{L}_d:")
    def group_bases(self, base):
        P = self.P
        P(f"s_mul_i32 s{sT1}, s{sP}, {PAIR}\ns_mul_i32 s3, s{sRT}, 7168\ns_add_u32 s3, s3, s{sT1}\ns_add_u32 s{sSX+4}, s3, {base:#x}")
        for n in range(4):
            P(f"s_sub_u32 s3, s{sSX+4}, {7168*(4-n)}\ns_cmp_lt_u32 s{sRT}, {4-n}\ns_cselect_b32 s{sSX+n}, s{sWS+2}, s3")

    def poll(self, addrs, vt, sbase):
        P = self.P
        L = P.label("poll")
        P(f"s_mov_b32 s{sT5}, 0\n{L}:")
        for k, (va, imm) in enumerate(addrs):
            P(f"buffer_load_dword v{vt+k}, v{va}, {sr(sWS,4)}, s{sbase} offen offset:{imm} sc1")
        P(f"s_add_u32 s{sT5}, s{sT5}, 1\ns_cmp_gt_u32 s{sT5}, {SPIN}\ns_cbranch_scc1 {L}_d\ns_waitcnt vmcnt(0)")
        for k in range(len(addrs)):
            P(f"v_cmp_ne_u32 vcc, s{sNONCE}, v{vt+k}\ns_cbranch_vccnz {L}")
        P(f"{L}_d:")

    def lds_wait(self, vflag, idx, val, vt):
        P = self.P
        L = P.label("lw")
        P(f"{L}:\nds_read_b32 v{vt}, v{vflag} offset:{4*idx}\ns_waitcnt lgkmcnt(0)\nv_cmp_gt_u32 vcc, {val}, v{vt}\ns_cbranch_vccnz {L}")
    def lds_signal(self, vflag, idx, vt):
        self.P(f"v_mov_b32 v{vt}, 1\ns_mov_b64 exec, 1\nds_add_u32 v{vflag}, v{vt} offset:{4*idx}\ns_mov_b64 exec, -1")
    def lds_set(self, vflag, idx, vt, val):
        self.P(f"v_mov_b32 v{vt}, {val}\nds_write_b32 v{vflag}, v{vt} offset:{4*idx}")

    def scratch_addr(self, vWR, vRD, base, t):
        P = self.P
        P(f"s_lshl_b32 s3, s{sU}, 11\ns_add_u32 s3, s3, {base}")
        P(f"v_and_b32 v{t}, 31, v0\nv_lshrrev_b32 v{t+1}, 5, v0\nv_bfe_u32 v{t+2}, v0, 1, 2\nv_xor_b32 v{t+2}, v{t+2}, v{t+1}")
        P(f"v_lshl_add_u32 v{t+3}, v{t}, 6, s3\nv_lshl_add_u32 v{vWR}, v{t+2}, 4, v{t+3}\nv_xor_b32 v{vWR+1}, 32, v{vWR}")
        P(f"v_lshl_add_u32 v{vRD}, v0, 4, s3")
        P(f"v_lshrrev_b32 v{t+2}, 2, v0\nv_lshrrev_b32 v{t+3}, 3, v0\nv_xor_b32 v{t+3}, v{t+3}, v0\nv_and_b32 v{t+3}, 3, v{t+3}\nv_lshlrev_b32 v{t+3}, 4, v{t+3}")

    def out_epilogue(self, acc, pk, vwr, vrd, vg0, vg1, soff, mod):
        P = self.P
        for h in range(2):
            for i in range(4): P(f"v_cvt_pk_bf16_f32 v{pk+4*h+i}, v{acc+8*h+2*i}, v{acc+8*h+2*i+1}")
            P(f"ds_write_b128 v{vwr+h}, {vr(pk+4*h,4)}")
        P(f"ds_read_b128 {vr(pk,4)}, v{vrd}\nds_read_b128 {vr(pk+4,4)}, v{vrd} offset:1024")
        P(f"s_waitcnt lgkmcnt(1)\nbuffer_store_dwordx4 {vr(pk,4)}, v{vg0}, {sr(sOUT,4)}, {soff} offen {mod}")
        P(f"s_waitcnt lgkmcnt(0)\nbuffer_store_dwordx4 {vr(pk+4,4)}, v{vg1}, {sr(sOUT,4)}, {soff} offen {mod}")

    def prologue(self):
        P = self.P; o = self.o
        P(f"s_cmpk_ge_u32 s2, 256\ns_cbranch_scc1 L_end")
        P(f"s_load_dwordx2 {sr(sXB,2)}, s[0:1], 40\ns_load_dwordx2 {sr(sWKV,2)}, s[0:1], 48\ns_load_dwordx8 s[12:19], s[0:1], 56\ns_load_dwordx2 {sr(sXA,2)}, s[0:1], 0")
        if o["stamps"]:
            P(f"s_memrealtime {sr(sSTAMP + 2*(NSTAMP-1), 2)}")
        self.stamp(0)
        P(f"v_readfirstlane_b32 s{sWV}, v0\nv_and_b32 v0, 63, v0\ns_and_b32 s3, s2, 7\ns_lshr_b32 s7, s2, 3\ns_lshr_b32 s{sWV}, s{sWV}, 6")
        if o["mixed"]:
            P(f"s_and_b32 s{sP}, s3, 1\ns_lshl_b32 s{sP}, s{sP}, 2\ns_and_b32 s{sT1}, s7, 3\ns_add_u32 s{sP}, s{sP}, s{sT1}\ns_lshr_b32 s{sT0}, s7, 2")
            P(f"s_lshr_b32 s{sRT}, s3, 1\ns_lshl3_add_u32 s{sRT}, s{sRT}, s{sT0}\ns_lshl1_add_u32 s{sT0}, s{sT1}, s{sT0}")
        else:
            P(f"s_and_b32 s{sP}, s7, 7\ns_lshr_b32 s{sT0}, s7, 3\ns_lshl2_add_u32 s{sRT}, s3, s{sT0}")
            P({0: f"s_lshl1_add_u32 s{sT0}, s{sT0}, s{sP}", 1: f"s_mov_b32 s{sT0}, s{sP}", 2: f"s_add_u32 s{sT0}, s{sT0}, s{sP}",
               3: f"s_and_b32 s{sT0}, s{sT0}, 1\ns_lshl2_add_u32 s{sT0}, s{sT0}, s{sP}"}[o["rot"]])
        P(f"s_and_b32 s{sU}, s{sWV}, 3\ns_and_b32 s{sR}, s{sU}, 1\ns_lshr_b32 s{sCI}, s{sU}, 1\ns_lshl_b32 s{sT4}, s{sU}, 10")
        P(f"s_cmp_lt_u32 s{sWV}, 4\ns_cbranch_scc1 L_g2")
        if o["codepf"]:
            P(f"s_getpc_b64 s[{sT2}:{sT3}]\nL_pc:")
            P(f"s_lshl2_add_u32 s{sT1}, s7, s{sU}\ns_lshl_b32 s{sT1}, s{sT1}, 8\nv_lshl_add_u32 v2, v0, 2, s{sT1}\nv_min_u32 v2, L_codeend-L_pc-4, v2")
            P(f"v_mov_b32 v3, s{sT3}\nv_add_co_u32 v2, vcc, s{sT2}, v2\nv_addc_co_u32 v3, vcc, 0, v3, vcc")
            P(f"global_load_dword v47, v[2:3], off")
        if o["warm"]:
            P(f"s_lshl2_add_u32 s{sT1}, s2, s{sU}\ns_mulk_i32 s{sT1}, 1184\nv_mul_u32_u24 v2, 20, v0\ns_mov_b32 s{sWKV+2}, {448*2688:#x}\ns_mov_b32 s{sWKV+3}, 0x20000")
            P(f"s_waitcnt lgkmcnt(0)\nbuffer_load_dword v47, v2, {sr(sWKV,4)}, s{sT1} offen")
        P(f"s_branch L_g1")
        P(f"L_g2:")

    def const_stream(self):
        F = []
        vE, vB, vK, vA, vC = 12, 13, 10, 40, 42
        CC, SS = 144, 172
        F += [f"s_lshl2_add_u32 s3, s{sEG}, s{sU}", f"v_and_b32 v{vA}, 15, v0", f"v_lshl_add_u32 v{vA}, s3, 4, v{vA}", f"v_cvt_f32_u32 v{vA}, v{vA}",
              f"v_mul_f32 v{vE}, {fl(1/448)}, v{vA}", f"v_cos_f32 v{vK}, v{vE}",
              f"v_lshrrev_b32 v{vA}, 1, v0", f"v_and_b32 v{vA}, 24, v{vA}", f"v_cvt_f32_u32 v{vA}, v{vA}", f"v_mul_f32 v{vB}, v{vE}, v{vA}",
              f"v_add_f32 v{vK}, v{vK}, v{vK}", f"v_mov_b32 v{vK+1}, v{vK}"]
        for ks in range(7):
            for j in range(2): F.append(f"v_fmamk_f32 v{vA+j}, v{vE}, {fl(32*ks+j)}, v{vB}")
            for j in range(2): F += [f"v_cos_f32 v{vC+2*j}, v{vA+j}", f"v_sin_f32 v{vC+2*j+1}, v{vA+j}"]
            def cv(jj):
                return [f"v_cvt_pk_bf16_f32 v{CC+4*ks+jj}, v{vC+4*jj}, v{vC+4*jj+2}", f"v_cvt_pk_bf16_f32 v{SS+4*ks+jj}, v{vC+4*jj+1}, v{vC+4*jj+3}"]
            pend = cv(0)
            for j in range(2, 8):
                F.append(pend.pop(0))
                if self.o.get("pk", True):
                    F.append(f"v_pk_fma_f32 {vr(vC+2*j,2)}, {vr(vK,2)}, {vr(vC+2*j-2,2)}, {vr(vC+2*j-4,2)} neg_lo:[0,0,1] neg_hi:[0,0,1]")
                else:
                    F += [f"v_fma_f32 v{vC+2*j+h}, v{vK}, v{vC+2*j-2+h}, -v{vC+2*j-4+h}" for h in range(2)]
                if j & 1: pend += cv(j >> 1)
            F += pend
        F += [f"v_and_b32 v{vA}, 15, v0", f"v_lshrrev_b32 v{vA+1}, 1, v{vA}", f"v_lshlrev_b32 v{vA}, 7, v{vA}",
              f"v_add_u32 v{vA}, {L_XA}, v{vA}",
              f"v_lshrrev_b32 v{vC}, 4, v0", f"v_xor_b32 v{vC}, v{vC}, v{vA+1}",
              f"v_lshl_add_u32 v8, v{vC}, 4, v{vA}", f"v_xor_b32 v9, 64, v8", f"v_lshl_or_b32 v11, v0, 31, 1.0",
              f"v_mov_b32 v15, {L_FLAG}"]
        return F

    def g2(self):
        P = self.P; o = self.o; T = self.tail
        vx0, vx1, vw0, vw1, vq0, vq1, vxa = 1, 2, 3, 4, 5, 6, 7
        P(f"v_lshrrev_b32 v16, 3, v0\nv_lshl_add_u32 v16, s{sU}, 3, v16")
        P(f"v_lshrrev_b32 v17, 1, v16\nv_xor_b32 v17, v17, v0\nv_and_b32 v17, 7, v17\nv_lshlrev_b32 v17, 4, v17")
        P(f"v_mul_u32_u24 v{vx0}, 896, v16\nv_add_u32 v{vx0}, v{vx0}, v17\nv_add_u32 v{vx1}, {32*896}, v{vx0}")
        P(f"v_lshrrev_b32 v18, 2, v0\nv_and_b32 v18, 4, v18\nv_xor_b32 v18, v18, v0\nv_and_b32 v18, 7, v18")
        P(f"v_mul_u32_u24 v19, 2688, v16\ns_add_u32 s{sT1}, s{sP}, 7\ns_lshl_b32 s{sT1}, s{sT1}, 7")
        P(f"v_lshl_add_u32 v{vw0}, v18, 4, v19\nv_add_u32 v{vw0}, s{sT1}, v{vw0}\nv_add_u32 v{vw1}, {32*2688}, v{vw0}")
        P(f"s_sub_u32 s{sT1}, s{sT0}, 7\ns_cselect_b32 s{sROT}, s{sT0}, s{sT1}\ns_mul_i32 s{sT2}, s{sRT}, {64*896}")
        P(f"s_lshl_b32 s{sT1}, s{sROT}, 7\ns_add_u32 s{sSX}, s{sT1}, s{sT2}\ns_mul_i32 s{sSW}, s{sROT}, {64*2688}")
        P(f"s_add_u32 s{sSW+1}, s{sSW}, {64*2688}\ns_add_u32 s{sSX+1}, s{sSX}, 128\ns_cmp_eq_u32 s{sROT}, 6\ns_cselect_b32 s{sSW+1}, 0, s{sSW+1}\ns_cselect_b32 s{sSX+1}, s{sT2}, s{sSX+1}")
        P(f"s_cmp_eq_u32 s{sP}, 7\ns_cselect_b32 s{sWKV+2}, 0, {448*2688:#x}")
        P(f"s_mov_b32 s{sWKV+3}, 0x20000\ns_mov_b32 s{sXB+2}, {2048*896:#x}\ns_mov_b32 s{sXB+3}, s{sWKV+3}\ns_mov_b32 m0, s{sT4}")
        P(f"s_waitcnt lgkmcnt(0)")
        self.stamp("karg")
        vm = Cnt(P, "vmcnt", 63)
        cur = 0
        pre = []
        for t in o["pre"].split():
            q = int(t[1])
            if t[0] == "X": pre += [(("K", q), L_X(q), vx0, sXB, sSX + q, 0), (("K", q), L_X(q) + 4096, vx1, sXB, sSX + q, 0)]
            if t[0] == "W": pre += [(("K", q), L_WK(q), vw0, sWKV, sSW + q, 0), (("K", q), L_WK(q) + 4096, vw1, sWKV, sSW + q, 0)]
            if t[0] == "V": pre += [(("V", q), L_WV(q), vw0, sWKV, sSW + q, 896), (("V", q), L_WV(q) + 4096, vw1, sWKV, sSW + q, 896)]
        for tag, lds, va, sd, so, imm in pre:
            d = lds - imm - cur; cur = lds - imm
            if d: P(f"s_addk_i32 m0, {d}" if abs(d) < 32768 else f"s_add_u32 m0, s{sT4}, {cur}")
            P(f"buffer_load_dwordx4 v{va}, {sr(sd,4)}, s{so} offen" + (f" offset:{imm}" if imm else "") + " lds"); vm.add(tag)
        self.stamp("dma0")
        P(f"s_load_dword s{sNONCE}, s[18:19], {WS_E}")
        P(f"s_lshr_b32 s{sT1}, s7, 2\ns_lshl3_add_u32 s{sS2}, s3, s{sT1}\ns_and_b32 s{sEG}, s7, 3")
        for q in range(2, 7):
            P(f"s_add_u32 s{sSX+q}, s{sSX+q-1}, 128\ns_add_u32 s{sSW+q}, s{sSW+q-1}, {64*2688}\ns_cmp_eq_u32 s{sROT}, {7-q}\ns_cselect_b32 s{sSX+q}, s{sT2}, s{sSX+q}\ns_cselect_b32 s{sSW+q}, 0, s{sSW+q}")
        A = Prog()
        srd(A, sW, sWKV, 448*2688); srd(A, sWS, 18, WS_SIZE); srd(A, sWO, 12, 448*896); srd(A, sOUT, 14, 2048*1792)
        A(f"s_mov_b32 s{sXA+2}, {2048*896:#x}\ns_mov_b32 s{sXA+3}, 0x20000\ns_mul_i32 s3, s{sS2}, 896")
        A(f"v_mul_u32_u24 v{vxa}, {64*896}, v16\nv_add3_u32 v{vxa}, v{vxa}, v17, s3")
        A(f"v_min_u32 v20, 6, v18\ns_mul_i32 s3, s{sP}, 112\nv_lshl_add_u32 v{vq0}, v20, 4, v19\nv_add_u32 v{vq0}, s3, v{vq0}\nv_add_u32 v{vq1}, {32*2688}, v{vq0}")
        A(f"s_cmp_eq_u32 s{sP}, 7\ns_cselect_b32 s{sFO}, 1, 0\ns_cmp_eq_u32 s{sR}, 0\ns_cselect_b32 s{sFO}, s{sFO}, 2")
        F = A.lines + self.const_stream()
        fi = 0
        def fill(n):
            nonlocal fi
            while fi + n < len(F) and F[fi + n].startswith(("s_cselect", "s_addc")): n += 1
            for l in F[fi:fi + n]: P(l)
            fi = min(len(F), fi + n)
        nbar = 0
        items = [(t[0], int(t[1]), t.endswith("b")) for t in o["items"].split()]
        safe = {}
        for i, (kind, q, _) in enumerate(items):
            later = [k for k in range(i + 2, len(items)) if items[k][2]]
            nb = sum(it[2] for it in items[:later[0] + 1]) if later else sum(it[2] for it in items) + 1
            if o["two"]: nb = min(nb, 8)
            if kind == "K": safe[L_X(q) // SL] = nb; safe[L_WK(q) // SL] = nb
        def dma(tag, lds, va, srdn, soff):
            if tag[0] != "K" and (lds // SL) in safe: assert nbar >= safe[lds // SL], ("WAR", tag, nbar)
            P(f"s_add_u32 m0, s{sT4}, {lds}\nbuffer_load_dwordx4 v{va}, {sr(srdn,4)}, s{soff} offen lds"); vm.add(tag)
        def ld(kind, q):
            if kind == "K":
                dma(("K", q), L_X(q), vx0, sXB, sSX + q); dma(("K", q), L_WK(q), vw0, sWKV, sSW + q)
                dma(("K", q), L_X(q) + 4096, vx1, sXB, sSX + q); dma(("K", q), L_WK(q) + 4096, vw1, sWKV, sSW + q)
            elif kind == "X":
                dma(("K", q), L_X(q), vx0, sXB, sSX + q); dma(("K", q), L_X(q) + 4096, vx1, sXB, sSX + q)
            elif kind == "V":
                if q == o['pre'].count('V'): P(f"v_add_u32 v{vw0}, 896, v{vw0}\nv_add_u32 v{vw1}, 896, v{vw1}")
                dma(("V", q), L_WV(q), vw0, sWKV, sSW + q); dma(("V", q), L_WV(q) + 4096, vw1, sWKV, sSW + q)
            elif kind == "Q":
                dma(("Q", q), L_WQ(q), vq0, sW, sSW + q); dma(("Q", q), L_WQ(q) + 4096, vq1, sW, sSW + q)
            elif kind == "A":
                P(f"s_add_u32 m0, s{sT4}, {L_XA + q*(4096-128)}\nbuffer_load_dwordx4 v{vxa}, {sr(sXA,4)}, 0 offen offset:{q*128} lds"); vm.add(("A", q))
        def bar(name, tag=None):
            nonlocal nbar
            self.stamp("f" + name)
            if tag: vm.wait(tag)
            self.stamp("w" + name)
            P("s_barrier"); nbar += 1
            self.stamp("b" + name)
        def only(cond, f):
            L = P.label("sk")
            P(f"{cond}\ns_cbranch_scc0 {L}"); f(); P(f"{L}:")
        FO = [24, 25, 26, 27, 11]
        def flag_setup(E):
            E(f"s_add_u32 s3, s{sP}, s{sCI}\ns_and_b32 s3, s3, 7\ns_lshl_b32 s3, s3, 5\ns_sub_u32 s3, s3, s{sCI}\ns_lshl2_add_u32 s3, s3, {WS_KF + 4:#x}")
            for d in range(5):
                E(f"s_add_u32 s7, s{sRT}, {d}\ns_and_b32 s7, s7, 31\ns_lshl_b32 s7, s7, 10\ns_add_u32 s{FO[d]}, s7, s3\ns_add_u32 s3, s3, 8")
            E(f"s_add_u32 s4, s18, {WS_VF - WS_KF:#x}\ns_addc_u32 s5, s19, 0")
        def sflag(bases, early):
            def f():
                for bs in bases:
                    for d in range(5): P(f"s_atomic_swap s{sNONCE}, {bs}, s{FO[d]}")
            only(f"s_cmp_eq_u32 s{sFO}, {int(early)}", f)
        CC, SS, ZC, ZS, ZH = 144, 172, 64, 72, 136
        vFL = 15
        def a1(k0, k1):
            lg = Cnt(P, "lgkmcnt", 15)
            NX = 6
            def xreg(ks): return (24, 32, 40, 48, 56, 112)[ks % NX]
            def xread(ks):
                for mt in range(2):
                    P(f"ds_read_b128 {vr(xreg(ks) + 4*mt, 4)}, v{8 + (ks & 1)} offset:{(ks>>1)*4096 + mt*2048}"); lg.add(("x", ks))
            for ks in range(k0, min(k1, k0 + NX - 1)): xread(ks)
            inl = dict(t.split(":") for t in o["ina1"].split())
            for ks in range(k0, k1):
                if str(ks) in inl:
                    if "kf" in inl[str(ks)]: assert ks >= k1 + 1 - NX; lg.all()
                    run(inl[str(ks)].replace(",", " "))
                lg.wait(("x", ks))
                x = xreg(ks); z = ZH if ks >= 7 else 0; kk = 4 * (ks % 7)
                c = (lambda r: "0" if kk == 0 else r)
                P(MF16(ZC + z, x, CC + kk, c(ZC + z)))
                P(MF16(ZS + z, x, SS + kk, c(ZS + z)))
                if ks + NX - 1 < k1: xread(ks + NX - 1)
                fk = ks - o["fks"]
                if fk in (0, 1):
                    for k in range(2): P(f"ds_read_b128 {vr(96+8*fk+4*k,4)}, v134 offset:{2048*fk+1024*k}"); lg.add("F")
                P(MF16(ZC + z + 4, x + 4, CC + kk, c(ZC + z + 4)))
                P(MF16(ZS + z + 4, x + 4, SS + kk, c(ZS + z + 4)))
            lg.wait("F")
            self.stamp("a1" if k1 == 14 else "a1a")
        ZR, ZP, ZN, TA = 80, 84, 88, 40
        def lva():
            for i in range(16): P(f"v_fmac_f32 v{ZC+i}, v11, v{ZC+ZH+i}")
            for i in range(4): P(f"v_cvt_pk_bf16_f32 v{ZR+i}, v{ZC+2*i}, v{ZC+2*i+1}")
            for i in range(4): P(f"v_cvt_pk_bf16_f32 v{ZP+i}, v{ZS+2*i}, v{ZS+2*i+1}")
            for i in range(4): P(f"v_cvt_pk_bf16_f32 v{ZN+i}, -v{ZS+2*i}, -v{ZS+2*i+1}")
            for nt in range(2):
                P(MF16(TA + 8*nt, ZR, 96 + 4*nt, "0")); P(MF16(TA + 8*nt + 4, ZR, 104 + 4*nt, "0"))
            P(f"v_and_b32 v18, 15, v0\nv_lshrrev_b32 v19, 4, v0\nv_lshl_add_u32 v20, s{sU}, 2, v19\nv_and_b32 v21, 7, v0\nv_xor_b32 v20, v20, v21")
            P(f"v_lshl_add_u32 v20, v18, 4, v20\nv_lshlrev_b32 v20, 4, v20\nv_add_u32 v20, {L_TS}, v20")
        def lvb():
            for nt in range(2):
                P(MF16(TA + 8*nt, ZN, 104 + 4*nt, TA + 8*nt)); P(MF16(TA + 8*nt + 4, ZP, 96 + 4*nt, TA + 8*nt + 4))
        def lvc():
            for nt in range(2):
                for r_ in range(4): P(f"v_cvt_pk_bf16_f32 v{56+4*nt+r_}, v{TA+8*nt+r_}, v{TA+8*nt+4+r_}")
                P(f"ds_write_b128 v20, {vr(56+4*nt,4)} offset:{4096*nt}")
            self.lds_signal(vFL, 6, 21)
        vTR, vWR, vRD, vG0, vG1, vOR = 120, 122, 121, 124, 125, 126
        sOB = 10
        def out_addr():
            P = self.P
            self.scratch_addr(vWR, vRD, L_OUT, 112)
            P(f"v_mul_u32_u24 v{vG0}, 1792, v114\nv_add_u32 v{vG0}, v{vG0}, v115\nv_add_u32 v{vG1}, {16*1792}, v{vG0}")
            P(f"s_lshl_b32 s{sT0}, s{sCI}, 6")
            self.tr_addr(vTR, 116, 117, True, sT0)
            P(f"v_add_u32 v{vTR}, {L_WQ(0)}, v{vTR}")
            P(f"s_lshl_b32 s3, s{sR}, 12\nv_lshl_add_u32 v{vOR}, v112, 3, s3\nv_lshl_add_u32 v{vOR}, v113, 9, v{vOR}")
            P(f"s_lshl1_add_u32 s3, s{sRT}, s{sR}\ns_mul_i32 s3, s3, {32*1792}\ns_lshl_b32 s7, s{sP}, 7\ns_add_u32 s3, s3, s7")
            P(f"s_add_u32 s3, s3, s{sT0}\ns_add_u32 s{sOB}, s3, 896")
        vD0, vD1, vWO = 14, 127, 17
        def role_setup():
            P = self.P
            P(f"s_mul_i32 s3, s{sCI}, -512\ns_add_u32 s3, s3, 4096\nv_lshlrev_b32 v{vD0}, 4, v0\nv_add_u32 v{vD1}, s3, v{vD0}")
            P(f"s_lshl3_add_u32 s3, s{sRT}, s{sP}\ns_lshl_b32 s3, s3, 7\ns_mul_i32 s7, s{sCI}, {WS_VF - WS_KF:#x}\ns_add_u32 s3, s3, s7\ns_add_u32 s{sT3}, s3, {WS_KF:#x}")
            P(f"s_mul_i32 s{sT1}, s{sP}, {PAIR}\ns_mul_i32 s3, s{sRT}, 7168\ns_add_u32 s3, s3, s{sT1}\ns_mul_i32 s7, s{sCI}, {WS_V - WS_K:#x}\ns_add_u32 s3, s3, s7\ns_add_u32 s{sGB[4]}, s3, {WS_K:#x}")
            for n in range(4):
                P(f"s_sub_u32 s3, s{sGB[4]}, {7168*(4-n)}\ns_cmp_lt_u32 s{sRT}, {4-n}\ns_cselect_b32 s{sGB[n]}, s{sWS+2}, s3")
            P(f"s_mul_i32 s3, s{sU}, 10\nv_lshrrev_b32 v132, 1, v0\nv_add_u32 v132, s3, v132\nv_lshl_add_u32 v133, s{sRT}, 3, v132\nv_cmp_le_u32 vcc, 32, v133")
            P(f"v_mov_b32 v129, 0x3f803f80\nv_and_b32 v133, 1, v0\nv_cndmask_b32 v128, 0, v129, vcc\nv_lshlrev_b32 v133, 6, v133\nv_lshl_add_u32 v132, v132, 10, v133")
            P(f"v_mov_b32 v129, v128\nv_mov_b32 v130, v128\nv_mov_b32 v131, v128\nv_add_u32 v134, {L_F}, v{vD0}")
        def ones():
            P(f"s_mov_b64 exec, 0xfffff\nds_write_b128 v132, v[128:131] offset:{L_VT + 896}\ns_mov_b64 exec, -1")
        for f in (lambda: flag_setup(self.P), out_addr, role_setup):
            B = Prog(); self.into(B, f); F += B.lines
            if o.get("verbose"): print("filler length", len(F) - len(B.lines), len(F))
        def die_tell():
            P(f"s_getreg_b32 s4, hwreg(HW_REG_XCC_ID, 0, 4)\ns_lshl_b32 s{sT5}, s{sRT}, 7\ns_add_u32 s{sT2}, s{sT5}, {WS_XF:#x}\ns_lshl2_add_u32 s{sT5}, s{sP}, s{sT2}")
            P(f"s_add_u32 s16, s4, s{sNONCE}\ns_mov_b32 s17, s16\ns_atomic_swap s17, s[18:19], s{sT5}")
        def die_ask(): P(f"s_load_dwordx8 s[20:27], s[18:19], s{sT2} glc")
        def die_check():
            Lx = P.label("xm")
            P(f"s_mov_b32 s{sT5}, {SPIN}\n{Lx}:\ns_waitcnt lgkmcnt(0)")
            for k in range(4): P(f"s_cmp_lg_u64 {sr(20+2*k,2)}, s[16:17]\ns_cbranch_scc1 {Lx}_n")
            self.lds_set(vFL, 3, 21, 1 if o['olocal'] else 0)
            P(f"{Lx}_e:\ns_waitcnt lgkmcnt(0)")
            T(f"{Lx}_n:\ns_sub_u32 s20, s20, s6")
            for k in range(1, 8): T(f"s_sub_u32 s{20+k}, s{20+k}, s6\ns_max_u32 s20, s20, s{20+k}")
            T(f"s_cmp_lt_u32 s20, 16\ns_cbranch_scc1 {Lx}_e\ns_load_dwordx8 s[20:27], s[18:19], s{sT2} glc\ns_sub_u32 s{sT5}, s{sT5}, 1\ns_cbranch_scc0 {Lx}\ns_branch {Lx}_e")
        p7state = {}
        def run(sched, extra={}):
            for tok in sched.split():
                if tok in extra: extra[tok]()
                elif tok[0] in "KVQAX" and tok[1:].isdigit(): ld(tok[0], int(tok[1:]))
                elif tok[0] == "f" and tok != "fs": fill(len(F) if tok == "f*" else int(tok[1:]))
                elif tok[0] == "w": vm.wait((tok[1], int(tok[2:])))
                elif tok[0] == "b": bar(tok[1:], (tok[1], int(tok[2:])) if tok[1] != "S" else None)
                elif tok == "nonce": P(f"s_waitcnt lgkmcnt(0)\n{NONCE}")
                elif tok == "lg0": P("s_waitcnt lgkmcnt(0)")
                elif tok == "oad": out_addr()
                elif tok == "fs": flag_setup(P)
                elif tok == "kf": sflag(["s[18:19]"], False)
                elif tok == "vf": sflag(["s[4:5]"], False)
                elif tok == "ef": sflag(["s[18:19]", "s[4:5]"], True)
                elif tok == "a1": a1(0, 14)
                elif tok == "a1a": a1(0, o["a1cut"])
                elif tok == "a1b": a1(o["a1cut"], 14)
                elif tok == "lva": lva()
                elif tok == "lvb": lvb()
                elif tok == "lvc": lvc()
                elif tok == "rs": role_setup()
                elif tok == "one": ones()
                elif tok == "xt": only(f"s_cmp_eq_u32 s{sU}, 3", die_tell)
                elif tok == "xa": only(f"s_cmp_eq_u32 s{sU}, 3", die_ask)
                elif tok == "xc": only(f"s_cmp_eq_u32 s{sU}, 3", die_check)
                elif tok == "p7":
                    P(f"s_cmp_eq_u32 s{sP}, 7\ns_cbranch_scc1 L_p7")
                    p7state.update(fi=fi, q=list(vm.q))
                elif tok == "join": P("L_p7join:")
                elif tok == "page": P("@JUMPALIGN g2p1"); self.pad("g2p1"); P("L_ja_g2p1:")
                else: raise ValueError(tok)
        run(o["sched"])
        P(f"s_cmp_eq_u32 s{sU}, 3\ns_cbranch_scc1 L_roleV\ns_cmp_eq_u32 s{sU}, 2\ns_cbranch_scc1 L_roleT\ns_cmp_eq_u32 s{sU}, 0\ns_cbranch_scc1 L_roleN")
        vq_saved = list(vm.q); nb_saved = nbar
        def k_ld(n):
            for z in range(7):
                if z in (0, 4): P(f"s_mov_b32 m0, {L_KT + n*7168 + z*1024}")
                P(f"buffer_load_dwordx4 v{vD0 if z < 4 else vD1}, {sr(sWS,4)}, s{sGB[n]} offen offset:{(z&3)*1024} sc1 lds"); vm.add(("k", n))
        ex = {"kp": self.inbox_issue, "kw": lambda: (self.inbox_wait(), self.stamp("r1"))}
        for n in range(5): ex[f"k{n}"] = (lambda n=n: k_ld(n))
        run(o["schedK"], ex)
        P("v_mov_b32 v112, 1\nv_mov_b32 v113, 2")
        vm.wait(("k", 3)); P(f"ds_write_b32 v{vFL}, v112"); self.stamp("r2")
        vm.all(); P(f"ds_write_b32 v{vFL}, v113")
        P("s_branch L_rolesdone")
        self.pad("roleN"); P("L_roleN:"); vm.q = list(vq_saved); nbar = nb_saved
        run(" ".join(t for t in o["schedT"].split() if t not in ("ts", "tst")))
        P("s_branch L_rolesdone")
        self.pad("roleT"); P("L_roleT:"); vm.q = list(vq_saved); nbar = nb_saved
        def t_setup():
            self.lds_wait(vFL, 6, 4, 22)
            P(f"v_xor_b32 v21, v19, v0\nv_lshlrev_b32 v21, 4, v21\nv_add_u32 v21, {L_TS}, v21\nv_xor_b32 v22, 64, v21")
            for n in range(8): P(f"ds_read_b128 {vr(24+4*n,4)}, v{21+(n&1)} offset:{1024*n}")
            P(f"v_and_b32 v23, 0x70, v{vD0}\nv_bfe_u32 v22, v0, 3, 1\nv_lshl_add_u32 v23, v22, 13, v23\nv_mul_u32_u24 v22, {TST}, v19\nv_add_u32 v23, v22, v23")
            P(f"s_lshl_b32 s{sT0}, s{sS2}, 7\ns_lshl_b32 s3, s{sEG}, 14\ns_add_u32 s{sT0}, s{sT0}, s3\ns_add_u32 s{sT0}, s{sT0}, {WS_T:#x}")
            P(f"s_lshr_b32 s7, s{sS2}, 3\ns_lshl3_add_u32 s3, s{sEG}, s7\ns_lshl_b32 s3, s3, 7\ns_and_b32 s7, s{sS2}, 7\ns_lshl2_add_u32 s3, s7, s3")
            P(f"s_add_u32 s{sT2}, s3, {WS_TF:#x}")
        def t_store():
            if o["twait"] >= 0: self.lds_wait(vFL, o["twait"], 1, 22)
            else: P("s_waitcnt lgkmcnt(0)")
            for n in range(8):
                P(f"buffer_store_dwordx4 {vr(24+4*n,4)}, v23, {sr(sWS,4)}, s{sT0} offen sc1\ns_add_u32 s{sT0}, s{sT0}, {4*TST}"); vm.add(("T", 0))
        run(o["schedT"], {"ts": t_setup, "tst": t_store})
        P(f"s_waitcnt vmcnt(0)\ns_atomic_swap s{sNONCE}, s[18:19], s{sT2}")
        self.stamp("r1")
        P("s_branch L_rolesdone")
        self.pad("roleV"); P("L_roleV:"); vm.q = list(vq_saved); nbar = nb_saved
        run(o["schedV"], {"vp": self.inbox_issue})
        P(f"v_mov_b32 v112, 1\nv_mov_b32 v113, 2\ns_mov_b32 exec_hi, 0x00ffffff")
        self.inbox_wait()
        self.stamp("r1")
        for n in (4, 3, 2, 1, 0):
            for z in range(8):
                P(f"s_mov_b32 m0, {L_VT + n*8192 + (z>>2)*4096 + (z&3)*128}")
                P(f"buffer_load_dwordx4 v{vD1 if z >> 2 else vD0}, {sr(sWS,4)}, s{sGB[n]} offen offset:{896*(z&3)} sc1 lds"); vm.add(("v", n))
            if n == o.get("vi", 1): P(f"ds_write_b32 v{vFL}, v112 offset:20")
        P(f"s_mov_b64 exec, -1")
        P(f"v_lshrrev_b32 v{vWO}, 3, v0\nv_mul_u32_u24 v{vWO}, 896, v{vWO}\nv_lshrrev_b32 v28, 2, v0\nv_and_b32 v28, 4, v28\nv_xor_b32 v28, v28, v0\nv_and_b32 v28, 7, v28")
        P(f"s_lshl_b32 s3, s{sP}, 7\nv_lshl_add_u32 v{vWO}, v28, 4, v{vWO}\nv_add_u32 v{vWO}, s3, v{vWO}")
        P(f"s_and_b32 s{sROT}, s{sRT}, 3\ns_mul_i32 s{sROT}, s{sROT}, {o.get('worot', 2)}")
        def wo_loop(nch):
            Lw = P.label("wo")
            P(f"s_mov_b32 s{sT2}, {nch}\n{Lw}:\ns_lshl_b32 s{sT1}, s{sROT}, 13\ns_add_u32 m0, s{sT1}, {L_WQ(0)}\ns_mul_i32 s{sT0}, s{sROT}, {64*896}")
            for z in range(8):
                P(f"buffer_load_dwordx4 v{vWO}, {sr(sWO,4)}, s{sT0} offen lds")
                if z < 7: P(f"s_addk_i32 m0, 1024\ns_addk_i32 s{sT0}, 7168")
            P(f"s_add_u32 s{sROT}, s{sROT}, 1\ns_cmp_eq_u32 s{sROT}, 7\ns_cselect_b32 s{sROT}, 0, s{sROT}\ns_sub_u32 s{sT2}, s{sT2}, 1\ns_cmp_lg_u32 s{sT2}, 0\ns_cbranch_scc1 {Lw}")
            for _ in range(8 * nch): vm.add(("w", 0))
        self.lds_wait(vFL, 2, 4, 25)
        vm.wait(("v", 3)); P(f"ds_write_b32 v{vFL}, v112 offset:4"); self.stamp("r2")
        P(f"s_cmp_eq_u32 s{sP}, 7\ns_cbranch_scc1 L_v7end")
        T(f"L_v7end:\ns_waitcnt vmcnt(0)\nds_write_b32 v{vFL}, v113 offset:4\ns_branch L_g2end")
        nw = o.get("wo1", 1)
        if nw: wo_loop(nw)
        vm.wait(("v", 0)); P(f"ds_write_b32 v{vFL}, v113 offset:4"); self.stamp("r3")
        wo_loop(7 - nw)
        vm.all()
        P("@JUMPALIGN done"); self.pad("done")
        P(f"L_ja_done:\nL_rolesdone:")
        self.stamp("roled")
        P(f"s_cmp_eq_u32 s{sP}, 7\ns_cbranch_scc1 L_g2end\ns_waitcnt lgkmcnt(0)")
        P("s_barrier")
        self.stamp("bw")
        WF = 144
        for ks in range(28):
            for t in range(2):
                P(f"ds_read_b64_tr_b16 {vr(WF+4*ks+2*t,2)}, v{vTR} offset:{ks*2048 + t*512}")
        P("s_setprio 2\ns_waitcnt lgkmcnt(0)")
        lg = Cnt(P, "lgkmcnt", 15)
        oa = LdsAddr(P, vOR)
        OF = 32
        nm = 0
        def omf():
            nonlocal nm
            q, s = nm >> 2, nm & 3
            lg.wait((q, s))
            P(MF32(64, WF + 4*nm, OF + 16*(q & 1) + 4*s, "0" if nm == 0 else 64)); nm += 1
        for q in range(7):
            P("s_barrier"); self.stamp(f"bo{q}")
            for s in range(4):
                if nm < 4 * q: omf()
                for t in range(2):
                    off = oa.off(L_O(q) + (4*s + t) * 256)
                    P(f"ds_read_b64 {vr(OF + 16*(q&1) + 4*s + 2*t, 2)}, v{vOR} offset:{off}"); lg.add((q, s))
            while nm < 4 * q + 4 - o.get("lago", 3): omf()
        while nm < 28: omf()
        self.out_epilogue(64, 24, vWR, vRD, vG0, vG1, f"s{sOB}", o["outmod"])
        self.stamp("fin")
        P(f"L_g2end:")
        self.stamp_out()
        P("s_endpgm")
        P("L_p7:")
        fi = p7state["fi"]; vm.q = p7state["q"]; nbar = 99
        run(o["sched7"])
        P("s_branch L_p7join")

    def g1(self):
        P = self.P; o = self.o; T = self.tail
        vXA, vWK, vWV, vWQ, vKS, vVS, vZ, vDA, vKR, vVR, vOS, vOP, vNON, vFL, vL, vH = 1, 5, 6, 7, 8, 10, 11, 13, 14, 15, 16, 17, 18, 19, 12, 20
        vSA, vSB = 22, 23
        QF, FM = 24, 32
        AK, AV, AQ, CD, WF, XF = 48, 64, 80, 96, 112, 144
        sG, sKO, sVO, sMODE, sFB, sOFo, sOO = sSW, sSW + 1, sSW + 2, sSW + 3, sSW + 4, sSW + 5, sSW + 6
        c = math.log2(math.e) / math.sqrt(28)
        P("L_g1:")
        self.stamp("G.in")
        P(f"s_waitcnt lgkmcnt(0)\ns_load_dword s{sNONCE}, s[18:19], {WS_E}")
        srd(P, sWS, 18, WS_SIZE); srd(P, sWO, 12, 448*896)
        P(f"s_mov_b32 s{sXA+2}, {2048*896:#x}\ns_mov_b32 s{sXA+3}, 0x20000")
        if o["warm"] > 1:
            P(f"s_lshl2_add_u32 s10, s2, s{sU}\ns_mulk_i32 s10, 392\nv_lshlrev_b32 v40, 3, v0\nbuffer_load_dword v47, v40, {sr(sWO,4)}, s10 offen")
        if o["pf7"]:
            Lp = P.label("pf")
            P(f"s_cmp_lg_u32 s{sP}, 7\ns_cbranch_scc1 {Lp}")
            P(f"s_and_b32 s7, s{sRT}, 3\ns_lshl2_add_u32 s7, s7, s{sU}\ns_mul_i32 s10, s7, {128*896}\ns_mul_i32 s11, s3, {8*896}\ns_add_u32 s10, s10, s11")
            P(f"v_lshlrev_b32 v40, 7, v0\ns_mov_b32 exec_hi, 0x00ffffff")
            for seg in range(2):
                P(f"buffer_load_dword v47, v40, {sr(sXA,4)}, s10 offen\ns_add_u32 s10, s10, {64*896}")
            if o["pfwo"]: P(f"s_mul_i32 s10, s7, 25088\ns_mov_b32 exec_hi, 0x0001ffff")
            for k in range(o["pfwo"]):
                P(f"buffer_load_dword v47, v40, {sr(sWO,4)}, s10 offen\ns_add_u32 s10, s10, {49*128}")
            P(f"s_mov_b64 exec, -1\n{Lp}:")
        if o["touch"]:
            Lt = P.label("tch")
            P(f"s_cmp_lg_u32 s{sU}, 0\ns_cbranch_scc1 {Lt}\nv_lshlrev_b32 v40, 21, v0\nv_add_u32 v41, 0x800, v40\ns_mov_b64 exec, 15")
            P(f"buffer_load_dword v47, v41, {sr(sWS,4)}, 0 offen\nbuffer_load_dword v47, v40, {sr(sXA,4)}, 0 offen\nbuffer_load_dword v47, v40, {sr(sWO,4)}, 0 offen")
            P(f"s_mov_b64 exec, -1\ns_lshl3_add_u32 s3, s{sRT}, s{sP}\ns_lshl_b32 s3, s3, 7\ns_add_u32 s7, s3, {WS_KF:#x}\ns_load_dword s10, s[18:19], s7 glc\ns_add_u32 s7, s3, {WS_VF:#x}\ns_load_dword s11, s[18:19], s7 glc")
            P(f"{Lt}:")
        P(f"v_and_b32 v{vL}, 31, v0\nv_lshrrev_b32 v{vH}, 5, v0\nv_bfe_u32 v42, v0, 1, 3\nv_xor_b32 v42, v42, v{vH}")
        P(f"s_lshl_b32 s3, s{sR}, 12\nv_lshl_add_u32 v43, v{vL}, 7, s3\nv_lshl_add_u32 v{vXA}, v42, 4, v43")
        for s in range(1, 4): P(f"v_xor_b32 v{vXA+s}, {32*s}, v{vXA}")
        P(f"s_lshl_b32 s{sT0}, s{sCI}, 6")
        self.tr_addr(vWK, 42, 43, True, sT0)
        P(f"s_add_u32 s{sT0}, s{sT0}, {L_WV(0)}")
        self.tr_addr(vWV, 42, 43, False, sT0)
        P(f"s_lshl1_add_u32 s{sG}, s{sRT}, s{sR}")
        P(f"s_lshl1_add_u32 s3, s{sP}, s{sCI}\ns_mov_b32 s7, {PAIR - 7*512}\nv_lshl_add_u32 v42, s3, 2, v{vH}")
        for s in range(2):
            P(f"v_mul_u32_u24 v43, 37, v42\nv_lshrrev_b32 v43, 8, v43\nv_mul_lo_u32 v43, v43, s7\nv_lshl_add_u32 v43, v42, 9, v43\nv_lshl_add_u32 v{vKS+s}, v{vL}, 4, v43")
            if s == 0: P("v_add_u32 v42, 2, v42")
        P(f"s_mul_i32 s3, s{sG}, 3584\ns_add_u32 s{sKO}, s3, {WS_K:#x}\ns_add_u32 s{sVO}, s3, {WS_V:#x}")
        P(f"v_mov_b32 v{vZ}, 0\nv_mov_b32 v{vFL}, {L_FLAG}\nv_and_b32 v42, 7, v0\nv_lshl_add_u32 v42, v42, 2, v{vFL}\nds_write_b32 v42, v{vZ}")
        if o["hops"]:
            for k, ch in enumerate(self.HOPS[:-1]): P(f"s_cmp_eq_u32 s{sU}, {k}\ns_cbranch_scc1 L_pad_{ch[0]}")
            P(f"s_branch L_pad_{self.HOPS[-1][0]}\nL_hopret:")
        self.stamp("G.set")
        lg = Cnt(P, "lgkmcnt", 15)
        xa = [LdsAddr(P, vXA + s) for s in range(4)]
        wa = {"K": LdsAddr(P, vWK), "V": LdsAddr(P, vWV, L_WV(0)), "Q": LdsAddr(P, vWQ, L_WQ(0))}
        wl = {"K": L_WK, "V": L_WV, "Q": L_WQ}
        acc = {"K": AK, "V": AV, "Q": AQ}
        def pack(a, half):
            for i in range(4): P(f"v_cvt_pk_bf16_f32 v{QF+4*half+i}, v{a+8*half+2*i}, v{a+8*half+2*i+1}")
        def proj(items, pre={}, lagn={}, post={}, mid={}):
            nm = 0
            def mf():
                nonlocal nm
                i, s = nm >> 2, nm & 3; kind, q, _ = items[i]
                lg.wait((i, s))
                w, x, a = WF + 16*(i & 1) + 4*s, XF + 16*q + 4*s, acc[kind]
                cc = "0" if (q == 0 and s == 0) else a
                P(MF32(a, x, w, cc) if kind == "V" else MF32(a, w, x, cc)); nm += 1
            for i, (kind, q, br) in enumerate(items):
                if i in pre: pre[i]()
                if br: P("s_barrier"); self.stamp(f"G.b{kind}{q}")
                for s in range(4):
                    if nm < 4 * i: mf()
                    if kind == "K":
                        off = xa[s].off(L_X(q))
                        P(f"ds_read_b128 {vr(XF + 16*q + 4*s, 4)}, v{vXA+s} offset:{off}"); lg.add((i, s))
                    for t in range(2):
                        off = wa[kind].off(wl[kind](q) + s*2048 + t*512)
                        P(f"ds_read_b64_tr_b16 {vr(WF + 16*(i&1) + 4*s + 2*t, 2)}, v{wa[kind].reg} offset:{off}"); lg.add((i, s))
                    if (i, s) in mid: mid[(i, s)]()
                while nm < 4 * i + 4 - lagn.get(i, 4): mf()
                if i in post: post[i]()
            while nm < 4 * len(items): mf()
        D = Prog()
        vE, vB, vA, vC, vS = 80, 81, 82, 84, 88
        D(f"v_and_b32 v{vA}, 15, v0\nv_lshl_add_u32 v{vA}, s{sR}, 4, v{vA}\nv_cvt_f32_u32 v{vA}, v{vA}\nv_mul_f32 v{vE}, {fl(1/32)}, v{vA}")
        D(f"v_lshrrev_b32 v{vA}, 2, v0\nv_and_b32 v{vA}, 12, v{vA}\nv_cvt_f32_u32 v{vA}, v{vA}\ns_mul_i32 s3, s{sCI}, {f2u(-0.25):#x}\nv_fma_f32 v{vB}, v{vE}, v{vA}, s3")
        for j in range(8): D(f"v_fmamk_f32 v{vC+j}, v{vE}, {fl(16*(j>>2)+(j&3))}, v{vB}")
        for j in range(8): D(f"v_cos_f32 v{vC+j}, v{vC+j}")
        for jj in range(4): D(f"v_cvt_pk_bf16_f32 v{CD+8+jj}, v{vC+2*jj}, v{vC+2*jj+1}")
        D(f"v_lshl_add_u32 v{vA}, v{vL}, 5, s{sRT}\nv_cvt_f32_u32 v{vA}, v{vA}\nv_mul_f32 v{vE}, {fl(1/2048)}, v{vA}")
        D(f"v_lshl_add_u32 v{vA}, s{sU}, 1, v{vH}\nv_lshlrev_b32 v{vA}, 3, v{vA}\nv_cvt_f32_u32 v{vA}, v{vA}\nv_mul_f32 v{vB}, v{vE}, v{vA}")
        for par in range(2):
            for jj in range(4): D(f"v_fmamk_f32 v{vS+jj}, v{vE}, {fl(2*jj + par)}, v{vB}")
            for jj in range(4): D(f"v_cos_f32 v{vC+jj}, v{vS+jj}")
            for jj in range(4): D(f"v_sin_f32 v{vS+jj}, v{vS+jj}")
            for jj in range(4): D(f"v_cvt_pk_bf16_f32 v{CD+4*par+jj}, v{vC+jj}, -v{vS+jj}")
        keep = P; P = D; self.P = D; D._lab = 500
        P(f"s_mul_i32 s{sT0}, s{sCI}, 48\ns_add_u32 s{sT0}, s{sT0}, {L_WQ(0)}")
        self.tr_addr(vWQ, 42, 43, True, sT0)
        P(f"s_lshl1_add_u32 s3, s{sP}, s{sCI}\nv_lshl_add_u32 v42, s3, 5, v{vL}\nv_mul_u32_u24 v43, 1171, v42\nv_lshrrev_b32 v43, 16, v43\ns_mov_b32 s7, {PAIR - 896}")
        P(f"v_mul_lo_u32 v43, v43, s7\nv_lshl_add_u32 v43, v42, 4, v43\nv_mul_u32_u24 v42, 896, v{vH}\nv_add_u32 v{vVS}, v42, v43")
        P(f"s_mul_i32 s3, s3, 1792\ns_mul_i32 s7, s{sG}, 28672\ns_add_u32 s3, s3, s7\ns_add_u32 s{sOO}, s3, {WS_O:#x}")
        P(f"s_lshl3_add_u32 s3, s{sRT}, s{sP}\ns_lshl2_add_u32 s3, s3, s{sU}\ns_lshl_b32 s3, s3, 2\ns_add_u32 s{sOFo}, s3, {WS_OF:#x}\ns_mov_b32 s{sFB}, 0")
        P(f"s_lshl_b32 s3, s{sRT}, 7\nv_lshl_add_u32 v{vOP}, v{vL}, 2, s3\nv_lshl_add_u32 v{vDA}, v0, 4, s{sT4}")
        P(f"v_lshlrev_b32 v42, 2, v{vH}\nv_sub_u32 v21, v{vL}, v42\ns_mov_b32 s11, {fl(c)}")
        P = keep; self.P = keep
        n0 = o.get("g1f0", 30)
        P.extend(D.lines[:n0])
        P(f"s_cmp_eq_u32 s{sP}, 7\ns_cbranch_scc1 L_x7\ns_setprio 1")
        self.stamp("G.set2")
        def fm_write(E):
            E(f"v_add_u32 v42, {L_F}, v{vDA}\nds_write_b128 v42, {vr(CD+8,4)}\nds_write_b128 v42, {vr(CD,4)} offset:{L_M - L_F}\nds_write_b128 v42, {vr(CD+4,4)} offset:{L_M - L_F + 4096}")
        B7 = Prog(); B7._lab = 600
        B7("L_x7:"); B7.extend(D.lines[n0:]); B7("s_waitcnt lgkmcnt(0)\ns_barrier")
        xa7 = [LdsAddr(B7, vXA + s) for s in range(4)]
        for q in range(7):
            for s in range(4):
                off = xa7[s].off(L_X(q))
                B7(f"ds_read_b128 {vr(XF + 16*q + 4*s, 4)}, v{vXA+s} offset:{off}")
        fm_write(B7)
        B7(f"s_waitcnt lgkmcnt(0)\ns_barrier\nds_read_b32 v44, v{vFL} offset:12\n" + "s_barrier\n" * (o["sched"].split("join")[1] + o["ina1"]).count("bV") + "s_waitcnt vmcnt(0) lgkmcnt(0)\ns_branch L_vdone")
        T.extend(B7.lines)
        items = [(t[0], int(t[1]), t.endswith("b")) for t in o["items"].split()]
        kst = o["kst"]
        def kstore(h):
            pack(AK, h)
            P(f"buffer_store_dwordx4 {vr(QF+4*h,4)}, v{vKS+h}, {sr(sWS,4)}, s{sKO} offen sc1")
            if h: self.stamp("G.kst")
        cuts = o["g1cuts"]
        di = n0
        def slot(i):
            nonlocal di
            P.extend(D.lines[di:di + cuts.get(i, 0)]); di += cuts.get(i, 0)
        fmw = lambda: (fm_write(P), lg.add("w"), lg.add("w"), lg.add("w"))
        mrd = lambda: (P(f"ds_read_b32 v44, v{vFL} offset:12"), lg.add("m"))
        if o["two"]:
            proj(items[:7], lagn={5: 2, 6: 2}, post={i: (lambda i=i: slot(i)) for i in range(7)})
            kstore(0); kstore(1)
            P("s_barrier\ns_setprio 0")
            P.extend(D.lines[di:])
            P("s_setprio 1")
            self.stamp("G.i1")
            proj(items[7:], pre={2: lambda: P("s_waitcnt vmcnt(0)")}, mid={(3, 1): fmw, (2, 3): mrd})
        else:
            proj(items, lagn=o.get("lagkv", {}), post={i: (lambda i=i: slot(i)) for i in range(8)},
                 mid={(kst, 0): lambda: kstore(0), (kst, 2): lambda: kstore(1), (o['fmw'], 1): fmw, (9, 3): mrd})
        for h in range(2):
            pack(AV, h)
            P(f"buffer_store_dwordx4 {vr(QF+4*h,4)}, v{vVS}, {sr(sWS,4)}, s{sVO} offen offset:{1792*h} sc1")
        P(f"L_vdone:\nv_readfirstlane_b32 s{sMODE}, v44")
        def otouch():
            P(f"v_lshlrev_b32 v42, 7, v0\ns_cmp_eq_u32 s{sMODE}, 0\ns_cselect_b32 s3, s{sWS+2}, s{sOO}\ns_cselect_b32 s7, s{sWS+2}, s{sOFo}\ns_mov_b64 exec, 0x3fff")
            P(f"buffer_load_dword v47, v42, {sr(sWS,4)}, s3 offen sc1\ns_mov_b64 exec, 1\nbuffer_load_dword v47, v42, {sr(sWS,4)}, s7 offen sc1\ns_mov_b64 exec, -1")
        nt = 0
        if o["otouch"] == 1: otouch(); nt = 2
        self.stamp("G.vst")
        P("s_barrier\ns_setprio 0")
        P("L_g1page:"); self.pad("g1p1", True)
        P(f"{NONCE}\nv_mov_b32 v{vNON}, s{sNONCE}")
        def mask(E, dst, far):
            E(f"v_cvt_f32_i32 v42, v21\nv_mul_f32 v42, {fl(-BIG if far else BIG)}, v42")
            for i in range(16):
                k = 8*(i >> 2) + (i & 3)
                E(f"v_add_f32 v{dst+i}, {fl((k-1)*BIG if far else -k*BIG)}, v42")
            for i in range(16): E(f"v_min_f32 v{dst+i}, 0, v{dst+i}")
        mask(P, AV, False)
        P(f"s_mov_b32 s3, 0x0b0b0909")
        for k in range(8):
            k0 = 8 * (k >> 1) + 2 * (k & 1)
            P(f"v_subrev_u32 v42, {k0}, v21\nv_subrev_u32 v43, {k0+1}, v21\nv_perm_b32 v{FM+k}, v43, v42, s3")
        P(f"s_mul_i32 s3, s{sR}, 3584\ns_mul_i32 s7, s{sCI}, 1536\ns_add_u32 s3, s3, s7\ns_add_u32 s3, s3, {L_KT}\nv_lshl_add_u32 v{vKR}, v0, 4, s3")
        P(f"v_cmp_gt_u32 vcc, 28, v{vL}\ns_mul_i32 s3, s{sCI}, 28\nv_add_u32 v42, s3, v{vL}\ns_lshl_b32 s7, s{sCI}, 2\ns_sub_u32 s7, 60, s7\nv_mov_b32 v43, s7")
        P(f"v_cndmask_b32 v42, v43, v42, vcc\ns_lshl_b32 s3, s{sR}, 12\nv_lshl_add_u32 v42, v42, 4, s3\nv_lshl_add_u32 v{vVR}, v{vH}, 10, v42")
        P(f"v_cmp_gt_u32 vcc, s{sCI}, v{vH}\nv_cmp_lt_u32 s[30:31], s{sCI}, v{vH}\nv_lshlrev_b32 v42, 3, v{vL}\nv_lshl_add_u32 v{vOS}, v{vH}, 8, v42\nv_mov_b32 v42, {fl(c)}")
        P(f"v_cndmask_b32 v{vSA}, v42, v{vZ}, vcc\nv_cndmask_b32 v{vSB}, v42, v{vZ}, s[30:31]")
        vTP = (6, 10)
        P(f"v_lshrrev_b32 v42, 3, v0\nv_lshlrev_b32 v42, 7, v42\nv_and_b32 v43, 7, v0\nv_lshl_add_u32 v42, v43, 2, v42\nv_add_u32 v42, {WS_TF - WS_OF}, v42")
        P(f"s_lshr_b32 s3, s{sP}, 1\ns_and_b32 s7, s{sP}, 1\nv_lshl_add_u32 v{vTP[0]}, s3, 10, v42\nv_lshl_add_u32 v{vTP[1]}, s7, 10, v{vTP[0]}")
        P(f"s_mul_i32 s{sT3}, s{sRT}, {TST}\ns_lshl_b32 s3, s{sP}, 13\ns_add_u32 s{sT3}, s{sT3}, s3\ns_add_u32 s{sT3}, s{sT3}, {WS_T:#x}")
        P(f"s_mov_b32 s{sT0}, {WS_OF:#x}\ns_mul_i32 s{sT1}, s{sRT}, {2*28672}\ns_add_u32 s{sT1}, s{sT1}, {WS_O:#x}\ns_add_u32 s{sT2}, s{sT1}, 28672")
        P(f"s_setprio 1")
        self.stamp("G.i2")
        proj([("Q", q, q in o["qbars"]) for q in range(7)], pre={0: lambda: P(f"s_waitcnt vmcnt({2+nt})"), o["qbars"][1]: lambda: P(f"s_waitcnt vmcnt({nt})")},
             lagn={o["qbars"][1] - 1: 0, 5: 2, 6: 2})
        S = lambda n: AK if n == 0 else (AV if n == 8 else XF + 16 * (n - 1))
        vM = 40
        KB, VB = WF, WF + 16
        pend = []
        def kread(i):
            for s in range(2):
                pend.append((f"ds_read_b128 {vr(KB + 8*((i+2)&3) + 4*s, 4)}, v{vKR} offset:{(8-i)*3584 + s*1024}", ("k", i)))
        def vread(i):
            for s in range(2):
                pend.append((f"ds_read_b128 {vr(S(8-i) + 8*s + 4, 4)}, v{vVR} offset:{(8-i)*4096 + s*2048}", ("v", i)))
        def flagrd(idx): pend.append((f"ds_read_b32 v44, v{vFL} offset:{4*idx}", "flag"))
        def drain(n=99):
            while pend and n > 0:
                t, tag = pend.pop(0); P(t); lg.add(tag); n -= 1
        def flagchk(idx, val, name, redo=[]):
            L = P.label("fc")
            lg.wait("flag")
            P(f"v_cmp_gt_u32 vcc, {val}, v44\ns_cbranch_vccnz {L}\n{L}_b:")
            if name == "G.k2": self.pad("fc", E=T)
            T(f"{L}:\nds_read_b32 v44, v{vFL} offset:{4*idx}")
            for t in redo: T(t)
            T(f"s_waitcnt lgkmcnt(0)\nv_cmp_gt_u32 vcc, {val}, v44\ns_nop 0\ns_cbranch_vccnz {L}\ns_branch {L}_b")
            self.stamp(name)
        self.lds_signal(vFL, 2, 40); lg.add("sig")
        if o["otouch"] == 2: otouch()
        flagrd(0); kread(0); kread(1); redo = [t for t, _ in pend[1:]]; drain()
        for i in range(8):
            sc, sel = (f"v[{vSA}:{vSA+1}]", "op_sel_hi:[0,1]") if i < 2 else ((f"v[{vSA}:{vSA+1}]", "op_sel:[1,0]") if i >= 6 else ("s[10:11]", "op_sel:[1,0]"))
            P(f"v_pk_mul_f32 {vr(AQ+2*i,2)}, {sc}, {vr(AQ+2*i,2)} {sel}")
        pack(AQ, 0); pack(AQ, 1)
        self.stamp("G.q")
        Lk = P.label("kw")
        lg.wait("flag")
        P(f"v_cmp_gt_u32 vcc, 1, v44\ns_cbranch_vccz {Lk}_d\n{Lk}:\nds_read_b32 v44, v{vFL}")
        P.extend(redo)
        P(f"s_waitcnt lgkmcnt(4)\nv_cmp_gt_u32 vcc, 1, v44\ns_cbranch_vccnz {Lk}\n{Lk}_d:")
        self.stamp("G.ck")
        def qk(i, s, nd=2):
            n = 8 - i
            lg.wait(("k", i))
            P(MF32(S(n), KB + 8*((i+2) & 3) + 4*s, QF + 4*s, S(n) if (s == 1 or n == 8) else CD)); drain(nd)
        npv = 0
        def pv(nd=2):
            nonlocal npv
            i, s = npv >> 1, npv & 1
            assert not any(t == ("v", i) for _, t in pend)
            lg.wait(("v", i))
            P(MF32(AQ, S(8 - i) + 8*s + 4, S(8 - i) + 8*s, "0" if npv == 0 else AQ)); npv += 1; drain(nd)
        def pvl(s):
            lg.wait(("v", 8)); P(MF32(AQ, KB + 4*s, S(0) + 8*s, AQ))
        kread(2)
        qk(0, 0); qk(0, 1)
        b = S(8)
        P(f"s_mov_b32 s3, {fl(-40.0)}\nv_max_f32 v{vM}, v{b}, v{b+1}\nv_max_f32 v{vM+1}, v{b+2}, v{b+3}")
        for k in range(2, 7): P(f"v_max3_f32 v{vM+(k&1)}, v{vM+(k&1)}, v{b+2*k}, v{b+2*k+1}")
        P(f"v_max3_f32 v{vM+1}, v{vM+1}, v{b+14}, v{b+15}\nv_max_f32 v42, v{vM}, v{vM+1}\nv_max_f32 v{vM+1}, v{vM}, v{vM+1}\nv_permlane32_swap_b32 v42, v{vM+1}\nv_max_f32 v{vM}, v42, v{vM+1}")
        for k in range(16): P(f"v_sub_f32 v{CD+k}, s3, v{vM}")
        for k in range(16):
            P(f"v_add_f32 v{b+k}, v{b+k}, v{CD}")
            if k == 1: qk(1, 0)
            if k == 5: flagrd(0)
            if k == 8: qk(1, 1)
        self.stamp("G.p1")
        lag = o["pvlag"]
        vnext = 0
        for i in range(9):
            b = S(8 - i)
            if i == 1: flagchk(0, 2, "G.k2"); kread(3); kread(4)
            if 2 <= i and i + 3 < 9: kread(i + 3)
            if i == lag - 1: flagchk(1, 1, "G.fv")
            if i == lag: flagchk(1, 2, "G.v2")
            if i >= lag - 1:
                lim = min(i, 3 if i == lag - 1 else 9, vnext + (3 if lag > 4 else 2))
                while vnext < lim: vread(vnext); vnext += 1
            if i == 7:
                for s in range(2): pend.append((f"ds_read_b128 {vr(KB + 4*s, 4)}, v{vVR} offset:{s*2048}", ("v", 8)))
            if i in (lag - 2, lag - 1): flagrd(1)
            mfs = []
            if 1 <= i < 8: mfs += [lambda i=i: qk(i + 1, 0, 3), lambda i=i: qk(i + 1, 1, 3)]
            ready = 2 * len([t for t in range(vnext) if not any(tag == ("v", t) for _, tag in pend)])
            k_ = 0
            while npv + k_ < ready and k_ < 4: mfs.append(pv); k_ += 1
            rest = []
            if i == 8:
                mfs = [pv] * (16 - npv) + [lambda: pvl(0)]
                mfs, rest = mfs[:6], mfs[6:]
            slots = {0: [], 1: [1], 2: [0, 5], 3: [0, 5, 11], 4: [0, 4, 8, 12], 5: [0, 4, 8, 11, 14], 6: [0, 3, 6, 8, 11, 14]}[len(mfs)]
            for pos in range(16):
                P(f"v_exp_f32 v{b+pos}, v{b+pos}")
                if pos in slots: mfs.pop(0)()
                if pos in (7, 15):
                    h = pos >> 3
                    for k in range(4): P(f"v_cvt_pk_bf16_f32 v{b+8*h+k}, v{b+8*h+2*k}, v{b+8*h+2*k+1}")
                    if i == 8:
                        for k in range(4): P(f"v_and_b32 v{b+8*h+k}, v{b+8*h+k}, v{FM+4*h+k}")
            drain()
        assert vnext == 8
        for f in rest: f()
        pvl(1)
        vWR, vRD, vG0, vG1, vTA, MF_, TF_, AE = 1, 3, 4, 5, 8, 176, 144, 64
        P(f"L_onorm:\ns_cmp_eq_u32 s{sMODE}, 0")
        P(f"v_mov_b32 v40, v{AQ+12}\nv_mov_b32 v41, v{AQ+12}\nv_permlane32_swap_b32 v40, v41\nv_rcp_f32 v41, v41\ns_cbranch_scc1 L_oslow")
        def ostore(E, mod):
            for a in range(4):
                for k in range(4): E(f"v_mul_f32 v{CD+4*a+k}, v{AQ+4*a+k}, v41")
                for k in range(2): E(f"v_cvt_pk_bf16_f32 v{VB+2*a+k}, v{CD+4*a+2*k}, v{CD+4*a+2*k+1}")
                if a == 3: E("s_mov_b32 exec_hi, 0")
                E(f"buffer_store_dwordx2 {vr(VB+2*a,2)}, v{vOS}, {sr(sWS,4)}, s{sOO} offen offset:{512*a} {mod}")
            E("s_mov_b64 exec, -1")
        ostore(P, o["omod"])
        P("L_ostored:")
        T("L_oslow:"); ostore(T, "sc1"); T("s_branch L_ostored")
        self.stamp("G.ost")
        P(f"v_mul_f32 v40, 0, v{AQ}\nv_mul_f32 v41, 0, v{AQ+1}")
        for k in range(2, 16): P(f"v_fmac_f32 v{40+(k&1)}, 0, v{AQ+k}")
        P(f"v_cmp_u_f32 vcc, v40, v41")
        if o["force_fb"]: P("s_mov_b64 vcc, -1")
        P(f"v_lshlrev_b32 v42, 4, v0\ns_cbranch_vccnz L_fallback\nL_ochecked:\nv_add_u32 v42, {L_M}, v42")
        for s in range(8): P(f"ds_read_b128 {vr(MF_+4*s,4)}, v42 offset:{1024*s}")
        A2 = Prog(); keep = P; P = A2; self.P = A2
        vWR, vRD, vG0, vG1, vTA, MF_, TF_, AE = 1, 3, 4, 5, 8, 176, 144, 64
        self.scratch_addr(vWR, vRD, L_TS, 52)
        P(f"s_lshl_b32 s3, s{sR}, 10\ns_add_u32 s3, s3, s{sRT}\nv_lshl_add_u32 v56, v54, 5, s3\ns_cmp_eq_u32 s{sCI}, 1\ns_cselect_b64 vcc, -1, 0")
        for dst in (vG0, vG1):
            P(f"v_sub_u32 v57, 0, v56\nv_and_b32 v57, 2047, v57\nv_cndmask_b32 v57, v56, v57, vcc\nv_mul_u32_u24 v57, 1792, v57\nv_add_u32 v{dst}, v57, v55")
            if dst == vG0: P("v_add_u32 v56, 512, v56")
        P(f"v_and_b32 v54, 19, v0\nv_bfe_u32 v55, v0, 2, 1\nv_lshl_add_u32 v54, v55, 3, v54\nv_bfe_u32 v55, v0, 3, 1\nv_lshl_add_u32 v54, v55, 2, v54")
        P(f"v_sub_u32 v55, 32, v54\nv_cndmask_b32 v54, v54, v55, vcc\nv_lshrrev_b32 v55, 5, v54\nv_and_b32 v54, 31, v54\nv_lshlrev_b32 v54, 2, v54")
        P(f"v_lshl_add_u32 v54, v55, 13, v54\nv_lshl_add_u32 v54, v{vH}, 10, v54\nv_add_u32 v{vTA}, {L_TT}, v54\nv_add_u32 v{vTA+1}, 128, v{vTA}")
        P(f"s_lshl_b32 s3, s{sP}, 6\ns_sub_u32 s7, 832, s3\ns_cmp_eq_u32 s{sCI}, 1\ns_cselect_b32 s10, s7, s3")
        srd(P, sOUT, 14, 2048*1792)
        P = keep; self.P = keep
        na = o.get("a2cut", 34)
        P("@PAGEPAD"); P.extend(A2.lines[:na]); P("@PAGEPADEND")
        P(f"s_mov_b64 exec, 1\ns_cmp_eq_u32 s{sMODE}, 0\ns_waitcnt vmcnt(0)\ns_cbranch_scc1 L_ofslow")
        P(f"buffer_store_dword v{vNON}, v{vZ}, {sr(sWS,4)}, s{sOFo} offen\nL_oflagged:\ns_mov_b64 exec, -1")
        T(f"L_ofslow:\nbuffer_store_dword v{vNON}, v{vZ}, {sr(sWS,4)}, s{sOFo} offen sc1\ns_branch L_oflagged")
        self.stamp("G.oack")
        P(f"s_cmp_eq_u32 s{sP}, 7\ns_cbranch_scc1 L_epoch")
        for k in range(2): P(f"buffer_load_dword v{45+k}, v{vTP[k]}, {sr(sWS,4)}, s{sT0} offen sc1")
        P(f"s_barrier")
        P.extend(A2.lines[na:])
        self.poll([(vOP, 0)], 44, sT0)
        self.stamp("G.op")
        def odma(q):
            for r_ in range(2):
                P(f"s_add_u32 m0, s{sT4}, {L_O(q) + r_*4096}\ns_nop 0\nbuffer_load_dwordx4 v{vDA}, {sr(sWS,4)}, s{sT1+r_} offen sc1 lds\ns_add_u32 s{sT1+r_}, s{sT1+r_}, 4096")
        def tdma():
            for q in range(4):
                P(f"s_add_u32 m0, s{sT4}, {L_TT + q*4096}\ns_nop 0\nbuffer_load_dwordx4 v{vDA}, {sr(sWS,4)}, s{sT3} offen sc1 lds\ns_add_u32 s{sT3}, s{sT3}, 4096")
        for q in range(4): odma(q)
        P(f"v_cmp_ne_u32 vcc, s{sNONCE}, v45\nv_cmp_ne_u32 s[8:9], s{sNONCE}, v46\ns_waitcnt vmcnt(6)\ns_barrier")
        for q in range(4, 6): odma(q)
        P("s_waitcnt vmcnt(8)\ns_barrier")
        odma(6)
        P(f"s_or_b64 vcc, vcc, s[8:9]\ns_waitcnt vmcnt(8)\ns_barrier\ns_cbranch_scc1 L_tlate")
        tdma()
        for q in range(3, 7):
            P(f"s_waitcnt vmcnt({16-2*q})\ns_barrier")
        P("L_tgo:")
        P(f"s_mul_i32 s3, s{sR}, 0x80008000\ns_waitcnt lgkmcnt(0)")
        for k in range(16): P(f"v_xor_b32 v{MF_+16+k}, s3, v{MF_+16+k}")
        P("s_waitcnt vmcnt(0)")
        self.lds_signal(vFL, 4, 44)
        self.lds_wait(vFL, 4, 4, 44)
        self.stamp("G.tl")
        lg.q = []
        for s in range(8):
            if s == 7: lg.wait(0); P(MF32(AE, TF_, MF_, "0"))
            for t in range(2):
                o0 = 8*(s & 3) + 2*t
                P(f"ds_read2st64_b32 {vr(TF_+4*s+2*t,2)}, v{vTA+(s>>2)} offset0:{o0} offset1:{o0+1}"); lg.add(s)
        for s in range(1, 8):
            lg.wait(s); P(MF32(AE, TF_ + 4*s, MF_ + 4*s, AE))
        self.out_epilogue(AE, 24, vWR, vRD, vG0, vG1, "s10", o["outmod"])
        self.stamp("G.fin")
        P("L_g1end:")
        self.stamp_out()
        P("L_end:\ns_endpgm")
        P("L_tlate:")
        for q in range(3, 7):
            P(f"s_waitcnt vmcnt({12-2*q})\ns_barrier")
        self.poll([(vTP[0], 0), (vTP[1], 0)], 45, sT0)
        tdma()
        P("s_branch L_tgo")
        P("L_epoch:")
        if not o.get("pft", True): P(f"s_cmp_lg_u32 s{sRT}, 31\ns_cbranch_scc1 L_g1end")
        P(f"s_cmp_lg_u32 s{sU}, 0\ns_cbranch_scc1 L_g1end\ns_sub_u32 s{sT0}, s{sT0}, 3072\ns_sub_u32 s{sT3}, s{sT3}, {7*8192}\nv_lshlrev_b32 v42, 7, v0")
        self.poll([(vTP[0], 0), (vTP[0], 1024), (vTP[0], 2048), (vTP[0], 3072)], 50, sT0)
        if o.get("pft", True):
            for k in range(8): P(f"buffer_load_dword v47, v42, {sr(sWS,4)}, s{sT3} offen sc1\ns_add_u32 s{sT3}, s{sT3}, 8192")
        P(f"s_cmp_lg_u32 s{sRT}, 31\ns_cbranch_scc1 L_g1end")
        P(f"s_mov_b64 exec, 1\nbuffer_store_dword v{vNON}, v{vZ}, {sr(sWS,4)}, 0 offen offset:{WS_E} sc1\ns_branch L_g1end")
        P("L_fallback:")
        P(f"s_cmp_lg_u32 s{sFB}, 0\ns_cbranch_scc1 L_ochecked\ns_mov_b32 s{sFB}, 1\ns_waitcnt vmcnt(0)")
        mask(P, AK, True); mask(P, AV, False)
        P(f"v_mov_b32 v{vM}, {fl(-BIG)}")
        for n in range(9):
            P(f"ds_read_b128 {vr(KB,4)}, v{vKR} offset:{n*3584}\nds_read_b128 {vr(KB+4,4)}, v{vKR} offset:{n*3584+1024}")
            if n <= 7:
                P(f"s_cmp_lt_u32 s{sG}, {8-n}\ns_cselect_b32 s3, {fl(-BIG)}, 0")
                for k in range(16): P(f"v_mov_b32 v{S(n)+k}, s3" if n else f"v_min_f32 v{S(n)+k}, s3, v{S(n)+k}")
            P("s_waitcnt lgkmcnt(0)")
            for s in range(2): P(MF32(S(n), KB + 4*s, QF + 4*s, S(n)))
            for k in range(8): P(f"v_max3_f32 v{vM}, v{vM}, v{S(n)+2*k}, v{S(n)+2*k+1}")
        P(f"v_mov_b32 v{vM+1}, v{vM}\nv_permlane32_swap_b32 v{vM}, v{vM+1}\nv_max_f32 v{vM}, v{vM}, v{vM+1}")
        for n in range(9):
            b = S(n)
            P(f"ds_read_b128 {vr(VB,4)}, v{vVR} offset:{n*4096}\nds_read_b128 {vr(VB+4,4)}, v{vVR} offset:{n*4096+2048}")
            for k in range(16): P(f"v_sub_f32 v{b+k}, v{b+k}, v{vM}")
            for k in range(16): P(f"v_exp_f32 v{b+k}, v{b+k}")
            for k in range(8): P(f"v_cvt_pk_bf16_f32 v{b+k}, v{b+2*k}, v{b+2*k+1}")
            P("s_waitcnt lgkmcnt(0)")
            for s in range(2): P(MF32(AQ, VB + 4*s, b + 4*s, "0" if (n == 0 and s == 0) else AQ))
        P("s_nop 11\ns_branch L_onorm")

    def addrs(self, lines):
        import subprocess, tempfile
        src = '.amdgcn_target "amdgcn-amd-amdhsa--gfx950"\n.text\n' + "".join(f"Z{i}:\n" + ("" if l.startswith("@") else l) + "\n" for i, l in enumerate(lines))
        if self.o["hops"] and not any(l.startswith("L_pad_g1p2") for l in lines): src += "L_pad_g1p2:\n"
        with tempfile.TemporaryDirectory() as d:
            open(d + "/a.s", "w").write(src)
            subprocess.run(["clang", "-x", "assembler", "-target", "amdgcn-amd-amdhsa", "-mcpu=gfx950", "-c", d + "/a.s", "-o", d + "/a.o"], check=True)
            out = subprocess.run(["llvm-objdump", "-t", d + "/a.o"], capture_output=True, text=True).stdout
        ad = {}
        for l in out.splitlines():
            w = l.split()
            if len(w) > 3 and w[-1][0] == "Z": ad[int(w[-1][1:])] = int(w[0], 16)
        return [ad[i] for i in range(len(lines))]

    def layout(self, body):
        fill = lambda n: [f".fill {n//4}, 4, 0xbf800000"] if n else []
        on = self.o["align"]
        while True:
            k = [i for i, l in enumerate(body) if l.startswith("@JUMPALIGN")]
            if not k: break
            i = k[0]; name = body[i].split()[1]
            a = self.addrs(body)[i] + 4
            body = body[:i] + [f"s_branch L_ja_{name}"] + (fill(-a % 4096) if on else []) + body[i+1:]
        ad = self.addrs(body)
        g = body.index("L_g1:")
        if on: body = body[:g] + fill(-ad[body.index("L_g1page:")] % 4096) + body[g:]
        ad = self.addrs(body)
        i0, i1 = body.index("@PAGEPAD"), body.index("@PAGEPADEND")
        pg = (ad[body.index("L_g1page:")] // 4096 + 1) * 4096
        if on and not (ad[i0] - 64 <= pg <= ad[i1]): print("warning: second page boundary at", hex(pg), "outside", hex(ad[i0]), hex(ad[i1]))
        j = i0 + 1
        while j < i1 and (ad[j] < pg or body[j].startswith("s_cselect")): j += 1
        B = Prog(); self.pad("g1p2", True, B)
        body = body[:i0] + body[i0+1:j] + B.lines + body[j:i1] + body[i1+1:]
        return body

    def build(self):
        self.prologue(); self.g2()
        g2 = list(self.P.lines); self.P.lines = []
        self.g1()
        fb = self.P.lines.index("L_fallback:")
        lines = g2 + self.tail.lines + self.P.lines[:fb] + ["L_codeend:"] + self.P.lines[fb:]
        body, pad = pad_hazards(lines)
        body = self.layout(body)
        hdr = open(os.path.join(os.path.dirname(os.path.abspath(__file__)), "header.txt")).read()
        if self.o["stamps"]: hdr += "; STAMPS " + self.o["stamps"] + (" MIXED" if self.o["mixed"] else "") + (" REALTIME" if self.o.get("rt") else "") + "\n"
        s = hdr + "; @launch grid=(256,1,1) block=(512,1,1) lds=163840\n"
        s += '.amdgcn_target "amdgcn-amd-amdhsa--gfx950"\n.text\n'
        if self.o["align"]: s += ".p2align 12\n.fill 832, 4, 0xbf810000\n"
        s += f".globl {NAME}\n.p2align 8\n.type {NAME},@function\n{NAME}:\n"
        s += "\n".join(("" if l.endswith(":") else "    ") + l for l in body) + "\n    s_endpgm\n"
        s += f""".section .rodata,"a"
.p2align 6
.amdhsa_kernel {NAME}
  .amdhsa_next_free_vgpr 256
  .amdhsa_next_free_sgpr 102
  .amdhsa_accum_offset 256
  .amdhsa_group_segment_fixed_size 0
  .amdhsa_kernarg_size 88
  .amdhsa_user_sgpr_count 2
  .amdhsa_user_sgpr_kernarg_segment_ptr 1
  .amdhsa_system_sgpr_workgroup_id_x 1
.end_amdhsa_kernel
"""
        return s, pad

if __name__ == "__main__":
    opts = {}
    out = sys.argv[1]
    for a in sys.argv[2:]:
        k, v = a.split("=", 1); opts[k] = v if k in STR_OPTS else eval(v)
    s, pad = Gen(**opts).build()
    open(out, "w").write(s)
    print("written", out, "pad states", pad, "lines", s.count("\n"))
```

```python
import sys, math, struct, os
sys.path.insert(0, os.path.dirname(os.path.abspath(__file__)))
from asmlib import *

NAME = "concat_heads__spectral_fnet__sliding_block__prompt_kernel"

def f2u(x): return struct.unpack("<I", struct.pack("<f", x))[0]
def fl(x): return f"{f2u(x):#x}"

WS_E = 0
WS_KF, WS_VF, WS_OF, WS_TF, WS_XF = 0x10000, 0x18000, 0x20000, 0x28000, 0x30000
WS_K, WS_V, WS_O, WS_T = 0x201000, 0x401000, 0x601000, 0x7F0000
NPAGE = 4
WS_STAMP = 0xA80000
WS_SIZE = 0xB00000
PAIR = 64 * 3584
TST = 65536 + 384
SL = 8192
def L_X(q): return 2 * q * SL
def L_WK(q): return (2 * q + 1) * SL
def L_WV(q): return (18 + q) * SL if q < 2 else (q - 2) * SL
L_XA = 14 * SL
def L_WQ(q): return (5 + q) * SL
L_KT = 13 * SL
L_VT = 0
L_F = 13 * SL
L_FLAG = 18 * SL - 64
L_TS = 12 * SL
L_OUT = 18 * SL
L_M = 19 * SL
L_TT = 15 * SL
def L_O(q): return q * SL if q < 5 else (13 + q - 5) * SL
sNONCE = 6
sXB, sW, sWKV, sXA, sWO, sOUT, sWS = 20, 48, 28, 32, 36, 40, 44
sU, sRT, sP, sS2, sEG, sR, sCI, sWV = 52, 53, 54, 55, 56, 57, 58, 59
sSX, sSW = 60, 67
sT0, sT1, sT2, sT3, sT4, sT5 = 74, 75, 76, 77, 78, 79
sROT, sFO = 8, 9
sGB = [12, 13, 14, 15, 8]
sSTAMP = 80
NSTAMP = 11
SPIN = 1 << 14
BIG = 2.0 ** 100

class Cnt:
    def __init__(self, prog, name, maxn):
        self.p, self.name, self.maxn = prog, name, maxn
        self.q = []
    def add(self, tag=None): self.q.append(tag)
    def wait(self, tag):
        idx = [i for i, t in enumerate(self.q) if t == tag]
        if not idx: return
        n = min(len(self.q) - 1 - idx[-1], self.maxn)
        self.p(f"s_waitcnt {self.name}({n})")
        self.q = self.q[len(self.q) - n:] if n else []
    def all(self):
        self.p(f"s_waitcnt {self.name}(0)"); self.q = []

def srd(P, d, lo, nrec):
    P(f"s_mov_b64 {sr(d,2)}, {sr(lo,2)}\ns_mov_b32 s{d+2}, {nrec:#x}\ns_mov_b32 s{d+3}, 0x20000")

def MF32(d, a, b, c): return f"v_mfma_f32_32x32x16_bf16 {vr(d,16)}, {vr(a,4)}, {vr(b,4)}, {c if isinstance(c,str) else vr(c,16)}"
def MF16(d, a, b, c): return f"v_mfma_f32_16x16x32_bf16 {vr(d,4)}, {vr(a,4)}, {vr(b,4)}, {c if isinstance(c,str) else vr(c,4)}"
NONCE = f"s_mul_i32 s{sNONCE}, s{sNONCE}, 0x9E3779C1\ns_add_u32 s{sNONCE}, s{sNONCE}, 0x7FEB3560"

STR_OPTS = ("pre", "items", "stamps", "sched", "sched7", "schedT", "schedK", "schedV", "ina1", "outmod", "omod")

class Gen:
    def __init__(self, **o):
        self.o = dict(stamps=False, codepf=True, mixed=False, npre=2, outmod="sc1", olocal=True, omod="", pvlag=4, pf7=True,
            otouch=1, hops=False, align=True, force_fb=False, pfwo=0, touch=0, twait=5, a1cut=8,
            two=True, items="K0b K1b K2b K3b K4b K5b K6b V0b V1 V2b V3b V4b V5b V6b", kst=11, fmw=10, fks=9, pre="X0 W0 X1 W1", rot=0, warm=2,
            g1f0=40, g1cuts={0: 8, 1: 8, 2: 8, 3: 8},
            sched="f188 nonce xt tl p7 K2 bK0 K3 f16 bK1 K4 f16 bK2 K5 f16 bK3 K6 xa f16 bK4 A0 A1 A2 A3 f16 bK5 A4 A5 A6 bK6 V0 V1 f* xc wA6 bS0 join a1a page bV1 V5 V6 bV2 kf Q0 bV3 bV4 Q1 bV5 bV6 "
                  "a1b lva bQ1 lvb lvc",
            sched7="X2 X3 f* ef X4 X5 X6 xa A0 A1 A2 A3 A4 A5 A6 bK6 xc lg0 wA6 bS0",
            ina1="0:V2 2:V3 4:V4 12:bS1,one,Q2,Q3,Q4", qbars=(0, 2, 3, 5, 6),
            schedT="bQ2 vf Q5 Q6 bQ4 bQ5 bQ6 ts tst",
            schedK="kp bQ2 Q5 Q6 kw bQ4 k4 k3 bQ5 k2 bQ6 k1 k0",
            schedV="bQ2 Q5 Q6 bQ4 bQ5 vp bQ6")
        self.o.update(o)
        self.P = Prog()
        self.tail = Prog()

    def stamp(self, name):
        if not self.o["stamps"]: return
        if name == 0: self.P(f"s_memtime {sr(sSTAMP, 2)}"); return
        for lst in self.o["stamps"].split("|"):
            l = lst.split(",")
            if name in l: self.P(f"{'s_memrealtime' if self.o.get('rt') else 's_memtime'} {sr(sSTAMP + 2*(1+l.index(name)), 2)}")

    def stamp_out(self):
        if not self.o["stamps"]: return
        P = self.P
        P(f"s_waitcnt vmcnt(0)\ns_memtime {sr(sSTAMP+16,2)}\ns_memrealtime {sr(sSTAMP+18,2)}\ns_waitcnt lgkmcnt(0)\ns_mov_b64 exec, 1")
        if self.o.get("enc") is not None:
            k = self.o["enc"]; L = P.label("enc"); D = P.label("encd")
            P(f"s_cmp_lg_u32 s{sWV}, {self.o['encwv']}\ns_cbranch_scc1 {D}\ns_cmp_eq_u32 s{sP}, 7\ns_cbranch_scc1 {D}")
            if self.o.get("encwg", -1) >= 0: P(f"s_cmp_lg_u32 s2, {self.o['encwg']}\ns_cbranch_scc1 {D}")
            if k == 9: P(f"s_sub_u32 s3, s{sSTAMP+18}, s{sSTAMP+20}\ns_lshl_b32 s3, s3, 2")
            else: P(f"s_sub_u32 s3, s{sSTAMP+2*k}, s{sSTAMP}\ns_lshr_b32 s3, s3, 2")
            P(f"s_min_u32 s3, s3, 50000\ns_add_u32 s3, s3, 5000")
            P(f"{L}:\ns_memrealtime s[4:5]\ns_waitcnt lgkmcnt(0)\ns_sub_u32 s4, s4, s{sSTAMP+20}\ns_cmp_lt_u32 s4, s3\ns_cbranch_scc1 {L}\n{D}:")
            return
        for i in range(NSTAMP): P(f"v_mov_b32 v{4+i}, s{sSTAMP+2*i}")
        P(f"s_getreg_b32 s3, hwreg(HW_REG_XCC_ID)\nv_mov_b32 v15, s3")
        P(f"s_lshl_b32 s3, s2, 3\ns_add_u32 s3, s3, s{sWV}\ns_lshl_b32 s3, s3, 6\ns_add_u32 s3, s3, {WS_STAMP:#x}\nv_mov_b32 v1, 0")
        for k in range(3): P(f"buffer_store_dwordx4 v[{4+4*k}:{7+4*k}], v1, {sr(sWS,4)}, s3 offen offset:{16*k}")

    def into(self, prog, f, *a):
        keep = self.P; lab = keep._lab
        self.P = prog; prog._lab = max(prog._lab, lab)
        f(*a)
        keep._lab = max(prog._lab, lab); self.P = keep

    HOPS = (("g2p1", "roleN"), ("roleT", "roleV"), ("g1p1", "fc"), ("g1p2", "done"))
    def pad(self, name, inline=False, E=None):
        E = E or self.P
        if not self.o["hops"]: return
        nxt = "L_hopret"
        for ch in self.HOPS:
            if name in ch[:-1]: nxt = "L_pad_" + ch[ch.index(name) + 1]
        if inline: E(f"s_branch L_over_{name}\nL_pad_{name}:\ns_branch {nxt}\nL_over_{name}:")
        else: E(f"L_pad_{name}:\ns_branch {nxt}")

    def tr_addr(self, dst, t0, t1, perm, sbase):
        P = self.P
        P(f"v_bfe_u32 v{t0}, v0, 4, 1\nv_lshl_add_u32 v{t0}, v{t0}, 5, s{sbase}")
        if perm:
            P(f"v_and_b32 v{t1}, 1, v0\nv_lshl_add_u32 v{t0}, v{t1}, 4, v{t0}")
            P(f"v_bfe_u32 v{t1}, v0, 1, 1\nv_lshl_add_u32 v{t0}, v{t1}, 3, v{t0}")
        else:
            P(f"v_and_b32 v{t1}, 3, v0\nv_lshl_add_u32 v{t0}, v{t1}, 3, v{t0}")
        P(f"v_and_b32 v{t1}, 8, v0\nv_lshlrev_b32 v{t1}, 3, v{t1}\nv_xor_b32 v{t0}, v{t0}, v{t1}")
        P(f"v_and_b32 v{t1}, 44, v0\nv_lshl_add_u32 v{dst}, v{t1}, 5, v{t0}")

    def inbox_setup(self, base):
        self.P(f"s_lshl3_add_u32 s3, s{sRT}, s{sP}\ns_lshl_b32 s3, s3, 7\ns_add_u32 s{sT3}, s3, {base:#x}")
    def inbox_issue(self, E=None):
        (E or self.P)(f"s_load_dwordx16 s[20:35], s[18:19], s{sT3} glc")
    def inbox_wait(self):
        P = self.P; L = P.label("kvp")
        P(f"s_mov_b32 s{sT5}, {SPIN}\ns_mov_b32 s7, s{sNONCE}\n{L}:\ns_waitcnt lgkmcnt(0)")
        P("s_xor_b64 s[20:21], s[20:21], s[6:7]")
        for n in range(1, 5):
            P(f"s_xor_b64 {sr(20+2*n,2)}, {sr(20+2*n,2)}, s[6:7]\ns_or_b64 s[20:21], s[20:21], {sr(20+2*n,2)}")
        P(f"s_cbranch_scc0 {L}_d")
        self.inbox_issue()
        P(f"s_sub_u32 s{sT5}, s{sT5}, 1\ns_cbranch_scc0 {L}\ns_waitcnt lgkmcnt(0)\n{L}_d:")
    def group_bases(self, base):
        P = self.P
        P(f"s_mul_i32 s{sT1}, s{sP}, {PAIR}\ns_mul_i32 s3, s{sRT}, 7168\ns_add_u32 s3, s3, s{sT1}\ns_add_u32 s{sSX+4}, s3, {base:#x}")
        for n in range(4):
            P(f"s_sub_u32 s3, s{sSX+4}, {7168*(4-n)}\ns_cmp_lt_u32 s{sRT}, {4-n}\ns_cselect_b32 s{sSX+n}, s{sWS+2}, s3")

    def poll(self, addrs, vt, sbase):
        P = self.P
        L = P.label("poll")
        P(f"s_mov_b32 s{sT5}, 0\n{L}:")
        for k, (va, imm) in enumerate(addrs):
            P(f"buffer_load_dword v{vt+k}, v{va}, {sr(sWS,4)}, s{sbase} offen offset:{imm} sc1")
        P(f"s_add_u32 s{sT5}, s{sT5}, 1\ns_cmp_gt_u32 s{sT5}, {SPIN}\ns_cbranch_scc1 {L}_d\ns_waitcnt vmcnt(0)")
        for k in range(len(addrs)):
            P(f"v_cmp_ne_u32 vcc, s{sNONCE}, v{vt+k}\ns_cbranch_vccnz {L}")
        P(f"{L}_d:")

    def lds_wait(self, vflag, idx, val, vt):
        P = self.P
        L = P.label("lw")
        P(f"{L}:\nds_read_b32 v{vt}, v{vflag} offset:{4*idx}\ns_waitcnt lgkmcnt(0)\nv_cmp_gt_u32 vcc, {val}, v{vt}\ns_cbranch_vccnz {L}")
    def lds_signal(self, vflag, idx, vt):
        self.P(f"v_mov_b32 v{vt}, 1\ns_mov_b64 exec, 1\nds_add_u32 v{vflag}, v{vt} offset:{4*idx}\ns_mov_b64 exec, -1")
    def lds_set(self, vflag, idx, vt, val):
        self.P(f"v_mov_b32 v{vt}, {val}\nds_write_b32 v{vflag}, v{vt} offset:{4*idx}")

    def scratch_addr(self, vWR, vRD, base, t):
        P = self.P
        P(f"s_lshl_b32 s3, s{sU}, 11\ns_add_u32 s3, s3, {base}")
        P(f"v_and_b32 v{t}, 31, v0\nv_lshrrev_b32 v{t+1}, 5, v0\nv_bfe_u32 v{t+2}, v0, 1, 2\nv_xor_b32 v{t+2}, v{t+2}, v{t+1}")
        P(f"v_lshl_add_u32 v{t+3}, v{t}, 6, s3\nv_lshl_add_u32 v{vWR}, v{t+2}, 4, v{t+3}\nv_xor_b32 v{vWR+1}, 32, v{vWR}")
        P(f"v_lshl_add_u32 v{vRD}, v0, 4, s3")
        P(f"v_lshrrev_b32 v{t+2}, 2, v0\nv_lshrrev_b32 v{t+3}, 3, v0\nv_xor_b32 v{t+3}, v{t+3}, v0\nv_and_b32 v{t+3}, 3, v{t+3}\nv_lshlrev_b32 v{t+3}, 4, v{t+3}")

    def out_epilogue(self, acc, pk, vwr, vrd, vg0, vg1, soff, mod):
        P = self.P
        for h in range(2):
            for i in range(4): P(f"v_cvt_pk_bf16_f32 v{pk+4*h+i}, v{acc+8*h+2*i}, v{acc+8*h+2*i+1}")
            P(f"ds_write_b128 v{vwr+h}, {vr(pk+4*h,4)}")
        P(f"ds_read_b128 {vr(pk,4)}, v{vrd}\nds_read_b128 {vr(pk+4,4)}, v{vrd} offset:1024")
        P(f"s_waitcnt lgkmcnt(1)\nbuffer_store_dwordx4 {vr(pk,4)}, v{vg0}, {sr(sOUT,4)}, {soff} offen {mod}")
        P(f"s_waitcnt lgkmcnt(0)\nbuffer_store_dwordx4 {vr(pk+4,4)}, v{vg1}, {sr(sOUT,4)}, {soff} offen {mod}")

    def prologue(self):
        P = self.P; o = self.o
        P(f"s_cmpk_ge_u32 s2, 256\ns_cbranch_scc1 L_end")
        P(f"s_load_dwordx2 {sr(sXB,2)}, s[0:1], 40\ns_load_dwordx2 {sr(sWKV,2)}, s[0:1], 48\ns_load_dwordx8 s[12:19], s[0:1], 56\ns_load_dwordx2 {sr(sXA,2)}, s[0:1], 0")
        if o["stamps"]:
            P(f"s_memrealtime {sr(sSTAMP + 2*(NSTAMP-1), 2)}")
        self.stamp(0)
        P(f"v_readfirstlane_b32 s{sWV}, v0\nv_and_b32 v0, 63, v0\ns_and_b32 s3, s2, 7\ns_lshr_b32 s7, s2, 3\ns_lshr_b32 s{sWV}, s{sWV}, 6")
        if o["mixed"]:
            P(f"s_and_b32 s{sP}, s3, 1\ns_lshl_b32 s{sP}, s{sP}, 2\ns_and_b32 s{sT1}, s7, 3\ns_add_u32 s{sP}, s{sP}, s{sT1}\ns_lshr_b32 s{sT0}, s7, 2")
            P(f"s_lshr_b32 s{sRT}, s3, 1\ns_lshl3_add_u32 s{sRT}, s{sRT}, s{sT0}\ns_lshl1_add_u32 s{sT0}, s{sT1}, s{sT0}")
        else:
            P(f"s_and_b32 s{sP}, s7, 7\ns_lshr_b32 s{sT0}, s7, 3\ns_lshl2_add_u32 s{sRT}, s3, s{sT0}")
            P({0: f"s_lshl1_add_u32 s{sT0}, s{sT0}, s{sP}", 1: f"s_mov_b32 s{sT0}, s{sP}", 2: f"s_add_u32 s{sT0}, s{sT0}, s{sP}",
               3: f"s_and_b32 s{sT0}, s{sT0}, 1\ns_lshl2_add_u32 s{sT0}, s{sT0}, s{sP}"}[o["rot"]])
        P(f"s_and_b32 s{sU}, s{sWV}, 3\ns_and_b32 s{sR}, s{sU}, 1\ns_lshr_b32 s{sCI}, s{sU}, 1\ns_lshl_b32 s{sT4}, s{sU}, 10")
        P(f"s_cmp_lt_u32 s{sWV}, 4\ns_cbranch_scc1 L_g2")
        if o["codepf"]:
            P(f"s_getpc_b64 s[{sT2}:{sT3}]\nL_pc:")
            P(f"s_lshl2_add_u32 s{sT1}, s7, s{sU}\ns_lshl_b32 s{sT1}, s{sT1}, 8\nv_lshl_add_u32 v2, v0, 2, s{sT1}\nv_min_u32 v2, L_codeend-L_pc-4, v2")
            P(f"v_mov_b32 v3, s{sT3}\nv_add_co_u32 v2, vcc, s{sT2}, v2\nv_addc_co_u32 v3, vcc, 0, v3, vcc")
            P(f"global_load_dword v47, v[2:3], off")
        if o["warm"]:
            P(f"s_lshl2_add_u32 s{sT1}, s2, s{sU}\ns_mulk_i32 s{sT1}, 1184\nv_mul_u32_u24 v2, 20, v0\ns_mov_b32 s{sWKV+2}, {448*2688:#x}\ns_mov_b32 s{sWKV+3}, 0x20000")
            P(f"s_waitcnt lgkmcnt(0)\nbuffer_load_dword v47, v2, {sr(sWKV,4)}, s{sT1} offen")
        P(f"s_branch L_g1")
        P(f"L_g2:")

    def const_stream(self):
        F = []
        vE, vB, vK, vA, vC = 12, 13, 10, 40, 42
        CC, SS = 144, 172
        F += [f"s_lshl2_add_u32 s3, s{sEG}, s{sU}", f"v_and_b32 v{vA}, 15, v0", f"v_lshl_add_u32 v{vA}, s3, 4, v{vA}", f"v_cvt_f32_u32 v{vA}, v{vA}",
              f"v_mul_f32 v{vE}, {fl(1/448)}, v{vA}", f"v_cos_f32 v{vK}, v{vE}",
              f"v_lshrrev_b32 v{vA}, 1, v0", f"v_and_b32 v{vA}, 24, v{vA}", f"v_cvt_f32_u32 v{vA}, v{vA}", f"v_mul_f32 v{vB}, v{vE}, v{vA}",
              f"v_add_f32 v{vK}, v{vK}, v{vK}", f"v_mov_b32 v{vK+1}, v{vK}"]
        for ks in range(7):
            for j in range(2): F.append(f"v_fmamk_f32 v{vA+j}, v{vE}, {fl(32*ks+j)}, v{vB}")
            for j in range(2): F += [f"v_cos_f32 v{vC+2*j}, v{vA+j}", f"v_sin_f32 v{vC+2*j+1}, v{vA+j}"]
            def cv(jj):
                return [f"v_cvt_pk_bf16_f32 v{CC+4*ks+jj}, v{vC+4*jj}, v{vC+4*jj+2}", f"v_cvt_pk_bf16_f32 v{SS+4*ks+jj}, v{vC+4*jj+1}, v{vC+4*jj+3}"]
            pend = cv(0)
            for j in range(2, 8):
                F.append(pend.pop(0))
                if self.o.get("pk", True):
                    F.append(f"v_pk_fma_f32 {vr(vC+2*j,2)}, {vr(vK,2)}, {vr(vC+2*j-2,2)}, {vr(vC+2*j-4,2)} neg_lo:[0,0,1] neg_hi:[0,0,1]")
                else:
                    F += [f"v_fma_f32 v{vC+2*j+h}, v{vK}, v{vC+2*j-2+h}, -v{vC+2*j-4+h}" for h in range(2)]
                if j & 1: pend += cv(j >> 1)
            F += pend
        F += [f"v_and_b32 v{vA}, 15, v0", f"v_lshrrev_b32 v{vA+1}, 1, v{vA}", f"v_lshlrev_b32 v{vA}, 7, v{vA}",
              f"v_add_u32 v{vA}, {L_XA}, v{vA}",
              f"v_lshrrev_b32 v{vC}, 4, v0", f"v_xor_b32 v{vC}, v{vC}, v{vA+1}",
              f"v_lshl_add_u32 v8, v{vC}, 4, v{vA}", f"v_xor_b32 v9, 64, v8", f"v_lshl_or_b32 v11, v0, 31, 1.0",
              f"v_mov_b32 v15, {L_FLAG}"]
        return F

    def g2(self):
        P = self.P; o = self.o; T = self.tail
        vx0, vx1, vw0, vw1, vq0, vq1, vxa = 1, 2, 3, 4, 5, 6, 7
        P(f"v_lshrrev_b32 v16, 3, v0\nv_lshl_add_u32 v16, s{sU}, 3, v16")
        P(f"v_lshrrev_b32 v17, 1, v16\nv_xor_b32 v17, v17, v0\nv_and_b32 v17, 7, v17\nv_lshlrev_b32 v17, 4, v17")
        P(f"v_mul_u32_u24 v{vx0}, 896, v16\nv_add_u32 v{vx0}, v{vx0}, v17\nv_add_u32 v{vx1}, {32*896}, v{vx0}")
        P(f"v_lshrrev_b32 v18, 2, v0\nv_and_b32 v18, 4, v18\nv_xor_b32 v18, v18, v0\nv_and_b32 v18, 7, v18")
        P(f"v_mul_u32_u24 v19, 2688, v16\ns_add_u32 s{sT1}, s{sP}, 7\ns_lshl_b32 s{sT1}, s{sT1}, 7")
        P(f"v_lshl_add_u32 v{vw0}, v18, 4, v19\nv_add_u32 v{vw0}, s{sT1}, v{vw0}\nv_add_u32 v{vw1}, {32*2688}, v{vw0}")
        P(f"s_sub_u32 s{sT1}, s{sT0}, 7\ns_cselect_b32 s{sROT}, s{sT0}, s{sT1}\ns_mul_i32 s{sT2}, s{sRT}, {64*896}")
        P(f"s_lshl_b32 s{sT1}, s{sROT}, 7\ns_add_u32 s{sSX}, s{sT1}, s{sT2}\ns_mul_i32 s{sSW}, s{sROT}, {64*2688}")
        P(f"s_add_u32 s{sSW+1}, s{sSW}, {64*2688}\ns_add_u32 s{sSX+1}, s{sSX}, 128\ns_cmp_eq_u32 s{sROT}, 6\ns_cselect_b32 s{sSW+1}, 0, s{sSW+1}\ns_cselect_b32 s{sSX+1}, s{sT2}, s{sSX+1}")
        P(f"s_cmp_eq_u32 s{sP}, 7\ns_cselect_b32 s{sWKV+2}, 0, {448*2688:#x}")
        P(f"s_mov_b32 s{sWKV+3}, 0x20000\ns_mov_b32 s{sXB+2}, {2048*896:#x}\ns_mov_b32 s{sXB+3}, s{sWKV+3}\ns_mov_b32 m0, s{sT4}")
        P(f"s_waitcnt lgkmcnt(0)")
        self.stamp("karg")
        vm = Cnt(P, "vmcnt", 63)
        cur = 0
        pre = []
        for t in o["pre"].split():
            q = int(t[1])
            if t[0] == "X": pre += [(("K", q), L_X(q), vx0, sXB, sSX + q, 0), (("K", q), L_X(q) + 4096, vx1, sXB, sSX + q, 0)]
            if t[0] == "W": pre += [(("K", q), L_WK(q), vw0, sWKV, sSW + q, 0), (("K", q), L_WK(q) + 4096, vw1, sWKV, sSW + q, 0)]
            if t[0] == "V": pre += [(("V", q), L_WV(q), vw0, sWKV, sSW + q, 896), (("V", q), L_WV(q) + 4096, vw1, sWKV, sSW + q, 896)]
        for tag, lds, va, sd, so, imm in pre:
            d = lds - imm - cur; cur = lds - imm
            if d: P(f"s_addk_i32 m0, {d}" if abs(d) < 32768 else f"s_add_u32 m0, s{sT4}, {cur}")
            P(f"buffer_load_dwordx4 v{va}, {sr(sd,4)}, s{so} offen" + (f" offset:{imm}" if imm else "") + " lds"); vm.add(tag)
        self.stamp("dma0")
        P(f"s_load_dword s{sNONCE}, s[18:19], {WS_E}")
        P(f"s_lshr_b32 s{sT1}, s7, 2\ns_lshl3_add_u32 s{sS2}, s3, s{sT1}\ns_and_b32 s{sEG}, s7, 3")
        for q in range(2, 7):
            P(f"s_add_u32 s{sSX+q}, s{sSX+q-1}, 128\ns_add_u32 s{sSW+q}, s{sSW+q-1}, {64*2688}\ns_cmp_eq_u32 s{sROT}, {7-q}\ns_cselect_b32 s{sSX+q}, s{sT2}, s{sSX+q}\ns_cselect_b32 s{sSW+q}, 0, s{sSW+q}")
        A = Prog()
        srd(A, sW, sWKV, 448*2688); srd(A, sWS, 18, WS_SIZE); srd(A, sWO, 12, 448*896); srd(A, sOUT, 14, 2048*1792)
        A(f"s_mov_b32 s{sXA+2}, {2048*896:#x}\ns_mov_b32 s{sXA+3}, 0x20000\ns_mul_i32 s3, s{sS2}, 896")
        A(f"v_mul_u32_u24 v{vxa}, {64*896}, v16\nv_add3_u32 v{vxa}, v{vxa}, v17, s3")
        A(f"v_min_u32 v20, 6, v18\ns_mul_i32 s3, s{sP}, 112\nv_lshl_add_u32 v{vq0}, v20, 4, v19\nv_add_u32 v{vq0}, s3, v{vq0}\nv_add_u32 v{vq1}, {32*2688}, v{vq0}")
        A(f"s_cmp_eq_u32 s{sP}, 7\ns_cselect_b32 s{sFO}, 1, 0\ns_cmp_eq_u32 s{sR}, 0\ns_cselect_b32 s{sFO}, s{sFO}, 2")
        F = A.lines + self.const_stream()
        fi = 0
        def fill(n):
            nonlocal fi
            while fi + n < len(F) and F[fi + n].startswith(("s_cselect", "s_addc")): n += 1
            for l in F[fi:fi + n]: P(l)
            fi = min(len(F), fi + n)
        nbar = 0
        items = [(t[0], int(t[1]), t.endswith("b")) for t in o["items"].split()]
        safe = {}
        for i, (kind, q, _) in enumerate(items):
            later = [k for k in range(i + 2, len(items)) if items[k][2]]
            nb = sum(it[2] for it in items[:later[0] + 1]) if later else sum(it[2] for it in items) + 1
            if o["two"]: nb = min(nb, 8)
            if kind == "K": safe[L_X(q) // SL] = nb; safe[L_WK(q) // SL] = nb
        def dma(tag, lds, va, srdn, soff):
            if tag[0] != "K" and (lds // SL) in safe: assert nbar >= safe[lds // SL], ("WAR", tag, nbar)
            P(f"s_add_u32 m0, s{sT4}, {lds}\nbuffer_load_dwordx4 v{va}, {sr(srdn,4)}, s{soff} offen lds"); vm.add(tag)
        def ld(kind, q):
            if kind == "K":
                dma(("K", q), L_X(q), vx0, sXB, sSX + q); dma(("K", q), L_WK(q), vw0, sWKV, sSW + q)
                dma(("K", q), L_X(q) + 4096, vx1, sXB, sSX + q); dma(("K", q), L_WK(q) + 4096, vw1, sWKV, sSW + q)
            elif kind == "X":
                dma(("K", q), L_X(q), vx0, sXB, sSX + q); dma(("K", q), L_X(q) + 4096, vx1, sXB, sSX + q)
            elif kind == "V":
                if q == o['pre'].count('V'): P(f"v_add_u32 v{vw0}, 896, v{vw0}\nv_add_u32 v{vw1}, 896, v{vw1}")
                dma(("V", q), L_WV(q), vw0, sWKV, sSW + q); dma(("V", q), L_WV(q) + 4096, vw1, sWKV, sSW + q)
            elif kind == "Q":
                dma(("Q", q), L_WQ(q), vq0, sW, sSW + q); dma(("Q", q), L_WQ(q) + 4096, vq1, sW, sSW + q)
            elif kind == "A":
                P(f"s_add_u32 m0, s{sT4}, {L_XA + q*(4096-128)}\nbuffer_load_dwordx4 v{vxa}, {sr(sXA,4)}, 0 offen offset:{q*128} lds"); vm.add(("A", q))
        def bar(name, tag=None):
            nonlocal nbar
            self.stamp("f" + name)
            if tag: vm.wait(tag)
            self.stamp("w" + name)
            P("s_barrier"); nbar += 1
            self.stamp("b" + name)
        def only(cond, f):
            L = P.label("sk")
            P(f"{cond}\ns_cbranch_scc0 {L}"); f(); P(f"{L}:")
        FO = [24, 25, 26, 27, 11]
        def flag_setup(E):
            E(f"s_add_u32 s3, s{sP}, s{sCI}\ns_and_b32 s3, s3, 7\ns_lshl_b32 s3, s3, 5\ns_sub_u32 s3, s3, s{sCI}\ns_lshl2_add_u32 s3, s3, {WS_KF + 4:#x}")
            for d in range(5):
                E(f"s_add_u32 s7, s{sRT}, {d}\ns_and_b32 s7, s7, 31\ns_lshl_b32 s7, s7, 10\ns_add_u32 s{FO[d]}, s7, s3\ns_add_u32 s3, s3, 8")
            E(f"s_add_u32 s4, s18, {WS_VF - WS_KF:#x}\ns_addc_u32 s5, s19, 0")
        def sflag(bases, early):
            def f():
                for bs in bases:
                    for d in range(5): P(f"s_atomic_swap s{sNONCE}, {bs}, s{FO[d]}")
            only(f"s_cmp_eq_u32 s{sFO}, {int(early)}", f)
        CC, SS, ZC, ZS, ZH = 144, 172, 64, 72, 136
        vFL = 15
        def a1(k0, k1):
            lg = Cnt(P, "lgkmcnt", 15)
            NX = 6
            def xreg(ks): return (24, 32, 40, 48, 56, 112)[ks % NX]
            def xread(ks):
                for mt in range(2):
                    P(f"ds_read_b128 {vr(xreg(ks) + 4*mt, 4)}, v{8 + (ks & 1)} offset:{(ks>>1)*4096 + mt*2048}"); lg.add(("x", ks))
            for ks in range(k0, min(k1, k0 + NX - 1)): xread(ks)
            inl = dict(t.split(":") for t in o["ina1"].split())
            for ks in range(k0, k1):
                if str(ks) in inl:
                    if "kf" in inl[str(ks)]: assert ks >= k1 + 1 - NX; lg.all()
                    run(inl[str(ks)].replace(",", " "))
                lg.wait(("x", ks))
                x = xreg(ks); z = ZH if ks >= 7 else 0; kk = 4 * (ks % 7)
                c = (lambda r: "0" if kk == 0 else r)
                P(MF16(ZC + z, x, CC + kk, c(ZC + z)))
                P(MF16(ZS + z, x, SS + kk, c(ZS + z)))
                if ks + NX - 1 < k1: xread(ks + NX - 1)
                fk = ks - o["fks"]
                if fk in (0, 1):
                    for k in range(2): P(f"ds_read_b128 {vr(96+8*fk+4*k,4)}, v134 offset:{2048*fk+1024*k}"); lg.add("F")
                P(MF16(ZC + z + 4, x + 4, CC + kk, c(ZC + z + 4)))
                P(MF16(ZS + z + 4, x + 4, SS + kk, c(ZS + z + 4)))
            lg.wait("F")
            self.stamp("a1" if k1 == 14 else "a1a")
        ZR, ZP, ZN, TA = 80, 84, 88, 40
        def lva():
            for i in range(16): P(f"v_fmac_f32 v{ZC+i}, v11, v{ZC+ZH+i}")
            for i in range(4): P(f"v_cvt_pk_bf16_f32 v{ZR+i}, v{ZC+2*i}, v{ZC+2*i+1}")
            for i in range(4): P(f"v_cvt_pk_bf16_f32 v{ZP+i}, v{ZS+2*i}, v{ZS+2*i+1}")
            for i in range(4): P(f"v_cvt_pk_bf16_f32 v{ZN+i}, -v{ZS+2*i}, -v{ZS+2*i+1}")
            for nt in range(2):
                P(MF16(TA + 8*nt, ZR, 96 + 4*nt, "0")); P(MF16(TA + 8*nt + 4, ZR, 104 + 4*nt, "0"))
            P(f"v_and_b32 v18, 15, v0\nv_lshrrev_b32 v19, 4, v0\nv_lshl_add_u32 v20, s{sU}, 2, v19\nv_and_b32 v21, 7, v0\nv_xor_b32 v20, v20, v21")
            P(f"v_lshl_add_u32 v20, v18, 4, v20\nv_lshlrev_b32 v20, 4, v20\nv_add_u32 v20, {L_TS}, v20")
        def lvb():
            for nt in range(2):
                P(MF16(TA + 8*nt, ZN, 104 + 4*nt, TA + 8*nt)); P(MF16(TA + 8*nt + 4, ZP, 96 + 4*nt, TA + 8*nt + 4))
        def lvc():
            for nt in range(2):
                for r_ in range(4): P(f"v_cvt_pk_bf16_f32 v{56+4*nt+r_}, v{TA+8*nt+r_}, v{TA+8*nt+4+r_}")
                P(f"ds_write_b128 v20, {vr(56+4*nt,4)} offset:{4096*nt}")
            self.lds_signal(vFL, 6, 21)
        vTR, vWR, vRD, vG0, vG1, vOR = 120, 122, 121, 124, 125, 126
        sOB = 10
        def out_addr():
            P = self.P
            self.scratch_addr(vWR, vRD, L_OUT, 112)
            P(f"v_mul_u32_u24 v{vG0}, 1792, v114\nv_add_u32 v{vG0}, v{vG0}, v115\nv_add_u32 v{vG1}, {16*1792}, v{vG0}")
            P(f"s_lshl_b32 s{sT0}, s{sCI}, 6")
            self.tr_addr(vTR, 116, 117, True, sT0)
            P(f"v_add_u32 v{vTR}, {L_WQ(0)}, v{vTR}")
            P(f"s_lshl_b32 s3, s{sR}, 12\nv_lshl_add_u32 v{vOR}, v112, 3, s3\nv_lshl_add_u32 v{vOR}, v113, 9, v{vOR}")
            P(f"s_lshl1_add_u32 s3, s{sRT}, s{sR}\ns_mul_i32 s3, s3, {32*1792}\ns_lshl_b32 s7, s{sP}, 7\ns_add_u32 s3, s3, s7")
            P(f"s_add_u32 s3, s3, s{sT0}\ns_add_u32 s{sOB}, s3, 896")
        vD0, vD1, vWO = 14, 127, 17
        def role_setup():
            P = self.P
            P(f"s_mul_i32 s3, s{sCI}, -512\ns_add_u32 s3, s3, 4096\nv_lshlrev_b32 v{vD0}, 4, v0\nv_add_u32 v{vD1}, s3, v{vD0}")
            P(f"s_lshl3_add_u32 s3, s{sRT}, s{sP}\ns_lshl_b32 s3, s3, 7\ns_mul_i32 s7, s{sCI}, {WS_VF - WS_KF:#x}\ns_add_u32 s3, s3, s7\ns_add_u32 s{sT3}, s3, {WS_KF:#x}")
            P(f"s_mul_i32 s{sT1}, s{sP}, {PAIR}\ns_mul_i32 s3, s{sRT}, 7168\ns_add_u32 s3, s3, s{sT1}\ns_mul_i32 s7, s{sCI}, {WS_V - WS_K:#x}\ns_add_u32 s3, s3, s7\ns_add_u32 s{sGB[4]}, s3, {WS_K:#x}")
            for n in range(4):
                P(f"s_sub_u32 s3, s{sGB[4]}, {7168*(4-n)}\ns_cmp_lt_u32 s{sRT}, {4-n}\ns_cselect_b32 s{sGB[n]}, s{sWS+2}, s3")
            P(f"s_mul_i32 s3, s{sU}, 10\nv_lshrrev_b32 v132, 1, v0\nv_add_u32 v132, s3, v132\nv_lshl_add_u32 v133, s{sRT}, 3, v132\nv_cmp_le_u32 vcc, 32, v133")
            P(f"v_mov_b32 v129, 0x3f803f80\nv_and_b32 v133, 1, v0\nv_cndmask_b32 v128, 0, v129, vcc\nv_lshlrev_b32 v133, 6, v133\nv_lshl_add_u32 v132, v132, 10, v133")
            P(f"v_mov_b32 v129, v128\nv_mov_b32 v130, v128\nv_mov_b32 v131, v128\nv_add_u32 v134, {L_F}, v{vD0}")
        def ones():
            P(f"s_mov_b64 exec, 0xfffff\nds_write_b128 v132, v[128:131] offset:{L_VT + 896}\ns_mov_b64 exec, -1")
        for f in (lambda: flag_setup(self.P), out_addr, role_setup):
            B = Prog(); self.into(B, f); F += B.lines
            if o.get("verbose"): print("filler length", len(F) - len(B.lines), len(F))
        def die_tell():
            P(f"s_getreg_b32 s4, hwreg(HW_REG_XCC_ID, 0, 4)\ns_lshl_b32 s{sT5}, s{sRT}, 7\ns_add_u32 s{sT2}, s{sT5}, {WS_XF:#x}\ns_lshl2_add_u32 s{sT5}, s{sP}, s{sT2}")
            P(f"s_add_u32 s16, s4, s{sNONCE}\ns_mov_b32 s17, s16\ns_atomic_swap s17, s[18:19], s{sT5}")
        def die_ask(): P(f"s_load_dwordx8 s[20:27], s[18:19], s{sT2} glc")
        def die_check():
            Lx = P.label("xm")
            P(f"s_mov_b32 s{sT5}, {SPIN}\n{Lx}:\ns_waitcnt lgkmcnt(0)")
            for k in range(4): P(f"s_cmp_lg_u64 {sr(20+2*k,2)}, s[16:17]\ns_cbranch_scc1 {Lx}_n")
            self.lds_set(vFL, 3, 21, 1 if o['olocal'] else 0)
            P(f"{Lx}_e:\ns_waitcnt lgkmcnt(0)")
            T(f"{Lx}_n:\ns_sub_u32 s20, s20, s6")
            for k in range(1, 8): T(f"s_sub_u32 s{20+k}, s{20+k}, s6\ns_max_u32 s20, s20, s{20+k}")
            T(f"s_cmp_lt_u32 s20, 16\ns_cbranch_scc1 {Lx}_e\ns_load_dwordx8 s[20:27], s[18:19], s{sT2} glc\ns_sub_u32 s{sT5}, s{sT5}, 1\ns_cbranch_scc0 {Lx}\ns_branch {Lx}_e")
        p7state = {}
        def run(sched, extra={}):
            for tok in sched.split():
                if tok in extra: extra[tok]()
                elif tok[0] in "KVQAX" and tok[1:].isdigit(): ld(tok[0], int(tok[1:]))
                elif tok[0] == "f" and tok != "fs": fill(len(F) if tok == "f*" else int(tok[1:]))
                elif tok[0] == "w": vm.wait((tok[1], int(tok[2:])))
                elif tok[0] == "b": bar(tok[1:], (tok[1], int(tok[2:])) if tok[1] != "S" else None)
                elif tok == "nonce": P(f"s_waitcnt lgkmcnt(0)\n{NONCE}")
                elif tok == "lg0": P("s_waitcnt lgkmcnt(0)")
                elif tok == "oad": out_addr()
                elif tok == "fs": flag_setup(P)
                elif tok == "kf": sflag(["s[18:19]"], False)
                elif tok == "vf": sflag(["s[4:5]"], False)
                elif tok == "ef": sflag(["s[18:19]", "s[4:5]"], True)
                elif tok == "a1": a1(0, 14)
                elif tok == "a1a": a1(0, o["a1cut"])
                elif tok == "a1b": a1(o["a1cut"], 14)
                elif tok == "lva": lva()
                elif tok == "lvb": lvb()
                elif tok == "lvc": lvc()
                elif tok == "rs": role_setup()
                elif tok == "one": ones()
                elif tok == "tl":
                    if o["touch"] & 2:
                        P(f"s_lshl_b32 s3, s2, 7\ns_add_u32 s7, s{sU}, 1\ns_lshl_b32 s7, s7, 21\ns_add_u32 s7, s7, s3\ns_load_dword s1, s[18:19], s7 glc")
                        P(f"s_lshl_b32 s7, s{sR}, 21\ns_lshl_b32 s{sT5}, s{sCI}, 15\ns_add_u32 s7, s7, s{sT5}\ns_add_u32 s7, s7, s3\ns_load_dword s0, {sr(sOUT,2)}, s7 glc")
                    if o["touch"] & 8:
                        P(f"s_lshl3_add_u32 s3, s{sRT}, s{sP}\ns_lshl_b32 s3, s3, 7\ns_lshl_b32 s7, s{sU}, 15\ns_add_u32 s3, s3, s7\ns_add_u32 s3, s3, {WS_KF:#x}\ns_load_dword s1, s[18:19], s3 glc")
                elif tok == "xt": only(f"s_cmp_eq_u32 s{sU}, 3", die_tell)
                elif tok == "xa": only(f"s_cmp_eq_u32 s{sU}, 3", die_ask)
                elif tok == "xc": only(f"s_cmp_eq_u32 s{sU}, 3", die_check)
                elif tok == "p7":
                    P(f"s_cmp_eq_u32 s{sP}, 7\ns_cbranch_scc1 L_p7")
                    p7state.update(fi=fi, q=list(vm.q))
                elif tok == "join": P("L_p7join:")
                elif tok == "page": P("@JUMPALIGN g2p1"); self.pad("g2p1"); P("L_ja_g2p1:")
                else: raise ValueError(tok)
        run(o["sched"])
        P(f"s_cmp_eq_u32 s{sU}, 3\ns_cbranch_scc1 L_roleV\ns_cmp_eq_u32 s{sU}, 2\ns_cbranch_scc1 L_roleT\ns_cmp_eq_u32 s{sU}, 0\ns_cbranch_scc1 L_roleN")
        vq_saved = list(vm.q); nb_saved = nbar
        def k_ld(n):
            for z in range(7):
                if z in (0, 4): P(f"s_mov_b32 m0, {L_KT + n*7168 + z*1024}")
                P(f"buffer_load_dwordx4 v{vD0 if z < 4 else vD1}, {sr(sWS,4)}, s{sGB[n]} offen offset:{(z&3)*1024} sc1 lds"); vm.add(("k", n))
        ex = {"kp": self.inbox_issue, "kw": lambda: (self.inbox_wait(), self.stamp("r1"))}
        for n in range(5): ex[f"k{n}"] = (lambda n=n: k_ld(n))
        run(o["schedK"], ex)
        P("v_mov_b32 v112, 1\nv_mov_b32 v113, 2")
        vm.wait(("k", 3)); P(f"ds_write_b32 v{vFL}, v112"); self.stamp("r2")
        vm.all(); P(f"ds_write_b32 v{vFL}, v113")
        P("s_branch L_rolesdone")
        self.pad("roleN"); P("L_roleN:"); vm.q = list(vq_saved); nbar = nb_saved
        run(" ".join(t for t in o["schedT"].split() if t not in ("ts", "tst")))
        P("s_branch L_rolesdone")
        self.pad("roleT"); P("L_roleT:"); vm.q = list(vq_saved); nbar = nb_saved
        def t_setup():
            self.lds_wait(vFL, 6, 4, 22)
            P(f"v_xor_b32 v21, v19, v0\nv_lshlrev_b32 v21, 4, v21\nv_add_u32 v21, {L_TS}, v21\nv_xor_b32 v22, 64, v21")
            for n in range(8): P(f"ds_read_b128 {vr(24+4*n,4)}, v{21+(n&1)} offset:{1024*n}")
            P(f"v_and_b32 v23, 0x70, v{vD0}\nv_bfe_u32 v22, v0, 3, 1\nv_lshl_add_u32 v23, v22, 13, v23\nv_mul_u32_u24 v22, {TST}, v19\nv_add_u32 v23, v22, v23")
            P(f"s_lshl_b32 s{sT0}, s{sS2}, 7\ns_lshl_b32 s3, s{sEG}, 14\ns_add_u32 s{sT0}, s{sT0}, s3\ns_add_u32 s{sT0}, s{sT0}, {WS_T:#x}")
            P(f"s_lshr_b32 s7, s{sS2}, 3\ns_lshl3_add_u32 s3, s{sEG}, s7\ns_lshl_b32 s3, s3, 7\ns_and_b32 s7, s{sS2}, 7\ns_lshl2_add_u32 s3, s7, s3")
            P(f"s_add_u32 s{sT2}, s3, {WS_TF:#x}")
        def t_store():
            if o["twait"] >= 0: self.lds_wait(vFL, o["twait"], 1, 22)
            else: P("s_waitcnt lgkmcnt(0)")
            for n in range(8):
                P(f"buffer_store_dwordx4 {vr(24+4*n,4)}, v23, {sr(sWS,4)}, s{sT0} offen sc1\ns_add_u32 s{sT0}, s{sT0}, {4*TST}"); vm.add(("T", 0))
        run(o["schedT"], {"ts": t_setup, "tst": t_store})
        P(f"s_waitcnt vmcnt(0)\ns_atomic_swap s{sNONCE}, s[18:19], s{sT2}")
        self.stamp("r1")
        P("s_branch L_rolesdone")
        self.pad("roleV"); P("L_roleV:"); vm.q = list(vq_saved); nbar = nb_saved
        run(o["schedV"], {"vp": self.inbox_issue})
        P(f"v_mov_b32 v112, 1\nv_mov_b32 v113, 2\ns_mov_b32 exec_hi, 0x00ffffff")
        self.inbox_wait()
        self.stamp("r1")
        for n in (4, 3, 2, 1, 0):
            for z in range(8):
                P(f"s_mov_b32 m0, {L_VT + n*8192 + (z>>2)*4096 + (z&3)*128}")
                P(f"buffer_load_dwordx4 v{vD1 if z >> 2 else vD0}, {sr(sWS,4)}, s{sGB[n]} offen offset:{896*(z&3)} sc1 lds"); vm.add(("v", n))
            if n == o.get("vi", 1): P(f"ds_write_b32 v{vFL}, v112 offset:20")
        P(f"s_mov_b64 exec, -1")
        P(f"v_lshrrev_b32 v{vWO}, 3, v0\nv_mul_u32_u24 v{vWO}, 896, v{vWO}\nv_lshrrev_b32 v28, 2, v0\nv_and_b32 v28, 4, v28\nv_xor_b32 v28, v28, v0\nv_and_b32 v28, 7, v28")
        P(f"s_lshl_b32 s3, s{sP}, 7\nv_lshl_add_u32 v{vWO}, v28, 4, v{vWO}\nv_add_u32 v{vWO}, s3, v{vWO}")
        P(f"s_and_b32 s{sROT}, s{sRT}, 3\ns_mul_i32 s{sROT}, s{sROT}, {o.get('worot', 2)}")
        def wo_loop(nch):
            Lw = P.label("wo")
            P(f"s_mov_b32 s{sT2}, {nch}\n{Lw}:\ns_lshl_b32 s{sT1}, s{sROT}, 13\ns_add_u32 m0, s{sT1}, {L_WQ(0)}\ns_mul_i32 s{sT0}, s{sROT}, {64*896}")
            for z in range(8):
                P(f"buffer_load_dwordx4 v{vWO}, {sr(sWO,4)}, s{sT0} offen lds")
                if z < 7: P(f"s_addk_i32 m0, 1024\ns_addk_i32 s{sT0}, 7168")
            P(f"s_add_u32 s{sROT}, s{sROT}, 1\ns_cmp_eq_u32 s{sROT}, 7\ns_cselect_b32 s{sROT}, 0, s{sROT}\ns_sub_u32 s{sT2}, s{sT2}, 1\ns_cmp_lg_u32 s{sT2}, 0\ns_cbranch_scc1 {Lw}")
            for _ in range(8 * nch): vm.add(("w", 0))
        self.lds_wait(vFL, 2, 4, 25)
        vm.wait(("v", 3)); P(f"ds_write_b32 v{vFL}, v112 offset:4"); self.stamp("r2")
        P(f"s_cmp_eq_u32 s{sP}, 7\ns_cbranch_scc1 L_v7end")
        T(f"L_v7end:\ns_waitcnt vmcnt(0)\nds_write_b32 v{vFL}, v113 offset:4\ns_branch L_g2end")
        nw = o.get("wo1", 1)
        if nw: wo_loop(nw)
        vm.wait(("v", 0)); P(f"ds_write_b32 v{vFL}, v113 offset:4"); self.stamp("r3")
        wo_loop(7 - nw)
        vm.all()
        P("@JUMPALIGN done"); self.pad("done")
        P(f"L_ja_done:\nL_rolesdone:")
        self.stamp("roled")
        P(f"s_cmp_eq_u32 s{sP}, 7\ns_cbranch_scc1 L_g2end\ns_waitcnt lgkmcnt(0)")
        P("s_barrier")
        self.stamp("bw")
        WF = 144
        for ks in range(28):
            for t in range(2):
                P(f"ds_read_b64_tr_b16 {vr(WF+4*ks+2*t,2)}, v{vTR} offset:{ks*2048 + t*512}")
        P("s_setprio 2\ns_waitcnt lgkmcnt(0)")
        lg = Cnt(P, "lgkmcnt", 15)
        oa = LdsAddr(P, vOR)
        OF = 32
        nm = 0
        def omf():
            nonlocal nm
            q, s = nm >> 2, nm & 3
            lg.wait((q, s))
            P(MF32(64, WF + 4*nm, OF + 16*(q & 1) + 4*s, "0" if nm == 0 else 64)); nm += 1
        for q in range(7):
            P("s_barrier"); self.stamp(f"bo{q}")
            for s in range(4):
                if nm < 4 * q: omf()
                for t in range(2):
                    off = oa.off(L_O(q) + (4*s + t) * 256)
                    P(f"ds_read_b64 {vr(OF + 16*(q&1) + 4*s + 2*t, 2)}, v{vOR} offset:{off}"); lg.add((q, s))
            while nm < 4 * q + 4 - o.get("lago", 3): omf()
        while nm < 28: omf()
        self.out_epilogue(64, 24, vWR, vRD, vG0, vG1, f"s{sOB}", o["outmod"])
        self.stamp("fin")
        P(f"L_g2end:")
        self.stamp_out()
        P("s_endpgm")
        P("L_p7:")
        fi = p7state["fi"]; vm.q = p7state["q"]; nbar = 99
        run(o["sched7"])
        P("s_branch L_p7join")

    def g1(self):
        P = self.P; o = self.o; T = self.tail
        vXA, vWK, vWV, vWQ, vKS, vVS, vZ, vDA, vKR, vVR, vOS, vOP, vNON, vFL, vL, vH = 1, 5, 6, 7, 8, 10, 11, 13, 14, 15, 16, 17, 18, 19, 12, 20
        vSA, vSB = 22, 23
        QF, FM = 24, 32
        AK, AV, AQ, CD, WF, XF = 48, 64, 80, 96, 112, 144
        sG, sKO, sVO, sMODE, sFB, sOFo, sOO = sSW, sSW + 1, sSW + 2, sSW + 3, sSW + 4, sSW + 5, sSW + 6
        c = math.log2(math.e) / math.sqrt(28)
        P("L_g1:")
        self.stamp("G.in")
        P(f"s_waitcnt lgkmcnt(0)\ns_load_dword s{sNONCE}, s[18:19], {WS_E}")
        srd(P, sWS, 18, WS_SIZE); srd(P, sWO, 12, 448*896)
        P(f"s_mov_b32 s{sXA+2}, {2048*896:#x}\ns_mov_b32 s{sXA+3}, 0x20000")
        if o["warm"] > 1:
            P(f"s_lshl2_add_u32 s10, s2, s{sU}\ns_mulk_i32 s10, 392\nv_lshlrev_b32 v40, 3, v0\nbuffer_load_dword v47, v40, {sr(sWO,4)}, s10 offen")
        if o["pf7"]:
            Lp = P.label("pf")
            P(f"s_cmp_lg_u32 s{sP}, 7\ns_cbranch_scc1 {Lp}")
            P(f"s_and_b32 s7, s{sRT}, 3\ns_lshl2_add_u32 s7, s7, s{sU}\ns_mul_i32 s10, s7, {128*896}\ns_mul_i32 s11, s3, {8*896}\ns_add_u32 s10, s10, s11")
            P(f"v_lshlrev_b32 v40, 7, v0\ns_mov_b32 exec_hi, 0x00ffffff")
            for seg in range(2):
                P(f"buffer_load_dword v47, v40, {sr(sXA,4)}, s10 offen\ns_add_u32 s10, s10, {64*896}")
            if o["pfwo"]: P(f"s_mul_i32 s10, s7, 25088\ns_mov_b32 exec_hi, 0x0001ffff")
            for k in range(o["pfwo"]):
                P(f"buffer_load_dword v47, v40, {sr(sWO,4)}, s10 offen\ns_add_u32 s10, s10, {49*128}")
            P(f"s_mov_b64 exec, -1\n{Lp}:")
        if o["touch"] & 1:
            Lt = P.label("tch")
            srd(P, sOUT, 14, 2048*1792)
            P(f"s_cmp_lg_u32 s{sU}, 0\ns_cbranch_scc1 {Lt}\nv_lshlrev_b32 v40, 21, v0\nv_add_u32 v41, 0x800, v40\ns_mov_b64 exec, {(1 << NPAGE) - 1}")
            P(f"buffer_load_dword v47, v41, {sr(sWS,4)}, 0 offen\nbuffer_load_dword v47, v40, {sr(sXA,4)}, 0 offen")
            if o["touch"] & 4:
                P(f"s_mul_i32 s7, s{sRT}, 1792\nv_mul_u32_u24 v40, {1024*1792 + 512*1792}, v0\nbuffer_load_dword v47, v40, {sr(sOUT,4)}, s7 offen")
            P(f"s_mov_b64 exec, -1\n{Lt}:")
        P(f"v_and_b32 v{vL}, 31, v0\nv_lshrrev_b32 v{vH}, 5, v0\nv_bfe_u32 v42, v0, 1, 3\nv_xor_b32 v42, v42, v{vH}")
        P(f"s_lshl_b32 s3, s{sR}, 12\nv_lshl_add_u32 v43, v{vL}, 7, s3\nv_lshl_add_u32 v{vXA}, v42, 4, v43")
        for s in range(1, 4): P(f"v_xor_b32 v{vXA+s}, {32*s}, v{vXA}")
        P(f"s_lshl_b32 s{sT0}, s{sCI}, 6")
        self.tr_addr(vWK, 42, 43, True, sT0)
        P(f"s_add_u32 s{sT0}, s{sT0}, {L_WV(0)}")
        self.tr_addr(vWV, 42, 43, False, sT0)
        P(f"s_lshl1_add_u32 s{sG}, s{sRT}, s{sR}")
        P(f"s_lshl1_add_u32 s3, s{sP}, s{sCI}\ns_mov_b32 s7, {PAIR - 7*512}\nv_lshl_add_u32 v42, s3, 2, v{vH}")
        for s in range(2):
            P(f"v_mul_u32_u24 v43, 37, v42\nv_lshrrev_b32 v43, 8, v43\nv_mul_lo_u32 v43, v43, s7\nv_lshl_add_u32 v43, v42, 9, v43\nv_lshl_add_u32 v{vKS+s}, v{vL}, 4, v43")
            if s == 0: P("v_add_u32 v42, 2, v42")
        P(f"s_mul_i32 s3, s{sG}, 3584\ns_add_u32 s{sKO}, s3, {WS_K:#x}\ns_add_u32 s{sVO}, s3, {WS_V:#x}")
        P(f"v_mov_b32 v{vZ}, 0\nv_mov_b32 v{vFL}, {L_FLAG}\nv_and_b32 v42, 7, v0\nv_lshl_add_u32 v42, v42, 2, v{vFL}\nds_write_b32 v42, v{vZ}")
        if o["hops"]:
            for k, ch in enumerate(self.HOPS[:-1]): P(f"s_cmp_eq_u32 s{sU}, {k}\ns_cbranch_scc1 L_pad_{ch[0]}")
            P(f"s_branch L_pad_{self.HOPS[-1][0]}\nL_hopret:")
        self.stamp("G.set")
        lg = Cnt(P, "lgkmcnt", 15)
        xa = [LdsAddr(P, vXA + s) for s in range(4)]
        wa = {"K": LdsAddr(P, vWK), "V": LdsAddr(P, vWV, L_WV(0)), "Q": LdsAddr(P, vWQ, L_WQ(0))}
        wl = {"K": L_WK, "V": L_WV, "Q": L_WQ}
        acc = {"K": AK, "V": AV, "Q": AQ}
        def pack(a, half):
            for i in range(4): P(f"v_cvt_pk_bf16_f32 v{QF+4*half+i}, v{a+8*half+2*i}, v{a+8*half+2*i+1}")
        def proj(items, pre={}, lagn={}, post={}, mid={}):
            nm = 0
            def mf():
                nonlocal nm
                i, s = nm >> 2, nm & 3; kind, q, _ = items[i]
                lg.wait((i, s))
                w, x, a = WF + 16*(i & 1) + 4*s, XF + 16*q + 4*s, acc[kind]
                cc = "0" if (q == 0 and s == 0) else a
                P(MF32(a, x, w, cc) if kind == "V" else MF32(a, w, x, cc)); nm += 1
            for i, (kind, q, br) in enumerate(items):
                if i in pre: pre[i]()
                if br: P("s_barrier"); self.stamp(f"G.b{kind}{q}")
                for s in range(4):
                    if nm < 4 * i: mf()
                    if kind == "K":
                        off = xa[s].off(L_X(q))
                        P(f"ds_read_b128 {vr(XF + 16*q + 4*s, 4)}, v{vXA+s} offset:{off}"); lg.add((i, s))
                    for t in range(2):
                        off = wa[kind].off(wl[kind](q) + s*2048 + t*512)
                        P(f"ds_read_b64_tr_b16 {vr(WF + 16*(i&1) + 4*s + 2*t, 2)}, v{wa[kind].reg} offset:{off}"); lg.add((i, s))
                    if (i, s) in mid: mid[(i, s)]()
                while nm < 4 * i + 4 - lagn.get(i, 4): mf()
                if i in post: post[i]()
            while nm < 4 * len(items): mf()
        D = Prog()
        vE, vB, vA, vC, vS = 80, 81, 82, 84, 88
        D(f"v_and_b32 v{vA}, 15, v0\nv_lshl_add_u32 v{vA}, s{sR}, 4, v{vA}\nv_cvt_f32_u32 v{vA}, v{vA}\nv_mul_f32 v{vE}, {fl(1/32)}, v{vA}")
        D(f"v_lshrrev_b32 v{vA}, 2, v0\nv_and_b32 v{vA}, 12, v{vA}\nv_cvt_f32_u32 v{vA}, v{vA}\ns_mul_i32 s3, s{sCI}, {f2u(-0.25):#x}\nv_fma_f32 v{vB}, v{vE}, v{vA}, s3")
        for j in range(8): D(f"v_fmamk_f32 v{vC+j}, v{vE}, {fl(16*(j>>2)+(j&3))}, v{vB}")
        for j in range(8): D(f"v_cos_f32 v{vC+j}, v{vC+j}")
        for jj in range(4): D(f"v_cvt_pk_bf16_f32 v{CD+8+jj}, v{vC+2*jj}, v{vC+2*jj+1}")
        D(f"v_lshl_add_u32 v{vA}, v{vL}, 5, s{sRT}\nv_cvt_f32_u32 v{vA}, v{vA}\nv_mul_f32 v{vE}, {fl(1/2048)}, v{vA}")
        D(f"v_lshl_add_u32 v{vA}, s{sU}, 1, v{vH}\nv_lshlrev_b32 v{vA}, 3, v{vA}\nv_cvt_f32_u32 v{vA}, v{vA}\nv_mul_f32 v{vB}, v{vE}, v{vA}")
        for par in range(2):
            for jj in range(4): D(f"v_fmamk_f32 v{vS+jj}, v{vE}, {fl(2*jj + par)}, v{vB}")
            for jj in range(4): D(f"v_cos_f32 v{vC+jj}, v{vS+jj}")
            for jj in range(4): D(f"v_sin_f32 v{vS+jj}, v{vS+jj}")
            for jj in range(4): D(f"v_cvt_pk_bf16_f32 v{CD+4*par+jj}, v{vC+jj}, -v{vS+jj}")
        keep = P; P = D; self.P = D; D._lab = 500
        P(f"s_mul_i32 s{sT0}, s{sCI}, 48\ns_add_u32 s{sT0}, s{sT0}, {L_WQ(0)}")
        self.tr_addr(vWQ, 42, 43, True, sT0)
        P(f"s_lshl1_add_u32 s3, s{sP}, s{sCI}\nv_lshl_add_u32 v42, s3, 5, v{vL}\nv_mul_u32_u24 v43, 1171, v42\nv_lshrrev_b32 v43, 16, v43\ns_mov_b32 s7, {PAIR - 896}")
        P(f"v_mul_lo_u32 v43, v43, s7\nv_lshl_add_u32 v43, v42, 4, v43\nv_mul_u32_u24 v42, 896, v{vH}\nv_add_u32 v{vVS}, v42, v43")
        P(f"s_mul_i32 s3, s3, 1792\ns_mul_i32 s7, s{sG}, 28672\ns_add_u32 s3, s3, s7\ns_add_u32 s{sOO}, s3, {WS_O:#x}")
        P(f"s_lshl3_add_u32 s3, s{sRT}, s{sP}\ns_lshl2_add_u32 s3, s3, s{sU}\ns_lshl_b32 s3, s3, 2\ns_add_u32 s{sOFo}, s3, {WS_OF:#x}\ns_mov_b32 s{sFB}, 0")
        P(f"s_lshl_b32 s3, s{sRT}, 7\nv_lshl_add_u32 v{vOP}, v{vL}, 2, s3\nv_lshl_add_u32 v{vDA}, v0, 4, s{sT4}")
        P(f"v_lshlrev_b32 v42, 2, v{vH}\nv_sub_u32 v21, v{vL}, v42\ns_mov_b32 s11, {fl(c)}")
        P = keep; self.P = keep
        n0 = o.get("g1f0", 30)
        P.extend(D.lines[:n0])
        P(f"s_cmp_eq_u32 s{sP}, 7\ns_cbranch_scc1 L_x7\ns_setprio 1")
        self.stamp("G.set2")
        def fm_write(E):
            E(f"v_add_u32 v42, {L_F}, v{vDA}\nds_write_b128 v42, {vr(CD+8,4)}\nds_write_b128 v42, {vr(CD,4)} offset:{L_M - L_F}\nds_write_b128 v42, {vr(CD+4,4)} offset:{L_M - L_F + 4096}")
        B7 = Prog(); B7._lab = 600
        B7("L_x7:"); B7.extend(D.lines[n0:]); B7("s_waitcnt lgkmcnt(0)\ns_barrier")
        xa7 = [LdsAddr(B7, vXA + s) for s in range(4)]
        for q in range(7):
            for s in range(4):
                off = xa7[s].off(L_X(q))
                B7(f"ds_read_b128 {vr(XF + 16*q + 4*s, 4)}, v{vXA+s} offset:{off}")
        fm_write(B7)
        B7(f"s_waitcnt lgkmcnt(0)\ns_barrier\nds_read_b32 v44, v{vFL} offset:12\n" + "s_barrier\n" * (o["sched"].split("join")[1] + o["ina1"]).count("bV") + "s_waitcnt vmcnt(0) lgkmcnt(0)\ns_branch L_vdone")
        T.extend(B7.lines)
        items = [(t[0], int(t[1]), t.endswith("b")) for t in o["items"].split()]
        kst = o["kst"]
        def kstore(h):
            pack(AK, h)
            P(f"buffer_store_dwordx4 {vr(QF+4*h,4)}, v{vKS+h}, {sr(sWS,4)}, s{sKO} offen sc1")
            if h: self.stamp("G.kst")
        cuts = o["g1cuts"]
        di = n0
        def slot(i):
            nonlocal di
            P.extend(D.lines[di:di + cuts.get(i, 0)]); di += cuts.get(i, 0)
        fmw = lambda: (fm_write(P), lg.add("w"), lg.add("w"), lg.add("w"))
        mrd = lambda: (P(f"ds_read_b32 v44, v{vFL} offset:12"), lg.add("m"))
        if o["two"]:
            proj(items[:7], lagn={5: 2, 6: 2}, post={i: (lambda i=i: slot(i)) for i in range(7)})
            kstore(0); kstore(1)
            P("s_barrier\ns_setprio 0")
            P.extend(D.lines[di:])
            P("s_setprio 1")
            self.stamp("G.i1")
            proj(items[7:], pre={2: lambda: P("s_waitcnt vmcnt(0)")}, mid={(3, 1): fmw, (2, 3): mrd})
        else:
            proj(items, lagn=o.get("lagkv", {}), post={i: (lambda i=i: slot(i)) for i in range(8)},
                 mid={(kst, 0): lambda: kstore(0), (kst, 2): lambda: kstore(1), (o['fmw'], 1): fmw, (9, 3): mrd})
        for h in range(2):
            pack(AV, h)
            P(f"buffer_store_dwordx4 {vr(QF+4*h,4)}, v{vVS}, {sr(sWS,4)}, s{sVO} offen offset:{1792*h} sc1")
        P(f"L_vdone:\nv_readfirstlane_b32 s{sMODE}, v44")
        def otouch():
            P(f"v_lshlrev_b32 v42, 7, v0\ns_cmp_eq_u32 s{sMODE}, 0\ns_cselect_b32 s3, s{sWS+2}, s{sOO}\ns_cselect_b32 s7, s{sWS+2}, s{sOFo}\ns_mov_b64 exec, 0x3fff")
            P(f"buffer_load_dword v47, v42, {sr(sWS,4)}, s3 offen sc1\ns_mov_b64 exec, 1\nbuffer_load_dword v47, v42, {sr(sWS,4)}, s7 offen sc1\ns_mov_b64 exec, -1")
        nt = 0
        if o["otouch"] == 1: otouch(); nt = 2
        self.stamp("G.vst")
        P("s_barrier\ns_setprio 0")
        P("L_g1page:"); self.pad("g1p1", True)
        P(f"{NONCE}\nv_mov_b32 v{vNON}, s{sNONCE}")
        def mask(E, dst, far):
            E(f"v_cvt_f32_i32 v42, v21\nv_mul_f32 v42, {fl(-BIG if far else BIG)}, v42")
            for i in range(16):
                k = 8*(i >> 2) + (i & 3)
                E(f"v_add_f32 v{dst+i}, {fl((k-1)*BIG if far else -k*BIG)}, v42")
            for i in range(16): E(f"v_min_f32 v{dst+i}, 0, v{dst+i}")
        mask(P, AV, False)
        P(f"s_mov_b32 s3, 0x0b0b0909")
        for k in range(8):
            k0 = 8 * (k >> 1) + 2 * (k & 1)
            P(f"v_subrev_u32 v42, {k0}, v21\nv_subrev_u32 v43, {k0+1}, v21\nv_perm_b32 v{FM+k}, v43, v42, s3")
        P(f"s_mul_i32 s3, s{sR}, 3584\ns_mul_i32 s7, s{sCI}, 1536\ns_add_u32 s3, s3, s7\ns_add_u32 s3, s3, {L_KT}\nv_lshl_add_u32 v{vKR}, v0, 4, s3")
        P(f"v_cmp_gt_u32 vcc, 28, v{vL}\ns_mul_i32 s3, s{sCI}, 28\nv_add_u32 v42, s3, v{vL}\ns_lshl_b32 s7, s{sCI}, 2\ns_sub_u32 s7, 60, s7\nv_mov_b32 v43, s7")
        P(f"v_cndmask_b32 v42, v43, v42, vcc\ns_lshl_b32 s3, s{sR}, 12\nv_lshl_add_u32 v42, v42, 4, s3\nv_lshl_add_u32 v{vVR}, v{vH}, 10, v42")
        P(f"v_cmp_gt_u32 vcc, s{sCI}, v{vH}\nv_cmp_lt_u32 s[30:31], s{sCI}, v{vH}\nv_lshlrev_b32 v42, 3, v{vL}\nv_lshl_add_u32 v{vOS}, v{vH}, 8, v42\nv_mov_b32 v42, {fl(c)}")
        P(f"v_cndmask_b32 v{vSA}, v42, v{vZ}, vcc\nv_cndmask_b32 v{vSB}, v42, v{vZ}, s[30:31]")
        vTP = (6, 10)
        P(f"v_lshrrev_b32 v42, 3, v0\nv_lshlrev_b32 v42, 7, v42\nv_and_b32 v43, 7, v0\nv_lshl_add_u32 v42, v43, 2, v42\nv_add_u32 v42, {WS_TF - WS_OF}, v42")
        P(f"s_lshr_b32 s3, s{sP}, 1\ns_and_b32 s7, s{sP}, 1\nv_lshl_add_u32 v{vTP[0]}, s3, 10, v42\nv_lshl_add_u32 v{vTP[1]}, s7, 10, v{vTP[0]}")
        P(f"s_mul_i32 s{sT3}, s{sRT}, {TST}\ns_lshl_b32 s3, s{sP}, 13\ns_add_u32 s{sT3}, s{sT3}, s3\ns_add_u32 s{sT3}, s{sT3}, {WS_T:#x}")
        P(f"s_mov_b32 s{sT0}, {WS_OF:#x}\ns_mul_i32 s{sT1}, s{sRT}, {2*28672}\ns_add_u32 s{sT1}, s{sT1}, {WS_O:#x}\ns_add_u32 s{sT2}, s{sT1}, 28672")
        P(f"s_setprio 1")
        self.stamp("G.i2")
        proj([("Q", q, q in o["qbars"]) for q in range(7)], pre={0: lambda: P(f"s_waitcnt vmcnt({2+nt})"), o["qbars"][1]: lambda: P(f"s_waitcnt vmcnt({nt})")},
             lagn={o["qbars"][1] - 1: 0, 5: 2, 6: 2})
        S = lambda n: AK if n == 0 else (AV if n == 8 else XF + 16 * (n - 1))
        vM = 40
        KB, VB = WF, WF + 16
        pend = []
        def kread(i):
            for s in range(2):
                pend.append((f"ds_read_b128 {vr(KB + 8*((i+2)&3) + 4*s, 4)}, v{vKR} offset:{(8-i)*3584 + s*1024}", ("k", i)))
        def vread(i):
            for s in range(2):
                pend.append((f"ds_read_b128 {vr(S(8-i) + 8*s + 4, 4)}, v{vVR} offset:{(8-i)*4096 + s*2048}", ("v", i)))
        def flagrd(idx): pend.append((f"ds_read_b32 v44, v{vFL} offset:{4*idx}", "flag"))
        def drain(n=99):
            while pend and n > 0:
                t, tag = pend.pop(0); P(t); lg.add(tag); n -= 1
        def flagchk(idx, val, name, redo=[]):
            L = P.label("fc")
            lg.wait("flag")
            P(f"v_cmp_gt_u32 vcc, {val}, v44\ns_cbranch_vccnz {L}\n{L}_b:")
            if name == "G.k2": self.pad("fc", E=T)
            T(f"{L}:\nds_read_b32 v44, v{vFL} offset:{4*idx}")
            for t in redo: T(t)
            T(f"s_waitcnt lgkmcnt(0)\nv_cmp_gt_u32 vcc, {val}, v44\ns_nop 0\ns_cbranch_vccnz {L}\ns_branch {L}_b")
            self.stamp(name)
        self.lds_signal(vFL, 2, 40); lg.add("sig")
        if o["otouch"] == 2: otouch()
        flagrd(0); kread(0); kread(1); redo = [t for t, _ in pend[1:]]; drain()
        for i in range(8):
            sc, sel = (f"v[{vSA}:{vSA+1}]", "op_sel_hi:[0,1]") if i < 2 else ((f"v[{vSA}:{vSA+1}]", "op_sel:[1,0]") if i >= 6 else ("s[10:11]", "op_sel:[1,0]"))
            P(f"v_pk_mul_f32 {vr(AQ+2*i,2)}, {sc}, {vr(AQ+2*i,2)} {sel}")
        pack(AQ, 0); pack(AQ, 1)
        self.stamp("G.q")
        Lk = P.label("kw")
        lg.wait("flag")
        P(f"v_cmp_gt_u32 vcc, 1, v44\ns_cbranch_vccz {Lk}_d\n{Lk}:\nds_read_b32 v44, v{vFL}")
        P.extend(redo)
        P(f"s_waitcnt lgkmcnt(4)\nv_cmp_gt_u32 vcc, 1, v44\ns_cbranch_vccnz {Lk}\n{Lk}_d:")
        self.stamp("G.ck")
        def qk(i, s, nd=2):
            n = 8 - i
            lg.wait(("k", i))
            P(MF32(S(n), KB + 8*((i+2) & 3) + 4*s, QF + 4*s, S(n) if (s == 1 or n == 8) else CD)); drain(nd)
        npv = 0
        def pv(nd=2):
            nonlocal npv
            i, s = npv >> 1, npv & 1
            assert not any(t == ("v", i) for _, t in pend)
            lg.wait(("v", i))
            P(MF32(AQ, S(8 - i) + 8*s + 4, S(8 - i) + 8*s, "0" if npv == 0 else AQ)); npv += 1; drain(nd)
        def pvl(s):
            lg.wait(("v", 8)); P(MF32(AQ, KB + 4*s, S(0) + 8*s, AQ))
        kread(2)
        qk(0, 0); qk(0, 1)
        b = S(8)
        P(f"s_mov_b32 s3, {fl(-40.0)}\nv_max_f32 v{vM}, v{b}, v{b+1}\nv_max_f32 v{vM+1}, v{b+2}, v{b+3}")
        for k in range(2, 7): P(f"v_max3_f32 v{vM+(k&1)}, v{vM+(k&1)}, v{b+2*k}, v{b+2*k+1}")
        P(f"v_max3_f32 v{vM+1}, v{vM+1}, v{b+14}, v{b+15}\nv_max_f32 v42, v{vM}, v{vM+1}\nv_max_f32 v{vM+1}, v{vM}, v{vM+1}\nv_permlane32_swap_b32 v42, v{vM+1}\nv_max_f32 v{vM}, v42, v{vM+1}")
        for k in range(16): P(f"v_sub_f32 v{CD+k}, s3, v{vM}")
        for k in range(16):
            P(f"v_add_f32 v{b+k}, v{b+k}, v{CD}")
            if k == 1: qk(1, 0)
            if k == 5: flagrd(0)
            if k == 8: qk(1, 1)
        self.stamp("G.p1")
        lag = o["pvlag"]
        vnext = 0
        for i in range(9):
            b = S(8 - i)
            if i == 1: flagchk(0, 2, "G.k2"); kread(3); kread(4)
            if 2 <= i and i + 3 < 9: kread(i + 3)
            if i == lag - 1: flagchk(1, 1, "G.fv")
            if i == lag: flagchk(1, 2, "G.v2")
            if i >= lag - 1:
                lim = min(i, 3 if i == lag - 1 else 9, vnext + (3 if lag > 4 else 2))
                while vnext < lim: vread(vnext); vnext += 1
            if i == 7:
                for s in range(2): pend.append((f"ds_read_b128 {vr(KB + 4*s, 4)}, v{vVR} offset:{s*2048}", ("v", 8)))
            if i in (lag - 2, lag - 1): flagrd(1)
            mfs = []
            if 1 <= i < 8: mfs += [lambda i=i: qk(i + 1, 0, 3), lambda i=i: qk(i + 1, 1, 3)]
            ready = 2 * len([t for t in range(vnext) if not any(tag == ("v", t) for _, tag in pend)])
            k_ = 0
            while npv + k_ < ready and k_ < 4: mfs.append(pv); k_ += 1
            rest = []
            if i == 8:
                mfs = [pv] * (16 - npv) + [lambda: pvl(0)]
                mfs, rest = mfs[:6], mfs[6:]
            slots = {0: [], 1: [1], 2: [0, 5], 3: [0, 5, 11], 4: [0, 4, 8, 12], 5: [0, 4, 8, 11, 14], 6: [0, 3, 6, 8, 11, 14]}[len(mfs)]
            for pos in range(16):
                P(f"v_exp_f32 v{b+pos}, v{b+pos}")
                if pos in slots: mfs.pop(0)()
                if pos in (7, 15):
                    h = pos >> 3
                    for k in range(4): P(f"v_cvt_pk_bf16_f32 v{b+8*h+k}, v{b+8*h+2*k}, v{b+8*h+2*k+1}")
                    if i == 8:
                        for k in range(4): P(f"v_and_b32 v{b+8*h+k}, v{b+8*h+k}, v{FM+4*h+k}")
            drain()
        assert vnext == 8
        for f in rest: f()
        pvl(1)
        vWR, vRD, vG0, vG1, vTA, MF_, TF_, AE = 1, 3, 4, 5, 8, 176, 144, 64
        P(f"L_onorm:\ns_cmp_eq_u32 s{sMODE}, 0")
        P(f"v_mov_b32 v40, v{AQ+12}\nv_mov_b32 v41, v{AQ+12}\nv_permlane32_swap_b32 v40, v41\nv_rcp_f32 v41, v41\ns_cbranch_scc1 L_oslow")
        def ostore(E, mod):
            for a in range(4):
                for k in range(4): E(f"v_mul_f32 v{CD+4*a+k}, v{AQ+4*a+k}, v41")
                for k in range(2): E(f"v_cvt_pk_bf16_f32 v{VB+2*a+k}, v{CD+4*a+2*k}, v{CD+4*a+2*k+1}")
                if a == 3: E("s_mov_b32 exec_hi, 0")
                E(f"buffer_store_dwordx2 {vr(VB+2*a,2)}, v{vOS}, {sr(sWS,4)}, s{sOO} offen offset:{512*a} {mod}")
            E("s_mov_b64 exec, -1")
        ostore(P, o["omod"])
        P("L_ostored:")
        T("L_oslow:"); ostore(T, "sc1"); T("s_branch L_ostored")
        self.stamp("G.ost")
        P(f"v_mul_f32 v40, 0, v{AQ}\nv_mul_f32 v41, 0, v{AQ+1}")
        for k in range(2, 16): P(f"v_fmac_f32 v{40+(k&1)}, 0, v{AQ+k}")
        P(f"v_cmp_u_f32 vcc, v40, v41")
        if o["force_fb"]: P("s_mov_b64 vcc, -1")
        P(f"v_lshlrev_b32 v42, 4, v0\ns_cbranch_vccnz L_fallback\nL_ochecked:\nv_add_u32 v42, {L_M}, v42")
        for s in range(8): P(f"ds_read_b128 {vr(MF_+4*s,4)}, v42 offset:{1024*s}")
        A2 = Prog(); keep = P; P = A2; self.P = A2
        vWR, vRD, vG0, vG1, vTA, MF_, TF_, AE = 1, 3, 4, 5, 8, 176, 144, 64
        self.scratch_addr(vWR, vRD, L_TS, 52)
        P(f"s_lshl_b32 s3, s{sR}, 10\ns_add_u32 s3, s3, s{sRT}\nv_lshl_add_u32 v56, v54, 5, s3\ns_cmp_eq_u32 s{sCI}, 1\ns_cselect_b64 vcc, -1, 0")
        for dst in (vG0, vG1):
            P(f"v_sub_u32 v57, 0, v56\nv_and_b32 v57, 2047, v57\nv_cndmask_b32 v57, v56, v57, vcc\nv_mul_u32_u24 v57, 1792, v57\nv_add_u32 v{dst}, v57, v55")
            if dst == vG0: P("v_add_u32 v56, 512, v56")
        P(f"v_and_b32 v54, 19, v0\nv_bfe_u32 v55, v0, 2, 1\nv_lshl_add_u32 v54, v55, 3, v54\nv_bfe_u32 v55, v0, 3, 1\nv_lshl_add_u32 v54, v55, 2, v54")
        P(f"v_sub_u32 v55, 32, v54\nv_cndmask_b32 v54, v54, v55, vcc\nv_lshrrev_b32 v55, 5, v54\nv_and_b32 v54, 31, v54\nv_lshlrev_b32 v54, 2, v54")
        P(f"v_lshl_add_u32 v54, v55, 13, v54\nv_lshl_add_u32 v54, v{vH}, 10, v54\nv_add_u32 v{vTA}, {L_TT}, v54\nv_add_u32 v{vTA+1}, 128, v{vTA}")
        P(f"s_lshl_b32 s3, s{sP}, 6\ns_sub_u32 s7, 832, s3\ns_cmp_eq_u32 s{sCI}, 1\ns_cselect_b32 s10, s7, s3")
        srd(P, sOUT, 14, 2048*1792)
        P = keep; self.P = keep
        na = o.get("a2cut", 34)
        P("@PAGEPAD"); P.extend(A2.lines[:na]); P("@PAGEPADEND")
        P(f"s_mov_b64 exec, 1\ns_cmp_eq_u32 s{sMODE}, 0\ns_waitcnt vmcnt(0)\ns_cbranch_scc1 L_ofslow")
        P(f"buffer_store_dword v{vNON}, v{vZ}, {sr(sWS,4)}, s{sOFo} offen\nL_oflagged:\ns_mov_b64 exec, -1")
        T(f"L_ofslow:\nbuffer_store_dword v{vNON}, v{vZ}, {sr(sWS,4)}, s{sOFo} offen sc1\ns_branch L_oflagged")
        self.stamp("G.oack")
        P(f"s_cmp_eq_u32 s{sP}, 7\ns_cbranch_scc1 L_epoch")
        for k in range(2): P(f"buffer_load_dword v{45+k}, v{vTP[k]}, {sr(sWS,4)}, s{sT0} offen sc1")
        P(f"s_barrier")
        P.extend(A2.lines[na:])
        self.poll([(vOP, 0)], 44, sT0)
        self.stamp("G.op")
        def odma(q):
            for r_ in range(2):
                P(f"s_add_u32 m0, s{sT4}, {L_O(q) + r_*4096}\ns_nop 0\nbuffer_load_dwordx4 v{vDA}, {sr(sWS,4)}, s{sT1+r_} offen sc1 lds\ns_add_u32 s{sT1+r_}, s{sT1+r_}, 4096")
        def tdma():
            for q in range(4):
                P(f"s_add_u32 m0, s{sT4}, {L_TT + q*4096}\ns_nop 0\nbuffer_load_dwordx4 v{vDA}, {sr(sWS,4)}, s{sT3} offen sc1 lds\ns_add_u32 s{sT3}, s{sT3}, 4096")
        for q in range(4): odma(q)
        P(f"v_cmp_ne_u32 vcc, s{sNONCE}, v45\nv_cmp_ne_u32 s[8:9], s{sNONCE}, v46\ns_waitcnt vmcnt(6)\ns_barrier")
        for q in range(4, 6): odma(q)
        P("s_waitcnt vmcnt(8)\ns_barrier")
        odma(6)
        P(f"s_or_b64 vcc, vcc, s[8:9]\ns_waitcnt vmcnt(8)\ns_barrier\ns_cbranch_scc1 L_tlate")
        tdma()
        for q in range(3, 7):
            P(f"s_waitcnt vmcnt({16-2*q})\ns_barrier")
        P("L_tgo:")
        P(f"s_mul_i32 s3, s{sR}, 0x80008000\ns_waitcnt lgkmcnt(0)")
        for k in range(16): P(f"v_xor_b32 v{MF_+16+k}, s3, v{MF_+16+k}")
        P("s_waitcnt vmcnt(0)")
        self.lds_signal(vFL, 4, 44)
        self.lds_wait(vFL, 4, 4, 44)
        self.stamp("G.tl")
        lg.q = []
        for s in range(8):
            if s == 7: lg.wait(0); P(MF32(AE, TF_, MF_, "0"))
            for t in range(2):
                o0 = 8*(s & 3) + 2*t
                P(f"ds_read2st64_b32 {vr(TF_+4*s+2*t,2)}, v{vTA+(s>>2)} offset0:{o0} offset1:{o0+1}"); lg.add(s)
        for s in range(1, 8):
            lg.wait(s); P(MF32(AE, TF_ + 4*s, MF_ + 4*s, AE))
        self.out_epilogue(AE, 24, vWR, vRD, vG0, vG1, "s10", o["outmod"])
        self.stamp("G.fin")
        P("L_g1end:")
        self.stamp_out()
        P("L_end:\ns_endpgm")
        P("L_tlate:")
        for q in range(3, 7):
            P(f"s_waitcnt vmcnt({12-2*q})\ns_barrier")
        self.poll([(vTP[0], 0), (vTP[1], 0)], 45, sT0)
        tdma()
        P("s_branch L_tgo")
        P("L_epoch:")
        if not o.get("pft", True): P(f"s_cmp_lg_u32 s{sRT}, 31\ns_cbranch_scc1 L_g1end")
        P(f"s_cmp_lg_u32 s{sU}, 0\ns_cbranch_scc1 L_g1end\ns_sub_u32 s{sT0}, s{sT0}, 3072\ns_sub_u32 s{sT3}, s{sT3}, {7*8192}\nv_lshlrev_b32 v42, 7, v0")
        self.poll([(vTP[0], 0), (vTP[0], 1024), (vTP[0], 2048), (vTP[0], 3072)], 50, sT0)
        if o.get("pft", True):
            for k in range(8): P(f"buffer_load_dword v47, v42, {sr(sWS,4)}, s{sT3} offen sc1\ns_add_u32 s{sT3}, s{sT3}, 8192")
        P(f"s_cmp_lg_u32 s{sRT}, 31\ns_cbranch_scc1 L_g1end")
        P(f"s_mov_b64 exec, 1\nbuffer_store_dword v{vNON}, v{vZ}, {sr(sWS,4)}, 0 offen offset:{WS_E} sc1\ns_branch L_g1end")
        P("L_fallback:")
        P(f"s_cmp_lg_u32 s{sFB}, 0\ns_cbranch_scc1 L_ochecked\ns_mov_b32 s{sFB}, 1\ns_waitcnt vmcnt(0)")
        mask(P, AK, True); mask(P, AV, False)
        P(f"v_mov_b32 v{vM}, {fl(-BIG)}")
        for n in range(9):
            P(f"ds_read_b128 {vr(KB,4)}, v{vKR} offset:{n*3584}\nds_read_b128 {vr(KB+4,4)}, v{vKR} offset:{n*3584+1024}")
            if n <= 7:
                P(f"s_cmp_lt_u32 s{sG}, {8-n}\ns_cselect_b32 s3, {fl(-BIG)}, 0")
                for k in range(16): P(f"v_mov_b32 v{S(n)+k}, s3" if n else f"v_min_f32 v{S(n)+k}, s3, v{S(n)+k}")
            P("s_waitcnt lgkmcnt(0)")
            for s in range(2): P(MF32(S(n), KB + 4*s, QF + 4*s, S(n)))
            for k in range(8): P(f"v_max3_f32 v{vM}, v{vM}, v{S(n)+2*k}, v{S(n)+2*k+1}")
        P(f"v_mov_b32 v{vM+1}, v{vM}\nv_permlane32_swap_b32 v{vM}, v{vM+1}\nv_max_f32 v{vM}, v{vM}, v{vM+1}")
        for n in range(9):
            b = S(n)
            P(f"ds_read_b128 {vr(VB,4)}, v{vVR} offset:{n*4096}\nds_read_b128 {vr(VB+4,4)}, v{vVR} offset:{n*4096+2048}")
            for k in range(16): P(f"v_sub_f32 v{b+k}, v{b+k}, v{vM}")
            for k in range(16): P(f"v_exp_f32 v{b+k}, v{b+k}")
            for k in range(8): P(f"v_cvt_pk_bf16_f32 v{b+k}, v{b+2*k}, v{b+2*k+1}")
            P("s_waitcnt lgkmcnt(0)")
            for s in range(2): P(MF32(AQ, VB + 4*s, b + 4*s, "0" if (n == 0 and s == 0) else AQ))
        P("s_nop 11\ns_branch L_onorm")

    def addrs(self, lines):
        import subprocess, tempfile
        src = '.amdgcn_target "amdgcn-amd-amdhsa--gfx950"\n.text\n' + "".join(f"Z{i}:\n" + ("" if l.startswith("@") else l) + "\n" for i, l in enumerate(lines))
        if self.o["hops"] and not any(l.startswith("L_pad_g1p2") for l in lines): src += "L_pad_g1p2:\n"
        with tempfile.TemporaryDirectory() as d:
            open(d + "/a.s", "w").write(src)
            subprocess.run(["clang", "-x", "assembler", "-target", "amdgcn-amd-amdhsa", "-mcpu=gfx950", "-c", d + "/a.s", "-o", d + "/a.o"], check=True)
            out = subprocess.run(["llvm-objdump", "-t", d + "/a.o"], capture_output=True, text=True).stdout
        ad = {}
        for l in out.splitlines():
            w = l.split()
            if len(w) > 3 and w[-1][0] == "Z": ad[int(w[-1][1:])] = int(w[0], 16)
        return [ad[i] for i in range(len(lines))]

    def layout(self, body):
        fill = lambda n: [f".fill {n//4}, 4, 0xbf800000"] if n else []
        on = self.o["align"]
        while True:
            k = [i for i, l in enumerate(body) if l.startswith("@JUMPALIGN")]
            if not k: break
            i = k[0]; name = body[i].split()[1]
            a = self.addrs(body)[i] + 4
            body = body[:i] + [f"s_branch L_ja_{name}"] + (fill(-a % 4096) if on else []) + body[i+1:]
        ad = self.addrs(body)
        g = body.index("L_g1:")
        if on: body = body[:g] + fill(-ad[body.index("L_g1page:")] % 4096) + body[g:]
        ad = self.addrs(body)
        i0, i1 = body.index("@PAGEPAD"), body.index("@PAGEPADEND")
        pg = (ad[body.index("L_g1page:")] // 4096 + 1) * 4096
        if on and not (ad[i0] - 64 <= pg <= ad[i1]): print("warning: second page boundary at", hex(pg), "outside", hex(ad[i0]), hex(ad[i1]))
        j = i0 + 1
        while j < i1 and (ad[j] < pg or body[j].startswith("s_cselect")): j += 1
        B = Prog(); self.pad("g1p2", True, B)
        body = body[:i0] + body[i0+1:j] + B.lines + body[j:i1] + body[i1+1:]
        return body

    def build(self):
        self.prologue(); self.g2()
        g2 = list(self.P.lines); self.P.lines = []
        self.g1()
        fb = self.P.lines.index("L_fallback:")
        lines = g2 + self.tail.lines + self.P.lines[:fb] + ["L_codeend:"] + self.P.lines[fb:]
        body, pad = pad_hazards(lines)
        body = self.layout(body)
        hdr = open(os.path.join(os.path.dirname(os.path.abspath(__file__)), "header.txt")).read()
        if self.o["stamps"]: hdr += "; STAMPS " + self.o["stamps"] + (" MIXED" if self.o["mixed"] else "") + (" REALTIME" if self.o.get("rt") else "") + "\n"
        s = hdr + "; @launch grid=(256,1,1) block=(512,1,1) lds=163840\n"
        s += '.amdgcn_target "amdgcn-amd-amdhsa--gfx950"\n.text\n'
        if self.o["align"]: s += ".p2align 12\n.fill 832, 4, 0xbf810000\n"
        s += f".globl {NAME}\n.p2align 8\n.type {NAME},@function\n{NAME}:\n"
        s += "\n".join(("" if l.endswith(":") else "    ") + l for l in body) + "\n    s_endpgm\n"
        s += f""".section .rodata,"a"
.p2align 6
.amdhsa_kernel {NAME}
  .amdhsa_next_free_vgpr 256
  .amdhsa_next_free_sgpr 102
  .amdhsa_accum_offset 256
  .amdhsa_group_segment_fixed_size 0
  .amdhsa_kernarg_size 88
  .amdhsa_user_sgpr_count 2
  .amdhsa_user_sgpr_kernarg_segment_ptr 1
  .amdhsa_system_sgpr_workgroup_id_x 1
.end_amdhsa_kernel
"""
        return s, pad

if __name__ == "__main__":
    opts = {}
    out = sys.argv[1]
    for a in sys.argv[2:]:
        k, v = a.split("=", 1); opts[k] = v if k in STR_OPTS else eval(v)
    s, pad = Gen(**opts).build()
    open(out, "w").write(s)
    print("written", out, "pad states", pad, "lines", s.count("\n"))
```

```python
import sys, math, struct, os
sys.path.insert(0, os.path.dirname(os.path.abspath(__file__)))
from asmlib import *

NAME = "concat_heads__spectral_fnet__sliding_block__prompt_kernel"

def f2u(x): return struct.unpack("<I", struct.pack("<f", x))[0]
def fl(x): return f"{f2u(x):#x}"

WS_E = 0
WS_KF, WS_VF, WS_OF, WS_TF, WS_XF = 0x10000, 0x18000, 0x20000, 0x28000, 0x30000
WS_K, WS_V, WS_O, WS_T = 0x201000, 0x401000, 0x601000, 0x7F0000
NPAGE = 4
WS_STAMP = 0xA80000
WS_SIZE = 0xB00000
PAIR = 64 * 3584
TST = 65536 + 384
SL = 8192
def L_X(q): return 2 * q * SL
def L_WK(q): return (2 * q + 1) * SL
def L_WV(q): return (18 + q) * SL if q < 2 else (q - 2) * SL
L_XA = 14 * SL
def L_WQ(q): return (5 + q) * SL
L_KT = 13 * SL
L_VT = 0
L_F = 13 * SL
L_FLAG = 18 * SL - 64
L_TS = 12 * SL
L_OUT = 18 * SL
L_M = 19 * SL
L_TT = 15 * SL
def L_O(q): return q * SL if q < 5 else (13 + q - 5) * SL
sNONCE = 6
sXB, sW, sWKV, sXA, sWO, sOUT, sWS = 20, 48, 28, 32, 36, 40, 44
sU, sRT, sP, sS2, sEG, sR, sCI, sWV = 52, 53, 54, 55, 56, 57, 58, 59
sSX, sSW = 60, 67
sT0, sT1, sT2, sT3, sT4, sT5 = 74, 75, 76, 77, 78, 79
sROT, sFO = 8, 9
sGB = [12, 13, 14, 15, 8]
sSTAMP = 80
NSTAMP = 11
SPIN = 1 << 14
BIG = 2.0 ** 100

class Cnt:
    def __init__(self, prog, name, maxn):
        self.p, self.name, self.maxn = prog, name, maxn
        self.q = []
    def add(self, tag=None): self.q.append(tag)
    def wait(self, tag):
        idx = [i for i, t in enumerate(self.q) if t == tag]
        if not idx: return
        n = min(len(self.q) - 1 - idx[-1], self.maxn)
        self.p(f"s_waitcnt {self.name}({n})")
        self.q = self.q[len(self.q) - n:] if n else []
    def all(self):
        self.p(f"s_waitcnt {self.name}(0)"); self.q = []

def srd(P, d, lo, nrec):
    P(f"s_mov_b64 {sr(d,2)}, {sr(lo,2)}\ns_mov_b32 s{d+2}, {nrec:#x}\ns_mov_b32 s{d+3}, 0x20000")

def MF32(d, a, b, c): return f"v_mfma_f32_32x32x16_bf16 {vr(d,16)}, {vr(a,4)}, {vr(b,4)}, {c if isinstance(c,str) else vr(c,16)}"
def MF16(d, a, b, c): return f"v_mfma_f32_16x16x32_bf16 {vr(d,4)}, {vr(a,4)}, {vr(b,4)}, {c if isinstance(c,str) else vr(c,4)}"
NONCE = f"s_mul_i32 s{sNONCE}, s{sNONCE}, 0x9E3779C1\ns_add_u32 s{sNONCE}, s{sNONCE}, 0x7FEB3560"

STR_OPTS = ("pre", "items", "stamps", "sched", "sched7", "schedT", "schedK", "schedV", "ina1", "outmod", "omod")

class Gen:
    def __init__(self, **o):
        self.o = dict(stamps=False, codepf=True, mixed=False, npre=2, outmod="sc1", olocal=True, omod="", pvlag=4, pf7=True,
            otouch=1, hops=False, align=True, force_fb=False, pfwo=0, touch=0, twait=5, a1cut=8,
            two=True, items="K0b K1b K2b K3b K4b K5b K6b V0b V1 V2b V3b V4b V5b V6b", kst=11, fmw=10, fks=9, pre="X0 W0 X1 W1", rot=0, warm=2,
            g1f0=20, g1cuts={},
            sched="f* nonce xt tl p7 K2 bK0 K3 bK1 K4 bK2 K5 bK3 K6 xa bK4 A0 A1 A2 A3 bK5 A4 A5 A6 bK6 V0 V1 xc wA6 bS0 join a1a page bV1 V5 V6 bV2 kf Q0 bV3 bV4 Q1 bV5 bV6 "
                  "a1b lva bQ1 lvb lvc",
            sched7="X2 X3 f* ef X4 X5 X6 xa A0 A1 A2 A3 A4 A5 A6 bK6 xc lg0 wA6 bS0",
            ina1="0:V2 2:V3 4:V4 12:bS1,one,Q2,Q3,Q4", qbars=(0, 2, 3, 5, 6),
            schedT="bQ2 vf Q5 Q6 bQ4 bQ5 bQ6 ts tst",
            schedK="kp bQ2 Q5 Q6 kw bQ4 k4 k3 bQ5 k2 bQ6 k1 k0",
            schedV="bQ2 Q5 Q6 bQ4 bQ5 vp bQ6")
        self.o.update(o)
        self.P = Prog()
        self.tail = Prog()

    def stamp(self, name):
        if not self.o["stamps"]: return
        if name == 0: self.P(f"s_memtime {sr(sSTAMP, 2)}"); return
        for lst in self.o["stamps"].split("|"):
            l = lst.split(",")
            if name in l: self.P(f"{'s_memrealtime' if self.o.get('rt') else 's_memtime'} {sr(sSTAMP + 2*(1+l.index(name)), 2)}")

    def stamp_out(self):
        if not self.o["stamps"]: return
        P = self.P
        P(f"s_waitcnt vmcnt(0)\ns_memtime {sr(sSTAMP+16,2)}\ns_memrealtime {sr(sSTAMP+18,2)}\ns_waitcnt lgkmcnt(0)\ns_mov_b64 exec, 1")
        if self.o.get("enc") is not None:
            k = self.o["enc"]; L = P.label("enc"); D = P.label("encd")
            P(f"s_cmp_lg_u32 s{sWV}, {self.o['encwv']}\ns_cbranch_scc1 {D}\ns_cmp_eq_u32 s{sP}, 7\ns_cbranch_scc1 {D}")
            if self.o.get("encwg", -1) >= 0: P(f"s_cmp_lg_u32 s2, {self.o['encwg']}\ns_cbranch_scc1 {D}")
            if k == 9: P(f"s_sub_u32 s3, s{sSTAMP+18}, s{sSTAMP+20}\ns_lshl_b32 s3, s3, 2")
            else: P(f"s_sub_u32 s3, s{sSTAMP+2*k}, s{sSTAMP}\ns_lshr_b32 s3, s3, 2")
            P(f"s_min_u32 s3, s3, 50000\ns_add_u32 s3, s3, 5000")
            P(f"{L}:\ns_memrealtime s[4:5]\ns_waitcnt lgkmcnt(0)\ns_sub_u32 s4, s4, s{sSTAMP+20}\ns_cmp_lt_u32 s4, s3\ns_cbranch_scc1 {L}\n{D}:")
            return
        for i in range(NSTAMP): P(f"v_mov_b32 v{4+i}, s{sSTAMP+2*i}")
        P(f"s_getreg_b32 s3, hwreg(HW_REG_XCC_ID)\nv_mov_b32 v15, s3")
        P(f"s_lshl_b32 s3, s2, 3\ns_add_u32 s3, s3, s{sWV}\ns_lshl_b32 s3, s3, 6\ns_add_u32 s3, s3, {WS_STAMP:#x}\nv_mov_b32 v1, 0")
        for k in range(3): P(f"buffer_store_dwordx4 v[{4+4*k}:{7+4*k}], v1, {sr(sWS,4)}, s3 offen offset:{16*k}")

    def into(self, prog, f, *a):
        keep = self.P; lab = keep._lab
        self.P = prog; prog._lab = max(prog._lab, lab)
        f(*a)
        keep._lab = max(prog._lab, lab); self.P = keep

    HOPS = (("g2p1", "roleN"), ("roleT", "roleV"), ("g1p1", "fc"), ("g1p2", "done"))
    def pad(self, name, inline=False, E=None):
        E = E or self.P
        if not self.o["hops"]: return
        nxt = "L_hopret"
        for ch in self.HOPS:
            if name in ch[:-1]: nxt = "L_pad_" + ch[ch.index(name) + 1]
        if inline: E(f"s_branch L_over_{name}\nL_pad_{name}:\ns_branch {nxt}\nL_over_{name}:")
        else: E(f"L_pad_{name}:\ns_branch {nxt}")

    def tr_addr(self, dst, t0, t1, perm, sbase):
        P = self.P
        P(f"v_bfe_u32 v{t0}, v0, 4, 1\nv_lshl_add_u32 v{t0}, v{t0}, 5, s{sbase}")
        if perm:
            P(f"v_and_b32 v{t1}, 1, v0\nv_lshl_add_u32 v{t0}, v{t1}, 4, v{t0}")
            P(f"v_bfe_u32 v{t1}, v0, 1, 1\nv_lshl_add_u32 v{t0}, v{t1}, 3, v{t0}")
        else:
            P(f"v_and_b32 v{t1}, 3, v0\nv_lshl_add_u32 v{t0}, v{t1}, 3, v{t0}")
        P(f"v_and_b32 v{t1}, 8, v0\nv_lshlrev_b32 v{t1}, 3, v{t1}\nv_xor_b32 v{t0}, v{t0}, v{t1}")
        P(f"v_and_b32 v{t1}, 44, v0\nv_lshl_add_u32 v{dst}, v{t1}, 5, v{t0}")

    def inbox_setup(self, base):
        self.P(f"s_lshl3_add_u32 s3, s{sRT}, s{sP}\ns_lshl_b32 s3, s3, 7\ns_add_u32 s{sT3}, s3, {base:#x}")
    def inbox_issue(self, E=None):
        (E or self.P)(f"s_load_dwordx16 s[20:35], s[18:19], s{sT3} glc")
    def inbox_wait(self):
        P = self.P; L = P.label("kvp")
        P(f"s_mov_b32 s{sT5}, {SPIN}\ns_mov_b32 s7, s{sNONCE}\n{L}:\ns_waitcnt lgkmcnt(0)")
        P("s_xor_b64 s[20:21], s[20:21], s[6:7]")
        for n in range(1, 5):
            P(f"s_xor_b64 {sr(20+2*n,2)}, {sr(20+2*n,2)}, s[6:7]\ns_or_b64 s[20:21], s[20:21], {sr(20+2*n,2)}")
        P(f"s_cbranch_scc0 {L}_d")
        self.inbox_issue()
        P(f"s_sub_u32 s{sT5}, s{sT5}, 1\ns_cbranch_scc0 {L}\ns_waitcnt lgkmcnt(0)\n{L}_d:")
    def group_bases(self, base):
        P = self.P
        P(f"s_mul_i32 s{sT1}, s{sP}, {PAIR}\ns_mul_i32 s3, s{sRT}, 7168\ns_add_u32 s3, s3, s{sT1}\ns_add_u32 s{sSX+4}, s3, {base:#x}")
        for n in range(4):
            P(f"s_sub_u32 s3, s{sSX+4}, {7168*(4-n)}\ns_cmp_lt_u32 s{sRT}, {4-n}\ns_cselect_b32 s{sSX+n}, s{sWS+2}, s3")

    def poll(self, addrs, vt, sbase):
        P = self.P
        L = P.label("poll")
        P(f"s_mov_b32 s{sT5}, 0\n{L}:")
        for k, (va, imm) in enumerate(addrs):
            P(f"buffer_load_dword v{vt+k}, v{va}, {sr(sWS,4)}, s{sbase} offen offset:{imm} sc1")
        P(f"s_add_u32 s{sT5}, s{sT5}, 1\ns_cmp_gt_u32 s{sT5}, {SPIN}\ns_cbranch_scc1 {L}_d\ns_waitcnt vmcnt(0)")
        for k in range(len(addrs)):
            P(f"v_cmp_ne_u32 vcc, s{sNONCE}, v{vt+k}\ns_cbranch_vccnz {L}")
        P(f"{L}_d:")

    def lds_wait(self, vflag, idx, val, vt):
        P = self.P
        L = P.label("lw")
        P(f"{L}:\nds_read_b32 v{vt}, v{vflag} offset:{4*idx}\ns_waitcnt lgkmcnt(0)\nv_cmp_gt_u32 vcc, {val}, v{vt}\ns_cbranch_vccnz {L}")
    def lds_signal(self, vflag, idx, vt):
        self.P(f"v_mov_b32 v{vt}, 1\ns_mov_b64 exec, 1\nds_add_u32 v{vflag}, v{vt} offset:{4*idx}\ns_mov_b64 exec, -1")
    def lds_set(self, vflag, idx, vt, val):
        self.P(f"v_mov_b32 v{vt}, {val}\nds_write_b32 v{vflag}, v{vt} offset:{4*idx}")

    def scratch_addr(self, vWR, vRD, base, t):
        P = self.P
        P(f"s_lshl_b32 s3, s{sU}, 11\ns_add_u32 s3, s3, {base}")
        P(f"v_and_b32 v{t}, 31, v0\nv_lshrrev_b32 v{t+1}, 5, v0\nv_bfe_u32 v{t+2}, v0, 1, 2\nv_xor_b32 v{t+2}, v{t+2}, v{t+1}")
        P(f"v_lshl_add_u32 v{t+3}, v{t}, 6, s3\nv_lshl_add_u32 v{vWR}, v{t+2}, 4, v{t+3}\nv_xor_b32 v{vWR+1}, 32, v{vWR}")
        P(f"v_lshl_add_u32 v{vRD}, v0, 4, s3")
        P(f"v_lshrrev_b32 v{t+2}, 2, v0\nv_lshrrev_b32 v{t+3}, 3, v0\nv_xor_b32 v{t+3}, v{t+3}, v0\nv_and_b32 v{t+3}, 3, v{t+3}\nv_lshlrev_b32 v{t+3}, 4, v{t+3}")

    def out_epilogue(self, acc, pk, vwr, vrd, vg0, vg1, soff, mod):
        P = self.P
        for h in range(2):
            for i in range(4): P(f"v_cvt_pk_bf16_f32 v{pk+4*h+i}, v{acc+8*h+2*i}, v{acc+8*h+2*i+1}")
            P(f"ds_write_b128 v{vwr+h}, {vr(pk+4*h,4)}")
        P(f"ds_read_b128 {vr(pk,4)}, v{vrd}\nds_read_b128 {vr(pk+4,4)}, v{vrd} offset:1024")
        P(f"s_waitcnt lgkmcnt(1)\nbuffer_store_dwordx4 {vr(pk,4)}, v{vg0}, {sr(sOUT,4)}, {soff} offen {mod}")
        P(f"s_waitcnt lgkmcnt(0)\nbuffer_store_dwordx4 {vr(pk+4,4)}, v{vg1}, {sr(sOUT,4)}, {soff} offen {mod}")

    def prologue(self):
        P = self.P; o = self.o
        P(f"s_cmpk_ge_u32 s2, 256\ns_cbranch_scc1 L_end")
        P(f"s_load_dwordx2 {sr(sXB,2)}, s[0:1], 40\ns_load_dwordx2 {sr(sWKV,2)}, s[0:1], 48\ns_load_dwordx8 s[12:19], s[0:1], 56\ns_load_dwordx2 {sr(sXA,2)}, s[0:1], 0")
        if o["stamps"]:
            P(f"s_memrealtime {sr(sSTAMP + 2*(NSTAMP-1), 2)}")
        self.stamp(0)
        P(f"v_readfirstlane_b32 s{sWV}, v0\nv_and_b32 v0, 63, v0\ns_and_b32 s3, s2, 7\ns_lshr_b32 s7, s2, 3\ns_lshr_b32 s{sWV}, s{sWV}, 6")
        if o["mixed"]:
            P(f"s_and_b32 s{sP}, s3, 1\ns_lshl_b32 s{sP}, s{sP}, 2\ns_and_b32 s{sT1}, s7, 3\ns_add_u32 s{sP}, s{sP}, s{sT1}\ns_lshr_b32 s{sT0}, s7, 2")
            P(f"s_lshr_b32 s{sRT}, s3, 1\ns_lshl3_add_u32 s{sRT}, s{sRT}, s{sT0}\ns_lshl1_add_u32 s{sT0}, s{sT1}, s{sT0}")
        else:
            P(f"s_and_b32 s{sP}, s7, 7\ns_lshr_b32 s{sT0}, s7, 3\ns_lshl2_add_u32 s{sRT}, s3, s{sT0}")
            P({0: f"s_lshl1_add_u32 s{sT0}, s{sT0}, s{sP}", 1: f"s_mov_b32 s{sT0}, s{sP}", 2: f"s_add_u32 s{sT0}, s{sT0}, s{sP}",
               3: f"s_and_b32 s{sT0}, s{sT0}, 1\ns_lshl2_add_u32 s{sT0}, s{sT0}, s{sP}"}[o["rot"]])
        P(f"s_and_b32 s{sU}, s{sWV}, 3\ns_and_b32 s{sR}, s{sU}, 1\ns_lshr_b32 s{sCI}, s{sU}, 1\ns_lshl_b32 s{sT4}, s{sU}, 10")
        P(f"s_cmp_lt_u32 s{sWV}, 4\ns_cbranch_scc1 L_g2")
        if o["codepf"]:
            P(f"s_getpc_b64 s[{sT2}:{sT3}]\nL_pc:")
            P(f"s_lshl2_add_u32 s{sT1}, s7, s{sU}\ns_lshl_b32 s{sT1}, s{sT1}, 8\nv_lshl_add_u32 v2, v0, 2, s{sT1}\nv_min_u32 v2, L_codeend-L_pc-4, v2")
            P(f"v_mov_b32 v3, s{sT3}\nv_add_co_u32 v2, vcc, s{sT2}, v2\nv_addc_co_u32 v3, vcc, 0, v3, vcc")
            P(f"global_load_dword v47, v[2:3], off")
        if o["warm"]:
            P(f"s_lshl2_add_u32 s{sT1}, s2, s{sU}\ns_mulk_i32 s{sT1}, 1184\nv_mul_u32_u24 v2, 20, v0\ns_mov_b32 s{sWKV+2}, {448*2688:#x}\ns_mov_b32 s{sWKV+3}, 0x20000")
            P(f"s_waitcnt lgkmcnt(0)\nbuffer_load_dword v47, v2, {sr(sWKV,4)}, s{sT1} offen")
        P(f"s_branch L_g1")
        P(f"L_g2:")

    def const_stream(self):
        F = []
        vE, vB, vK, vA, vC = 12, 13, 10, 40, 42
        CC, SS = 144, 172
        F += [f"s_lshl2_add_u32 s3, s{sEG}, s{sU}", f"v_and_b32 v{vA}, 15, v0", f"v_lshl_add_u32 v{vA}, s3, 4, v{vA}", f"v_cvt_f32_u32 v{vA}, v{vA}",
              f"v_mul_f32 v{vE}, {fl(1/448)}, v{vA}", f"v_cos_f32 v{vK}, v{vE}",
              f"v_lshrrev_b32 v{vA}, 1, v0", f"v_and_b32 v{vA}, 24, v{vA}", f"v_cvt_f32_u32 v{vA}, v{vA}", f"v_mul_f32 v{vB}, v{vE}, v{vA}",
              f"v_add_f32 v{vK}, v{vK}, v{vK}", f"v_mov_b32 v{vK+1}, v{vK}"]
        for ks in range(7):
            for j in range(2): F.append(f"v_fmamk_f32 v{vA+j}, v{vE}, {fl(32*ks+j)}, v{vB}")
            for j in range(2): F += [f"v_cos_f32 v{vC+2*j}, v{vA+j}", f"v_sin_f32 v{vC+2*j+1}, v{vA+j}"]
            def cv(jj):
                return [f"v_cvt_pk_bf16_f32 v{CC+4*ks+jj}, v{vC+4*jj}, v{vC+4*jj+2}", f"v_cvt_pk_bf16_f32 v{SS+4*ks+jj}, v{vC+4*jj+1}, v{vC+4*jj+3}"]
            pend = cv(0)
            for j in range(2, 8):
                F.append(pend.pop(0))
                if self.o.get("pk", True):
                    F.append(f"v_pk_fma_f32 {vr(vC+2*j,2)}, {vr(vK,2)}, {vr(vC+2*j-2,2)}, {vr(vC+2*j-4,2)} neg_lo:[0,0,1] neg_hi:[0,0,1]")
                else:
                    F += [f"v_fma_f32 v{vC+2*j+h}, v{vK}, v{vC+2*j-2+h}, -v{vC+2*j-4+h}" for h in range(2)]
                if j & 1: pend += cv(j >> 1)
            F += pend
        F += [f"v_and_b32 v{vA}, 15, v0", f"v_lshrrev_b32 v{vA+1}, 1, v{vA}", f"v_lshlrev_b32 v{vA}, 7, v{vA}",
              f"v_add_u32 v{vA}, {L_XA}, v{vA}",
              f"v_lshrrev_b32 v{vC}, 4, v0", f"v_xor_b32 v{vC}, v{vC}, v{vA+1}",
              f"v_lshl_add_u32 v8, v{vC}, 4, v{vA}", f"v_xor_b32 v9, 64, v8", f"v_lshl_or_b32 v11, v0, 31, 1.0",
              f"v_mov_b32 v15, {L_FLAG}"]
        return F

    def g2(self):
        P = self.P; o = self.o; T = self.tail
        vx0, vx1, vw0, vw1, vq0, vq1, vxa = 1, 2, 3, 4, 5, 6, 7
        P(f"v_lshrrev_b32 v16, 3, v0\nv_lshl_add_u32 v16, s{sU}, 3, v16")
        P(f"v_lshrrev_b32 v17, 1, v16\nv_xor_b32 v17, v17, v0\nv_and_b32 v17, 7, v17\nv_lshlrev_b32 v17, 4, v17")
        P(f"v_mul_u32_u24 v{vx0}, 896, v16\nv_add_u32 v{vx0}, v{vx0}, v17\nv_add_u32 v{vx1}, {32*896}, v{vx0}")
        P(f"v_lshrrev_b32 v18, 2, v0\nv_and_b32 v18, 4, v18\nv_xor_b32 v18, v18, v0\nv_and_b32 v18, 7, v18")
        P(f"v_mul_u32_u24 v19, 2688, v16\ns_add_u32 s{sT1}, s{sP}, 7\ns_lshl_b32 s{sT1}, s{sT1}, 7")
        P(f"v_lshl_add_u32 v{vw0}, v18, 4, v19\nv_add_u32 v{vw0}, s{sT1}, v{vw0}\nv_add_u32 v{vw1}, {32*2688}, v{vw0}")
        P(f"s_sub_u32 s{sT1}, s{sT0}, 7\ns_cselect_b32 s{sROT}, s{sT0}, s{sT1}\ns_mul_i32 s{sT2}, s{sRT}, {64*896}")
        P(f"s_lshl_b32 s{sT1}, s{sROT}, 7\ns_add_u32 s{sSX}, s{sT1}, s{sT2}\ns_mul_i32 s{sSW}, s{sROT}, {64*2688}")
        P(f"s_add_u32 s{sSW+1}, s{sSW}, {64*2688}\ns_add_u32 s{sSX+1}, s{sSX}, 128\ns_cmp_eq_u32 s{sROT}, 6\ns_cselect_b32 s{sSW+1}, 0, s{sSW+1}\ns_cselect_b32 s{sSX+1}, s{sT2}, s{sSX+1}")
        P(f"s_cmp_eq_u32 s{sP}, 7\ns_cselect_b32 s{sWKV+2}, 0, {448*2688:#x}")
        P(f"s_mov_b32 s{sWKV+3}, 0x20000\ns_mov_b32 s{sXB+2}, {2048*896:#x}\ns_mov_b32 s{sXB+3}, s{sWKV+3}\ns_mov_b32 m0, s{sT4}")
        P(f"s_waitcnt lgkmcnt(0)")
        self.stamp("karg")
        vm = Cnt(P, "vmcnt", 63)
        cur = 0
        pre = []
        for t in o["pre"].split():
            q = int(t[1])
            if t[0] == "X": pre += [(("K", q), L_X(q), vx0, sXB, sSX + q, 0), (("K", q), L_X(q) + 4096, vx1, sXB, sSX + q, 0)]
            if t[0] == "W": pre += [(("K", q), L_WK(q), vw0, sWKV, sSW + q, 0), (("K", q), L_WK(q) + 4096, vw1, sWKV, sSW + q, 0)]
            if t[0] == "V": pre += [(("V", q), L_WV(q), vw0, sWKV, sSW + q, 896), (("V", q), L_WV(q) + 4096, vw1, sWKV, sSW + q, 896)]
        for tag, lds, va, sd, so, imm in pre:
            d = lds - imm - cur; cur = lds - imm
            if d: P(f"s_addk_i32 m0, {d}" if abs(d) < 32768 else f"s_add_u32 m0, s{sT4}, {cur}")
            P(f"buffer_load_dwordx4 v{va}, {sr(sd,4)}, s{so} offen" + (f" offset:{imm}" if imm else "") + " lds"); vm.add(tag)
        self.stamp("dma0")
        P(f"s_load_dword s{sNONCE}, s[18:19], {WS_E}")
        P(f"s_lshr_b32 s{sT1}, s7, 2\ns_lshl3_add_u32 s{sS2}, s3, s{sT1}\ns_and_b32 s{sEG}, s7, 3")
        for q in range(2, 7):
            P(f"s_add_u32 s{sSX+q}, s{sSX+q-1}, 128\ns_add_u32 s{sSW+q}, s{sSW+q-1}, {64*2688}\ns_cmp_eq_u32 s{sROT}, {7-q}\ns_cselect_b32 s{sSX+q}, s{sT2}, s{sSX+q}\ns_cselect_b32 s{sSW+q}, 0, s{sSW+q}")
        A = Prog()
        srd(A, sW, sWKV, 448*2688); srd(A, sWS, 18, WS_SIZE); srd(A, sWO, 12, 448*896); srd(A, sOUT, 14, 2048*1792)
        A(f"s_mov_b32 s{sXA+2}, {2048*896:#x}\ns_mov_b32 s{sXA+3}, 0x20000\ns_mul_i32 s3, s{sS2}, 896")
        A(f"v_mul_u32_u24 v{vxa}, {64*896}, v16\nv_add3_u32 v{vxa}, v{vxa}, v17, s3")
        A(f"v_min_u32 v20, 6, v18\ns_mul_i32 s3, s{sP}, 112\nv_lshl_add_u32 v{vq0}, v20, 4, v19\nv_add_u32 v{vq0}, s3, v{vq0}\nv_add_u32 v{vq1}, {32*2688}, v{vq0}")
        A(f"s_cmp_eq_u32 s{sP}, 7\ns_cselect_b32 s{sFO}, 1, 0\ns_cmp_eq_u32 s{sR}, 0\ns_cselect_b32 s{sFO}, s{sFO}, 2")
        F = A.lines + self.const_stream()
        fi = 0
        def fill(n):
            nonlocal fi
            while fi + n < len(F) and F[fi + n].startswith(("s_cselect", "s_addc")): n += 1
            for l in F[fi:fi + n]: P(l)
            fi = min(len(F), fi + n)
        nbar = 0
        items = [(t[0], int(t[1]), t.endswith("b")) for t in o["items"].split()]
        safe = {}
        for i, (kind, q, _) in enumerate(items):
            later = [k for k in range(i + 2, len(items)) if items[k][2]]
            nb = sum(it[2] for it in items[:later[0] + 1]) if later else sum(it[2] for it in items) + 1
            if o["two"]: nb = min(nb, 8)
            if kind == "K": safe[L_X(q) // SL] = nb; safe[L_WK(q) // SL] = nb
        def dma(tag, lds, va, srdn, soff):
            if tag[0] != "K" and (lds // SL) in safe: assert nbar >= safe[lds // SL], ("WAR", tag, nbar)
            P(f"s_add_u32 m0, s{sT4}, {lds}\nbuffer_load_dwordx4 v{va}, {sr(srdn,4)}, s{soff} offen lds"); vm.add(tag)
        def ld(kind, q):
            if kind == "K":
                dma(("K", q), L_X(q), vx0, sXB, sSX + q); dma(("K", q), L_WK(q), vw0, sWKV, sSW + q)
                dma(("K", q), L_X(q) + 4096, vx1, sXB, sSX + q); dma(("K", q), L_WK(q) + 4096, vw1, sWKV, sSW + q)
            elif kind == "X":
                dma(("K", q), L_X(q), vx0, sXB, sSX + q); dma(("K", q), L_X(q) + 4096, vx1, sXB, sSX + q)
            elif kind == "V":
                if q == o['pre'].count('V'): P(f"v_add_u32 v{vw0}, 896, v{vw0}\nv_add_u32 v{vw1}, 896, v{vw1}")
                dma(("V", q), L_WV(q), vw0, sWKV, sSW + q); dma(("V", q), L_WV(q) + 4096, vw1, sWKV, sSW + q)
            elif kind == "Q":
                dma(("Q", q), L_WQ(q), vq0, sW, sSW + q); dma(("Q", q), L_WQ(q) + 4096, vq1, sW, sSW + q)
            elif kind == "A":
                P(f"s_add_u32 m0, s{sT4}, {L_XA + q*(4096-128)}\nbuffer_load_dwordx4 v{vxa}, {sr(sXA,4)}, 0 offen offset:{q*128} lds"); vm.add(("A", q))
        def bar(name, tag=None):
            nonlocal nbar
            self.stamp("f" + name)
            if tag: vm.wait(tag)
            self.stamp("w" + name)
            P("s_barrier"); nbar += 1
            self.stamp("b" + name)
        def only(cond, f):
            L = P.label("sk")
            P(f"{cond}\ns_cbranch_scc0 {L}"); f(); P(f"{L}:")
        FO = [24, 25, 26, 27, 11]
        def flag_setup(E):
            E(f"s_add_u32 s3, s{sP}, s{sCI}\ns_and_b32 s3, s3, 7\ns_lshl_b32 s3, s3, 5\ns_sub_u32 s3, s3, s{sCI}\ns_lshl2_add_u32 s3, s3, {WS_KF + 4:#x}")
            for d in range(5):
                E(f"s_add_u32 s7, s{sRT}, {d}\ns_and_b32 s7, s7, 31\ns_lshl_b32 s7, s7, 10\ns_add_u32 s{FO[d]}, s7, s3\ns_add_u32 s3, s3, 8")
            E(f"s_add_u32 s4, s18, {WS_VF - WS_KF:#x}\ns_addc_u32 s5, s19, 0")
        def sflag(bases, early):
            def f():
                for bs in bases:
                    for d in range(5): P(f"s_atomic_swap s{sNONCE}, {bs}, s{FO[d]}")
            only(f"s_cmp_eq_u32 s{sFO}, {int(early)}", f)
        CC, SS, ZC, ZS, ZH = 144, 172, 64, 72, 136
        vFL = 15
        def a1(k0, k1):
            lg = Cnt(P, "lgkmcnt", 15)
            NX = 6
            def xreg(ks): return (24, 32, 40, 48, 56, 112)[ks % NX]
            def xread(ks):
                for mt in range(2):
                    P(f"ds_read_b128 {vr(xreg(ks) + 4*mt, 4)}, v{8 + (ks & 1)} offset:{(ks>>1)*4096 + mt*2048}"); lg.add(("x", ks))
            for ks in range(k0, min(k1, k0 + NX - 1)): xread(ks)
            inl = dict(t.split(":") for t in o["ina1"].split())
            for ks in range(k0, k1):
                if str(ks) in inl:
                    if "kf" in inl[str(ks)]: assert ks >= k1 + 1 - NX; lg.all()
                    run(inl[str(ks)].replace(",", " "))
                lg.wait(("x", ks))
                x = xreg(ks); z = ZH if ks >= 7 else 0; kk = 4 * (ks % 7)
                c = (lambda r: "0" if kk == 0 else r)
                P(MF16(ZC + z, x, CC + kk, c(ZC + z)))
                P(MF16(ZS + z, x, SS + kk, c(ZS + z)))
                if ks + NX - 1 < k1: xread(ks + NX - 1)
                fk = ks - o["fks"]
                if fk in (0, 1):
                    for k in range(2): P(f"ds_read_b128 {vr(96+8*fk+4*k,4)}, v134 offset:{2048*fk+1024*k}"); lg.add("F")
                P(MF16(ZC + z + 4, x + 4, CC + kk, c(ZC + z + 4)))
                P(MF16(ZS + z + 4, x + 4, SS + kk, c(ZS + z + 4)))
            lg.wait("F")
            self.stamp("a1" if k1 == 14 else "a1a")
        ZR, ZP, ZN, TA = 80, 84, 88, 40
        def lva():
            for i in range(16): P(f"v_fmac_f32 v{ZC+i}, v11, v{ZC+ZH+i}")
            for i in range(4): P(f"v_cvt_pk_bf16_f32 v{ZR+i}, v{ZC+2*i}, v{ZC+2*i+1}")
            for i in range(4): P(f"v_cvt_pk_bf16_f32 v{ZP+i}, v{ZS+2*i}, v{ZS+2*i+1}")
            for i in range(4): P(f"v_cvt_pk_bf16_f32 v{ZN+i}, -v{ZS+2*i}, -v{ZS+2*i+1}")
            for nt in range(2):
                P(MF16(TA + 8*nt, ZR, 96 + 4*nt, "0")); P(MF16(TA + 8*nt + 4, ZR, 104 + 4*nt, "0"))
            P(f"v_and_b32 v18, 15, v0\nv_lshrrev_b32 v19, 4, v0\nv_lshl_add_u32 v20, s{sU}, 2, v19\nv_and_b32 v21, 7, v0\nv_xor_b32 v20, v20, v21")
            P(f"v_lshl_add_u32 v20, v18, 4, v20\nv_lshlrev_b32 v20, 4, v20\nv_add_u32 v20, {L_TS}, v20")
        def lvb():
            for nt in range(2):
                P(MF16(TA + 8*nt, ZN, 104 + 4*nt, TA + 8*nt)); P(MF16(TA + 8*nt + 4, ZP, 96 + 4*nt, TA + 8*nt + 4))
        def lvc():
            for nt in range(2):
                for r_ in range(4): P(f"v_cvt_pk_bf16_f32 v{56+4*nt+r_}, v{TA+8*nt+r_}, v{TA+8*nt+4+r_}")
                P(f"ds_write_b128 v20, {vr(56+4*nt,4)} offset:{4096*nt}")
            self.lds_signal(vFL, 6, 21)
        vTR, vWR, vRD, vG0, vG1, vOR = 120, 122, 121, 124, 125, 126
        sOB = 10
        def out_addr():
            P = self.P
            self.scratch_addr(vWR, vRD, L_OUT, 112)
            P(f"v_mul_u32_u24 v{vG0}, 1792, v114\nv_add_u32 v{vG0}, v{vG0}, v115\nv_add_u32 v{vG1}, {16*1792}, v{vG0}")
            P(f"s_lshl_b32 s3, s{sR}, 12\nv_lshl_add_u32 v{vOR}, v112, 3, s3\nv_lshl_add_u32 v{vOR}, v113, 9, v{vOR}")
            P(f"s_lshl1_add_u32 s3, s{sRT}, s{sR}\ns_mul_i32 s3, s3, {32*1792}\ns_lshl_b32 s7, s{sP}, 7\ns_add_u32 s3, s3, s7")
            P(f"s_add_u32 s3, s3, s{sT0}\ns_add_u32 s{sOB}, s3, 896")
        vD0, vD1, vWO = 14, 127, 17
        def role_setup():
            P = self.P
            P(f"s_mul_i32 s3, s{sCI}, -512\ns_add_u32 s3, s3, 4096\nv_lshlrev_b32 v{vD0}, 4, v0\nv_add_u32 v{vD1}, s3, v{vD0}")
            P(f"s_lshl3_add_u32 s3, s{sRT}, s{sP}\ns_lshl_b32 s3, s3, 7\ns_mul_i32 s7, s{sCI}, {WS_VF - WS_KF:#x}\ns_add_u32 s3, s3, s7\ns_add_u32 s{sT3}, s3, {WS_KF:#x}")
            P(f"s_mul_i32 s{sT1}, s{sP}, {PAIR}\ns_mul_i32 s3, s{sRT}, 7168\ns_add_u32 s3, s3, s{sT1}\ns_mul_i32 s7, s{sCI}, {WS_V - WS_K:#x}\ns_add_u32 s3, s3, s7\ns_add_u32 s{sGB[4]}, s3, {WS_K:#x}")
            for n in range(4):
                P(f"s_sub_u32 s3, s{sGB[4]}, {7168*(4-n)}\ns_cmp_lt_u32 s{sRT}, {4-n}\ns_cselect_b32 s{sGB[n]}, s{sWS+2}, s3")
            P(f"s_mul_i32 s3, s{sU}, 10\nv_lshrrev_b32 v132, 1, v0\nv_add_u32 v132, s3, v132\nv_lshl_add_u32 v133, s{sRT}, 3, v132\nv_cmp_le_u32 vcc, 32, v133")
            P(f"v_mov_b32 v129, 0x3f803f80\nv_and_b32 v133, 1, v0\nv_cndmask_b32 v128, 0, v129, vcc\nv_lshlrev_b32 v133, 6, v133\nv_lshl_add_u32 v132, v132, 10, v133")
            P(f"v_mov_b32 v129, v128\nv_mov_b32 v130, v128\nv_mov_b32 v131, v128\nv_add_u32 v134, {L_F}, v{vD0}")
        def ones():
            P(f"s_mov_b64 exec, 0xfffff\nds_write_b128 v132, v[128:131] offset:{L_VT + 896}\ns_mov_b64 exec, -1")
        for f in (role_setup, lambda: flag_setup(self.P)):
            B = Prog(); self.into(B, f); F += B.lines
            if o.get("verbose"): print("filler length", len(F) - len(B.lines), len(F))
        def die_tell():
            P(f"s_getreg_b32 s4, hwreg(HW_REG_XCC_ID, 0, 4)\ns_lshl_b32 s{sT5}, s{sRT}, 7\ns_add_u32 s{sT2}, s{sT5}, {WS_XF:#x}\ns_lshl2_add_u32 s{sT5}, s{sP}, s{sT2}")
            P(f"s_add_u32 s16, s4, s{sNONCE}\ns_mov_b32 s17, s16\ns_atomic_swap s17, s[18:19], s{sT5}")
        def die_ask(): P(f"s_load_dwordx8 s[20:27], s[18:19], s{sT2} glc")
        def die_check():
            Lx = P.label("xm")
            P(f"s_mov_b32 s{sT5}, {SPIN}\n{Lx}:\ns_waitcnt lgkmcnt(0)")
            for k in range(4): P(f"s_cmp_lg_u64 {sr(20+2*k,2)}, s[16:17]\ns_cbranch_scc1 {Lx}_n")
            self.lds_set(vFL, 3, 21, 1 if o['olocal'] else 0)
            P(f"{Lx}_e:\ns_waitcnt lgkmcnt(0)")
            T(f"{Lx}_n:\ns_sub_u32 s20, s20, s6")
            for k in range(1, 8): T(f"s_sub_u32 s{20+k}, s{20+k}, s6\ns_max_u32 s20, s20, s{20+k}")
            T(f"s_cmp_lt_u32 s20, 16\ns_cbranch_scc1 {Lx}_e\ns_load_dwordx8 s[20:27], s[18:19], s{sT2} glc\ns_sub_u32 s{sT5}, s{sT5}, 1\ns_cbranch_scc0 {Lx}\ns_branch {Lx}_e")
        p7state = {}
        def run(sched, extra={}):
            for tok in sched.split():
                if tok in extra: extra[tok]()
                elif tok[0] in "KVQAX" and tok[1:].isdigit(): ld(tok[0], int(tok[1:]))
                elif tok[0] == "f" and tok != "fs": fill(len(F) if tok == "f*" else int(tok[1:]))
                elif tok[0] == "w": vm.wait((tok[1], int(tok[2:])))
                elif tok[0] == "b": bar(tok[1:], (tok[1], int(tok[2:])) if tok[1] != "S" else None)
                elif tok == "nonce": P(f"s_waitcnt lgkmcnt(0)\n{NONCE}")
                elif tok == "lg0": P("s_waitcnt lgkmcnt(0)")
                elif tok == "oad": out_addr()
                elif tok == "fs": flag_setup(P)
                elif tok == "kf": sflag(["s[18:19]"], False)
                elif tok == "vf": sflag(["s[4:5]"], False)
                elif tok == "ef": sflag(["s[18:19]", "s[4:5]"], True)
                elif tok == "a1": a1(0, 14)
                elif tok == "a1a": a1(0, o["a1cut"])
                elif tok == "a1b": a1(o["a1cut"], 14)
                elif tok == "lva": lva()
                elif tok == "lvb": lvb()
                elif tok == "lvc": lvc()
                elif tok == "rs": role_setup()
                elif tok == "one": ones()
                elif tok == "tl":
                    if o["touch"] & 2:
                        P(f"s_lshl_b32 s3, s2, 7\ns_add_u32 s7, s{sU}, 1\ns_lshl_b32 s7, s7, 21\ns_add_u32 s7, s7, s3\ns_load_dword s1, s[18:19], s7 glc")
                        P(f"s_lshl_b32 s7, s{sR}, 21\ns_lshl_b32 s{sT5}, s{sCI}, 15\ns_add_u32 s7, s7, s{sT5}\ns_add_u32 s7, s7, s3\ns_load_dword s0, {sr(sOUT,2)}, s7 glc")
                    if o["touch"] & 8:
                        P(f"s_lshl3_add_u32 s3, s{sRT}, s{sP}\ns_lshl_b32 s3, s3, 7\ns_lshl_b32 s7, s{sU}, 15\ns_add_u32 s3, s3, s7\ns_add_u32 s3, s3, {WS_KF:#x}\ns_load_dword s1, s[18:19], s3 glc")
                elif tok == "xt": only(f"s_cmp_eq_u32 s{sU}, 3", die_tell)
                elif tok == "xa": only(f"s_cmp_eq_u32 s{sU}, 3", die_ask)
                elif tok == "xc": only(f"s_cmp_eq_u32 s{sU}, 3", die_check)
                elif tok == "p7":
                    P(f"s_cmp_eq_u32 s{sP}, 7\ns_cbranch_scc1 L_p7")
                    p7state.update(fi=fi, q=list(vm.q))
                elif tok == "join": P("L_p7join:")
                elif tok == "page": P("@JUMPALIGN g2p1"); self.pad("g2p1"); P("L_ja_g2p1:")
                else: raise ValueError(tok)
        run(o["sched"])
        P(f"s_cmp_eq_u32 s{sU}, 3\ns_cbranch_scc1 L_roleV\ns_cmp_eq_u32 s{sU}, 2\ns_cbranch_scc1 L_roleT\ns_cmp_eq_u32 s{sU}, 0\ns_cbranch_scc1 L_roleN")
        vq_saved = list(vm.q); nb_saved = nbar
        def k_ld(n):
            for z in range(7):
                if z in (0, 4): P(f"s_mov_b32 m0, {L_KT + n*7168 + z*1024}")
                P(f"buffer_load_dwordx4 v{vD0 if z < 4 else vD1}, {sr(sWS,4)}, s{sGB[n]} offen offset:{(z&3)*1024} sc1 lds"); vm.add(("k", n))
        ex = {"kp": self.inbox_issue, "kw": lambda: (self.inbox_wait(), self.stamp("r1"))}
        for n in range(5): ex[f"k{n}"] = (lambda n=n: k_ld(n))
        run(o["schedK"], ex)
        P("v_mov_b32 v112, 1\nv_mov_b32 v113, 2")
        vm.wait(("k", 3)); P(f"ds_write_b32 v{vFL}, v112"); self.stamp("r2")
        vm.all(); P(f"ds_write_b32 v{vFL}, v113")
        P("s_branch L_rolesdone")
        self.pad("roleN"); P("L_roleN:"); vm.q = list(vq_saved); nbar = nb_saved
        run(" ".join(t for t in o["schedT"].split() if t not in ("ts", "tst")))
        P("s_branch L_rolesdone")
        self.pad("roleT"); P("L_roleT:"); vm.q = list(vq_saved); nbar = nb_saved
        def t_setup():
            self.lds_wait(vFL, 6, 4, 22)
            P(f"v_xor_b32 v21, v19, v0\nv_lshlrev_b32 v21, 4, v21\nv_add_u32 v21, {L_TS}, v21\nv_xor_b32 v22, 64, v21")
            for n in range(8): P(f"ds_read_b128 {vr(24+4*n,4)}, v{21+(n&1)} offset:{1024*n}")
            P(f"v_and_b32 v23, 0x70, v{vD0}\nv_bfe_u32 v22, v0, 3, 1\nv_lshl_add_u32 v23, v22, 13, v23\nv_mul_u32_u24 v22, {TST}, v19\nv_add_u32 v23, v22, v23")
            P(f"s_lshl_b32 s{sT0}, s{sS2}, 7\ns_lshl_b32 s3, s{sEG}, 14\ns_add_u32 s{sT0}, s{sT0}, s3\ns_add_u32 s{sT0}, s{sT0}, {WS_T:#x}")
            P(f"s_lshr_b32 s7, s{sS2}, 3\ns_lshl3_add_u32 s3, s{sEG}, s7\ns_lshl_b32 s3, s3, 7\ns_and_b32 s7, s{sS2}, 7\ns_lshl2_add_u32 s3, s7, s3")
            P(f"s_add_u32 s{sT2}, s3, {WS_TF:#x}")
        def t_store():
            if o["twait"] >= 0: self.lds_wait(vFL, o["twait"], 1, 22)
            else: P("s_waitcnt lgkmcnt(0)")
            for n in range(8):
                P(f"buffer_store_dwordx4 {vr(24+4*n,4)}, v23, {sr(sWS,4)}, s{sT0} offen sc1\ns_add_u32 s{sT0}, s{sT0}, {4*TST}"); vm.add(("T", 0))
        run(o["schedT"], {"ts": t_setup, "tst": t_store})
        P(f"s_waitcnt vmcnt(0)\ns_atomic_swap s{sNONCE}, s[18:19], s{sT2}")
        self.stamp("r1")
        P("s_branch L_rolesdone")
        self.pad("roleV"); P("L_roleV:"); vm.q = list(vq_saved); nbar = nb_saved
        run(o["schedV"], {"vp": self.inbox_issue})
        P(f"v_mov_b32 v112, 1\nv_mov_b32 v113, 2\ns_mov_b32 exec_hi, 0x00ffffff")
        self.inbox_wait()
        self.stamp("r1")
        for n in (4, 3, 2, 1, 0):
            for z in range(8):
                P(f"s_mov_b32 m0, {L_VT + n*8192 + (z>>2)*4096 + (z&3)*128}")
                P(f"buffer_load_dwordx4 v{vD1 if z >> 2 else vD0}, {sr(sWS,4)}, s{sGB[n]} offen offset:{896*(z&3)} sc1 lds"); vm.add(("v", n))
            if n == o.get("vi", 1): P(f"ds_write_b32 v{vFL}, v112 offset:20")
        P(f"s_mov_b64 exec, -1")
        P(f"v_lshrrev_b32 v{vWO}, 3, v0\nv_mul_u32_u24 v{vWO}, 896, v{vWO}\nv_lshrrev_b32 v28, 2, v0\nv_and_b32 v28, 4, v28\nv_xor_b32 v28, v28, v0\nv_and_b32 v28, 7, v28")
        P(f"s_lshl_b32 s3, s{sP}, 7\nv_lshl_add_u32 v{vWO}, v28, 4, v{vWO}\nv_add_u32 v{vWO}, s3, v{vWO}")
        P(f"s_and_b32 s{sROT}, s{sRT}, 3\ns_mul_i32 s{sROT}, s{sROT}, {o.get('worot', 2)}")
        def wo_loop(nch):
            Lw = P.label("wo")
            P(f"s_mov_b32 s{sT2}, {nch}\n{Lw}:\ns_lshl_b32 s{sT1}, s{sROT}, 13\ns_add_u32 m0, s{sT1}, {L_WQ(0)}\ns_mul_i32 s{sT0}, s{sROT}, {64*896}")
            for z in range(8):
                P(f"buffer_load_dwordx4 v{vWO}, {sr(sWO,4)}, s{sT0} offen lds")
                if z < 7: P(f"s_addk_i32 m0, 1024\ns_addk_i32 s{sT0}, 7168")
            P(f"s_add_u32 s{sROT}, s{sROT}, 1\ns_cmp_eq_u32 s{sROT}, 7\ns_cselect_b32 s{sROT}, 0, s{sROT}\ns_sub_u32 s{sT2}, s{sT2}, 1\ns_cmp_lg_u32 s{sT2}, 0\ns_cbranch_scc1 {Lw}")
            for _ in range(8 * nch): vm.add(("w", 0))
        self.lds_wait(vFL, 2, 4, 25)
        vm.wait(("v", 3)); P(f"ds_write_b32 v{vFL}, v112 offset:4"); self.stamp("r2")
        P(f"s_cmp_eq_u32 s{sP}, 7\ns_cbranch_scc1 L_v7end")
        T(f"L_v7end:\ns_waitcnt vmcnt(0)\nds_write_b32 v{vFL}, v113 offset:4\ns_branch L_g2end")
        nw = o.get("wo1", 1)
        if nw: wo_loop(nw)
        vm.wait(("v", 0)); P(f"ds_write_b32 v{vFL}, v113 offset:4"); self.stamp("r3")
        wo_loop(7 - nw)
        vm.all()
        P("@JUMPALIGN done"); self.pad("done")
        P(f"L_ja_done:\nL_rolesdone:")
        self.stamp("roled")
        P(f"s_cmp_eq_u32 s{sP}, 7\ns_cbranch_scc1 L_g2end\ns_waitcnt lgkmcnt(0)")
        P("s_barrier")
        self.stamp("bw")
        P(f"s_lshl_b32 s{sT0}, s{sCI}, 6\ns_add_u32 s3, s{sT0}, {L_WQ(0)}")
        self.tr_addr(vTR, 116, 117, True, 3)
        WF = 144
        for ks in range(28):
            for t in range(2):
                P(f"ds_read_b64_tr_b16 {vr(WF+4*ks+2*t,2)}, v{vTR} offset:{ks*2048 + t*512}")
        out_addr()
        P("s_setprio 2\ns_waitcnt lgkmcnt(0)")
        lg = Cnt(P, "lgkmcnt", 15)
        oa = LdsAddr(P, vOR)
        OF = 32
        nm = 0
        def omf():
            nonlocal nm
            q, s = nm >> 2, nm & 3
            lg.wait((q, s))
            P(MF32(64, WF + 4*nm, OF + 16*(q & 1) + 4*s, "0" if nm == 0 else 64)); nm += 1
        for q in range(7):
            P("s_barrier"); self.stamp(f"bo{q}")
            for s in range(4):
                if nm < 4 * q: omf()
                for t in range(2):
                    off = oa.off(L_O(q) + (4*s + t) * 256)
                    P(f"ds_read_b64 {vr(OF + 16*(q&1) + 4*s + 2*t, 2)}, v{vOR} offset:{off}"); lg.add((q, s))
            while nm < 4 * q + 4 - o.get("lago", 3): omf()
        while nm < 28: omf()
        self.out_epilogue(64, 24, vWR, vRD, vG0, vG1, f"s{sOB}", o["outmod"])
        self.stamp("fin")
        P(f"L_g2end:")
        self.stamp_out()
        P("s_endpgm")
        P("L_p7:")
        fi = p7state["fi"]; vm.q = p7state["q"]; nbar = 99
        run(o["sched7"])
        P("s_branch L_p7join")

    def g1(self):
        P = self.P; o = self.o; T = self.tail
        vXA, vWK, vWV, vWQ, vKS, vVS, vZ, vDA, vKR, vVR, vOS, vOP, vNON, vFL, vL, vH = 1, 5, 6, 7, 8, 10, 11, 13, 14, 15, 16, 17, 18, 19, 12, 20
        vSA, vSB = 22, 23
        QF, FM = 24, 32
        AK, AV, AQ, CD, WF, XF = 48, 64, 80, 96, 112, 144
        sG, sKO, sVO, sMODE, sFB, sOFo, sOO = sSW, sSW + 1, sSW + 2, sSW + 3, sSW + 4, sSW + 5, sSW + 6
        c = math.log2(math.e) / math.sqrt(28)
        P("L_g1:")
        self.stamp("G.in")
        P(f"s_waitcnt lgkmcnt(0)\ns_load_dword s{sNONCE}, s[18:19], {WS_E}")
        srd(P, sWS, 18, WS_SIZE); srd(P, sWO, 12, 448*896)
        P(f"s_mov_b32 s{sXA+2}, {2048*896:#x}\ns_mov_b32 s{sXA+3}, 0x20000")
        if o["warm"] > 1:
            P(f"s_lshl2_add_u32 s10, s2, s{sU}\ns_mulk_i32 s10, 392\nv_lshlrev_b32 v40, 3, v0\nbuffer_load_dword v47, v40, {sr(sWO,4)}, s10 offen")
        if o["pf7"]:
            Lp = P.label("pf")
            P(f"s_cmp_lg_u32 s{sP}, 7\ns_cbranch_scc1 {Lp}")
            P(f"s_and_b32 s7, s{sRT}, 3\ns_lshl2_add_u32 s7, s7, s{sU}\ns_mul_i32 s10, s7, {128*896}\ns_mul_i32 s11, s3, {8*896}\ns_add_u32 s10, s10, s11")
            P(f"v_lshlrev_b32 v40, 7, v0\ns_mov_b32 exec_hi, 0x00ffffff")
            for seg in range(2):
                P(f"buffer_load_dword v47, v40, {sr(sXA,4)}, s10 offen\ns_add_u32 s10, s10, {64*896}")
            if o["pfwo"]: P(f"s_mul_i32 s10, s7, 25088\ns_mov_b32 exec_hi, 0x0001ffff")
            for k in range(o["pfwo"]):
                P(f"buffer_load_dword v47, v40, {sr(sWO,4)}, s10 offen\ns_add_u32 s10, s10, {49*128}")
            P(f"s_mov_b64 exec, -1\n{Lp}:")
        if o["touch"] & 1:
            Lt = P.label("tch")
            srd(P, sOUT, 14, 2048*1792)
            P(f"s_cmp_lg_u32 s{sU}, 0\ns_cbranch_scc1 {Lt}\nv_lshlrev_b32 v40, 21, v0\nv_add_u32 v41, 0x800, v40\ns_mov_b64 exec, {(1 << NPAGE) - 1}")
            P(f"buffer_load_dword v47, v41, {sr(sWS,4)}, 0 offen\nbuffer_load_dword v47, v40, {sr(sXA,4)}, 0 offen")
            if o["touch"] & 4:
                P(f"s_mul_i32 s7, s{sRT}, 1792\nv_mul_u32_u24 v40, {1024*1792 + 512*1792}, v0\nbuffer_load_dword v47, v40, {sr(sOUT,4)}, s7 offen")
            P(f"s_mov_b64 exec, -1\n{Lt}:")
        P(f"v_and_b32 v{vL}, 31, v0\nv_lshrrev_b32 v{vH}, 5, v0\nv_bfe_u32 v42, v0, 1, 3\nv_xor_b32 v42, v42, v{vH}")
        P(f"s_lshl_b32 s3, s{sR}, 12\nv_lshl_add_u32 v43, v{vL}, 7, s3\nv_lshl_add_u32 v{vXA}, v42, 4, v43")
        for s in range(1, 4): P(f"v_xor_b32 v{vXA+s}, {32*s}, v{vXA}")
        P(f"s_lshl_b32 s{sT0}, s{sCI}, 6")
        self.tr_addr(vWK, 42, 43, True, sT0)
        P(f"s_add_u32 s{sT0}, s{sT0}, {L_WV(0)}")
        self.tr_addr(vWV, 42, 43, False, sT0)
        P(f"s_lshl1_add_u32 s{sG}, s{sRT}, s{sR}")
        P(f"s_lshl1_add_u32 s3, s{sP}, s{sCI}\ns_mov_b32 s7, {PAIR - 7*512}\nv_lshl_add_u32 v42, s3, 2, v{vH}")
        for s in range(2):
            P(f"v_mul_u32_u24 v43, 37, v42\nv_lshrrev_b32 v43, 8, v43\nv_mul_lo_u32 v43, v43, s7\nv_lshl_add_u32 v43, v42, 9, v43\nv_lshl_add_u32 v{vKS+s}, v{vL}, 4, v43")
            if s == 0: P("v_add_u32 v42, 2, v42")
        P(f"s_mul_i32 s3, s{sG}, 3584\ns_add_u32 s{sKO}, s3, {WS_K:#x}\ns_add_u32 s{sVO}, s3, {WS_V:#x}")
        P(f"v_mov_b32 v{vZ}, 0\nv_mov_b32 v{vFL}, {L_FLAG}\nv_and_b32 v42, 7, v0\nv_lshl_add_u32 v42, v42, 2, v{vFL}\nds_write_b32 v42, v{vZ}")
        if o["hops"]:
            for k, ch in enumerate(self.HOPS[:-1]): P(f"s_cmp_eq_u32 s{sU}, {k}\ns_cbranch_scc1 L_pad_{ch[0]}")
            P(f"s_branch L_pad_{self.HOPS[-1][0]}\nL_hopret:")
        self.stamp("G.set")
        lg = Cnt(P, "lgkmcnt", 15)
        xa = [LdsAddr(P, vXA + s) for s in range(4)]
        wa = {"K": LdsAddr(P, vWK), "V": LdsAddr(P, vWV, L_WV(0)), "Q": LdsAddr(P, vWQ, L_WQ(0))}
        wl = {"K": L_WK, "V": L_WV, "Q": L_WQ}
        acc = {"K": AK, "V": AV, "Q": AQ}
        def pack(a, half):
            for i in range(4): P(f"v_cvt_pk_bf16_f32 v{QF+4*half+i}, v{a+8*half+2*i}, v{a+8*half+2*i+1}")
        def proj(items, pre={}, lagn={}, post={}, mid={}):
            nm = 0
            def mf():
                nonlocal nm
                i, s = nm >> 2, nm & 3; kind, q, _ = items[i]
                lg.wait((i, s))
                w, x, a = WF + 16*(i & 1) + 4*s, XF + 16*q + 4*s, acc[kind]
                cc = "0" if (q == 0 and s == 0) else a
                P(MF32(a, x, w, cc) if kind == "V" else MF32(a, w, x, cc)); nm += 1
            for i, (kind, q, br) in enumerate(items):
                if i in pre: pre[i]()
                if br: P("s_barrier"); self.stamp(f"G.b{kind}{q}")
                for s in range(4):
                    if nm < 4 * i: mf()
                    if kind == "K":
                        off = xa[s].off(L_X(q))
                        P(f"ds_read_b128 {vr(XF + 16*q + 4*s, 4)}, v{vXA+s} offset:{off}"); lg.add((i, s))
                    for t in range(2):
                        off = wa[kind].off(wl[kind](q) + s*2048 + t*512)
                        P(f"ds_read_b64_tr_b16 {vr(WF + 16*(i&1) + 4*s + 2*t, 2)}, v{wa[kind].reg} offset:{off}"); lg.add((i, s))
                    if (i, s) in mid: mid[(i, s)]()
                while nm < 4 * i + 4 - lagn.get(i, 4): mf()
                if i in post: post[i]()
            while nm < 4 * len(items): mf()
        D = Prog()
        vE, vB, vA, vC, vS = 80, 81, 82, 84, 88
        D(f"v_and_b32 v{vA}, 15, v0\nv_lshl_add_u32 v{vA}, s{sR}, 4, v{vA}\nv_cvt_f32_u32 v{vA}, v{vA}\nv_mul_f32 v{vE}, {fl(1/32)}, v{vA}")
        D(f"v_lshrrev_b32 v{vA}, 2, v0\nv_and_b32 v{vA}, 12, v{vA}\nv_cvt_f32_u32 v{vA}, v{vA}\ns_mul_i32 s3, s{sCI}, {f2u(-0.25):#x}\nv_fma_f32 v{vB}, v{vE}, v{vA}, s3")
        for j in range(8): D(f"v_fmamk_f32 v{vC+j}, v{vE}, {fl(16*(j>>2)+(j&3))}, v{vB}")
        for j in range(8): D(f"v_cos_f32 v{vC+j}, v{vC+j}")
        for jj in range(4): D(f"v_cvt_pk_bf16_f32 v{CD+8+jj}, v{vC+2*jj}, v{vC+2*jj+1}")
        D(f"v_lshl_add_u32 v{vA}, v{vL}, 5, s{sRT}\nv_cvt_f32_u32 v{vA}, v{vA}\nv_mul_f32 v{vE}, {fl(1/2048)}, v{vA}")
        D(f"v_lshl_add_u32 v{vA}, s{sU}, 1, v{vH}\nv_lshlrev_b32 v{vA}, 3, v{vA}\nv_cvt_f32_u32 v{vA}, v{vA}\nv_mul_f32 v{vB}, v{vE}, v{vA}")
        for par in range(2):
            for jj in range(4): D(f"v_fmamk_f32 v{vS+jj}, v{vE}, {fl(2*jj + par)}, v{vB}")
            for jj in range(4): D(f"v_cos_f32 v{vC+jj}, v{vS+jj}")
            for jj in range(4): D(f"v_sin_f32 v{vS+jj}, v{vS+jj}")
            for jj in range(4): D(f"v_cvt_pk_bf16_f32 v{CD+4*par+jj}, v{vC+jj}, -v{vS+jj}")
        keep = P; P = D; self.P = D; D._lab = 500
        P(f"s_mul_i32 s{sT0}, s{sCI}, 48\ns_add_u32 s{sT0}, s{sT0}, {L_WQ(0)}")
        self.tr_addr(vWQ, 42, 43, True, sT0)
        P(f"s_lshl1_add_u32 s3, s{sP}, s{sCI}\nv_lshl_add_u32 v42, s3, 5, v{vL}\nv_mul_u32_u24 v43, 1171, v42\nv_lshrrev_b32 v43, 16, v43\ns_mov_b32 s7, {PAIR - 896}")
        P(f"v_mul_lo_u32 v43, v43, s7\nv_lshl_add_u32 v43, v42, 4, v43\nv_mul_u32_u24 v42, 896, v{vH}\nv_add_u32 v{vVS}, v42, v43")
        P(f"s_mul_i32 s3, s3, 1792\ns_mul_i32 s7, s{sG}, 28672\ns_add_u32 s3, s3, s7\ns_add_u32 s{sOO}, s3, {WS_O:#x}")
        P(f"s_lshl3_add_u32 s3, s{sRT}, s{sP}\ns_lshl2_add_u32 s3, s3, s{sU}\ns_lshl_b32 s3, s3, 2\ns_add_u32 s{sOFo}, s3, {WS_OF:#x}\ns_mov_b32 s{sFB}, 0")
        P(f"s_lshl_b32 s3, s{sRT}, 7\nv_lshl_add_u32 v{vOP}, v{vL}, 2, s3\nv_lshl_add_u32 v{vDA}, v0, 4, s{sT4}")
        P(f"v_lshlrev_b32 v42, 2, v{vH}\nv_sub_u32 v21, v{vL}, v42\ns_mov_b32 s11, {fl(c)}")
        P = keep; self.P = keep
        n0 = o.get("g1f0", 30)
        P.extend(D.lines[:n0])
        P(f"s_cmp_eq_u32 s{sP}, 7\ns_cbranch_scc1 L_x7\ns_setprio 1")
        self.stamp("G.set2")
        def fm_write(E):
            E(f"v_add_u32 v42, {L_F}, v{vDA}\nds_write_b128 v42, {vr(CD+8,4)}\nds_write_b128 v42, {vr(CD,4)} offset:{L_M - L_F}\nds_write_b128 v42, {vr(CD+4,4)} offset:{L_M - L_F + 4096}")
        B7 = Prog(); B7._lab = 600
        B7("L_x7:"); B7.extend(D.lines[n0:]); B7("s_waitcnt lgkmcnt(0)\ns_barrier")
        xa7 = [LdsAddr(B7, vXA + s) for s in range(4)]
        for q in range(7):
            for s in range(4):
                off = xa7[s].off(L_X(q))
                B7(f"ds_read_b128 {vr(XF + 16*q + 4*s, 4)}, v{vXA+s} offset:{off}")
        fm_write(B7)
        B7(f"s_waitcnt lgkmcnt(0)\ns_barrier\nds_read_b32 v44, v{vFL} offset:12\n" + "s_barrier\n" * (o["sched"].split("join")[1] + o["ina1"]).count("bV") + "s_waitcnt vmcnt(0) lgkmcnt(0)\ns_branch L_vdone")
        T.extend(B7.lines)
        items = [(t[0], int(t[1]), t.endswith("b")) for t in o["items"].split()]
        kst = o["kst"]
        def kstore(h):
            pack(AK, h)
            P(f"buffer_store_dwordx4 {vr(QF+4*h,4)}, v{vKS+h}, {sr(sWS,4)}, s{sKO} offen sc1")
            if h: self.stamp("G.kst")
        cuts = o["g1cuts"]
        di = n0
        def slot(i):
            nonlocal di
            P.extend(D.lines[di:di + cuts.get(i, 0)]); di += cuts.get(i, 0)
        fmw = lambda: (fm_write(P), lg.add("w"), lg.add("w"), lg.add("w"))
        mrd = lambda: (P(f"ds_read_b32 v44, v{vFL} offset:12"), lg.add("m"))
        if o["two"]:
            proj(items[:7], lagn={5: 2, 6: 2}, post={i: (lambda i=i: slot(i)) for i in range(7)})
            kstore(0); kstore(1)
            P("s_barrier\ns_setprio 0")
            P.extend(D.lines[di:])
            P("s_setprio 1")
            self.stamp("G.i1")
            proj(items[7:], pre={2: lambda: P("s_waitcnt vmcnt(0)")}, mid={(3, 1): fmw, (2, 3): mrd})
        else:
            proj(items, lagn=o.get("lagkv", {}), post={i: (lambda i=i: slot(i)) for i in range(8)},
                 mid={(kst, 0): lambda: kstore(0), (kst, 2): lambda: kstore(1), (o['fmw'], 1): fmw, (9, 3): mrd})
        for h in range(2):
            pack(AV, h)
            P(f"buffer_store_dwordx4 {vr(QF+4*h,4)}, v{vVS}, {sr(sWS,4)}, s{sVO} offen offset:{1792*h} sc1")
        P(f"L_vdone:\nv_readfirstlane_b32 s{sMODE}, v44")
        def otouch():
            P(f"v_lshlrev_b32 v42, 7, v0\ns_cmp_eq_u32 s{sMODE}, 0\ns_cselect_b32 s3, s{sWS+2}, s{sOO}\ns_cselect_b32 s7, s{sWS+2}, s{sOFo}\ns_mov_b64 exec, 0x3fff")
            P(f"buffer_load_dword v47, v42, {sr(sWS,4)}, s3 offen sc1\ns_mov_b64 exec, 1\nbuffer_load_dword v47, v42, {sr(sWS,4)}, s7 offen sc1\ns_mov_b64 exec, -1")
        nt = 0
        if o["otouch"] == 1: otouch(); nt = 2
        self.stamp("G.vst")
        P("s_barrier\ns_setprio 0")
        P("L_g1page:"); self.pad("g1p1", True)
        P(f"{NONCE}\nv_mov_b32 v{vNON}, s{sNONCE}")
        def mask(E, dst, far):
            E(f"v_cvt_f32_i32 v42, v21\nv_mul_f32 v42, {fl(-BIG if far else BIG)}, v42")
            for i in range(16):
                k = 8*(i >> 2) + (i & 3)
                E(f"v_add_f32 v{dst+i}, {fl((k-1)*BIG if far else -k*BIG)}, v42")
            for i in range(16): E(f"v_min_f32 v{dst+i}, 0, v{dst+i}")
        mask(P, AV, False)
        P(f"s_mov_b32 s3, 0x0b0b0909")
        for k in range(8):
            k0 = 8 * (k >> 1) + 2 * (k & 1)
            P(f"v_subrev_u32 v42, {k0}, v21\nv_subrev_u32 v43, {k0+1}, v21\nv_perm_b32 v{FM+k}, v43, v42, s3")
        P(f"s_mul_i32 s3, s{sR}, 3584\ns_mul_i32 s7, s{sCI}, 1536\ns_add_u32 s3, s3, s7\ns_add_u32 s3, s3, {L_KT}\nv_lshl_add_u32 v{vKR}, v0, 4, s3")
        P(f"v_cmp_gt_u32 vcc, 28, v{vL}\ns_mul_i32 s3, s{sCI}, 28\nv_add_u32 v42, s3, v{vL}\ns_lshl_b32 s7, s{sCI}, 2\ns_sub_u32 s7, 60, s7\nv_mov_b32 v43, s7")
        P(f"v_cndmask_b32 v42, v43, v42, vcc\ns_lshl_b32 s3, s{sR}, 12\nv_lshl_add_u32 v42, v42, 4, s3\nv_lshl_add_u32 v{vVR}, v{vH}, 10, v42")
        P(f"v_cmp_gt_u32 vcc, s{sCI}, v{vH}\nv_cmp_lt_u32 s[30:31], s{sCI}, v{vH}\nv_lshlrev_b32 v42, 3, v{vL}\nv_lshl_add_u32 v{vOS}, v{vH}, 8, v42\nv_mov_b32 v42, {fl(c)}")
        P(f"v_cndmask_b32 v{vSA}, v42, v{vZ}, vcc\nv_cndmask_b32 v{vSB}, v42, v{vZ}, s[30:31]")
        vTP = (6, 10)
        P(f"v_lshrrev_b32 v42, 3, v0\nv_lshlrev_b32 v42, 7, v42\nv_and_b32 v43, 7, v0\nv_lshl_add_u32 v42, v43, 2, v42\nv_add_u32 v42, {WS_TF - WS_OF}, v42")
        P(f"s_lshr_b32 s3, s{sP}, 1\ns_and_b32 s7, s{sP}, 1\nv_lshl_add_u32 v{vTP[0]}, s3, 10, v42\nv_lshl_add_u32 v{vTP[1]}, s7, 10, v{vTP[0]}")
        P(f"s_mul_i32 s{sT3}, s{sRT}, {TST}\ns_lshl_b32 s3, s{sP}, 13\ns_add_u32 s{sT3}, s{sT3}, s3\ns_add_u32 s{sT3}, s{sT3}, {WS_T:#x}")
        P(f"s_mov_b32 s{sT0}, {WS_OF:#x}\ns_mul_i32 s{sT1}, s{sRT}, {2*28672}\ns_add_u32 s{sT1}, s{sT1}, {WS_O:#x}\ns_add_u32 s{sT2}, s{sT1}, 28672")
        P(f"s_setprio 1")
        self.stamp("G.i2")
        proj([("Q", q, q in o["qbars"]) for q in range(7)], pre={0: lambda: P(f"s_waitcnt vmcnt({2+nt})"), o["qbars"][1]: lambda: P(f"s_waitcnt vmcnt({nt})")},
             lagn={o["qbars"][1] - 1: 0, 5: 2, 6: 2})
        S = lambda n: AK if n == 0 else (AV if n == 8 else XF + 16 * (n - 1))
        vM = 40
        KB, VB = WF, WF + 16
        pend = []
        def kread(i):
            for s in range(2):
                pend.append((f"ds_read_b128 {vr(KB + 8*((i+2)&3) + 4*s, 4)}, v{vKR} offset:{(8-i)*3584 + s*1024}", ("k", i)))
        def vread(i):
            for s in range(2):
                pend.append((f"ds_read_b128 {vr(S(8-i) + 8*s + 4, 4)}, v{vVR} offset:{(8-i)*4096 + s*2048}", ("v", i)))
        def flagrd(idx): pend.append((f"ds_read_b32 v44, v{vFL} offset:{4*idx}", "flag"))
        def drain(n=99):
            while pend and n > 0:
                t, tag = pend.pop(0); P(t); lg.add(tag); n -= 1
        def flagchk(idx, val, name, redo=[]):
            L = P.label("fc")
            lg.wait("flag")
            P(f"v_cmp_gt_u32 vcc, {val}, v44\ns_cbranch_vccnz {L}\n{L}_b:")
            if name == "G.k2": self.pad("fc", E=T)
            T(f"{L}:\nds_read_b32 v44, v{vFL} offset:{4*idx}")
            for t in redo: T(t)
            T(f"s_waitcnt lgkmcnt(0)\nv_cmp_gt_u32 vcc, {val}, v44\ns_nop 0\ns_cbranch_vccnz {L}\ns_branch {L}_b")
            self.stamp(name)
        self.lds_signal(vFL, 2, 40); lg.add("sig")
        if o["otouch"] == 2: otouch()
        flagrd(0); kread(0); kread(1); redo = [t for t, _ in pend[1:]]; drain()
        for i in range(8):
            sc, sel = (f"v[{vSA}:{vSA+1}]", "op_sel_hi:[0,1]") if i < 2 else ((f"v[{vSA}:{vSA+1}]", "op_sel:[1,0]") if i >= 6 else ("s[10:11]", "op_sel:[1,0]"))
            P(f"v_pk_mul_f32 {vr(AQ+2*i,2)}, {sc}, {vr(AQ+2*i,2)} {sel}")
        pack(AQ, 0); pack(AQ, 1)
        self.stamp("G.q")
        Lk = P.label("kw")
        lg.wait("flag")
        P(f"v_cmp_gt_u32 vcc, 1, v44\ns_cbranch_vccz {Lk}_d\n{Lk}:\nds_read_b32 v44, v{vFL}")
        P.extend(redo)
        P(f"s_waitcnt lgkmcnt(4)\nv_cmp_gt_u32 vcc, 1, v44\ns_cbranch_vccnz {Lk}\n{Lk}_d:")
        self.stamp("G.ck")
        def qk(i, s, nd=2):
            n = 8 - i
            lg.wait(("k", i))
            P(MF32(S(n), KB + 8*((i+2) & 3) + 4*s, QF + 4*s, S(n) if (s == 1 or n == 8) else CD)); drain(nd)
        npv = 0
        def pv(nd=2):
            nonlocal npv
            i, s = npv >> 1, npv & 1
            assert not any(t == ("v", i) for _, t in pend)
            lg.wait(("v", i))
            P(MF32(AQ, S(8 - i) + 8*s + 4, S(8 - i) + 8*s, "0" if npv == 0 else AQ)); npv += 1; drain(nd)
        def pvl(s):
            lg.wait(("v", 8)); P(MF32(AQ, KB + 4*s, S(0) + 8*s, AQ))
        kread(2)
        qk(0, 0); qk(0, 1)
        b = S(8)
        P(f"s_mov_b32 s3, {fl(-40.0)}\nv_max_f32 v{vM}, v{b}, v{b+1}\nv_max_f32 v{vM+1}, v{b+2}, v{b+3}")
        for k in range(2, 7): P(f"v_max3_f32 v{vM+(k&1)}, v{vM+(k&1)}, v{b+2*k}, v{b+2*k+1}")
        P(f"v_max3_f32 v{vM+1}, v{vM+1}, v{b+14}, v{b+15}\nv_max_f32 v42, v{vM}, v{vM+1}\nv_max_f32 v{vM+1}, v{vM}, v{vM+1}\nv_permlane32_swap_b32 v42, v{vM+1}\nv_max_f32 v{vM}, v42, v{vM+1}")
        for k in range(16): P(f"v_sub_f32 v{CD+k}, s3, v{vM}")
        for k in range(16):
            P(f"v_add_f32 v{b+k}, v{b+k}, v{CD}")
            if k == 1: qk(1, 0)
            if k == 5: flagrd(0)
            if k == 8: qk(1, 1)
        self.stamp("G.p1")
        lag = o["pvlag"]
        vnext = 0
        for i in range(9):
            b = S(8 - i)
            if i == 1: flagchk(0, 2, "G.k2"); kread(3); kread(4)
            if 2 <= i and i + 3 < 9: kread(i + 3)
            if i == lag - 1: flagchk(1, 1, "G.fv")
            if i == lag: flagchk(1, 2, "G.v2")
            if i >= lag - 1:
                lim = min(i, 3 if i == lag - 1 else 9, vnext + (3 if lag > 4 else 2))
                while vnext < lim: vread(vnext); vnext += 1
            if i == 7:
                for s in range(2): pend.append((f"ds_read_b128 {vr(KB + 4*s, 4)}, v{vVR} offset:{s*2048}", ("v", 8)))
            if i in (lag - 2, lag - 1): flagrd(1)
            mfs = []
            if 1 <= i < 8: mfs += [lambda i=i: qk(i + 1, 0, 3), lambda i=i: qk(i + 1, 1, 3)]
            ready = 2 * len([t for t in range(vnext) if not any(tag == ("v", t) for _, tag in pend)])
            k_ = 0
            while npv + k_ < ready and k_ < 4: mfs.append(pv); k_ += 1
            rest = []
            if i == 8:
                mfs = [pv] * (16 - npv) + [lambda: pvl(0)]
                mfs, rest = mfs[:6], mfs[6:]
            slots = {0: [], 1: [1], 2: [0, 5], 3: [0, 5, 11], 4: [0, 4, 8, 12], 5: [0, 4, 8, 11, 14], 6: [0, 3, 6, 8, 11, 14]}[len(mfs)]
            for pos in range(16):
                P(f"v_exp_f32 v{b+pos}, v{b+pos}")
                if pos in slots: mfs.pop(0)()
                if pos in (7, 15):
                    h = pos >> 3
                    for k in range(4): P(f"v_cvt_pk_bf16_f32 v{b+8*h+k}, v{b+8*h+2*k}, v{b+8*h+2*k+1}")
                    if i == 8:
                        for k in range(4): P(f"v_and_b32 v{b+8*h+k}, v{b+8*h+k}, v{FM+4*h+k}")
            drain()
        assert vnext == 8
        for f in rest: f()
        pvl(1)
        vWR, vRD, vG0, vG1, vTA, MF_, TF_, AE = 1, 3, 4, 5, 8, 176, 144, 64
        P(f"L_onorm:\ns_cmp_eq_u32 s{sMODE}, 0")
        P(f"v_mov_b32 v40, v{AQ+12}\nv_mov_b32 v41, v{AQ+12}\nv_permlane32_swap_b32 v40, v41\nv_rcp_f32 v41, v41\ns_cbranch_scc1 L_oslow")
        def ostore(E, mod):
            for a in range(4):
                for k in range(4): E(f"v_mul_f32 v{CD+4*a+k}, v{AQ+4*a+k}, v41")
                for k in range(2): E(f"v_cvt_pk_bf16_f32 v{VB+2*a+k}, v{CD+4*a+2*k}, v{CD+4*a+2*k+1}")
                if a == 3: E("s_mov_b32 exec_hi, 0")
                E(f"buffer_store_dwordx2 {vr(VB+2*a,2)}, v{vOS}, {sr(sWS,4)}, s{sOO} offen offset:{512*a} {mod}")
            E("s_mov_b64 exec, -1")
        ostore(P, o["omod"])
        P("L_ostored:")
        T("L_oslow:"); ostore(T, "sc1"); T("s_branch L_ostored")
        self.stamp("G.ost")
        P(f"v_mul_f32 v40, 0, v{AQ}\nv_mul_f32 v41, 0, v{AQ+1}")
        for k in range(2, 16): P(f"v_fmac_f32 v{40+(k&1)}, 0, v{AQ+k}")
        P(f"v_cmp_u_f32 vcc, v40, v41")
        if o["force_fb"]: P("s_mov_b64 vcc, -1")
        P(f"v_lshlrev_b32 v42, 4, v0\ns_cbranch_vccnz L_fallback\nL_ochecked:\nv_add_u32 v42, {L_M}, v42")
        for s in range(8): P(f"ds_read_b128 {vr(MF_+4*s,4)}, v42 offset:{1024*s}")
        A2 = Prog(); keep = P; P = A2; self.P = A2
        vWR, vRD, vG0, vG1, vTA, MF_, TF_, AE = 1, 3, 4, 5, 8, 176, 144, 64
        self.scratch_addr(vWR, vRD, L_TS, 52)
        P(f"s_lshl_b32 s3, s{sR}, 10\ns_add_u32 s3, s3, s{sRT}\nv_lshl_add_u32 v56, v54, 5, s3\ns_cmp_eq_u32 s{sCI}, 1\ns_cselect_b64 vcc, -1, 0")
        for dst in (vG0, vG1):
            P(f"v_sub_u32 v57, 0, v56\nv_and_b32 v57, 2047, v57\nv_cndmask_b32 v57, v56, v57, vcc\nv_mul_u32_u24 v57, 1792, v57\nv_add_u32 v{dst}, v57, v55")
            if dst == vG0: P("v_add_u32 v56, 512, v56")
        P(f"v_and_b32 v54, 19, v0\nv_bfe_u32 v55, v0, 2, 1\nv_lshl_add_u32 v54, v55, 3, v54\nv_bfe_u32 v55, v0, 3, 1\nv_lshl_add_u32 v54, v55, 2, v54")
        P(f"v_sub_u32 v55, 32, v54\nv_cndmask_b32 v54, v54, v55, vcc\nv_lshrrev_b32 v55, 5, v54\nv_and_b32 v54, 31, v54\nv_lshlrev_b32 v54, 2, v54")
        P(f"v_lshl_add_u32 v54, v55, 13, v54\nv_lshl_add_u32 v54, v{vH}, 10, v54\nv_add_u32 v{vTA}, {L_TT}, v54\nv_add_u32 v{vTA+1}, 128, v{vTA}")
        P(f"s_lshl_b32 s3, s{sP}, 6\ns_sub_u32 s7, 832, s3\ns_cmp_eq_u32 s{sCI}, 1\ns_cselect_b32 s10, s7, s3")
        srd(P, sOUT, 14, 2048*1792)
        P = keep; self.P = keep
        na = o.get("a2cut", 34)
        P("@PAGEPAD"); P.extend(A2.lines[:na]); P("@PAGEPADEND")
        P(f"s_mov_b64 exec, 1\ns_cmp_eq_u32 s{sMODE}, 0\ns_waitcnt vmcnt(0)\ns_cbranch_scc1 L_ofslow")
        P(f"buffer_store_dword v{vNON}, v{vZ}, {sr(sWS,4)}, s{sOFo} offen\nL_oflagged:\ns_mov_b64 exec, -1")
        T(f"L_ofslow:\nbuffer_store_dword v{vNON}, v{vZ}, {sr(sWS,4)}, s{sOFo} offen sc1\ns_branch L_oflagged")
        self.stamp("G.oack")
        P(f"s_cmp_eq_u32 s{sP}, 7\ns_cbranch_scc1 L_epoch")
        for k in range(2): P(f"buffer_load_dword v{45+k}, v{vTP[k]}, {sr(sWS,4)}, s{sT0} offen sc1")
        P(f"s_barrier")
        P.extend(A2.lines[na:])
        self.poll([(vOP, 0)], 44, sT0)
        self.stamp("G.op")
        def odma(q):
            for r_ in range(2):
                P(f"s_add_u32 m0, s{sT4}, {L_O(q) + r_*4096}\ns_nop 0\nbuffer_load_dwordx4 v{vDA}, {sr(sWS,4)}, s{sT1+r_} offen sc1 lds\ns_add_u32 s{sT1+r_}, s{sT1+r_}, 4096")
        def tdma():
            for q in range(4):
                P(f"s_add_u32 m0, s{sT4}, {L_TT + q*4096}\ns_nop 0\nbuffer_load_dwordx4 v{vDA}, {sr(sWS,4)}, s{sT3} offen sc1 lds\ns_add_u32 s{sT3}, s{sT3}, 4096")
        for q in range(4): odma(q)
        P(f"v_cmp_ne_u32 vcc, s{sNONCE}, v45\nv_cmp_ne_u32 s[8:9], s{sNONCE}, v46\ns_waitcnt vmcnt(6)\ns_barrier")
        for q in range(4, 6): odma(q)
        P("s_waitcnt vmcnt(8)\ns_barrier")
        odma(6)
        P(f"s_or_b64 vcc, vcc, s[8:9]\ns_waitcnt vmcnt(8)\ns_barrier\ns_cbranch_scc1 L_tlate")
        tdma()
        for q in range(3, 7):
            P(f"s_waitcnt vmcnt({16-2*q})\ns_barrier")
        P("L_tgo:")
        P(f"s_mul_i32 s3, s{sR}, 0x80008000\ns_waitcnt lgkmcnt(0)")
        for k in range(16): P(f"v_xor_b32 v{MF_+16+k}, s3, v{MF_+16+k}")
        P("s_waitcnt vmcnt(0)")
        self.lds_signal(vFL, 4, 44)
        self.lds_wait(vFL, 4, 4, 44)
        self.stamp("G.tl")
        lg.q = []
        for s in range(8):
            if s == 7: lg.wait(0); P(MF32(AE, TF_, MF_, "0"))
            for t in range(2):
                o0 = 8*(s & 3) + 2*t
                P(f"ds_read2st64_b32 {vr(TF_+4*s+2*t,2)}, v{vTA+(s>>2)} offset0:{o0} offset1:{o0+1}"); lg.add(s)
        for s in range(1, 8):
            lg.wait(s); P(MF32(AE, TF_ + 4*s, MF_ + 4*s, AE))
        self.out_epilogue(AE, 24, vWR, vRD, vG0, vG1, "s10", o["outmod"])
        self.stamp("G.fin")
        P("L_g1end:")
        self.stamp_out()
        P("L_end:\ns_endpgm")
        P("L_tlate:")
        for q in range(3, 7):
            P(f"s_waitcnt vmcnt({12-2*q})\ns_barrier")
        self.poll([(vTP[0], 0), (vTP[1], 0)], 45, sT0)
        tdma()
        P("s_branch L_tgo")
        P("L_epoch:")
        if not o.get("pft", True): P(f"s_cmp_lg_u32 s{sRT}, 31\ns_cbranch_scc1 L_g1end")
        P(f"s_cmp_lg_u32 s{sU}, 0\ns_cbranch_scc1 L_g1end\ns_sub_u32 s{sT0}, s{sT0}, 3072\ns_sub_u32 s{sT3}, s{sT3}, {7*8192}\nv_lshlrev_b32 v42, 7, v0")
        self.poll([(vTP[0], 0), (vTP[0], 1024), (vTP[0], 2048), (vTP[0], 3072)], 50, sT0)
        if o.get("pft", True):
            for k in range(8): P(f"buffer_load_dword v47, v42, {sr(sWS,4)}, s{sT3} offen sc1\ns_add_u32 s{sT3}, s{sT3}, 8192")
        P(f"s_cmp_lg_u32 s{sRT}, 31\ns_cbranch_scc1 L_g1end")
        P(f"s_mov_b64 exec, 1\nbuffer_store_dword v{vNON}, v{vZ}, {sr(sWS,4)}, 0 offen offset:{WS_E} sc1\ns_branch L_g1end")
        P("L_fallback:")
        P(f"s_cmp_lg_u32 s{sFB}, 0\ns_cbranch_scc1 L_ochecked\ns_mov_b32 s{sFB}, 1\ns_waitcnt vmcnt(0)")
        mask(P, AK, True); mask(P, AV, False)
        P(f"v_mov_b32 v{vM}, {fl(-BIG)}")
        for n in range(9):
            P(f"ds_read_b128 {vr(KB,4)}, v{vKR} offset:{n*3584}\nds_read_b128 {vr(KB+4,4)}, v{vKR} offset:{n*3584+1024}")
            if n <= 7:
                P(f"s_cmp_lt_u32 s{sG}, {8-n}\ns_cselect_b32 s3, {fl(-BIG)}, 0")
                for k in range(16): P(f"v_mov_b32 v{S(n)+k}, s3" if n else f"v_min_f32 v{S(n)+k}, s3, v{S(n)+k}")
            P("s_waitcnt lgkmcnt(0)")
            for s in range(2): P(MF32(S(n), KB + 4*s, QF + 4*s, S(n)))
            for k in range(8): P(f"v_max3_f32 v{vM}, v{vM}, v{S(n)+2*k}, v{S(n)+2*k+1}")
        P(f"v_mov_b32 v{vM+1}, v{vM}\nv_permlane32_swap_b32 v{vM}, v{vM+1}\nv_max_f32 v{vM}, v{vM}, v{vM+1}")
        for n in range(9):
            b = S(n)
            P(f"ds_read_b128 {vr(VB,4)}, v{vVR} offset:{n*4096}\nds_read_b128 {vr(VB+4,4)}, v{vVR} offset:{n*4096+2048}")
            for k in range(16): P(f"v_sub_f32 v{b+k}, v{b+k}, v{vM}")
            for k in range(16): P(f"v_exp_f32 v{b+k}, v{b+k}")
            for k in range(8): P(f"v_cvt_pk_bf16_f32 v{b+k}, v{b+2*k}, v{b+2*k+1}")
            P("s_waitcnt lgkmcnt(0)")
            for s in range(2): P(MF32(AQ, VB + 4*s, b + 4*s, "0" if (n == 0 and s == 0) else AQ))
        P("s_nop 11\ns_branch L_onorm")

    def addrs(self, lines):
        import subprocess, tempfile
        src = '.amdgcn_target "amdgcn-amd-amdhsa--gfx950"\n.text\n' + "".join(f"Z{i}:\n" + ("" if l.startswith("@") else l) + "\n" for i, l in enumerate(lines))
        if self.o["hops"] and not any(l.startswith("L_pad_g1p2") for l in lines): src += "L_pad_g1p2:\n"
        with tempfile.TemporaryDirectory() as d:
            open(d + "/a.s", "w").write(src)
            subprocess.run(["clang", "-x", "assembler", "-target", "amdgcn-amd-amdhsa", "-mcpu=gfx950", "-c", d + "/a.s", "-o", d + "/a.o"], check=True)
            out = subprocess.run(["llvm-objdump", "-t", d + "/a.o"], capture_output=True, text=True).stdout
        ad = {}
        for l in out.splitlines():
            w = l.split()
            if len(w) > 3 and w[-1][0] == "Z": ad[int(w[-1][1:])] = int(w[0], 16)
        return [ad[i] for i in range(len(lines))]

    def layout(self, body):
        fill = lambda n: [f".fill {n//4}, 4, 0xbf800000"] if n else []
        on = self.o["align"]
        while True:
            k = [i for i, l in enumerate(body) if l.startswith("@JUMPALIGN")]
            if not k: break
            i = k[0]; name = body[i].split()[1]
            a = self.addrs(body)[i] + 4
            body = body[:i] + [f"s_branch L_ja_{name}"] + (fill(-a % 4096) if on else []) + body[i+1:]
        ad = self.addrs(body)
        g = body.index("L_g1:")
        if on: body = body[:g] + fill(-ad[body.index("L_g1page:")] % 4096) + body[g:]
        ad = self.addrs(body)
        i0, i1 = body.index("@PAGEPAD"), body.index("@PAGEPADEND")
        pg = (ad[body.index("L_g1page:")] // 4096 + 1) * 4096
        if on and not (ad[i0] - 64 <= pg <= ad[i1]): print("warning: second page boundary at", hex(pg), "outside", hex(ad[i0]), hex(ad[i1]))
        j = i0 + 1
        while j < i1 and (ad[j] < pg or body[j].startswith("s_cselect")): j += 1
        B = Prog(); self.pad("g1p2", True, B)
        body = body[:i0] + body[i0+1:j] + B.lines + body[j:i1] + body[i1+1:]
        return body

    def build(self):
        self.prologue(); self.g2()
        g2 = list(self.P.lines); self.P.lines = []
        self.g1()
        fb = self.P.lines.index("L_fallback:")
        lines = g2 + self.tail.lines + self.P.lines[:fb] + ["L_codeend:"] + self.P.lines[fb:]
        body, pad = pad_hazards(lines)
        body = self.layout(body)
        hdr = open(os.path.join(os.path.dirname(os.path.abspath(__file__)), "header.txt")).read()
        if self.o["stamps"]: hdr += "; STAMPS " + self.o["stamps"] + (" MIXED" if self.o["mixed"] else "") + (" REALTIME" if self.o.get("rt") else "") + "\n"
        s = hdr + "; @launch grid=(256,1,1) block=(512,1,1) lds=163840\n"
        s += '.amdgcn_target "amdgcn-amd-amdhsa--gfx950"\n.text\n'
        if self.o["align"]: s += ".p2align 12\n.fill 832, 4, 0xbf810000\n"
        s += f".globl {NAME}\n.p2align 8\n.type {NAME},@function\n{NAME}:\n"
        s += "\n".join(("" if l.endswith(":") else "    ") + l for l in body) + "\n    s_endpgm\n"
        s += f""".section .rodata,"a"
.p2align 6
.amdhsa_kernel {NAME}
  .amdhsa_next_free_vgpr 256
  .amdhsa_next_free_sgpr 102
  .amdhsa_accum_offset 256
  .amdhsa_group_segment_fixed_size 0
  .amdhsa_kernarg_size 88
  .amdhsa_user_sgpr_count 2
  .amdhsa_user_sgpr_kernarg_segment_ptr 1
  .amdhsa_system_sgpr_workgroup_id_x 1
.end_amdhsa_kernel
"""
        return s, pad

if __name__ == "__main__":
    opts = {}
    out = sys.argv[1]
    for a in sys.argv[2:]:
        k, v = a.split("=", 1); opts[k] = v if k in STR_OPTS else eval(v)
    s, pad = Gen(**opts).build()
    open(out, "w").write(s)
    print("written", out, "pad states", pad, "lines", s.count("\n"))
```

```python
import sys, math, struct, os
sys.path.insert(0, os.path.dirname(os.path.abspath(__file__)))
from asmlib import *

NAME = "concat_heads__spectral_fnet__sliding_block__prompt_kernel"

def f2u(x): return struct.unpack("<I", struct.pack("<f", x))[0]
def fl(x): return f"{f2u(x):#x}"

WS_E = 0
WS_KF, WS_VF, WS_OF, WS_TF, WS_XF = 0x10000, 0x18000, 0x20000, 0x28000, 0x30000
WS_K, WS_V, WS_O, WS_T = 0x201000, 0x401000, 0x601000, 0x7F0000
NPAGE = 4
WS_STAMP = 0xA80000
WS_SIZE = 0xB00000
PAIR = 64 * 3584
TST = 65536 + 384
SL = 8192
def L_X(q): return 2 * q * SL
def L_WK(q): return (2 * q + 1) * SL
def L_WV(q): return (18 + q) * SL if q < 2 else (q - 2) * SL
L_XA = 14 * SL
def L_WQ(q): return (5 + q) * SL
L_KT = 13 * SL
L_VT = 0
L_F = 13 * SL
L_FLAG = 18 * SL - 64
L_TS = 12 * SL
L_OUT = 18 * SL
L_M = 19 * SL
L_TT = 15 * SL
def L_O(q): return q * SL if q < 5 else (13 + q - 5) * SL
sNONCE = 6
sXB, sW, sWKV, sXA, sWO, sOUT, sWS = 20, 48, 28, 32, 36, 40, 44
sU, sRT, sP, sS2, sEG, sR, sCI, sWV = 52, 53, 54, 55, 56, 57, 58, 59
sSX, sSW = 60, 67
sT0, sT1, sT2, sT3, sT4, sT5 = 74, 75, 76, 77, 78, 79
sROT, sFO = 8, 9
sGB = [12, 13, 14, 15, 8]
sSTAMP = 80
NSTAMP = 11
SPIN = 1 << 14
sLS = 60
def bound(lab): return f"s_add_u32 s{sLS}, s{sLS}, 1\ns_cmp_gt_u32 s{sLS}, 0x100000\ns_cbranch_scc1 {lab}"
BIG = 2.0 ** 100

class Cnt:
    def __init__(self, prog, name, maxn):
        self.p, self.name, self.maxn = prog, name, maxn
        self.q = []
    def add(self, tag=None): self.q.append(tag)
    def wait(self, tag):
        idx = [i for i, t in enumerate(self.q) if t == tag]
        if not idx: return
        n = min(len(self.q) - 1 - idx[-1], self.maxn)
        self.p(f"s_waitcnt {self.name}({n})")
        self.q = self.q[len(self.q) - n:] if n else []
    def all(self):
        self.p(f"s_waitcnt {self.name}(0)"); self.q = []

def srd(P, d, lo, nrec):
    P(f"s_mov_b64 {sr(d,2)}, {sr(lo,2)}\ns_mov_b32 s{d+2}, {nrec:#x}\ns_mov_b32 s{d+3}, 0x20000")

def MF32(d, a, b, c): return f"v_mfma_f32_32x32x16_bf16 {vr(d,16)}, {vr(a,4)}, {vr(b,4)}, {c if isinstance(c,str) else vr(c,16)}"
def MF16(d, a, b, c): return f"v_mfma_f32_16x16x32_bf16 {vr(d,4)}, {vr(a,4)}, {vr(b,4)}, {c if isinstance(c,str) else vr(c,4)}"
NONCE = f"s_mul_i32 s{sNONCE}, s{sNONCE}, 0x9E3779C1\ns_add_u32 s{sNONCE}, s{sNONCE}, 0x7FEB3560"

STR_OPTS = ("pre", "items", "stamps", "sched", "sched7", "schedT", "schedK", "schedV", "ina1", "outmod", "omod")

class Gen:
    def __init__(self, **o):
        self.o = dict(stamps=False, codepf=True, mixed=False, npre=2, outmod="nt", olocal=True, omod="nt", d3early=1, pvlag=4, pf7=True,
            otouch=3, stream=False, hops=3, align=True, force_fb=False, pfwo=0, touch=0, twait=5, a1cut=8,
            two=True, items="K0b K1b K2b K3b K4b K5b K6b V0b V1 V2b V3b V4b V5b V6b", kst=11, fmw=10, fks=8, pre="X0 W0 X1 W1", rot=3, warm=2,
            g1f0=30, g1cuts={0: 28, 1: 26, 2: 26, 3: 26, 4: 27},
            sched="f* nonce xt tl p7 K2 bK0 K3 bK1 K4 hop bK2 K5 bK3 K6 xa bK4 A0 A1 A2 A3 bK5 A4 A5 A6 bK6 V0 V1 xc page wA6 bS0 join a1a bV1 V5 V6 bV2 kf Q0 bV3 bV4 Q1 bV5 bV6 "
                  "a1b kp1 bQ1 lva Q5",
            sched7="X2 X3 f* ef X4 X5 X6 xa A0 A1 A2 A3 A4 A5 A6 bK6 xc lg0 wA6 bS0",
            ina1="0:V2 2:V3 4:V4 10:bS1,one,Q2,Q3 12:Q4", qbars=(0, 2, 3, 5, 6),
            schedT="bQ2 vf Q6 bQ4 lvb bQ5 bQ6 lvc ts tst",
            schedK="kw bQ2 Q6 k4 bQ4 k3 lvb bQ5 k2 bQ6 k1 k0 s1 lvc",
            schedV="bQ2 Q6 bQ4 lvb bQ5 vp bQ6 lvc")
        if o.get("merged"):
            self.o.update(two=False, items="K0b K1b K2b K3b K4b K5b K6b V0b V1b V2b V3b V4b V5b V6b", kst=11, fmw=8, fks=2, g1f0=99,
                sched="f* nonce xt p7 K2 bK0 K3 bK1 K4 bK2 K5 bK3 K6 xa bK4 V0 V1 bK5 V2 V3 bK6 V4 xc bV0 V5 bV1 V6 A0 A1 bV2 A2 A3 A4 bV3 A5 A6 bV4 Q0 bV5 bV6 "
                      "page wA6 join bS1 one a1 bQ0 kf lva lvb bQ2 vf Q4 Q5 lvc Q6",
                sched7="X2 X3 ef X4 X5 X6 xa A0 A1 A2 A3 A4 A5 A6 Q0 bK6 xc bS0 lg0 wA6",
                ina1="0:Q1,Q2 3:Q3", qbars=(0, 1, 3, 5, 6),
                schedT="bQ4 bQ5 bQ6 ts tst", schedK="kp bQ4 bQ5 bQ6 kw k4 k3 k2 k1 k0 s1", schedV="bQ4 bQ5 bQ6 vp")
        if o.get("stream"):
            self.o.update(two=False, items="K0b K1b K2b K3b K4b K5b K6b V0b V1b V2b V3b V4b V5b V6b", kst2=((8, 2), (9, 2)), kack=12, fmw=10, otouch=4, rot=1,
                g1f0=30, g1cuts={0: 24, 1: 24, 2: 24, 3: 24, 4: 24, 5: 24}, qcuts=(5, 18, 18, 18), vack=3, qbars=(0, 1, 2, 3, 4, 5, 6), ina1="",
                sched="f* nonce xt p7 K2 bK0 K3 bK1 K4 bK2 K5 bK3 K6 xa bK4 V0 V1 bK5 V2 V3 bK6 V4 xc bV0 V5 bV1 V6 bV2 A0 A1 bV3 A2 A3 bV4 A4 A5 bV5 kf A6 Q0 bV6 Q1 page Q2 join "
                      "bQ0 r:0-5 one Q3 m:0-2 bQ1 r:5-10 Q4 m:2-5 bQ2 r:10-14 F Q5 m:5-8 lg0 kp1 bQ3 vf Q6 m:8-11 bQ4 m:11-14 bQ5",
                sched7="X2 X3 ef X4 X5 X6 xa A0 A1 A2 A3 A4 A5 A6 Q0 bK6 xc bS0 Q1 Q2 lg0",
                schedT="lva bQ6 lvb lvc ts tst", schedK="kw k4 k3 bQ6 k2 k1 k0 lva lvb lvc s1", schedV="lva bQ6 vp lvb lvc")
        self.o.update(o)
        self.P = Prog()
        self.tail = Prog()

    def stamp(self, name):
        if not self.o["stamps"]: return
        if name == 0: self.P(f"s_memtime {sr(sSTAMP, 2)}"); return
        for lst in self.o["stamps"].split("|"):
            l = lst.split(",")
            if name in l: self.P(f"{'s_memrealtime' if self.o.get('rt') else 's_memtime'} {sr(sSTAMP + 2*(1+l.index(name)), 2)}")

    def stamp_out(self):
        if not self.o["stamps"]: return
        P = self.P
        P(f"s_waitcnt vmcnt(0)\ns_memtime {sr(sSTAMP+16,2)}\ns_memrealtime {sr(sSTAMP+18,2)}\ns_waitcnt lgkmcnt(0)\ns_mov_b64 exec, 1")
        if self.o.get("enc") is not None:
            k = self.o["enc"]; L = P.label("enc"); D = P.label("encd")
            P(f"s_cmp_lg_u32 s{sWV}, {self.o['encwv']}\ns_cbranch_scc1 {D}\ns_cmp_eq_u32 s{sP}, 7\ns_cbranch_scc1 {D}")
            if self.o.get("encwg", -1) >= 0: P(f"s_cmp_lg_u32 s2, {self.o['encwg']}\ns_cbranch_scc1 {D}")
            if k == 9: P(f"s_sub_u32 s3, s{sSTAMP+18}, s{sSTAMP+20}\ns_lshl_b32 s3, s3, 2")
            else: P(f"s_sub_u32 s3, s{sSTAMP+2*k}, s{sSTAMP}\ns_lshr_b32 s3, s3, 2")
            P(f"s_min_u32 s3, s3, 50000\ns_add_u32 s3, s3, 5000")
            P(f"{L}:\ns_memrealtime s[4:5]\ns_waitcnt lgkmcnt(0)\ns_sub_u32 s4, s4, s{sSTAMP+20}\ns_cmp_lt_u32 s4, s3\ns_cbranch_scc1 {L}\n{D}:")
            return
        for i in range(NSTAMP): P(f"v_mov_b32 v{4+i}, s{sSTAMP+2*i}")
        P(f"s_getreg_b32 s3, hwreg(HW_REG_XCC_ID)\nv_mov_b32 v15, s3")
        P(f"s_lshl_b32 s3, s2, 3\ns_add_u32 s3, s3, s{sWV}\ns_lshl_b32 s3, s3, 6\ns_add_u32 s3, s3, {WS_STAMP:#x}\nv_mov_b32 v1, 0")
        for k in range(3): P(f"buffer_store_dwordx4 v[{4+4*k}:{7+4*k}], v1, {sr(sWS,4)}, s3 offen offset:{16*k}")

    def into(self, prog, f, *a):
        keep = self.P; lab = keep._lab
        self.P = prog; prog._lab = max(prog._lab, lab)
        f(*a)
        keep._lab = max(prog._lab, lab); self.P = keep

    HOPS = (("roleN",), ("g1p1",), ("roleT",), ("roleV",))
    LATE = ("fc", "g1p2")
    def pad(self, name, inline=False, E=None):
        E = E or self.P
        if name in self.LATE:
            if not self.o["hops"] & 2: return
            nxt = "L_pad_g1p2" if name == "fc" else "L_rolesdone"
        else:
            if not self.o["hops"] & 1 or name in ("done", "g2p1"): return
            nxt = "L_hopret"
            for ch in self.HOPS:
                if name in ch[:-1]: nxt = "L_pad_" + ch[ch.index(name) + 1]
        if inline: E(f"s_branch L_over_{name}\nL_pad_{name}:\ns_branch {nxt}\nL_over_{name}:")
        else: E(f"L_pad_{name}:\ns_branch {nxt}")

    def tr_addr(self, dst, t0, t1, perm, sbase):
        P = self.P
        P(f"v_bfe_u32 v{t0}, v0, 4, 1\nv_lshl_add_u32 v{t0}, v{t0}, 5, s{sbase}")
        if perm:
            P(f"v_and_b32 v{t1}, 1, v0\nv_lshl_add_u32 v{t0}, v{t1}, 4, v{t0}")
            P(f"v_bfe_u32 v{t1}, v0, 1, 1\nv_lshl_add_u32 v{t0}, v{t1}, 3, v{t0}")
        else:
            P(f"v_and_b32 v{t1}, 3, v0\nv_lshl_add_u32 v{t0}, v{t1}, 3, v{t0}")
        P(f"v_and_b32 v{t1}, 8, v0\nv_lshlrev_b32 v{t1}, 3, v{t1}\nv_xor_b32 v{t0}, v{t0}, v{t1}")
        P(f"v_and_b32 v{t1}, 44, v0\nv_lshl_add_u32 v{dst}, v{t1}, 5, v{t0}")

    def inbox_setup(self, base):
        self.P(f"s_lshl3_add_u32 s3, s{sRT}, s{sP}\ns_lshl_b32 s3, s3, 7\ns_add_u32 s{sT3}, s3, {base:#x}")
    def inbox_issue(self, E=None):
        (E or self.P)(f"s_load_dwordx16 s[20:35], s[18:19], s{sT3} glc")
    def inbox_wait(self):
        P = self.P; L = P.label("kvp")
        P(f"s_mov_b32 s{sT5}, {SPIN}\ns_mov_b32 s7, s{sNONCE}\n{L}:\ns_waitcnt lgkmcnt(0)")
        P("s_xor_b64 s[20:21], s[20:21], s[6:7]")
        for n in range(1, 5):
            P(f"s_xor_b64 {sr(20+2*n,2)}, {sr(20+2*n,2)}, s[6:7]\ns_or_b64 s[20:21], s[20:21], {sr(20+2*n,2)}")
        P(f"s_cbranch_scc0 {L}_d")
        self.inbox_issue()
        P(f"s_sub_u32 s{sT5}, s{sT5}, 1\ns_cbranch_scc0 {L}\ns_waitcnt lgkmcnt(0)\n{L}_d:")
    def group_bases(self, base):
        P = self.P
        P(f"s_mul_i32 s{sT1}, s{sP}, {PAIR}\ns_mul_i32 s3, s{sRT}, 7168\ns_add_u32 s3, s3, s{sT1}\ns_add_u32 s{sSX+4}, s3, {base:#x}")
        for n in range(4):
            P(f"s_sub_u32 s3, s{sSX+4}, {7168*(4-n)}\ns_cmp_lt_u32 s{sRT}, {4-n}\ns_cselect_b32 s{sSX+n}, s{sWS+2}, s3")

    def poll(self, addrs, vt, sbase):
        P = self.P
        L = P.label("poll")
        P(f"s_mov_b32 s{sT5}, 0\n{L}:")
        for k, (va, imm) in enumerate(addrs):
            P(f"buffer_load_dword v{vt+k}, v{va}, {sr(sWS,4)}, s{sbase} offen offset:{imm} sc1")
        P(f"s_add_u32 s{sT5}, s{sT5}, 1\ns_cmp_gt_u32 s{sT5}, {SPIN}\ns_cbranch_scc1 {L}_d\ns_waitcnt vmcnt(0)")
        for k in range(len(addrs)):
            P(f"v_cmp_ne_u32 vcc, s{sNONCE}, v{vt+k}\ns_cbranch_vccnz {L}")
        P(f"{L}_d:")

    def lds_wait(self, vflag, idx, val, vt):
        P = self.P
        L = P.label("lw")
        P(f"{L}:\nds_read_b32 v{vt}, v{vflag} offset:{4*idx}\n{bound(L + '_d')}\ns_waitcnt lgkmcnt(0)\nv_cmp_gt_u32 vcc, {val}, v{vt}\ns_cbranch_vccnz {L}\n{L}_d:")
    def lds_signal(self, vflag, idx, vt):
        self.P(f"v_mov_b32 v{vt}, 1\ns_mov_b64 exec, 1\nds_add_u32 v{vflag}, v{vt} offset:{4*idx}\ns_mov_b64 exec, -1")
    def lds_set(self, vflag, idx, vt, val):
        self.P(f"v_mov_b32 v{vt}, {val}\nds_write_b32 v{vflag}, v{vt} offset:{4*idx}")

    def scratch_addr(self, vWR, vRD, base, t):
        P = self.P
        P(f"s_lshl_b32 s3, s{sU}, 11\ns_add_u32 s3, s3, {base}")
        P(f"v_and_b32 v{t}, 31, v0\nv_lshrrev_b32 v{t+1}, 5, v0\nv_bfe_u32 v{t+2}, v0, 1, 2\nv_xor_b32 v{t+2}, v{t+2}, v{t+1}")
        P(f"v_lshl_add_u32 v{t+3}, v{t}, 6, s3\nv_lshl_add_u32 v{vWR}, v{t+2}, 4, v{t+3}\nv_xor_b32 v{vWR+1}, 32, v{vWR}")
        P(f"v_lshl_add_u32 v{vRD}, v0, 4, s3")
        P(f"v_lshrrev_b32 v{t+2}, 2, v0\nv_lshrrev_b32 v{t+3}, 3, v0\nv_xor_b32 v{t+3}, v{t+3}, v0\nv_and_b32 v{t+3}, 3, v{t+3}\nv_lshlrev_b32 v{t+3}, 4, v{t+3}")

    def out_epilogue(self, acc, pk, vwr, vrd, vg0, vg1, soff, mod):
        P = self.P
        for h in range(2):
            for i in range(4): P(f"v_cvt_pk_bf16_f32 v{pk+4*h+i}, v{acc+8*h+2*i}, v{acc+8*h+2*i+1}")
            P(f"ds_write_b128 v{vwr+h}, {vr(pk+4*h,4)}")
        P(f"ds_read_b128 {vr(pk,4)}, v{vrd}\nds_read_b128 {vr(pk+4,4)}, v{vrd} offset:1024")
        P(f"s_waitcnt lgkmcnt(1)\nbuffer_store_dwordx4 {vr(pk,4)}, v{vg0}, {sr(sOUT,4)}, {soff} offen {mod}")
        P(f"s_waitcnt lgkmcnt(0)\nbuffer_store_dwordx4 {vr(pk+4,4)}, v{vg1}, {sr(sOUT,4)}, {soff} offen {mod}")

    def prologue(self):
        P = self.P; o = self.o
        P(f"s_cmpk_ge_u32 s2, 256\ns_cbranch_scc1 L_end")
        P(f"s_load_dwordx2 {sr(sXB,2)}, s[0:1], 40\ns_load_dwordx2 {sr(sWKV,2)}, s[0:1], 48\ns_load_dwordx8 s[12:19], s[0:1], 56\ns_load_dwordx2 {sr(sXA,2)}, s[0:1], 0")
        if o["stamps"]:
            P(f"s_memrealtime {sr(sSTAMP + 2*(NSTAMP-1), 2)}")
        self.stamp(0)
        P(f"v_readfirstlane_b32 s{sWV}, v0\nv_and_b32 v0, 63, v0\ns_and_b32 s3, s2, 7\ns_lshr_b32 s7, s2, 3\ns_lshr_b32 s{sWV}, s{sWV}, 6")
        if o["mixed"]:
            P(f"s_and_b32 s{sP}, s3, 1\ns_lshl_b32 s{sP}, s{sP}, 2\ns_and_b32 s{sT1}, s7, 3\ns_add_u32 s{sP}, s{sP}, s{sT1}\ns_lshr_b32 s{sT0}, s7, 2")
            P(f"s_lshr_b32 s{sRT}, s3, 1\ns_lshl3_add_u32 s{sRT}, s{sRT}, s{sT0}\ns_lshl1_add_u32 s{sT0}, s{sT1}, s{sT0}")
        else:
            P(f"s_and_b32 s{sP}, s7, 7\ns_lshr_b32 s{sT0}, s7, 3\ns_lshl2_add_u32 s{sRT}, s3, s{sT0}")
            P({0: f"s_lshl1_add_u32 s{sT0}, s{sT0}, s{sP}", 1: f"s_mov_b32 s{sT0}, s{sP}", 2: f"s_add_u32 s{sT0}, s{sT0}, s{sP}",
               3: f"s_and_b32 s{sT0}, s{sT0}, 1\ns_lshl2_add_u32 s{sT0}, s{sT0}, s{sP}"}[o["rot"]])
        P(f"s_and_b32 s{sU}, s{sWV}, 3\ns_and_b32 s{sR}, s{sU}, 1\ns_lshr_b32 s{sCI}, s{sU}, 1\ns_lshl_b32 s{sT4}, s{sU}, 10")
        P(f"s_cmp_lt_u32 s{sWV}, 4\ns_cbranch_scc1 L_g2")
        if o["codepf"]:
            P(f"s_getpc_b64 s[{sT2}:{sT3}]\nL_pc:")
            P(f"s_lshl2_add_u32 s{sT1}, s7, s{sU}\ns_lshl_b32 s{sT1}, s{sT1}, 8\nv_lshl_add_u32 v2, v0, 2, s{sT1}\nv_min_u32 v2, L_codeend-L_pc-4, v2")
            P(f"v_mov_b32 v3, s{sT3}\nv_add_co_u32 v2, vcc, s{sT2}, v2\nv_addc_co_u32 v3, vcc, 0, v3, vcc")
            P(f"global_load_dword v47, v[2:3], off")
        if o["warm"]:
            P(f"s_lshl2_add_u32 s{sT1}, s2, s{sU}\ns_mulk_i32 s{sT1}, 1184\nv_mul_u32_u24 v2, 20, v0\ns_mov_b32 s{sWKV+2}, {448*2688:#x}\ns_mov_b32 s{sWKV+3}, 0x20000")
            P(f"s_waitcnt lgkmcnt(0)\nbuffer_load_dword v47, v2, {sr(sWKV,4)}, s{sT1} offen")
        P(f"s_branch L_g1")
        P(f"L_g2:")

    def const_stream(self):
        F = []
        vE, vB, vK, vA, vC = 12, 13, 10, 40, 42
        CC, SS = 144, 172
        F += [f"s_lshl2_add_u32 s3, s{sEG}, s{sU}", f"v_and_b32 v{vA}, 15, v0", f"v_lshl_add_u32 v{vA}, s3, 4, v{vA}", f"v_cvt_f32_u32 v{vA}, v{vA}",
              f"v_mul_f32 v{vE}, {fl(1/448)}, v{vA}", f"v_cos_f32 v{vK}, v{vE}",
              f"v_lshrrev_b32 v{vA}, 1, v0", f"v_and_b32 v{vA}, 24, v{vA}", f"v_cvt_f32_u32 v{vA}, v{vA}", f"v_mul_f32 v{vB}, v{vE}, v{vA}",
              f"v_add_f32 v{vK}, v{vK}, v{vK}", f"v_mov_b32 v{vK+1}, v{vK}"]
        for ks in range(7):
            for j in range(2): F.append(f"v_fmamk_f32 v{vA+j}, v{vE}, {fl(32*ks+j)}, v{vB}")
            for j in range(2): F += [f"v_cos_f32 v{vC+2*j}, v{vA+j}", f"v_sin_f32 v{vC+2*j+1}, v{vA+j}"]
            def cv(jj):
                return [f"v_cvt_pk_bf16_f32 v{CC+4*ks+jj}, v{vC+4*jj}, v{vC+4*jj+2}", f"v_cvt_pk_bf16_f32 v{SS+4*ks+jj}, v{vC+4*jj+1}, v{vC+4*jj+3}"]
            pend = cv(0)
            for j in range(2, 8):
                F.append(pend.pop(0))
                if self.o.get("pk", True):
                    F.append(f"v_pk_fma_f32 {vr(vC+2*j,2)}, {vr(vK,2)}, {vr(vC+2*j-2,2)}, {vr(vC+2*j-4,2)} neg_lo:[0,0,1] neg_hi:[0,0,1]")
                else:
                    F += [f"v_fma_f32 v{vC+2*j+h}, v{vK}, v{vC+2*j-2+h}, -v{vC+2*j-4+h}" for h in range(2)]
                if j & 1: pend += cv(j >> 1)
            F += pend
        F += [f"v_and_b32 v{vA}, 15, v0", f"v_lshrrev_b32 v{vA+1}, 1, v{vA}", f"v_lshlrev_b32 v{vA}, 7, v{vA}",
              f"v_add_u32 v{vA}, {L_XA}, v{vA}",
              f"v_lshrrev_b32 v{vC}, 4, v0", f"v_xor_b32 v{vC}, v{vC}, v{vA+1}",
              f"v_lshl_add_u32 v8, v{vC}, 4, v{vA}", f"v_xor_b32 v9, 64, v8", f"v_lshl_or_b32 v11, v0, 31, 1.0",
              f"v_mov_b32 v15, {L_FLAG}"]
        return F

    def g2(self):
        P = self.P; o = self.o; T = self.tail
        vx0, vx1, vw0, vw1, vq0, vq1, vxa = 1, 2, 3, 4, 5, 6, 7
        P(f"v_lshrrev_b32 v16, 3, v0\nv_lshl_add_u32 v16, s{sU}, 3, v16")
        P(f"v_lshrrev_b32 v17, 1, v16\nv_xor_b32 v17, v17, v0\nv_and_b32 v17, 7, v17\nv_lshlrev_b32 v17, 4, v17")
        P(f"v_mul_u32_u24 v{vx0}, 896, v16\nv_add_u32 v{vx0}, v{vx0}, v17\nv_add_u32 v{vx1}, {32*896}, v{vx0}")
        P(f"v_lshrrev_b32 v18, 2, v0\nv_and_b32 v18, 4, v18\nv_xor_b32 v18, v18, v0\nv_and_b32 v18, 7, v18")
        P(f"v_mul_u32_u24 v19, 2688, v16\ns_add_u32 s{sT1}, s{sP}, 7\ns_lshl_b32 s{sT1}, s{sT1}, 7")
        P(f"v_lshl_add_u32 v{vw0}, v18, 4, v19\nv_add_u32 v{vw0}, s{sT1}, v{vw0}\nv_add_u32 v{vw1}, {32*2688}, v{vw0}")
        P(f"s_sub_u32 s{sT1}, s{sT0}, 7\ns_cselect_b32 s{sROT}, s{sT0}, s{sT1}\ns_mul_i32 s{sT2}, s{sRT}, {64*896}")
        P(f"s_lshl_b32 s{sT1}, s{sROT}, 7\ns_add_u32 s{sSX}, s{sT1}, s{sT2}\ns_mul_i32 s{sSW}, s{sROT}, {64*2688}")
        P(f"s_add_u32 s{sSW+1}, s{sSW}, {64*2688}\ns_add_u32 s{sSX+1}, s{sSX}, 128\ns_cmp_eq_u32 s{sROT}, 6\ns_cselect_b32 s{sSW+1}, 0, s{sSW+1}\ns_cselect_b32 s{sSX+1}, s{sT2}, s{sSX+1}")
        P(f"s_cmp_eq_u32 s{sP}, 7\ns_cselect_b32 s{sWKV+2}, 0, {448*2688:#x}")
        P(f"s_mov_b32 s{sWKV+3}, 0x20000\ns_mov_b32 s{sXB+2}, {2048*896:#x}\ns_mov_b32 s{sXB+3}, 0x20000\ns_mov_b32 m0, s{sT4}")
        P(f"s_waitcnt lgkmcnt(0)")
        self.stamp("karg")
        vm = Cnt(P, "vmcnt", 63)
        cur = 0
        pre = []
        for t in o["pre"].split():
            q = int(t[1])
            if t[0] == "X": pre += [(("K", q), L_X(q), vx0, sXB, sSX + q, 0), (("K", q), L_X(q) + 4096, vx1, sXB, sSX + q, 0)]
            if t[0] == "W": pre += [(("K", q), L_WK(q), vw0, sWKV, sSW + q, 0), (("K", q), L_WK(q) + 4096, vw1, sWKV, sSW + q, 0)]
            if t[0] == "V": pre += [(("V", q), L_WV(q), vw0, sWKV, sSW + q, 896), (("V", q), L_WV(q) + 4096, vw1, sWKV, sSW + q, 896)]
        for tag, lds, va, sd, so, imm in pre:
            d = lds - imm - cur; cur = lds - imm
            if d: P(f"s_addk_i32 m0, {d}" if abs(d) < 32768 else f"s_add_u32 m0, s{sT4}, {cur}")
            P(f"buffer_load_dwordx4 v{va}, {sr(sd,4)}, s{so} offen" + (f" offset:{imm}" if imm else "") + " lds"); vm.add(tag)
        self.stamp("dma0")
        P(f"s_load_dword s{sNONCE}, s[18:19], {WS_E}")
        P(f"s_lshr_b32 s{sT1}, s7, 2\ns_lshl3_add_u32 s{sS2}, s3, s{sT1}\ns_and_b32 s{sEG}, s7, 3")
        for q in range(2, 7):
            P(f"s_add_u32 s{sSX+q}, s{sSX+q-1}, 128\ns_add_u32 s{sSW+q}, s{sSW+q-1}, {64*2688}\ns_cmp_eq_u32 s{sROT}, {7-q}\ns_cselect_b32 s{sSX+q}, s{sT2}, s{sSX+q}\ns_cselect_b32 s{sSW+q}, 0, s{sSW+q}")
        A = Prog()
        srd(A, sW, sWKV, 448*2688); srd(A, sWS, 18, WS_SIZE); srd(A, sWO, 12, 448*896); srd(A, sOUT, 14, 2048*1792)
        A(f"s_mov_b32 s{sXA+2}, {2048*896:#x}\ns_mov_b32 s{sXA+3}, 0x20000\ns_mul_i32 s3, s{sS2}, 896")
        A(f"v_mul_u32_u24 v{vxa}, {64*896}, v16\nv_add3_u32 v{vxa}, v{vxa}, v17, s3")
        A(f"v_min_u32 v20, 6, v18\ns_mul_i32 s3, s{sP}, 112\nv_lshl_add_u32 v{vq0}, v20, 4, v19\nv_add_u32 v{vq0}, s3, v{vq0}\nv_add_u32 v{vq1}, {32*2688}, v{vq0}")
        A(f"s_cmp_eq_u32 s{sP}, 7\ns_cselect_b32 s{sFO}, 1, 0\ns_cmp_eq_u32 s{sR}, 0\ns_cselect_b32 s{sFO}, s{sFO}, 2")
        F = A.lines + self.const_stream()
        fi = 0
        def fill(n):
            nonlocal fi
            while fi + n < len(F) and F[fi + n].startswith(("s_cselect", "s_addc")): n += 1
            for l in F[fi:fi + n]: P(l)
            fi = min(len(F), fi + n)
        nbar = 0
        items = [(t[0], int(t[1]), t.endswith("b")) for t in o["items"].split()]
        safe = {}
        for i, (kind, q, _) in enumerate(items):
            later = [k for k in range(i + 2, len(items)) if items[k][2]]
            nb = sum(it[2] for it in items[:later[0] + 1]) if later else sum(it[2] for it in items) + 1
            if o["two"]: nb = min(nb, 8)
            if kind == "K": safe[L_X(q) // SL] = nb; safe[L_WK(q) // SL] = nb
        def dma(tag, lds, va, srdn, soff):
            if tag[0] != "K" and (lds // SL) in safe: assert nbar >= safe[lds // SL], ("WAR", tag, nbar)
            P(f"s_add_u32 m0, s{sT4}, {lds}\nbuffer_load_dwordx4 v{va}, {sr(srdn,4)}, s{soff} offen lds"); vm.add(tag)
        def ld(kind, q):
            if kind == "K":
                dma(("K", q), L_X(q), vx0, sXB, sSX + q); dma(("K", q), L_WK(q), vw0, sWKV, sSW + q)
                dma(("K", q), L_X(q) + 4096, vx1, sXB, sSX + q); dma(("K", q), L_WK(q) + 4096, vw1, sWKV, sSW + q)
            elif kind == "X":
                dma(("K", q), L_X(q), vx0, sXB, sSX + q); dma(("K", q), L_X(q) + 4096, vx1, sXB, sSX + q)
            elif kind == "V":
                if q == o['pre'].count('V'): P(f"v_add_u32 v{vw0}, 896, v{vw0}\nv_add_u32 v{vw1}, 896, v{vw1}")
                dma(("V", q), L_WV(q), vw0, sWKV, sSW + q); dma(("V", q), L_WV(q) + 4096, vw1, sWKV, sSW + q)
            elif kind == "Q":
                dma(("Q", q), L_WQ(q), vq0, sW, sSW + q); dma(("Q", q), L_WQ(q) + 4096, vq1, sW, sSW + q)
            elif kind == "A":
                P(f"s_add_u32 m0, s{sT4}, {L_XA + q*(4096-128)}\nbuffer_load_dwordx4 v{vxa}, {sr(sXA,4)}, 0 offen offset:{q*128} lds"); vm.add(("A", q))
        def bar(name, tag=None):
            nonlocal nbar
            self.stamp("f" + name)
            if tag: vm.wait(tag)
            self.stamp("w" + name)
            P("s_barrier"); nbar += 1
            self.stamp("b" + name)
        def only(cond, f):
            L = P.label("sk")
            P(f"{cond}\ns_cbranch_scc0 {L}"); f(); P(f"{L}:")
        FO = [24, 25, 26, 27, 11]
        def flag_setup(E):
            E(f"s_add_u32 s3, s{sP}, s{sCI}\ns_and_b32 s3, s3, 7\ns_lshl_b32 s3, s3, 5\ns_sub_u32 s3, s3, s{sCI}\ns_lshl2_add_u32 s3, s3, {WS_KF + 4:#x}")
            for d in range(5):
                E(f"s_add_u32 s7, s{sRT}, {d}\ns_and_b32 s7, s7, 31\ns_lshl_b32 s7, s7, 10\ns_add_u32 s{FO[d]}, s7, s3\ns_add_u32 s3, s3, 8")
            E(f"s_add_u32 s4, s18, {WS_VF - WS_KF:#x}\ns_addc_u32 s5, s19, 0")
        def sflag(bases, early):
            def f():
                for bs in bases:
                    for d in range(5): P(f"s_atomic_swap s{sNONCE}, {bs}, s{FO[d]}")
            only(f"s_cmp_eq_u32 s{sFO}, {int(early)}", f)
        CC, SS, ZC, ZS, ZH = 144, 172, 64, 72, 136
        vFL = 15
        def a1(k0, k1):
            lg = Cnt(P, "lgkmcnt", 15)
            NX = 6
            def xreg(ks): return (24, 32, 40, 48, 56, 112)[ks % NX]
            def xread(ks):
                for mt in range(2):
                    P(f"ds_read_b128 {vr(xreg(ks) + 4*mt, 4)}, v{8 + (ks & 1)} offset:{(ks>>1)*4096 + mt*2048}"); lg.add(("x", ks))
            for ks in range(k0, min(k1, k0 + NX - 1)): xread(ks)
            inl = dict(t.split(":") for t in o["ina1"].split())
            for ks in range(k0, k1):
                if str(ks) in inl:
                    if "kf" in inl[str(ks)]: assert ks >= k1 + 1 - NX; lg.all()
                    run(inl[str(ks)].replace(",", " "))
                lg.wait(("x", ks))
                x = xreg(ks); z = ZH if ks >= 7 else 0; kk = 4 * (ks % 7)
                c = (lambda r: "0" if kk == 0 else r)
                P(MF16(ZC + z, x, CC + kk, c(ZC + z)))
                P(MF16(ZS + z, x, SS + kk, c(ZS + z)))
                if ks + NX - 1 < k1: xread(ks + NX - 1)
                fk = ks - o["fks"]
                if fk in (0, 1):
                    for k in range(2): P(f"ds_read_b128 {vr(96+8*fk+4*k,4)}, v134 offset:{2048*fk+1024*k}"); lg.add("F")
                P(MF16(ZC + z + 4, x + 4, CC + kk, c(ZC + z + 4)))
                P(MF16(ZS + z + 4, x + 4, SS + kk, c(ZS + z + 4)))
            lg.wait("F")
            self.stamp("a1" if k1 == 14 else "a1a")
        XR = (24, 32, 80, 88, 40, 48, 56, 112, 120, 136, 216, 224, 232, 240)
        lgx = Cnt(P, "lgkmcnt", 15)
        def xr(k0, k1):
            for ks in range(k0, k1):
                for mt in range(2):
                    P(f"ds_read_b128 {vr(XR[ks] + 4*mt, 4)}, v{8 + (ks & 1)} offset:{(ks>>1)*4096 + mt*2048}"); lgx.add(ks)
        def fr():
            for k in range(4): P(f"ds_read_b128 {vr(96+4*k,4)}, v134 offset:{1024*k}"); lgx.add("F")
        def xm(k0, k1):
            lgx.wait(k1 - 1)
            for ks in range(k0, k1):
                x = XR[ks]; z = ZH if ks >= 7 else 0; kk = 4 * (ks % 7)
                for mt in range(2):
                    for zz, cc in ((ZC, CC), (ZS, SS)):
                        d = zz + z + 4*mt
                        P(MF16(d, x + 4*mt, cc + kk, "0" if kk == 0 else d))
            if k1 == 14: self.stamp("a1")
        ZR, ZP, ZN, TA = 80, 84, 88, 40
        def lva():
            for i in range(16): P(f"v_fmac_f32 v{ZC+i}, v11, v{ZC+ZH+i}")
            for i in range(4): P(f"v_cvt_pk_bf16_f32 v{ZR+i}, v{ZC+2*i}, v{ZC+2*i+1}")
            for i in range(4): P(f"v_cvt_pk_bf16_f32 v{ZP+i}, v{ZS+2*i}, v{ZS+2*i+1}")
            for i in range(4): P(f"v_cvt_pk_bf16_f32 v{ZN+i}, -v{ZS+2*i}, -v{ZS+2*i+1}")
            for nt in range(2):
                P(MF16(TA + 8*nt, ZR, 96 + 4*nt, "0")); P(MF16(TA + 8*nt + 4, ZR, 104 + 4*nt, "0"))
            P(f"v_and_b32 v18, 15, v0\nv_lshrrev_b32 v19, 4, v0\nv_lshl_add_u32 v20, s{sU}, 2, v19\nv_and_b32 v21, 7, v0\nv_xor_b32 v20, v20, v21")
            P(f"v_lshl_add_u32 v20, v18, 4, v20\nv_lshlrev_b32 v20, 4, v20\nv_add_u32 v20, {L_TS}, v20")
        def lvb():
            for nt in range(2):
                P(MF16(TA + 8*nt, ZN, 104 + 4*nt, TA + 8*nt)); P(MF16(TA + 8*nt + 4, ZP, 96 + 4*nt, TA + 8*nt + 4))
        def lvc():
            for nt in range(2):
                for r_ in range(4): P(f"v_cvt_pk_bf16_f32 v{56+4*nt+r_}, v{TA+8*nt+r_}, v{TA+8*nt+4+r_}")
                P(f"ds_write_b128 v20, {vr(56+4*nt,4)} offset:{4096*nt}")
            self.lds_signal(vFL, 6, 21)
        vTR, vWR, vRD, vG0, vG1, vOR = 120, 122, 121, 124, 125, 126
        sOB = 10
        def out_addr():
            P = self.P
            self.scratch_addr(vWR, vRD, L_OUT, 112)
            P(f"v_mul_u32_u24 v{vG0}, 1792, v114\nv_add_u32 v{vG0}, v{vG0}, v115\nv_add_u32 v{vG1}, {16*1792}, v{vG0}")
            P(f"s_lshl_b32 s3, s{sR}, 12\nv_lshl_add_u32 v{vOR}, v112, 3, s3\nv_lshl_add_u32 v{vOR}, v113, 9, v{vOR}")
            P(f"s_lshl1_add_u32 s3, s{sRT}, s{sR}\ns_mul_i32 s3, s3, {32*1792}\ns_lshl_b32 s7, s{sP}, 7\ns_add_u32 s3, s3, s7")
            P(f"s_add_u32 s3, s3, s{sT0}\ns_add_u32 s{sOB}, s3, 896")
        vD0, vD1, vWO = 14, 135, 17
        def role_setup():
            P = self.P
            P(f"s_mul_i32 s3, s{sCI}, -512\ns_add_u32 s3, s3, 4096\nv_lshlrev_b32 v{vD0}, 4, v0\nv_add_u32 v{vD1}, s3, v{vD0}")
            P(f"s_lshl3_add_u32 s3, s{sRT}, s{sP}\ns_lshl_b32 s3, s3, 7\ns_mul_i32 s7, s{sCI}, {WS_VF - WS_KF:#x}\ns_add_u32 s3, s3, s7\ns_add_u32 s{sT3}, s3, {WS_KF:#x}")
            P(f"s_mul_i32 s{sT1}, s{sP}, {PAIR}\ns_mul_i32 s3, s{sRT}, 7168\ns_add_u32 s3, s3, s{sT1}\ns_mul_i32 s7, s{sCI}, {WS_V - WS_K:#x}\ns_add_u32 s3, s3, s7\ns_add_u32 s{sGB[4]}, s3, {WS_K:#x}")
            for n in range(4):
                P(f"s_sub_u32 s3, s{sGB[4]}, {7168*(4-n)}\ns_cmp_lt_u32 s{sRT}, {4-n}\ns_cselect_b32 s{sGB[n]}, s{sWS+2}, s3")
            P(f"s_mul_i32 s3, s{sU}, 10\nv_lshrrev_b32 v132, 1, v0\nv_add_u32 v132, s3, v132\nv_lshl_add_u32 v133, s{sRT}, 3, v132\nv_cmp_le_u32 vcc, 32, v133")
            P(f"v_mov_b32 v129, 0x3f803f80\nv_and_b32 v133, 1, v0\nv_cndmask_b32 v128, 0, v129, vcc\nv_lshlrev_b32 v133, 6, v133\nv_lshl_add_u32 v132, v132, 10, v133")
            P(f"v_mov_b32 v129, v128\nv_mov_b32 v130, v128\nv_mov_b32 v131, v128\nv_add_u32 v134, {L_F}, v{vD0}")
        def ones():
            P(f"s_mov_b64 exec, 0xfffff\nds_write_b128 v132, v[128:131] offset:{L_VT + 896}\ns_mov_b64 exec, -1")
        for f in (role_setup, lambda: flag_setup(self.P)):
            B = Prog(); self.into(B, f); F += B.lines
            if o.get("verbose"): print("filler length", len(F) - len(B.lines), len(F))
        def die_tell():
            P(f"s_getreg_b32 s4, hwreg(HW_REG_XCC_ID, 0, 4)\ns_lshl_b32 s{sT5}, s{sRT}, 7\ns_add_u32 s{sT2}, s{sT5}, {WS_XF:#x}\ns_lshl2_add_u32 s{sT5}, s{sP}, s{sT2}")
            P(f"s_add_u32 s16, s4, s{sNONCE}\ns_mov_b32 s17, s16\ns_atomic_swap s17, s[18:19], s{sT5}")
        def die_ask(): P(f"s_load_dwordx8 s[20:27], s[18:19], s{sT2} glc")
        def die_check():
            Lx = P.label("xm")
            P(f"s_mov_b32 s{sT5}, {SPIN}\n{Lx}:\ns_waitcnt lgkmcnt(0)")
            for k in range(4): P(f"s_cmp_lg_u64 {sr(20+2*k,2)}, s[16:17]\ns_cbranch_scc1 {Lx}_n")
            self.lds_set(vFL, 3, 21, 1 if o['olocal'] else 0)
            P(f"s_mov_b32 s17, {0 if o['olocal'] else WS_SIZE}\n{Lx}_e:\ns_waitcnt lgkmcnt(0)")
            T(f"{Lx}_n:\ns_sub_u32 s20, s20, s6")
            for k in range(1, 8): T(f"s_sub_u32 s{20+k}, s{20+k}, s6\ns_max_u32 s20, s20, s{20+k}")
            T(f"s_cmp_lt_u32 s20, 16\ns_cbranch_scc1 {Lx}_s\ns_load_dwordx8 s[20:27], s[18:19], s{sT2} glc\ns_sub_u32 s{sT5}, s{sT5}, 1\ns_cbranch_scc0 {Lx}\n{Lx}_s:\ns_mov_b32 s17, s{sWS+2}\ns_branch {Lx}_e")
        p7state = {}
        def run(sched, extra={}):
            for tok in sched.split():
                if tok in extra: extra[tok]()
                elif tok[0] in "KVQAX" and tok[1:].isdigit(): ld(tok[0], int(tok[1:]))
                elif tok[0] == "f" and tok != "fs": fill(len(F) if tok == "f*" else int(tok[1:]))
                elif tok[0] == "w": vm.wait((tok[1], int(tok[2:])))
                elif tok[0] == "b": bar(tok[1:], (tok[1], int(tok[2:])) if tok[1] != "S" else None)
                elif tok == "nonce": P(f"s_waitcnt lgkmcnt(0)\n{NONCE}")
                elif tok == "lg0": lgx.all()
                elif tok[:2] == "r:": xr(*map(int, tok[2:].split("-")))
                elif tok[:2] == "m:": xm(*map(int, tok[2:].split("-")))
                elif tok == "F": fr()
                elif tok == "kp1": only(f"s_cmp_eq_u32 s{sU}, 1", self.inbox_issue)
                elif tok == "oad": out_addr()
                elif tok == "fs": flag_setup(P)
                elif tok == "kf": sflag(["s[18:19]"], False)
                elif tok == "vf": sflag(["s[4:5]"], False)
                elif tok == "ef": sflag(["s[18:19]", "s[4:5]"], True)
                elif tok == "a1": a1(0, 14)
                elif tok == "a1a": a1(0, o["a1cut"])
                elif tok == "a1b": a1(o["a1cut"], 14)
                elif tok == "lva": lva()
                elif tok == "lvb": lvb()
                elif tok == "lvc": lvc()
                elif tok == "rs": role_setup()
                elif tok == "one": ones()
                elif tok == "hop":
                    if o["hops"] & 1:
                        for k, ch in enumerate(self.HOPS[:-1]): P(f"s_cmp_eq_u32 s{sU}, {k}\ns_cbranch_scc1 L_pad_{ch[0]}")
                        P(f"s_branch L_pad_{self.HOPS[-1][0]}\nL_hopret:")
                elif tok == "tl":
                    if o["touch"] & 2:
                        P(f"s_lshl_b32 s3, s2, 7\ns_add_u32 s7, s{sU}, 1\ns_lshl_b32 s7, s7, 21\ns_add_u32 s7, s7, s3\ns_load_dword s1, s[18:19], s7 glc")
                        P(f"s_lshl_b32 s7, s{sR}, 21\ns_lshl_b32 s{sT5}, s{sCI}, 15\ns_add_u32 s7, s7, s{sT5}\ns_add_u32 s7, s7, s3\ns_load_dword s0, {sr(sOUT,2)}, s7 glc")
                    if o["touch"] & 8:
                        P(f"s_lshl3_add_u32 s3, s{sRT}, s{sP}\ns_lshl_b32 s3, s3, 7\ns_lshl_b32 s7, s{sU}, 15\ns_add_u32 s3, s3, s7\ns_add_u32 s3, s3, {WS_KF:#x}\ns_load_dword s1, s[18:19], s3 glc")
                elif tok == "xt": only(f"s_cmp_eq_u32 s{sU}, 3", die_tell)
                elif tok == "xa": only(f"s_cmp_eq_u32 s{sU}, 3", die_ask)
                elif tok == "xc": only(f"s_cmp_eq_u32 s{sU}, 3", die_check)
                elif tok == "p7":
                    P(f"s_cmp_eq_u32 s{sP}, 7\ns_cbranch_scc1 L_p7")
                    p7state.update(fi=fi, q=list(vm.q))
                elif tok == "join": P("L_p7join:")
                elif tok == "page": P("@JUMPALIGN g2p1"); self.pad("g2p1"); P("L_ja_g2p1:")
                else: raise ValueError(tok)
        run(o["sched"])
        P(f"s_mov_b32 s{sLS}, 0")
        P(f"s_cmp_eq_u32 s{sU}, 3\ns_cbranch_scc1 L_roleV\ns_cmp_eq_u32 s{sU}, 2\ns_cbranch_scc1 L_roleT\ns_cmp_eq_u32 s{sU}, 0\ns_cbranch_scc1 L_roleN")
        vq_saved = list(vm.q); nb_saved = nbar
        def k_ld(n):
            for z in range(7):
                if z in (0, 4): P(f"s_mov_b32 m0, {L_KT + n*7168 + z*1024}")
                P(f"buffer_load_dwordx4 v{vD0 if z < 4 else vD1}, {sr(sWS,4)}, s{sGB[n]} offen offset:{(z&3)*1024} sc1 lds"); vm.add(("k", n))
        ex = {"kp": self.inbox_issue, "kw": lambda: (self.inbox_wait(), self.stamp("r1"))}
        for n in range(5): ex[f"k{n}"] = (lambda n=n: k_ld(n))
        ex["s1"] = lambda: (vm.wait(("k", 3)), P(f"ds_write_b32 v{vFL}, v112"), self.stamp("r2"))
        P("v_mov_b32 v112, 1\nv_mov_b32 v113, 2")
        run(o["schedK"], ex)
        vm.all(); P(f"ds_write_b32 v{vFL}, v113")
        P("s_branch L_rolesdone")
        iN = len(P.lines)
        self.pad("roleN"); P("L_roleN:"); vm.q = list(vq_saved); nbar = nb_saved
        run(" ".join(t for t in o["schedT"].split() if t not in ("ts", "tst")))
        P("s_branch L_pad_fc" if o["hops"] & 2 else "s_branch L_rolesdone")
        self.pad("roleT"); P("L_roleT:"); vm.q = list(vq_saved); nbar = nb_saved
        def t_setup():
            self.lds_wait(vFL, 6, 4, 22)
            P(f"v_xor_b32 v21, v19, v0\nv_lshlrev_b32 v21, 4, v21\nv_add_u32 v21, {L_TS}, v21\nv_xor_b32 v22, 64, v21")
            for n in range(8): P(f"ds_read_b128 {vr(24+4*n,4)}, v{21+(n&1)} offset:{1024*n}")
            P(f"v_and_b32 v23, 0x70, v{vD0}\nv_bfe_u32 v22, v0, 3, 1\nv_lshl_add_u32 v23, v22, 13, v23\nv_mul_u32_u24 v22, {TST}, v19\nv_add_u32 v23, v22, v23")
            P(f"s_lshl_b32 s{sT0}, s{sS2}, 7\ns_lshl_b32 s3, s{sEG}, 14\ns_add_u32 s{sT0}, s{sT0}, s3\ns_add_u32 s{sT0}, s{sT0}, {WS_T:#x}")
            P(f"s_lshr_b32 s7, s{sS2}, 3\ns_lshl3_add_u32 s3, s{sEG}, s7\ns_lshl_b32 s3, s3, 7\ns_and_b32 s7, s{sS2}, 7\ns_lshl2_add_u32 s3, s7, s3")
            P(f"s_add_u32 s{sT2}, s3, {WS_TF:#x}")
        def t_store():
            if o["twait"] >= 0: self.lds_wait(vFL, o["twait"], 1, 22)
            else: P("s_waitcnt lgkmcnt(0)")
            for n in range(8):
                P(f"buffer_store_dwordx4 {vr(24+4*n,4)}, v23, {sr(sWS,4)}, s{sT0} offen sc1\ns_add_u32 s{sT0}, s{sT0}, {4*TST}"); vm.add(("T", 0))
        run(o["schedT"], {"ts": t_setup, "tst": t_store})
        P(f"s_waitcnt vmcnt(0)\ns_atomic_swap s{sNONCE}, s[18:19], s{sT2}")
        self.stamp("r1")
        P("s_branch L_rolesdone")
        iV = len(P.lines)
        self.pad("roleV"); P("L_roleV:"); vm.q = list(vq_saved); nbar = nb_saved
        run(o["schedV"], {"vp": self.inbox_issue})
        if o["otouch"] == 4:
            P(f"s_mul_i32 s3, s{sRT}, {2*28672}\ns_mul_i32 s7, s{sP}, 3584\ns_add_u32 s3, s3, s7\ns_add_u32 s3, s3, {WS_O:#x}\nv_cmp_gt_u32 vcc, 28, v0\nv_lshl_add_u32 v30, v0, 7, s3")
            P(f"v_add_u32 v31, {28672 - 3584}, v30\ns_lshl_b32 s7, s{sRT}, 7\nv_cndmask_b32 v30, v31, v30, vcc\nv_cmp_gt_u32 vcc, 56, v0\ns_add_u32 s7, s7, {WS_OF:#x}\nv_mov_b32 v31, s7\nv_cndmask_b32 v30, v31, v30, vcc")
        P(f"v_mov_b32 v112, 1\nv_mov_b32 v113, 2\ns_mov_b32 exec_hi, 0x00ffffff")
        self.inbox_wait()
        self.stamp("r1")
        for n in (4, 3, 2, 1, 0):
            for z in range(8):
                P(f"s_mov_b32 m0, {L_VT + n*8192 + (z>>2)*4096 + (z&3)*128}")
                P(f"buffer_load_dwordx4 v{vD1 if z >> 2 else vD0}, {sr(sWS,4)}, s{sGB[n]} offen offset:{896*(z&3)} sc1 lds"); vm.add(("v", n))
            if n == o.get("vi", 1): P(f"ds_write_b32 v{vFL}, v112 offset:20")
        P(f"s_mov_b64 exec, -1")
        if o["otouch"] == 4:
            P(f"buffer_load_dword v29, v30, {sr(sWS,4)}, s17 offen sc1"); vm.add(("t", 0))
        P(f"v_lshrrev_b32 v{vWO}, 3, v0\nv_mul_u32_u24 v{vWO}, 896, v{vWO}\nv_lshrrev_b32 v28, 2, v0\nv_and_b32 v28, 4, v28\nv_xor_b32 v28, v28, v0\nv_and_b32 v28, 7, v28")
        P(f"s_lshl_b32 s3, s{sP}, 7\nv_lshl_add_u32 v{vWO}, v28, 4, v{vWO}\nv_add_u32 v{vWO}, s3, v{vWO}")
        P(f"s_and_b32 s{sROT}, s{sRT}, 3\ns_mul_i32 s{sROT}, s{sROT}, {o.get('worot', 2)}")
        def wo_loop(nch):
            Lw = P.label("wo")
            P(f"s_mov_b32 s{sT2}, {nch}\n{Lw}:\ns_lshl_b32 s{sT1}, s{sROT}, 13\ns_add_u32 m0, s{sT1}, {L_WQ(0)}\ns_mul_i32 s{sT0}, s{sROT}, {64*896}")
            for z in range(8):
                P(f"buffer_load_dwordx4 v{vWO}, {sr(sWO,4)}, s{sT0} offen lds")
                if z < 7: P(f"s_addk_i32 m0, 1024\ns_addk_i32 s{sT0}, 7168")
            P(f"s_add_u32 s{sROT}, s{sROT}, 1\ns_cmp_eq_u32 s{sROT}, 7\ns_cselect_b32 s{sROT}, 0, s{sROT}\ns_sub_u32 s{sT2}, s{sT2}, 1\ns_cmp_lg_u32 s{sT2}, 0\ns_cbranch_scc1 {Lw}")
            for _ in range(8 * nch): vm.add(("w", 0))
        self.lds_wait(vFL, 2, 4, 25)
        vm.wait(("v", 3)); P(f"ds_write_b32 v{vFL}, v112 offset:4"); self.stamp("r2")
        P(f"s_cmp_eq_u32 s{sP}, 7\ns_cbranch_scc1 L_v7end")
        T(f"L_v7end:\ns_waitcnt vmcnt(0)\nds_write_b32 v{vFL}, v113 offset:4\ns_branch L_g2end")
        nw = o.get("wo1", 1)
        if nw: wo_loop(nw)
        vm.wait(("v", 0)); P(f"ds_write_b32 v{vFL}, v113 offset:4"); self.stamp("r3")
        wo_loop(7 - nw)
        vm.all()
        P("s_branch L_rolesdone")
        P.lines = P.lines[:iN] + P.lines[iV:] + P.lines[iN:iV-1]
        if o.get("aligndone", False): P("@JUMPALIGN done")
        P(f"L_ja_done:\nL_rolesdone:")
        self.stamp("roled")
        P(f"s_cmp_eq_u32 s{sP}, 7\ns_cbranch_scc1 L_g2end\ns_waitcnt lgkmcnt(0)")
        P("s_barrier")
        self.stamp("bw")
        P(f"s_lshl_b32 s{sT0}, s{sCI}, 6\ns_add_u32 s3, s{sT0}, {L_WQ(0)}")
        self.tr_addr(vTR, 116, 117, True, 3)
        WF = 144
        for ks in range(28):
            for t in range(2):
                P(f"ds_read_b64_tr_b16 {vr(WF+4*ks+2*t,2)}, v{vTR} offset:{ks*2048 + t*512}")
        out_addr()
        P("s_setprio 2\ns_waitcnt lgkmcnt(0)")
        lg = Cnt(P, "lgkmcnt", 15)
        oa = LdsAddr(P, vOR)
        OF = 32
        nm = 0
        def omf():
            nonlocal nm
            q, s = nm >> 2, nm & 3
            lg.wait((q, s))
            P(MF32(64, WF + 4*nm, OF + 16*(q & 1) + 4*s, "0" if nm == 0 else 64)); nm += 1
        for q in range(7):
            P("s_barrier"); self.stamp(f"bo{q}")
            for s in range(4):
                if nm < 4 * q: omf()
                for t in range(2):
                    off = oa.off(L_O(q) + (4*s + t) * 256)
                    P(f"ds_read_b64 {vr(OF + 16*(q&1) + 4*s + 2*t, 2)}, v{vOR} offset:{off}"); lg.add((q, s))
            while nm < 4 * q + 4 - o.get("lago", 3): omf()
        while nm < 28: omf()
        self.out_epilogue(64, 24, vWR, vRD, vG0, vG1, f"s{sOB}", o["outmod"])
        self.stamp("fin")
        P(f"L_g2end:")
        self.stamp_out()
        P("s_endpgm")
        P("L_p7:")
        fi = p7state["fi"]; vm.q = p7state["q"]; nbar = 99
        run(o["sched7"])
        P("s_branch L_p7join")

    def g1(self):
        P = self.P; o = self.o; T = self.tail
        vXA, vWK, vWV, vWQ, vKS, vVS, vZ, vDA, vKR, vVR, vOS, vOP, vNON, vFL, vL, vH = 1, 5, 6, 7, 8, 10, 11, 13, 14, 15, 16, 17, 18, 19, 12, 20
        vSA, vSB = 22, 23
        QF, FM = 24, 32
        AK, AV, AQ, CD, WF, XF = 48, 64, 80, 96, 112, 144
        sG, sKO, sVO, sMODE, sFB, sOFo, sOO = sSW, sSW + 1, sSW + 2, sSW + 3, sSW + 4, sSW + 5, sSW + 6
        c = math.log2(math.e) / math.sqrt(28)
        P("L_g1:")
        self.stamp("G.in")
        P(f"s_waitcnt lgkmcnt(0)\ns_load_dword s{sNONCE}, s[18:19], {WS_E}")
        srd(P, sWS, 18, WS_SIZE); srd(P, sWO, 12, 448*896)
        P(f"s_mov_b32 s{sXA+2}, {2048*896:#x}\ns_mov_b32 s{sXA+3}, 0x20000")
        if o["warm"] > 1:
            P(f"s_lshl2_add_u32 s10, s2, s{sU}\ns_mulk_i32 s10, 392\nv_lshlrev_b32 v40, 3, v0\nbuffer_load_dword v47, v40, {sr(sWO,4)}, s10 offen")
        PF = Prog(); keep = P
        if o["pf7"] == 2: P = PF; PF._lab = 700; P(f"s_and_b32 s3, s2, 7")
        if o["pf7"]:
            Lp = P.label("pf")
            P(f"s_cmp_lg_u32 s{sP}, 7\ns_cbranch_scc1 {Lp}")
            P(f"s_and_b32 s7, s{sRT}, 3\ns_lshl2_add_u32 s7, s7, s{sU}\ns_mul_i32 s10, s7, {128*896}\ns_mul_i32 s11, s3, {8*896}\ns_add_u32 s10, s10, s11")
            P(f"v_lshlrev_b32 v40, 7, v0\ns_mov_b32 exec_hi, 0x00ffffff")
            for seg in range(2):
                P(f"buffer_load_dword v47, v40, {sr(sXA,4)}, s10 offen\ns_add_u32 s10, s10, {64*896}")
            if o["pfwo"]: P(f"s_mul_i32 s10, s7, 25088\ns_mov_b32 exec_hi, 0x0001ffff")
            for k in range(o["pfwo"]):
                P(f"buffer_load_dword v47, v40, {sr(sWO,4)}, s10 offen\ns_add_u32 s10, s10, {49*128}")
            P(f"s_mov_b64 exec, -1\n{Lp}:")
        P = keep
        if o["touch"] & 1:
            Lt = P.label("tch")
            srd(P, sOUT, 14, 2048*1792)
            P(f"s_cmp_lg_u32 s{sU}, 0\ns_cbranch_scc1 {Lt}\nv_lshlrev_b32 v40, 21, v0\nv_add_u32 v41, 0x800, v40\ns_mov_b64 exec, {(1 << NPAGE) - 1}")
            P(f"buffer_load_dword v47, v41, {sr(sWS,4)}, 0 offen\nbuffer_load_dword v47, v40, {sr(sXA,4)}, 0 offen")
            if o["touch"] & 4:
                P(f"s_mul_i32 s7, s{sRT}, 1792\nv_mul_u32_u24 v40, {1024*1792 + 512*1792}, v0\nbuffer_load_dword v47, v40, {sr(sOUT,4)}, s7 offen")
            P(f"s_mov_b64 exec, -1\n{Lt}:")
        P(f"v_and_b32 v{vL}, 31, v0\nv_lshrrev_b32 v{vH}, 5, v0\nv_bfe_u32 v42, v0, 1, 3\nv_xor_b32 v42, v42, v{vH}")
        P(f"s_lshl_b32 s3, s{sR}, 12\nv_lshl_add_u32 v43, v{vL}, 7, s3\nv_lshl_add_u32 v{vXA}, v42, 4, v43")
        for s in range(1, 4): P(f"v_xor_b32 v{vXA+s}, {32*s}, v{vXA}")
        P(f"s_lshl_b32 s{sT0}, s{sCI}, 6")
        self.tr_addr(vWK, 42, 43, True, sT0)
        P(f"s_add_u32 s{sT0}, s{sT0}, {L_WV(0)}")
        self.tr_addr(vWV, 42, 43, False, sT0)
        P(f"s_lshl1_add_u32 s{sG}, s{sRT}, s{sR}")
        P(f"s_lshl1_add_u32 s3, s{sP}, s{sCI}\ns_mov_b32 s7, {PAIR - 7*512}\nv_lshl_add_u32 v42, s3, 2, v{vH}")
        for s in range(2):
            P(f"v_mul_u32_u24 v43, 37, v42\nv_lshrrev_b32 v43, 8, v43\nv_mul_lo_u32 v43, v43, s7\nv_lshl_add_u32 v43, v42, 9, v43\nv_lshl_add_u32 v{vKS+s}, v{vL}, 4, v43")
            if s == 0: P("v_add_u32 v42, 2, v42")
        P(f"s_mul_i32 s3, s{sG}, 3584\ns_add_u32 s{sKO}, s3, {WS_K:#x}\ns_add_u32 s{sVO}, s3, {WS_V:#x}")
        P(f"v_mov_b32 v{vZ}, 0\nv_mov_b32 v{vFL}, {L_FLAG}\nv_and_b32 v42, 7, v0\nv_lshl_add_u32 v42, v42, 2, v{vFL}\nds_write_b32 v42, v{vZ}")
        self.stamp("G.set")
        lg = Cnt(P, "lgkmcnt", 15)
        xa = [LdsAddr(P, vXA + s) for s in range(4)]
        wa = {"K": LdsAddr(P, vWK), "V": LdsAddr(P, vWV, L_WV(0)), "Q": LdsAddr(P, vWQ, L_WQ(0))}
        wl = {"K": L_WK, "V": L_WV, "Q": L_WQ}
        acc = {"K": AK, "V": AV, "Q": AQ}
        def pack(a, half):
            for i in range(4): P(f"v_cvt_pk_bf16_f32 v{QF+4*half+i}, v{a+8*half+2*i}, v{a+8*half+2*i+1}")
        def proj(items, pre={}, lagn={}, post={}, mid={}):
            nm = 0
            def mf():
                nonlocal nm
                i, s = nm >> 2, nm & 3; kind, q, _ = items[i]
                lg.wait((i, s))
                w, x, a = WF + 16*(i & 1) + 4*s, XF + 16*q + 4*s, acc[kind]
                cc = "0" if (q == 0 and s == 0) else a
                P(MF32(a, x, w, cc) if kind == "V" else MF32(a, w, x, cc)); nm += 1
            for i, (kind, q, br) in enumerate(items):
                if i in pre: pre[i]()
                if br: P("s_barrier"); self.stamp(f"G.b{kind}{q}")
                for s in range(4):
                    if nm < 4 * i: mf()
                    if kind == "K":
                        off = xa[s].off(L_X(q))
                        P(f"ds_read_b128 {vr(XF + 16*q + 4*s, 4)}, v{vXA+s} offset:{off}"); lg.add((i, s))
                    for t in range(2):
                        off = wa[kind].off(wl[kind](q) + s*2048 + t*512)
                        P(f"ds_read_b64_tr_b16 {vr(WF + 16*(i&1) + 4*s + 2*t, 2)}, v{wa[kind].reg} offset:{off}"); lg.add((i, s))
                    if (i, s) in mid: mid[(i, s)]()
                while nm < 4 * i + 4 - lagn.get(i, 4): mf()
                if i in post: post[i]()
            while nm < 4 * len(items): mf()
        D = Prog()
        vE, vB, vA, vC, vS = 80, 81, 82, 84, 88
        D(f"v_and_b32 v{vA}, 15, v0\nv_lshl_add_u32 v{vA}, s{sR}, 4, v{vA}\nv_cvt_f32_u32 v{vA}, v{vA}\nv_mul_f32 v{vE}, {fl(1/32)}, v{vA}")
        D(f"v_lshrrev_b32 v{vA}, 2, v0\nv_and_b32 v{vA}, 12, v{vA}\nv_cvt_f32_u32 v{vA}, v{vA}\ns_mul_i32 s3, s{sCI}, {f2u(-0.25):#x}\nv_fma_f32 v{vB}, v{vE}, v{vA}, s3")
        for j in range(8): D(f"v_fmamk_f32 v{vC+j}, v{vE}, {fl(16*(j>>2)+(j&3))}, v{vB}")
        for j in range(8): D(f"v_cos_f32 v{vC+j}, v{vC+j}")
        for jj in range(4): D(f"v_cvt_pk_bf16_f32 v{CD+8+jj}, v{vC+2*jj}, v{vC+2*jj+1}")
        D2 = Prog()
        D2(f"v_lshl_add_u32 v{vA}, v{vL}, 5, s{sRT}\nv_cvt_f32_u32 v{vA}, v{vA}\nv_mul_f32 v{vE}, {fl(1/2048)}, v{vA}")
        D2(f"v_lshl_add_u32 v{vA}, s{sU}, 1, v{vH}\nv_lshlrev_b32 v{vA}, 3, v{vA}\nv_cvt_f32_u32 v{vA}, v{vA}\nv_mul_f32 v{vB}, v{vE}, v{vA}")
        for par in range(2):
            for jj in range(4): D2(f"v_fmamk_f32 v{vS+jj}, v{vE}, {fl(2*jj + par)}, v{vB}")
            for jj in range(4): D2(f"v_cos_f32 v{vC+jj}, v{vS+jj}")
            for jj in range(4): D2(f"v_sin_f32 v{vS+jj}, v{vS+jj}")
            for jj in range(4): D2(f"v_cvt_pk_bf16_f32 v{CD+4*par+jj}, v{vC+jj}, -v{vS+jj}")
        keep = P; P = D2; self.P = D2
        P(f"s_mul_i32 s{sT0}, s{sCI}, 48\ns_add_u32 s{sT0}, s{sT0}, {L_WQ(0)}")
        self.tr_addr(vWQ, 42, 43, True, sT0)
        P(f"s_lshl_b32 s3, s{sRT}, 7\nv_lshl_add_u32 v{vOP}, v{vL}, 2, s3")
        P(f"v_lshlrev_b32 v42, 2, v{vH}\nv_sub_u32 v21, v{vL}, v42\ns_mov_b32 s11, {fl(c)}")
        D3 = Prog(); P = D3; self.P = D3
        P(f"s_mov_b32 s3, 0x0b0b0909")
        for k in range(8):
            k0 = 8 * (k >> 1) + 2 * (k & 1)
            P(f"v_subrev_u32 v42, {k0}, v21\nv_subrev_u32 v43, {k0+1}, v21\nv_perm_b32 v{FM+k}, v43, v42, s3")
        P(f"s_mul_i32 s3, s{sR}, 3584\ns_mul_i32 s7, s{sCI}, 1536\ns_add_u32 s3, s3, s7\ns_add_u32 s3, s3, {L_KT}\nv_lshl_add_u32 v{vKR}, v0, 4, s3")
        P(f"v_cmp_gt_u32 vcc, 28, v{vL}\ns_mul_i32 s3, s{sCI}, 28\nv_add_u32 v42, s3, v{vL}\ns_lshl_b32 s7, s{sCI}, 2\ns_sub_u32 s7, 60, s7\nv_mov_b32 v43, s7")
        P(f"v_cndmask_b32 v42, v43, v42, vcc\ns_lshl_b32 s3, s{sR}, 12\nv_lshl_add_u32 v42, v42, 4, s3\nv_lshl_add_u32 v{vVR}, v{vH}, 10, v42")
        P(f"v_cmp_gt_u32 vcc, s{sCI}, v{vH}\nv_cmp_lt_u32 s[30:31], s{sCI}, v{vH}\nv_lshlrev_b32 v42, 3, v{vL}\nv_lshl_add_u32 v{vOS}, v{vH}, 8, v42\nv_mov_b32 v42, {fl(c)}")
        P(f"v_cndmask_b32 v{vSA}, v42, v{vZ}, vcc\nv_cndmask_b32 v{vSB}, v42, v{vZ}, s[30:31]")
        P = D; self.P = D
        P(f"s_lshl1_add_u32 s3, s{sP}, s{sCI}\nv_lshl_add_u32 v42, s3, 5, v{vL}\nv_mul_u32_u24 v43, 1171, v42\nv_lshrrev_b32 v43, 16, v43\ns_mov_b32 s7, {PAIR - 896}")
        P(f"v_mul_lo_u32 v43, v43, s7\nv_lshl_add_u32 v43, v42, 4, v43\nv_mul_u32_u24 v42, 896, v{vH}\nv_add_u32 v{vVS}, v42, v43")
        P(f"s_mul_i32 s3, s3, 1792\ns_mul_i32 s7, s{sG}, 28672\ns_add_u32 s3, s3, s7\ns_add_u32 s{sOO}, s3, {WS_O:#x}")
        P(f"s_lshl3_add_u32 s3, s{sRT}, s{sP}\ns_lshl2_add_u32 s3, s3, s{sU}\ns_lshl_b32 s3, s3, 2\ns_add_u32 s{sOFo}, s3, {WS_OF:#x}\ns_mov_b32 s{sFB}, 0\ns_mov_b32 s{sLS}, 0")
        P(f"v_cmp_gt_u32 vcc, 14, v0\nv_lshl_add_u32 v{vDA}, v0, 4, s{sT4}\nv_lshl_add_u32 v42, v0, 7, s{sOO}\nv_mov_b32 v43, s{sOFo}\nv_cndmask_b32 v45, v43, v42, vcc")
        P = keep; self.P = keep
        if o["two"] or o["stream"]: D.extend(D2.lines); D2.lines = []
        if o["stream"] or o.get("d3early"): D.extend(D3.lines); D3.lines = []
        A2 = Prog(); P = A2; self.P = A2
        vWR, vRD, vG0, vG1, vTA, MF_, TF_, AE = 1, 3, 4, 5, 8, 176, 144, 64
        self.scratch_addr(vWR, vRD, L_TS, 52)
        P(f"s_lshl_b32 s3, s{sR}, 10\ns_add_u32 s3, s3, s{sRT}\nv_lshl_add_u32 v56, v54, 5, s3\ns_cmp_eq_u32 s{sCI}, 1\ns_cselect_b64 vcc, -1, 0")
        for dst in (vG0, vG1):
            P(f"v_sub_u32 v57, 0, v56\nv_and_b32 v57, 2047, v57\nv_cndmask_b32 v57, v56, v57, vcc\nv_mul_u32_u24 v57, 1792, v57\nv_add_u32 v{dst}, v57, v55")
            if dst == vG0: P("v_add_u32 v56, 512, v56")
        P(f"v_and_b32 v54, 19, v0\nv_bfe_u32 v55, v0, 2, 1\nv_lshl_add_u32 v54, v55, 3, v54\nv_bfe_u32 v55, v0, 3, 1\nv_lshl_add_u32 v54, v55, 2, v54")
        P(f"v_sub_u32 v55, 32, v54\nv_cndmask_b32 v54, v54, v55, vcc\nv_lshrrev_b32 v55, 5, v54\nv_and_b32 v54, 31, v54\nv_lshlrev_b32 v54, 2, v54")
        P(f"v_lshl_add_u32 v54, v55, 13, v54\nv_lshl_add_u32 v54, v{vH}, 10, v54\nv_add_u32 v{vTA}, {L_TT}, v54\nv_add_u32 v{vTA+1}, 128, v{vTA}")
        P(f"s_lshl_b32 s3, s{sP}, 6\ns_sub_u32 s7, 832, s3\ns_cmp_eq_u32 s{sCI}, 1\ns_cselect_b32 s10, s7, s3")
        srd(P, sOUT, 14, 2048*1792)
        P = keep; self.P = keep
        n0 = o.get("g1f0", 30)
        P.extend(D.lines[:n0])
        P(f"s_cmp_eq_u32 s{sP}, 7\ns_cbranch_scc1 L_x7\ns_setprio 1")
        self.stamp("G.set2")
        def fm_write(E):
            E(f"v_add_u32 v46, {L_F}, v{vDA}\nds_write_b128 v46, {vr(CD+8,4)}")
        def otouch(E):
            E(f"v_readfirstlane_b32 s{sMODE}, v44\ns_nop 0\ns_cmp_eq_u32 s{sMODE}, 0\ns_cselect_b32 s3, s{sWS+2}, 0\nbuffer_load_dword v47, v45, {sr(sWS,4)}, s3 offen sc1")
        B7 = Prog(); B7._lab = 600
        B7("L_x7:"); B7.extend(D.lines[n0:]); B7.extend([l.replace("s11", "s9") for l in PF.lines]); B7("s_waitcnt lgkmcnt(0)\ns_barrier")
        xa7 = [LdsAddr(B7, vXA + s) for s in range(4)]
        for q in range(7):
            for s in range(4):
                off = xa7[s].off(L_X(q))
                B7(f"ds_read_b128 {vr(XF + 16*q + 4*s, 4)}, v{vXA+s} offset:{off}")
        fm_write(B7)
        B7(f"s_waitcnt lgkmcnt(0)\ns_barrier\nds_read_b32 v44, v{vFL} offset:12\n" + "s_barrier\n" * (o["sched"].split("join")[1] + o["ina1"]).count("bV") + "s_waitcnt vmcnt(0) lgkmcnt(0)")
        if o["otouch"] == 3: otouch(B7)
        B7("s_setprio 1\ns_branch L_vdone")
        T.extend(B7.lines)
        items = [(t[0], int(t[1]), t.endswith("b")) for t in o["items"].split()]
        kst = o["kst"]
        def kstore(h):
            pack(AK, h)
            P(f"buffer_store_dwordx4 {vr(QF+4*h,4)}, v{vKS+h}, {sr(sWS,4)}, s{sKO} offen sc1")
            if h: self.stamp("G.kst")
        cuts = o["g1cuts"]
        di = n0
        def slot(i):
            nonlocal di
            P.extend(D.lines[di:di + cuts.get(i, 0)]); di += cuts.get(i, 0)
        fmw = lambda: (fm_write(P), lg.add("w"))
        otc = lambda: (lg.wait("m"), otouch(P)) if o["otouch"] == 3 else None
        mrd = lambda: (P(f"ds_read_b32 v44, v{vFL} offset:12"), lg.add("m"))
        if o["two"]:
            proj(items[:7], lagn={5: 2, 6: 2}, post={i: (lambda i=i: slot(i)) for i in range(7)})
            kstore(0); kstore(1)
            P("s_barrier\ns_setprio 0")
            P.extend(D.lines[di:])
            P.extend(A2.lines)
            P("s_setprio 1")
            self.stamp("G.i1")
            proj(items[7:], pre={2: lambda: P("s_waitcnt vmcnt(0)")}, mid={(1, 1): fmw, (0, 3): mrd, (o.get('otp', 3), 1): otc})
        else:
            ks0, ks1 = o.get("kst2", ((kst, 0), (kst, 2)))
            proj(items, lagn=o.get("lagkv", {}), post={i: (lambda i=i: slot(i)) for i in range(8)}, pre={o.get("kack", -1): lambda: P("s_waitcnt vmcnt(0)")},
                 mid={ks0: lambda: kstore(0), ks1: lambda: kstore(1), (o['fmw'], 1): fmw, (9, 3): mrd, (kst + 1, 1): otc})
            assert di >= len(D.lines)
        for h in range(2):
            pack(AV, h)
            P(f"buffer_store_dwordx4 {vr(QF+4*h,4)}, v{vVS}, {sr(sWS,4)}, s{sVO} offen offset:{1792*h} sc1")
        P(f"L_vdone:")
        nt = 0
        if o["otouch"] == 1: otouch(P); nt = 1
        if o["otouch"] == 4: P(f"v_readfirstlane_b32 s{sMODE}, v44")
        self.stamp("G.vst")
        if not o["stream"]: P("s_barrier\ns_setprio 0")
        mainP = P
        if o["stream"]: P("L_g1page:"); self.pad("g1p1", True); P = Prog(); self.P = P
        P.extend(D2.lines)
        if not o["stream"]: P("L_g1page:"); self.pad("g1p1", True)
        P(f"{NONCE}\nv_mov_b32 v{vNON}, s{sNONCE}")
        P(f"ds_write_b128 v46, {vr(CD,4)} offset:{L_M - L_F}\nds_write_b128 v46, {vr(CD+4,4)} offset:{L_M - L_F + 4096}")
        def mask(E, dst, far):
            E(f"v_cvt_f32_i32 v42, v21\nv_mul_f32 v42, {fl(-BIG if far else BIG)}, v42")
            for i in range(16):
                k = 8*(i >> 2) + (i & 3)
                E(f"v_add_f32 v{dst+i}, {fl((k-1)*BIG if far else -k*BIG)}, v42")
            for i in range(16): E(f"v_min_f32 v{dst+i}, 0, v{dst+i}")
        mask(P, AV, False)
        P.extend(D3.lines)
        if not o["two"]: P.extend(A2.lines)
        vTP = (6, 10)
        P(f"v_lshrrev_b32 v42, 3, v0\nv_lshlrev_b32 v42, 7, v42\nv_and_b32 v43, 7, v0\nv_lshl_add_u32 v42, v43, 2, v42\nv_add_u32 v42, {WS_TF - WS_OF}, v42")
        P(f"s_lshr_b32 s3, s{sP}, 1\ns_and_b32 s7, s{sP}, 1\nv_lshl_add_u32 v{vTP[0]}, s3, 10, v42\nv_lshl_add_u32 v{vTP[1]}, s7, 10, v{vTP[0]}")
        P(f"s_mul_i32 s{sT3}, s{sRT}, {TST}\ns_lshl_b32 s3, s{sP}, 13\ns_add_u32 s{sT3}, s{sT3}, s3\ns_lshl2_add_u32 s3, s{sT4}, {WS_T:#x}\ns_add_u32 s{sT3}, s{sT3}, s3")
        P(f"s_mov_b32 s{sT0}, {WS_OF:#x}\ns_lshl1_add_u32 s3, s{sRT}, s{sCI}\ns_mul_i32 s{sT1}, s3, 28672\ns_lshl_b32 s3, s{sR}, 11\ns_add_u32 s{sT1}, s{sT1}, s3\ns_add_u32 s{sT1}, s{sT1}, {WS_O:#x}")
        P(f"s_lshl_b32 s{sT2}, s{sT4}, 1\nv_lshlrev_b32 v{vDA}, 4, v0")
        if o["stream"]:
            L2 = P.lines; P = mainP; self.P = P
            c0 = o["qcuts"]; cs = [sum(c0[:k]) for k in range(len(c0) + 1)]; assert cs[-1] >= len(L2)
            P.extend(L2[:cs[1]])
            proj([("Q", q, q in o["qbars"]) for q in range(7)], pre={o["vack"]: lambda: P(f"s_waitcnt vmcnt(0)")},
                 lagn=o.get("lagq", {5: 2, 6: 2}), post={k: (lambda k=k: P.extend(L2[cs[k+1]:cs[k+2]])) for k in range(len(c0) - 1)})
        else:
            P(f"s_setprio 1")
            self.stamp("G.i2")
            proj([("Q", q, q in o["qbars"]) for q in range(7)], pre={0: lambda: P(f"s_waitcnt vmcnt(3)"), o["qbars"][1]: lambda: P(f"s_waitcnt vmcnt({nt})")},
                 lagn={o["qbars"][1] - 1: 0, 5: 2, 6: 2})
        S = lambda n: AK if n == 0 else (AV if n == 8 else XF + 16 * (n - 1))
        vM = 40
        KB, VB = WF, WF + 16
        pend = []
        def kread(i):
            for s in range(2):
                pend.append((f"ds_read_b128 {vr(KB + 8*((i+2)&3) + 4*s, 4)}, v{vKR} offset:{(8-i)*3584 + s*1024}", ("k", i)))
        def vread(i):
            for s in range(2):
                pend.append((f"ds_read_b128 {vr(S(8-i) + 8*s + 4, 4)}, v{vVR} offset:{(8-i)*4096 + s*2048}", ("v", i)))
        def flagrd(idx): pend.append((f"ds_read_b32 v44, v{vFL} offset:{4*idx}", "flag"))
        def drain(n=99):
            while pend and n > 0:
                t, tag = pend.pop(0); P(t); lg.add(tag); n -= 1
        def flagchk(idx, val, name, redo=[]):
            L = P.label("fc")
            lg.wait("flag")
            P(f"v_cmp_gt_u32 vcc, {val}, v44\ns_cbranch_vccnz {L}\n{L}_b:")
            if name == "G.k2": self.pad("fc", E=T)
            T(f"{L}:\nds_read_b32 v44, v{vFL} offset:{4*idx}")
            for t in redo: T(t)
            T(bound(L + "_b"))
            T(f"s_waitcnt lgkmcnt(0)\nv_cmp_gt_u32 vcc, {val}, v44\ns_nop 0\ns_cbranch_vccnz {L}\ns_branch {L}_b")
            self.stamp(name)
        self.lds_signal(vFL, 2, 40); lg.add("sig")
        flagrd(0); kread(0); kread(1); redo = [t for t, _ in pend[1:]]; drain()
        for i in range(8):
            sc, sel = (f"v[{vSA}:{vSA+1}]", "op_sel_hi:[0,1]") if i < 2 else ((f"v[{vSA}:{vSA+1}]", "op_sel:[1,0]") if i >= 6 else ("s[10:11]", "op_sel:[1,0]"))
            P(f"v_pk_mul_f32 {vr(AQ+2*i,2)}, {sc}, {vr(AQ+2*i,2)} {sel}")
        pack(AQ, 0); pack(AQ, 1)
        self.stamp("G.q")
        Lk = P.label("kw")
        lg.wait("flag")
        P(f"v_cmp_gt_u32 vcc, 1, v44\ns_cbranch_vccz {Lk}_d\n{Lk}:\nds_read_b32 v44, v{vFL}")
        P.extend(redo); P(bound(Lk + "_d"))
        P(f"s_waitcnt lgkmcnt(4)\nv_cmp_gt_u32 vcc, 1, v44\ns_cbranch_vccnz {Lk}\n{Lk}_d:")
        self.stamp("G.ck")
        def qk(i, s, nd=2):
            n = 8 - i
            lg.wait(("k", i))
            P(MF32(S(n), KB + 8*((i+2) & 3) + 4*s, QF + 4*s, S(n) if (s == 1 or n == 8) else CD)); drain(nd)
        npv = 0
        def pv(nd=2):
            nonlocal npv
            i, s = npv >> 1, npv & 1
            assert not any(t == ("v", i) for _, t in pend)
            lg.wait(("v", i))
            P(MF32(AQ, S(8 - i) + 8*s + 4, S(8 - i) + 8*s, "0" if npv == 0 else AQ)); npv += 1; drain(nd)
        def pvl(s):
            lg.wait(("v", 8)); P(MF32(AQ, KB + 4*s, S(0) + 8*s, AQ))
        kread(2)
        qk(0, 0); qk(0, 1)
        b = S(8)
        P(f"s_mov_b32 s3, {fl(-40.0)}\nv_max_f32 v{vM}, v{b}, v{b+1}\nv_max_f32 v{vM+1}, v{b+2}, v{b+3}")
        for k in range(2, 7): P(f"v_max3_f32 v{vM+(k&1)}, v{vM+(k&1)}, v{b+2*k}, v{b+2*k+1}")
        P(f"v_max3_f32 v{vM+1}, v{vM+1}, v{b+14}, v{b+15}\nv_max_f32 v42, v{vM}, v{vM+1}\nv_max_f32 v{vM+1}, v{vM}, v{vM+1}\nv_permlane32_swap_b32 v42, v{vM+1}\nv_max_f32 v{vM}, v42, v{vM+1}")
        P(f"v_sub_f32 v{vM}, s3, v{vM}")
        for k in range(8): P(f"v_pk_mul_f32 {vr(CD+2*k,2)}, {vr(vM,2)}, 1.0 op_sel_hi:[0,0]")
        for k in range(8): P(f"v_pk_add_f32 {vr(b+2*k,2)}, {vr(vM,2)}, {vr(b+2*k,2)} op_sel_hi:[0,1]")
        flagrd(0)
        self.stamp("G.p1")
        lag = o["pvlag"]
        vnext = 0
        for i in range(9):
            b = S(8 - i)
            if i == 1: flagchk(0, 2, "G.k2"); kread(3); kread(4)
            if 2 <= i and i + 3 < 9: kread(i + 3)
            if i == lag - 1: flagchk(1, 1, "G.fv")
            if i == lag: flagchk(1, 2, "G.v2")
            if i >= lag - 1:
                lim = min(i, 3 if i == lag - 1 else 9, vnext + (3 if lag > 4 else 2))
                while vnext < lim: vread(vnext); vnext += 1
            if i == 7:
                for s in range(2): pend.append((f"ds_read_b128 {vr(KB + 4*s, 4)}, v{vVR} offset:{s*2048}", ("v", 8)))
            if i in (lag - 2, lag - 1): flagrd(1)
            mfs = []
            if i < 8: mfs += [lambda i=i: qk(i + 1, 0, 3), lambda i=i: qk(i + 1, 1, 3)]
            ready = 2 * len([t for t in range(vnext) if not any(tag == ("v", t) for _, tag in pend)])
            k_ = 0
            while npv + k_ < ready and k_ < 4: mfs.append(pv); k_ += 1
            rest = []
            if i == 8:
                mfs = [pv] * (16 - npv) + [lambda: pvl(0)]
                mfs, rest = mfs[:6], mfs[6:]
            slots = {0: [], 1: [1], 2: [0, 5], 3: [0, 5, 11], 4: [0, 4, 8, 12], 5: [0, 4, 8, 11, 14], 6: [0, 3, 6, 8, 11, 14]}[len(mfs)]
            for pos in range(16):
                P(f"v_exp_f32 v{b+pos}, v{b+pos}")
                if pos in slots: mfs.pop(0)()
                if pos in (7, 15):
                    h = pos >> 3
                    for k in range(4): P(f"v_cvt_pk_bf16_f32 v{b+8*h+k}, v{b+8*h+2*k}, v{b+8*h+2*k+1}")
                    if i == 8:
                        for k in range(4): P(f"v_and_b32 v{b+8*h+k}, v{b+8*h+k}, v{FM+4*h+k}")
            drain()
        assert vnext == 8
        for f in rest: f()
        pvl(1)
        vWR, vRD, vG0, vG1, vTA, MF_, TF_, AE = 1, 3, 4, 5, 8, 176, 144, 64
        P(f"L_onorm:\ns_cmp_eq_u32 s{sMODE}, 0")
        P(f"v_mov_b32 v40, v{AQ+12}\nv_mov_b32 v41, v{AQ+12}\nv_permlane32_swap_b32 v40, v41\nv_rcp_f32 v41, v41\ns_cbranch_scc1 L_oslow")
        def ostore(E, mod):
            for a in range(4):
                for k in range(2): E(f"v_pk_mul_f32 {vr(CD+4*a+2*k,2)}, v[40:41], {vr(AQ+4*a+2*k,2)} op_sel:[1,0]")
                for k in range(2): E(f"v_cvt_pk_bf16_f32 v{VB+2*a+k}, v{CD+4*a+2*k}, v{CD+4*a+2*k+1}")
                if a == 3: E("s_mov_b32 exec_hi, 0")
                E(f"buffer_store_dwordx2 {vr(VB+2*a,2)}, v{vOS}, {sr(sWS,4)}, s{sOO} offen offset:{512*a} {mod}")
            E("s_mov_b64 exec, -1")
        ostore(P, o["omod"])
        P("L_ostored:")
        T("L_oslow:"); ostore(T, "sc1"); T("s_branch L_ostored")
        self.stamp("G.ost")
        P(f"v_mul_f32 v40, 0, v{AQ}\nv_mul_f32 v41, 0, v{AQ+1}")
        for k in range(2, 16): P(f"v_fmac_f32 v{40+(k&1)}, 0, v{AQ+k}")
        P(f"v_cmp_u_f32 vcc, v40, v41")
        if o["force_fb"]: P("s_mov_b64 vcc, -1")
        P(f"v_add_u32 v42, {L_M}, v{vDA}\ns_cbranch_vccnz L_fallback\nL_ochecked:")
        for s in range(8): P(f"ds_read_b128 {vr(MF_+4*s,4)}, v42 offset:{1024*s}")
        P(f"s_cmp_eq_u32 s{sP}, 7\ns_cbranch_scc1 L_ja_g1p2\ns_barrier")
        P("@JUMP2 g1p2"); self.pad("g1p2"); P("L_ja_g1p2:")
        P(f"s_mul_i32 s3, s{sR}, 0x80008000\nv_mov_b32 v43, 1\ns_waitcnt lgkmcnt(0)")
        for k in range(16): P(f"v_xor_b32 v{MF_+16+k}, s3, v{MF_+16+k}")
        P(f"s_mov_b64 exec, 1\ns_cmp_eq_u32 s{sMODE}, 0\ns_waitcnt vmcnt(0)\ns_cbranch_scc1 L_ofslow")
        P(f"buffer_store_dword v{vNON}, v{vZ}, {sr(sWS,4)}, s{sOFo} offen\nL_oflagged:\ns_mov_b64 exec, -1")
        T(f"L_ofslow:\nbuffer_store_dword v{vNON}, v{vZ}, {sr(sWS,4)}, s{sOFo} offen sc1\ns_branch L_oflagged")
        self.stamp("G.oack")
        P(f"s_cmp_eq_u32 s{sP}, 7\ns_cbranch_scc1 L_epoch\ns_add_u32 m0, s{sT2}, {L_O(0)}")
        vm = Cnt(P, "vmcnt", 63)
        def tpoll():
            for k in range(2): P(f"buffer_load_dword v{45+k}, v{vTP[k]}, {sr(sWS,4)}, s{sT0} offen sc1"); vm.add("p")
        tp = o.get("tpos", 3)
        if tp < 0: tpoll()
        self.poll([(vOP, 0)], 44, sT0)
        vm.q = []
        self.stamp("G.op")
        def odma(q):
            if q: P(f"s_add_u32 m0, s{sT2}, {L_O(q)}\ns_add_u32 s{sT1}, s{sT1}, 4096")
            for k in range(2):
                P(f"buffer_load_dwordx4 v{vDA}, {sr(sWS,4)}, s{sT1} offen offset:{1024*k} sc1 lds"); vm.add(q)
            if q == tp: tpoll()
        def tdma():
            P(f"s_lshl1_add_u32 m0, s{sT2}, {L_TT}\ns_nop 0")
            for q in range(4):
                P(f"buffer_load_dwordx4 v{vDA}, {sr(sWS,4)}, s{sT3} offen offset:{1024*q} sc1 lds"); vm.add("t")
        def obar(q): vm.wait(q); P("s_barrier")
        nb = 0
        for q in range(7):
            odma(q)
            if q >= 3: obar(nb); nb += 1
        while nb <= tp: obar(nb); nb += 1
        vm.wait("p")
        P(f"v_cmp_ne_u32 vcc, s{sNONCE}, v45\nv_cmp_ne_u32 s[8:9], s{sNONCE}, v46\ns_nop 0\ns_or_b64 vcc, vcc, s[8:9]\ns_cbranch_scc1 L_tlate")
        late_q = list(vm.q)
        tdma()
        for q in range(nb, 7): obar(q)
        P(f"L_tgo:\ns_mov_b64 exec, 1\ns_waitcnt vmcnt(0)\nds_add_u32 v{vFL}, v43 offset:16\ns_mov_b64 exec, -1")
        P(f"L_tread:\nds_read_b32 v44, v{vFL} offset:16")
        lg.q = ["c"]
        def tread(s):
            for t in range(2):
                o0 = 8*(s & 3) + 2*t
                P(f"ds_read2st64_b32 {vr(TF_+4*s+2*t,2)}, v{vTA+(s>>2)} offset0:{o0} offset1:{o0+1}"); lg.add(s)
        for s in range(4): tread(s)
        P(bound("L_tread_d"))
        lg.wait("c")
        P(f"v_cmp_gt_u32 vcc, 4, v44\ns_cbranch_vccnz L_tread\nL_tread_d:")
        self.stamp("G.tl")
        for s in range(8):
            lg.wait(s); P(MF32(AE, TF_ + 4*s, MF_ + 4*s, AE if s else "0"))
            if s < 4: tread(s + 4)
        self.out_epilogue(AE, 24, vWR, vRD, vG0, vG1, "s10", o["outmod"])
        self.stamp("G.fin")
        P("L_g1end:")
        self.stamp_out()
        P("L_end:\ns_endpgm")
        P("L_tlate:")
        vm.q = late_q
        for q in range(nb, 7): obar(q)
        self.poll([(vTP[0], 0), (vTP[1], 0)], 45, sT0)
        tdma()
        P("s_branch L_tgo")
        P("L_epoch:")
        if not o.get("pft", True): P(f"s_cmp_lg_u32 s{sRT}, 31\ns_cbranch_scc1 L_g1end")
        P(f"s_cmp_lg_u32 s{sU}, 0\ns_cbranch_scc1 L_g1end\ns_sub_u32 s{sT0}, s{sT0}, 3072\ns_sub_u32 s{sT3}, s{sT3}, {7*8192}\nv_lshlrev_b32 v42, 7, v0")
        self.poll([(vTP[0], 0), (vTP[0], 1024), (vTP[0], 2048), (vTP[0], 3072)], 50, sT0)
        if o.get("pft", True):
            for k in range(8): P(f"buffer_load_dword v47, v42, {sr(sWS,4)}, s{sT3} offen sc1\ns_add_u32 s{sT3}, s{sT3}, 8192")
        P(f"s_cmp_lg_u32 s{sRT}, 31\ns_cbranch_scc1 L_g1end")
        P(f"s_mov_b64 exec, 1\nbuffer_store_dword v{vNON}, v{vZ}, {sr(sWS,4)}, 0 offen offset:{WS_E} sc1\ns_branch L_g1end")
        P("L_fallback:")
        P(f"s_cmp_lg_u32 s{sFB}, 0\ns_cbranch_scc1 L_ochecked\ns_mov_b32 s{sFB}, 1\ns_waitcnt vmcnt(0)")
        mask(P, AK, True); mask(P, AV, False)
        P(f"v_mov_b32 v{vM}, {fl(-BIG)}")
        for n in range(9):
            P(f"ds_read_b128 {vr(KB,4)}, v{vKR} offset:{n*3584}\nds_read_b128 {vr(KB+4,4)}, v{vKR} offset:{n*3584+1024}")
            if n <= 7:
                P(f"s_cmp_lt_u32 s{sG}, {8-n}\ns_cselect_b32 s3, {fl(-BIG)}, 0")
                for k in range(16): P(f"v_mov_b32 v{S(n)+k}, s3" if n else f"v_min_f32 v{S(n)+k}, s3, v{S(n)+k}")
            P("s_waitcnt lgkmcnt(0)")
            for s in range(2): P(MF32(S(n), KB + 4*s, QF + 4*s, S(n)))
            for k in range(8): P(f"v_max3_f32 v{vM}, v{vM}, v{S(n)+2*k}, v{S(n)+2*k+1}")
        P(f"v_mov_b32 v{vM+1}, v{vM}\nv_permlane32_swap_b32 v{vM}, v{vM+1}\nv_max_f32 v{vM}, v{vM}, v{vM+1}")
        for n in range(9):
            b = S(n)
            P(f"ds_read_b128 {vr(VB,4)}, v{vVR} offset:{n*4096}\nds_read_b128 {vr(VB+4,4)}, v{vVR} offset:{n*4096+2048}")
            for k in range(16): P(f"v_sub_f32 v{b+k}, v{b+k}, v{vM}")
            for k in range(16): P(f"v_exp_f32 v{b+k}, v{b+k}")
            for k in range(8): P(f"v_cvt_pk_bf16_f32 v{b+k}, v{b+2*k}, v{b+2*k+1}")
            P("s_waitcnt lgkmcnt(0)")
            for s in range(2): P(MF32(AQ, VB + 4*s, b + 4*s, "0" if (n == 0 and s == 0) else AQ))
        P("s_nop 11\ns_branch L_onorm")

    def addrs(self, lines):
        import subprocess, tempfile
        src = '.amdgcn_target "amdgcn-amd-amdhsa--gfx950"\n.text\n' + "".join(f"Z{i}:\n" + ("" if l.startswith("@") else l) + "\n" for i, l in enumerate(lines))
        with tempfile.TemporaryDirectory() as d:
            open(d + "/a.s", "w").write(src)
            subprocess.run(["clang", "-x", "assembler", "-target", "amdgcn-amd-amdhsa", "-mcpu=gfx950", "-c", d + "/a.s", "-o", d + "/a.o"], check=True)
            out = subprocess.run(["llvm-objdump", "-t", d + "/a.o"], capture_output=True, text=True).stdout
        ad = {}
        for l in out.splitlines():
            w = l.split()
            if len(w) > 3 and w[-1][0] == "Z": ad[int(w[-1][1:])] = int(w[0], 16)
        return [ad[i] for i in range(len(lines))]

    def layout(self, body):
        fill = lambda n: [f".fill {n//4}, 4, 0xbf800000"] if n else []
        on = self.o["align"]
        while True:
            k = [i for i, l in enumerate(body) if l.startswith("@JUMPALIGN")]
            if not k: break
            i = k[0]; name = body[i].split()[1]
            a = self.addrs(body)[i] + 4
            body = body[:i] + [f"s_branch L_ja_{name}"] + (fill(-a % 4096) if on else []) + body[i+1:]
        ad = self.addrs(body)
        g = body.index("L_g1:")
        if on: body = body[:g] + fill(-ad[body.index("L_g1page:")] % 4096) + body[g:]
        ad = self.addrs(body)
        i = body.index("@JUMP2 g1p2"); a = ad[i] + 4
        if a - ad[body.index("L_g1page:")] > 4096: print("warning: attention page overflows")
        body = body[:i] + [f"s_branch L_ja_g1p2"] + (fill(-a % 4096) if on else []) + body[i+1:]
        return body

    def build(self):
        self.prologue(); self.g2()
        g2 = list(self.P.lines); self.P.lines = []
        self.g1()
        fb = self.P.lines.index("L_fallback:")
        lines = g2 + self.tail.lines + self.P.lines[:fb] + ["L_codeend:"] + self.P.lines[fb:]
        body, pad = pad_hazards(lines)
        body = self.layout(body)
        hdr = open(os.path.join(os.path.dirname(os.path.abspath(__file__)), "header.txt")).read()
        if self.o["stamps"]: hdr += "; STAMPS " + self.o["stamps"] + (" MIXED" if self.o["mixed"] else "") + (" REALTIME" if self.o.get("rt") else "") + "\n"
        s = hdr + "; @launch grid=(256,1,1) block=(512,1,1) lds=163840\n"
        s += '.amdgcn_target "amdgcn-amd-amdhsa--gfx950"\n.text\n'
        if self.o["align"]: s += ".p2align 12\n.fill 832, 4, 0xbf810000\n"
        s += f".globl {NAME}\n.p2align 8\n.type {NAME},@function\n{NAME}:\n"
        s += "\n".join(("" if l.endswith(":") else "    ") + l for l in body) + "\n    s_endpgm\n"
        s += f""".section .rodata,"a"
.p2align 6
.amdhsa_kernel {NAME}
  .amdhsa_next_free_vgpr 256
  .amdhsa_next_free_sgpr 102
  .amdhsa_accum_offset 256
  .amdhsa_group_segment_fixed_size 0
  .amdhsa_kernarg_size 88
  .amdhsa_user_sgpr_count 2
  .amdhsa_user_sgpr_kernarg_segment_ptr 1
  .amdhsa_system_sgpr_workgroup_id_x 1
.end_amdhsa_kernel
"""
        return s, pad

if __name__ == "__main__":
    opts = {}
    out = sys.argv[1]
    for a in sys.argv[2:]:
        k, v = a.split("=", 1); opts[k] = v if k in STR_OPTS else eval(v)
    s, pad = Gen(**opts).build()
    open(out, "w").write(s)
    print("written", out, "pad states", pad, "lines", s.count("\n"))
```

```python
import sys, math, struct, os
sys.path.insert(0, os.path.dirname(os.path.abspath(__file__)))
from asmlib import *

NAME = "concat_heads__spectral_fnet__sliding_block__prompt_kernel"

def f2u(x): return struct.unpack("<I", struct.pack("<f", x))[0]
def fl(x): return f"{f2u(x):#x}"

WS_E = 0
WS_KF, WS_VF, WS_OF, WS_TF, WS_XF = 0x10000, 0x18000, 0x20000, 0x28000, 0x30000
WS_K, WS_V, WS_O, WS_T = 0x201000, 0x401000, 0x601000, 0x7F0000
NPAGE = 4
WS_STAMP = 0xA80000
WS_SIZE = 0xB00000
PAIR = 64 * 3584
TST = 65536 + 384
SL = 8192
def L_X(q): return 2 * q * SL
def L_WK(q): return (2 * q + 1) * SL
def L_WV(q): return (18 + q) * SL if q < 2 else (q - 2) * SL
L_XA = 14 * SL
def L_WQ(q): return (5 + q) * SL
L_KT = 13 * SL
L_VT = 0
L_F = 13 * SL
L_FLAG = 18 * SL - 64
L_TS = 12 * SL
L_OUT = 18 * SL
L_M = 19 * SL
L_TT = 15 * SL
def L_O(q): return q * SL if q < 5 else (13 + q - 5) * SL
sNONCE = 6
sXB, sW, sWKV, sXA, sWO, sOUT, sWS = 20, 48, 28, 32, 36, 40, 44
sU, sRT, sP, sS2, sEG, sR, sCI, sWV = 52, 53, 54, 55, 56, 57, 58, 59
sSX, sSW = 60, 67
sT0, sT1, sT2, sT3, sT4, sT5 = 74, 75, 76, 77, 78, 79
sROT, sFO = 8, 9
sGB = [12, 13, 14, 15, 8]
sSTAMP = 80
NSTAMP = 11
SPIN = 1 << 14
sLS = 60
def bound(lab): return f"s_add_u32 s{sLS}, s{sLS}, 1\ns_cmp_gt_u32 s{sLS}, 0x100000\ns_cbranch_scc1 {lab}"
BIG = 2.0 ** 100

class Cnt:
    def __init__(self, prog, name, maxn):
        self.p, self.name, self.maxn = prog, name, maxn
        self.q = []
    def add(self, tag=None): self.q.append(tag)
    def wait(self, tag):
        idx = [i for i, t in enumerate(self.q) if t == tag]
        if not idx: return
        n = min(len(self.q) - 1 - idx[-1], self.maxn)
        self.p(f"s_waitcnt {self.name}({n})")
        self.q = self.q[len(self.q) - n:] if n else []
    def all(self):
        self.p(f"s_waitcnt {self.name}(0)"); self.q = []

def srd(P, d, lo, nrec):
    P(f"s_mov_b64 {sr(d,2)}, {sr(lo,2)}\ns_mov_b32 s{d+2}, {nrec:#x}\ns_mov_b32 s{d+3}, 0x20000")

def MF32(d, a, b, c): return f"v_mfma_f32_32x32x16_bf16 {vr(d,16)}, {vr(a,4)}, {vr(b,4)}, {c if isinstance(c,str) else vr(c,16)}"
def MF16(d, a, b, c): return f"v_mfma_f32_16x16x32_bf16 {vr(d,4)}, {vr(a,4)}, {vr(b,4)}, {c if isinstance(c,str) else vr(c,4)}"
NONCE = f"s_mul_i32 s{sNONCE}, s{sNONCE}, 0x9E3779C1\ns_add_u32 s{sNONCE}, s{sNONCE}, 0x7FEB3560"

STR_OPTS = ("osched", "pre", "items", "stamps", "sched", "sched7", "schedT", "schedK", "schedV", "ina1", "outmod", "omod")

class Gen:
    def __init__(self, **o):
        self.o = dict(stamps=False, codepf=True, mixed=False, npre=2, outmod="nt", olocal=True, omod="nt", d3early=1, pvlag=4, pf7=True,
            otouch=3, stream=False, hops=3, align=True, force_fb=False, pfwo=0, touch=0, twait=5, a1cut=8,
            two=True, items="K0b K1b K2b K3b K4b K5b K6b V0b V1 V2b V3b V4b V5b V6b", kst=11, fmw=10, fks=8, pre="X0 W0 X1 W1", rot=0, warm=2,
            g1f0=30, g1cuts={0: 28, 1: 26, 2: 26, 3: 26, 4: 27},
            sched="f* nonce xt tl p7 K2 bK0 K3 bK1 K4 hop bK2 K5 bK3 K6 xa bK4 A0 A1 A2 A3 bK5 A4 A5 A6 bK6 V0 V1 xc page wA6 bS0 a1a bV1 V4 V5 V6 bV2 kf Q0 bV3 bV4 Q1 bV5 bV6 join "
                  "a1b lva lvb lvc",
            sched7="X2 X3 f* ef X4 X5 X6 xa A0 A1 A2 A3 A4 A5 A6 Q0 bK6 xc lg0 wA6 bS0 Q1 a1p",
            ina1="0:V2 3:V3 10:bS1,one,Q2 12:kp1", qbars=(0, 2, 4, 5, 6), pft=0,
            schedT="lvw Q3 bQ1 vf Q4 Q5 Q6 bQ3 bQ4 bQ5 bQ6 bS7 ts tst",
            schedK="Q3 bQ1 Q4 Q5 Q6 kw bQ3 k4 bQ4 k3 bQ5 k2 bQ6 k1 s1 k0 lvw",
            schedV="lvw Q3 bQ1 Q4 Q5 Q6 bQ3 bQ4 vp bQ5 bQ6 bS7")
        if o.get("merged"):
            self.o.update(two=False, items="K0b K1b K2b K3b K4b K5b K6b V0b V1b V2b V3b V4b V5b V6b", kst=11, fmw=8, fks=2, g1f0=99,
                sched="f* nonce xt p7 K2 bK0 K3 bK1 K4 bK2 K5 bK3 K6 xa bK4 V0 V1 bK5 V2 V3 bK6 V4 xc bV0 V5 bV1 V6 A0 A1 bV2 A2 A3 A4 bV3 A5 A6 bV4 Q0 bV5 bV6 "
                      "page wA6 join bS1 one a1 bQ0 kf lva lvb bQ2 vf Q4 Q5 lvc Q6",
                sched7="X2 X3 ef X4 X5 X6 xa A0 A1 A2 A3 A4 A5 A6 Q0 bK6 xc bS0 lg0 wA6",
                ina1="0:Q1,Q2 3:Q3", qbars=(0, 1, 3, 5, 6),
                schedT="bQ4 bQ5 bQ6 ts tst", schedK="kp bQ4 bQ5 bQ6 kw k4 k3 k2 k1 k0 s1", schedV="bQ4 bQ5 bQ6 vp")
        if o.get("stream"):
            self.o.update(two=False, items="K0b K1b K2b K3b K4b K5b K6b V0b V1b V2b V3b V4b V5b V6b", kst2=((8, 2), (9, 2)), kack=12, fmw=10, otouch=4, rot=1,
                g1f0=30, g1cuts={0: 24, 1: 24, 2: 24, 3: 24, 4: 24, 5: 24}, qcuts=(5, 18, 18, 18), vack=3, qbars=(0, 1, 2, 3, 4, 5, 6), ina1="",
                sched="f* nonce xt p7 K2 bK0 K3 bK1 K4 bK2 K5 bK3 K6 xa bK4 V0 V1 bK5 V2 V3 bK6 V4 xc bV0 V5 bV1 V6 bV2 A0 A1 bV3 A2 A3 bV4 A4 A5 bV5 kf A6 Q0 bV6 Q1 page Q2 join "
                      "bQ0 r:0-5 one Q3 m:0-2 bQ1 r:5-10 Q4 m:2-5 bQ2 r:10-14 F Q5 m:5-8 lg0 kp1 bQ3 vf Q6 m:8-11 bQ4 m:11-14 bQ5",
                sched7="X2 X3 ef X4 X5 X6 xa A0 A1 A2 A3 A4 A5 A6 Q0 bK6 xc bS0 Q1 Q2 lg0",
                schedT="lva bQ6 lvb lvc ts tst", schedK="kw k4 k3 bQ6 k2 k1 k0 lva lvb lvc s1", schedV="lva bQ6 vp lvb lvc")
        self.o.update(o)
        self.P = Prog()
        self.tail = Prog()

    def stamp(self, name):
        if self.o.get("jit") is not None:
            P = self.P
            if name == 0:
                P(f"s_memtime s[98:99]\ns_waitcnt lgkmcnt(0)\nv_readfirstlane_b32 s97, v0\ns_nop 0\ns_lshl_b32 s96, s2, 10\ns_add_u32 s97, s97, s96\ns_add_u32 s98, s98, s97\ns_mul_i32 s98, s98, 0x9E3779B1")
                return
            self._jl = getattr(self, "_jl", 0) + 1
            L = f"jit_{self._jl}"
            P(f"s_cselect_b32 s96, 1, 0\ns_mul_i32 s98, s98, 0x41C64E6D\ns_add_u32 s98, s98, 12345\ns_lshr_b32 s97, s98, {32 - self.o['jit']}\ns_cmp_lg_u32 s97, 0\ns_cbranch_scc1 {L}\ns_sleep {self.o.get('jitn', 24)}\n{L}:\ns_cmp_lg_u32 s96, 0")
            return
        if not self.o["stamps"]: return
        if name == 0: self.P(f"s_memtime {sr(sSTAMP, 2)}"); return
        for lst in self.o["stamps"].split("|"):
            l = lst.split(",")
            if name in l: self.P(f"{'s_memrealtime' if self.o.get('rt') else 's_memtime'} {sr(sSTAMP + 2*(1+l.index(name)), 2)}")

    def stamp_out(self):
        if not self.o["stamps"]: return
        P = self.P
        P(f"s_waitcnt vmcnt(0)\ns_memtime {sr(sSTAMP+16,2)}\ns_memrealtime {sr(sSTAMP+18,2)}\ns_waitcnt lgkmcnt(0)\ns_mov_b64 exec, 1")
        if self.o.get("enc") is not None:
            k = self.o["enc"]; L = P.label("enc"); D = P.label("encd")
            P(f"s_cmp_lg_u32 s{sWV}, {self.o['encwv']}\ns_cbranch_scc1 {D}\ns_cmp_eq_u32 s{sP}, 7\ns_cbranch_scc1 {D}")
            if self.o.get("encwg", -1) >= 0: P(f"s_cmp_lg_u32 s2, {self.o['encwg']}\ns_cbranch_scc1 {D}")
            if k == 9: P(f"s_sub_u32 s3, s{sSTAMP+18}, s{sSTAMP+20}\ns_lshl_b32 s3, s3, 2")
            else: P(f"s_sub_u32 s3, s{sSTAMP+2*k}, s{sSTAMP}\ns_lshr_b32 s3, s3, 2")
            P(f"s_min_u32 s3, s3, 50000\ns_add_u32 s3, s3, 5000")
            P(f"{L}:\ns_memrealtime s[4:5]\ns_waitcnt lgkmcnt(0)\ns_sub_u32 s4, s4, s{sSTAMP+20}\ns_cmp_lt_u32 s4, s3\ns_cbranch_scc1 {L}\n{D}:")
            return
        for i in range(NSTAMP): P(f"v_mov_b32 v{4+i}, s{sSTAMP+2*i}")
        P(f"s_getreg_b32 s3, hwreg(HW_REG_XCC_ID)\nv_mov_b32 v15, s3")
        P(f"s_lshl_b32 s3, s2, 3\ns_add_u32 s3, s3, s{sWV}\ns_lshl_b32 s3, s3, 6\ns_add_u32 s3, s3, {WS_STAMP:#x}\nv_mov_b32 v1, 0")
        for k in range(3): P(f"buffer_store_dwordx4 v[{4+4*k}:{7+4*k}], v1, {sr(sWS,4)}, s3 offen offset:{16*k}")

    def into(self, prog, f, *a):
        keep = self.P; lab = keep._lab
        self.P = prog; prog._lab = max(prog._lab, lab)
        f(*a)
        keep._lab = max(prog._lab, lab); self.P = keep

    HOPS = (("roleN",), ("g1p1",), ("roleT",), ("roleV",))
    LATE = ("fc", "g1p2")
    def pad(self, name, inline=False, E=None):
        E = E or self.P
        if name in self.LATE:
            if not self.o["hops"] & 2: return
            nxt = "L_pad_g1p2" if name == "fc" else "L_rolesdone"
        else:
            if not self.o["hops"] & 1 or name in ("done", "g2p1"): return
            nxt = "L_hopret"
            for ch in self.HOPS:
                if name in ch[:-1]: nxt = "L_pad_" + ch[ch.index(name) + 1]
        if inline: E(f"s_branch L_over_{name}\nL_pad_{name}:\ns_branch {nxt}\nL_over_{name}:")
        else: E(f"L_pad_{name}:\ns_branch {nxt}")

    def tr_addr(self, dst, t0, t1, perm, sbase):
        P = self.P
        P(f"v_bfe_u32 v{t0}, v0, 4, 1\nv_lshl_add_u32 v{t0}, v{t0}, 5, s{sbase}")
        if perm:
            P(f"v_and_b32 v{t1}, 1, v0\nv_lshl_add_u32 v{t0}, v{t1}, 4, v{t0}")
            P(f"v_bfe_u32 v{t1}, v0, 1, 1\nv_lshl_add_u32 v{t0}, v{t1}, 3, v{t0}")
        else:
            P(f"v_and_b32 v{t1}, 3, v0\nv_lshl_add_u32 v{t0}, v{t1}, 3, v{t0}")
        P(f"v_and_b32 v{t1}, 8, v0\nv_lshlrev_b32 v{t1}, 3, v{t1}\nv_xor_b32 v{t0}, v{t0}, v{t1}")
        P(f"v_and_b32 v{t1}, 44, v0\nv_lshl_add_u32 v{dst}, v{t1}, 5, v{t0}")

    def inbox_setup(self, base):
        self.P(f"s_lshl3_add_u32 s3, s{sRT}, s{sP}\ns_lshl_b32 s3, s3, 7\ns_add_u32 s{sT3}, s3, {base:#x}")
    def inbox_issue(self, E=None):
        (E or self.P)(f"s_load_dwordx16 s[20:35], s[18:19], s{sT3} glc")
    def inbox_wait(self):
        P = self.P; L = P.label("kvp")
        P(f"s_mov_b32 s{sT5}, {SPIN}\ns_mov_b32 s7, s{sNONCE}\n{L}:\ns_waitcnt lgkmcnt(0)")
        P("s_xor_b64 s[20:21], s[20:21], s[6:7]")
        for n in range(1, 5):
            P(f"s_xor_b64 {sr(20+2*n,2)}, {sr(20+2*n,2)}, s[6:7]\ns_or_b64 s[20:21], s[20:21], {sr(20+2*n,2)}")
        P(f"s_cbranch_scc0 {L}_d")
        self.inbox_issue()
        P(f"s_sub_u32 s{sT5}, s{sT5}, 1\ns_cbranch_scc0 {L}\ns_waitcnt lgkmcnt(0)\n{L}_d:")
    def group_bases(self, base):
        P = self.P
        P(f"s_mul_i32 s{sT1}, s{sP}, {PAIR}\ns_mul_i32 s3, s{sRT}, 7168\ns_add_u32 s3, s3, s{sT1}\ns_add_u32 s{sSX+4}, s3, {base:#x}")
        for n in range(4):
            P(f"s_sub_u32 s3, s{sSX+4}, {7168*(4-n)}\ns_cmp_lt_u32 s{sRT}, {4-n}\ns_cselect_b32 s{sSX+n}, s{sWS+2}, s3")

    def poll(self, addrs, vt, sbase):
        P = self.P
        L = P.label("poll")
        P(f"s_mov_b32 s{sT5}, 0\n{L}:")
        for k, (va, imm) in enumerate(addrs):
            P(f"buffer_load_dword v{vt+k}, v{va}, {sr(sWS,4)}, s{sbase} offen offset:{imm} sc1")
        P(f"s_add_u32 s{sT5}, s{sT5}, 1\ns_cmp_gt_u32 s{sT5}, {SPIN}\ns_cbranch_scc1 {L}_d\ns_waitcnt vmcnt(0)")
        for k in range(len(addrs)):
            P(f"v_cmp_ne_u32 vcc, s{sNONCE}, v{vt+k}\ns_cbranch_vccnz {L}")
        P(f"{L}_d:")

    def lds_wait(self, vflag, idx, val, vt):
        P = self.P
        L = P.label("lw")
        P(f"{L}:\nds_read_b32 v{vt}, v{vflag} offset:{4*idx}\n{bound(L + '_d')}\ns_waitcnt lgkmcnt(0)\nv_cmp_gt_u32 vcc, {val}, v{vt}\ns_cbranch_vccnz {L}\n{L}_d:")
    def lds_signal(self, vflag, idx, vt):
        self.P(f"v_mov_b32 v{vt}, 1\ns_mov_b64 exec, 1\nds_add_u32 v{vflag}, v{vt} offset:{4*idx}\ns_mov_b64 exec, -1")
    def lds_set(self, vflag, idx, vt, val):
        self.P(f"v_mov_b32 v{vt}, {val}\nds_write_b32 v{vflag}, v{vt} offset:{4*idx}")

    def scratch_addr(self, vWR, vRD, base, t):
        P = self.P
        P(f"s_lshl_b32 s3, s{sU}, 11\ns_add_u32 s3, s3, {base}")
        P(f"v_and_b32 v{t}, 31, v0\nv_lshrrev_b32 v{t+1}, 5, v0\nv_bfe_u32 v{t+2}, v0, 1, 2\nv_xor_b32 v{t+2}, v{t+2}, v{t+1}")
        P(f"v_lshl_add_u32 v{t+3}, v{t}, 6, s3\nv_lshl_add_u32 v{vWR}, v{t+2}, 4, v{t+3}\nv_xor_b32 v{vWR+1}, 32, v{vWR}")
        P(f"v_lshl_add_u32 v{vRD}, v0, 4, s3")
        P(f"v_lshrrev_b32 v{t+2}, 2, v0\nv_lshrrev_b32 v{t+3}, 3, v0\nv_xor_b32 v{t+3}, v{t+3}, v0\nv_and_b32 v{t+3}, 3, v{t+3}\nv_lshlrev_b32 v{t+3}, 4, v{t+3}")

    def out_epilogue(self, acc, pk, vwr, vrd, vg0, vg1, soff, mod):
        P = self.P
        for h in range(2):
            for i in range(4): P(f"v_cvt_pk_bf16_f32 v{pk+4*h+i}, v{acc+8*h+2*i}, v{acc+8*h+2*i+1}")
            P(f"ds_write_b128 v{vwr+h}, {vr(pk+4*h,4)}")
        P(f"ds_read_b128 {vr(pk,4)}, v{vrd}\nds_read_b128 {vr(pk+4,4)}, v{vrd} offset:1024")
        P(f"s_waitcnt lgkmcnt(1)\nbuffer_store_dwordx4 {vr(pk,4)}, v{vg0}, {sr(sOUT,4)}, {soff} offen {mod}")
        P(f"s_waitcnt lgkmcnt(0)\nbuffer_store_dwordx4 {vr(pk+4,4)}, v{vg1}, {sr(sOUT,4)}, {soff} offen {mod}")

    def prologue(self):
        P = self.P; o = self.o
        P(f"s_cmpk_ge_u32 s2, 256\ns_cbranch_scc1 L_end")
        P(f"s_load_dwordx2 {sr(sXB,2)}, s[0:1], 40\ns_load_dwordx2 {sr(sWKV,2)}, s[0:1], 48\ns_load_dwordx8 s[12:19], s[0:1], 56\ns_load_dwordx2 {sr(sXA,2)}, s[0:1], 0")
        if o["stamps"]:
            P(f"s_memrealtime {sr(sSTAMP + 2*(NSTAMP-1), 2)}")
        self.stamp(0)
        P(f"v_readfirstlane_b32 s{sWV}, v0\nv_and_b32 v0, 63, v0\ns_and_b32 s3, s2, 7\ns_lshr_b32 s7, s2, 3\ns_lshr_b32 s{sWV}, s{sWV}, 6")
        if o["mixed"]:
            P(f"s_and_b32 s{sP}, s3, 1\ns_lshl_b32 s{sP}, s{sP}, 2\ns_and_b32 s{sT1}, s7, 3\ns_add_u32 s{sP}, s{sP}, s{sT1}\ns_lshr_b32 s{sT0}, s7, 2")
            P(f"s_lshr_b32 s{sRT}, s3, 1\ns_lshl3_add_u32 s{sRT}, s{sRT}, s{sT0}\ns_lshl1_add_u32 s{sT0}, s{sT1}, s{sT0}")
        else:
            P(f"s_and_b32 s{sP}, s7, 7\ns_lshr_b32 s{sT0}, s7, 3\ns_lshl2_add_u32 s{sRT}, s3, s{sT0}")
            P({0: f"s_lshl1_add_u32 s{sT0}, s{sT0}, s{sP}", 1: f"s_mov_b32 s{sT0}, s{sP}", 2: f"s_add_u32 s{sT0}, s{sT0}, s{sP}",
               3: f"s_and_b32 s{sT0}, s{sT0}, 1\ns_lshl2_add_u32 s{sT0}, s{sT0}, s{sP}"}[o["rot"]])
        P(f"s_and_b32 s{sU}, s{sWV}, 3\ns_and_b32 s{sR}, s{sU}, 1\ns_lshr_b32 s{sCI}, s{sU}, 1\ns_lshl_b32 s{sT4}, s{sU}, 10")
        P(f"s_cmp_lt_u32 s{sWV}, 4\ns_cbranch_scc1 L_g2")
        if o["codepf"]:
            P(f"s_getpc_b64 s[{sT2}:{sT3}]\nL_pc:")
            P(f"s_lshl2_add_u32 s{sT1}, s7, s{sU}\ns_lshl_b32 s{sT1}, s{sT1}, 8\nv_lshl_add_u32 v2, v0, 2, s{sT1}\nv_min_u32 v2, L_codeend-L_pc-4, v2")
            P(f"v_mov_b32 v3, s{sT3}\nv_add_co_u32 v2, vcc, s{sT2}, v2\nv_addc_co_u32 v3, vcc, 0, v3, vcc")
            P(f"global_load_dword v47, v[2:3], off")
        if o["warm"]:
            P(f"s_lshl2_add_u32 s{sT1}, s2, s{sU}\ns_mulk_i32 s{sT1}, 1184\nv_mul_u32_u24 v2, 20, v0\ns_mov_b32 s{sWKV+2}, {448*2688:#x}\ns_mov_b32 s{sWKV+3}, 0x20000")
            P(f"s_waitcnt lgkmcnt(0)\nbuffer_load_dword v47, v2, {sr(sWKV,4)}, s{sT1} offen")
        P(f"s_branch L_g1")
        P(f"L_g2:")

    def const_stream(self):
        F = []
        vE, vB, vK, vA, vC = 12, 13, 10, 40, 42
        CC, SS = 144, 172
        F += [f"s_lshl2_add_u32 s3, s{sEG}, s{sU}", f"v_and_b32 v{vA}, 15, v0", f"v_lshl_add_u32 v{vA}, s3, 4, v{vA}", f"v_cvt_f32_u32 v{vA}, v{vA}",
              f"v_mul_f32 v{vE}, {fl(1/448)}, v{vA}", f"v_cos_f32 v{vK}, v{vE}",
              f"v_lshrrev_b32 v{vA}, 1, v0", f"v_and_b32 v{vA}, 24, v{vA}", f"v_cvt_f32_u32 v{vA}, v{vA}", f"v_mul_f32 v{vB}, v{vE}, v{vA}",
              f"v_add_f32 v{vK}, v{vK}, v{vK}", f"v_mov_b32 v{vK+1}, v{vK}"]
        for ks in range(7):
            for j in range(2): F.append(f"v_fmamk_f32 v{vA+j}, v{vE}, {fl(32*ks+j)}, v{vB}")
            for j in range(2): F += [f"v_cos_f32 v{vC+2*j}, v{vA+j}", f"v_sin_f32 v{vC+2*j+1}, v{vA+j}"]
            def cv(jj):
                return [f"v_cvt_pk_bf16_f32 v{CC+4*ks+jj}, v{vC+4*jj}, v{vC+4*jj+2}", f"v_cvt_pk_bf16_f32 v{SS+4*ks+jj}, v{vC+4*jj+1}, v{vC+4*jj+3}"]
            pend = cv(0)
            for j in range(2, 8):
                F.append(pend.pop(0))
                if self.o.get("pk", True):
                    F.append(f"v_pk_fma_f32 {vr(vC+2*j,2)}, {vr(vK,2)}, {vr(vC+2*j-2,2)}, {vr(vC+2*j-4,2)} neg_lo:[0,0,1] neg_hi:[0,0,1]")
                else:
                    F += [f"v_fma_f32 v{vC+2*j+h}, v{vK}, v{vC+2*j-2+h}, -v{vC+2*j-4+h}" for h in range(2)]
                if j & 1: pend += cv(j >> 1)
            F += pend
        F += [f"v_and_b32 v{vA}, 15, v0", f"v_lshrrev_b32 v{vA+1}, 1, v{vA}", f"v_lshlrev_b32 v{vA}, 7, v{vA}",
              f"v_add_u32 v{vA}, {L_XA}, v{vA}",
              f"v_lshrrev_b32 v{vC}, 4, v0", f"v_xor_b32 v{vC}, v{vC}, v{vA+1}",
              f"v_lshl_add_u32 v8, v{vC}, 4, v{vA}", f"v_xor_b32 v9, 64, v8", f"v_lshl_or_b32 v11, v0, 31, 1.0",
              f"v_mov_b32 v15, {L_FLAG}"]
        return F

    def g2(self):
        P = self.P; o = self.o; T = self.tail
        vx0, vx1, vw0, vw1, vq0, vq1, vxa = 1, 2, 3, 4, 5, 6, 7
        P(f"v_lshrrev_b32 v16, 3, v0\nv_lshl_add_u32 v16, s{sU}, 3, v16")
        P(f"v_lshrrev_b32 v17, 1, v16\nv_xor_b32 v17, v17, v0\nv_and_b32 v17, 7, v17\nv_lshlrev_b32 v17, 4, v17")
        P(f"v_mul_u32_u24 v{vx0}, 896, v16\nv_add_u32 v{vx0}, v{vx0}, v17\nv_add_u32 v{vx1}, {32*896}, v{vx0}")
        P(f"v_lshrrev_b32 v18, 2, v0\nv_and_b32 v18, 4, v18\nv_xor_b32 v18, v18, v0\nv_and_b32 v18, 7, v18")
        P(f"v_mul_u32_u24 v19, 2688, v16\ns_add_u32 s{sT1}, s{sP}, 7\ns_lshl_b32 s{sT1}, s{sT1}, 7")
        P(f"v_lshl_add_u32 v{vw0}, v18, 4, v19\nv_add_u32 v{vw0}, s{sT1}, v{vw0}\nv_add_u32 v{vw1}, {32*2688}, v{vw0}")
        P(f"s_sub_u32 s{sT1}, s{sT0}, 7\ns_cselect_b32 s{sROT}, s{sT0}, s{sT1}\ns_mul_i32 s{sT2}, s{sRT}, {64*896}")
        P(f"s_lshl_b32 s{sT1}, s{sROT}, 7\ns_add_u32 s{sSX}, s{sT1}, s{sT2}\ns_mul_i32 s{sSW}, s{sROT}, {64*2688}")
        P(f"s_add_u32 s{sSW+1}, s{sSW}, {64*2688}\ns_add_u32 s{sSX+1}, s{sSX}, 128\ns_cmp_eq_u32 s{sROT}, 6\ns_cselect_b32 s{sSW+1}, 0, s{sSW+1}\ns_cselect_b32 s{sSX+1}, s{sT2}, s{sSX+1}")
        P(f"s_cmp_eq_u32 s{sP}, 7\ns_cselect_b32 s{sWKV+2}, 0, {448*2688:#x}")
        P(f"s_mov_b32 s{sWKV+3}, 0x20000\ns_mov_b32 s{sXB+2}, {2048*896:#x}\ns_mov_b32 s{sXB+3}, 0x20000\ns_mov_b32 m0, s{sT4}")
        P(f"s_waitcnt lgkmcnt(0)")
        self.stamp("karg")
        vm = Cnt(P, "vmcnt", 63)
        cur = 0
        pre = []
        for t in o["pre"].split():
            q = int(t[1])
            if t[0] == "X": pre += [(("K", q), L_X(q), vx0, sXB, sSX + q, 0), (("K", q), L_X(q) + 4096, vx1, sXB, sSX + q, 0)]
            if t[0] == "W": pre += [(("K", q), L_WK(q), vw0, sWKV, sSW + q, 0), (("K", q), L_WK(q) + 4096, vw1, sWKV, sSW + q, 0)]
            if t[0] == "V": pre += [(("V", q), L_WV(q), vw0, sWKV, sSW + q, 896), (("V", q), L_WV(q) + 4096, vw1, sWKV, sSW + q, 896)]
        for tag, lds, va, sd, so, imm in pre:
            d = lds - imm - cur; cur = lds - imm
            if d: P(f"s_addk_i32 m0, {d}" if abs(d) < 32768 else f"s_add_u32 m0, s{sT4}, {cur}")
            P(f"buffer_load_dwordx4 v{va}, {sr(sd,4)}, s{so} offen" + (f" offset:{imm}" if imm else "") + " lds"); vm.add(tag)
        self.stamp("dma0")
        P(f"s_load_dword s{sNONCE}, s[18:19], {WS_E}")
        P(f"s_lshr_b32 s{sT1}, s7, 2\ns_lshl3_add_u32 s{sS2}, s3, s{sT1}\ns_and_b32 s{sEG}, s7, 3")
        for q in range(2, 7):
            P(f"s_add_u32 s{sSX+q}, s{sSX+q-1}, 128\ns_add_u32 s{sSW+q}, s{sSW+q-1}, {64*2688}\ns_cmp_eq_u32 s{sROT}, {7-q}\ns_cselect_b32 s{sSX+q}, s{sT2}, s{sSX+q}\ns_cselect_b32 s{sSW+q}, 0, s{sSW+q}")
        A = Prog()
        srd(A, sW, sWKV, 448*2688); srd(A, sWS, 18, WS_SIZE); srd(A, sWO, 12, 448*896); srd(A, sOUT, 14, 2048*1792)
        A(f"s_mov_b32 s{sXA+2}, {2048*896:#x}\ns_mov_b32 s{sXA+3}, 0x20000\ns_mul_i32 s3, s{sS2}, 896")
        A(f"v_mul_u32_u24 v{vxa}, {64*896}, v16\nv_add3_u32 v{vxa}, v{vxa}, v17, s3")
        A(f"v_min_u32 v20, 6, v18\ns_mul_i32 s3, s{sP}, 112\nv_lshl_add_u32 v{vq0}, v20, 4, v19\nv_add_u32 v{vq0}, s3, v{vq0}\nv_add_u32 v{vq1}, {32*2688}, v{vq0}")
        A(f"s_cmp_eq_u32 s{sP}, 7\ns_cselect_b32 s{sFO}, 1, 0\ns_cmp_eq_u32 s{sR}, 0\ns_cselect_b32 s{sFO}, s{sFO}, 2")
        F = A.lines + self.const_stream()
        fi = 0
        def fill(n):
            nonlocal fi
            while fi + n < len(F) and F[fi + n].startswith(("s_cselect", "s_addc")): n += 1
            for l in F[fi:fi + n]: P(l)
            fi = min(len(F), fi + n)
        nbar = 0
        items = [(t[0], int(t[1]), t.endswith("b")) for t in o["items"].split()]
        safe = {}
        for i, (kind, q, _) in enumerate(items):
            later = [k for k in range(i + 2, len(items)) if items[k][2]]
            nb = sum(it[2] for it in items[:later[0] + 1]) if later else sum(it[2] for it in items) + 1
            if o["two"]: nb = min(nb, 8)
            if kind == "K": safe[L_X(q) // SL] = nb; safe[L_WK(q) // SL] = nb
        def dma(tag, lds, va, srdn, soff):
            if tag[0] != "K" and (lds // SL) in safe: assert nbar >= safe[lds // SL], ("WAR", tag, nbar)
            P(f"s_add_u32 m0, s{sT4}, {lds}\nbuffer_load_dwordx4 v{va}, {sr(srdn,4)}, s{soff} offen lds"); vm.add(tag)
        def ld(kind, q):
            if kind == "K":
                dma(("K", q), L_X(q), vx0, sXB, sSX + q); dma(("K", q), L_WK(q), vw0, sWKV, sSW + q)
                dma(("K", q), L_X(q) + 4096, vx1, sXB, sSX + q); dma(("K", q), L_WK(q) + 4096, vw1, sWKV, sSW + q)
            elif kind == "X":
                dma(("K", q), L_X(q), vx0, sXB, sSX + q); dma(("K", q), L_X(q) + 4096, vx1, sXB, sSX + q)
            elif kind == "V":
                if q == o['pre'].count('V'): P(f"v_add_u32 v{vw0}, 896, v{vw0}\nv_add_u32 v{vw1}, 896, v{vw1}")
                dma(("V", q), L_WV(q), vw0, sWKV, sSW + q); dma(("V", q), L_WV(q) + 4096, vw1, sWKV, sSW + q)
            elif kind == "Q":
                dma(("Q", q), L_WQ(q), vq0, sW, sSW + q); dma(("Q", q), L_WQ(q) + 4096, vq1, sW, sSW + q)
            elif kind == "A":
                P(f"s_add_u32 m0, s{sT4}, {L_XA + q*(4096-128)}\nbuffer_load_dwordx4 v{vxa}, {sr(sXA,4)}, 0 offen offset:{q*128} lds"); vm.add(("A", q))
        def bar(name, tag=None):
            nonlocal nbar
            self.stamp("f" + name)
            if tag: vm.wait(tag)
            self.stamp("w" + name)
            P("s_barrier"); nbar += 1
            self.stamp("b" + name)
        def only(cond, f):
            L = P.label("sk")
            P(f"{cond}\ns_cbranch_scc0 {L}"); f(); P(f"{L}:")
        FO = [24, 25, 26, 27, 11]
        def flag_setup(E):
            E(f"s_add_u32 s3, s{sP}, s{sCI}\ns_and_b32 s3, s3, 7\ns_lshl_b32 s3, s3, 5\ns_sub_u32 s3, s3, s{sCI}\ns_lshl2_add_u32 s3, s3, {WS_KF + 4:#x}")
            for d in range(5):
                E(f"s_add_u32 s7, s{sRT}, {d}\ns_and_b32 s7, s7, 31\ns_lshl_b32 s7, s7, 10\ns_add_u32 s{FO[d]}, s7, s3\ns_add_u32 s3, s3, 8")
            E(f"s_add_u32 s4, s18, {WS_VF - WS_KF:#x}\ns_addc_u32 s5, s19, 0")
        def sflag(bases, early):
            def f():
                for bs in bases:
                    for d in range(5): P(f"s_atomic_swap s{sNONCE}, {bs}, s{FO[d]}")
            only(f"s_cmp_eq_u32 s{sFO}, {int(early)}", f)
        CC, SS, ZC, ZS, ZH = 144, 172, 64, 72, 136
        vFL = 15
        def a1(k0, k1, ina=None):
            lg = Cnt(P, "lgkmcnt", 15)
            NX = 6
            def xreg(ks): return (24, 32, 40, 48, 56, 112)[ks % NX]
            def xread(ks):
                for mt in range(2):
                    P(f"ds_read_b128 {vr(xreg(ks) + 4*mt, 4)}, v{8 + (ks & 1)} offset:{(ks>>1)*4096 + mt*2048}"); lg.add(("x", ks))
            for ks in range(k0, min(k1, k0 + NX - 1)): xread(ks)
            inl = dict(t.split(":") for t in (o["ina1"] if ina is None else ina).split())
            for ks in range(k0, k1):
                if str(ks) in inl:
                    if "kf" in inl[str(ks)] or "kp1" in inl[str(ks)]: assert ks >= k1 + 1 - NX; lg.all()
                    run(inl[str(ks)].replace(",", " "))
                lg.wait(("x", ks))
                x = xreg(ks); z = ZH if ks >= 7 else 0; kk = 4 * (ks % 7)
                c = (lambda r: "0" if kk == 0 else r)
                P(MF16(ZC + z, x, CC + kk, c(ZC + z)))
                P(MF16(ZS + z, x, SS + kk, c(ZS + z)))
                if ks + NX - 1 < k1: xread(ks + NX - 1)
                fk = ks - o["fks"]
                if fk in (0, 1):
                    for k in range(2): P(f"ds_read_b128 {vr(96+8*fk+4*k,4)}, v134 offset:{2048*fk+1024*k}"); lg.add("F")
                P(MF16(ZC + z + 4, x + 4, CC + kk, c(ZC + z + 4)))
                P(MF16(ZS + z + 4, x + 4, SS + kk, c(ZS + z + 4)))
            lg.wait("F")
            self.stamp("a1" if k1 == 14 else "a1a")
        XR = (24, 32, 80, 88, 40, 48, 56, 112, 120, 136, 216, 224, 232, 240)
        lgx = Cnt(P, "lgkmcnt", 15)
        def xr(k0, k1):
            for ks in range(k0, k1):
                for mt in range(2):
                    P(f"ds_read_b128 {vr(XR[ks] + 4*mt, 4)}, v{8 + (ks & 1)} offset:{(ks>>1)*4096 + mt*2048}"); lgx.add(ks)
        def fr():
            for k in range(4): P(f"ds_read_b128 {vr(96+4*k,4)}, v134 offset:{1024*k}"); lgx.add("F")
        def xm(k0, k1):
            lgx.wait(k1 - 1)
            for ks in range(k0, k1):
                x = XR[ks]; z = ZH if ks >= 7 else 0; kk = 4 * (ks % 7)
                for mt in range(2):
                    for zz, cc in ((ZC, CC), (ZS, SS)):
                        d = zz + z + 4*mt
                        P(MF16(d, x + 4*mt, cc + kk, "0" if kk == 0 else d))
            if k1 == 14: self.stamp("a1")
        ZR, ZP, ZN, TA = 80, 84, 88, 40
        def lva():
            for i in range(16): P(f"v_fmac_f32 v{ZC+i}, v11, v{ZC+ZH+i}")
            for i in range(4): P(f"v_cvt_pk_bf16_f32 v{ZR+i}, v{ZC+2*i}, v{ZC+2*i+1}")
            for i in range(4): P(f"v_cvt_pk_bf16_f32 v{ZP+i}, v{ZS+2*i}, v{ZS+2*i+1}")
            for i in range(4): P(f"v_cvt_pk_bf16_f32 v{ZN+i}, -v{ZS+2*i}, -v{ZS+2*i+1}")
            for nt in range(2):
                P(MF16(TA + 8*nt, ZR, 96 + 4*nt, "0")); P(MF16(TA + 8*nt + 4, ZR, 104 + 4*nt, "0"))
            P(f"v_and_b32 v18, 15, v0\nv_lshrrev_b32 v19, 4, v0\nv_lshl_add_u32 v20, s{sU}, 2, v19\nv_and_b32 v21, 7, v0\nv_xor_b32 v20, v20, v21")
            P(f"v_lshl_add_u32 v20, v18, 4, v20\nv_lshlrev_b32 v20, 4, v20\nv_add_u32 v20, {L_TS}, v20")
        def lvb():
            for nt in range(2):
                P(MF16(TA + 8*nt, ZN, 104 + 4*nt, TA + 8*nt)); P(MF16(TA + 8*nt + 4, ZP, 96 + 4*nt, TA + 8*nt + 4))
        def lvc():
            for nt in range(2):
                for r_ in range(4): P(f"v_cvt_pk_bf16_f32 v{56+4*nt+r_}, v{TA+8*nt+r_}, v{TA+8*nt+4+r_}")
        def lvw():
            for nt in range(2): P(f"ds_write_b128 v20, {vr(56+4*nt,4)} offset:{4096*nt}")
            self.lds_signal(vFL, 6, 21)
        vTR, vWR, vRD, vG0, vG1, vOR = 120, 122, 121, 124, 125, 126
        sOB = 10
        def out_addr():
            P = self.P
            self.scratch_addr(vWR, vRD, L_OUT, 112)
            P(f"v_mul_u32_u24 v{vG0}, 1792, v114\nv_add_u32 v{vG0}, v{vG0}, v115\nv_add_u32 v{vG1}, {16*1792}, v{vG0}")
            P(f"s_lshl_b32 s3, s{sR}, 12\nv_lshl_add_u32 v{vOR}, v112, 3, s3\nv_lshl_add_u32 v{vOR}, v113, 9, v{vOR}")
            P(f"s_lshl1_add_u32 s3, s{sRT}, s{sR}\ns_mul_i32 s3, s3, {32*1792}\ns_lshl_b32 s7, s{sP}, 7\ns_add_u32 s3, s3, s7")
            P(f"s_add_u32 s3, s3, s{sT0}\ns_add_u32 s{sOB}, s3, 896")
        vD0, vD1, vWO = 14, 135, 17
        def role_setup():
            P = self.P
            P(f"s_mul_i32 s3, s{sCI}, -512\ns_add_u32 s3, s3, 4096\nv_lshlrev_b32 v{vD0}, 4, v0\nv_add_u32 v{vD1}, s3, v{vD0}")
            P(f"s_lshl3_add_u32 s3, s{sRT}, s{sP}\ns_lshl_b32 s3, s3, 7\ns_mul_i32 s7, s{sCI}, {WS_VF - WS_KF:#x}\ns_add_u32 s3, s3, s7\ns_add_u32 s{sT3}, s3, {WS_KF:#x}")
            P(f"s_mul_i32 s{sT1}, s{sP}, {PAIR}\ns_mul_i32 s3, s{sRT}, 7168\ns_add_u32 s3, s3, s{sT1}\ns_mul_i32 s7, s{sCI}, {WS_V - WS_K:#x}\ns_add_u32 s3, s3, s7\ns_add_u32 s{sGB[4]}, s3, {WS_K:#x}")
            for n in range(4):
                P(f"s_sub_u32 s3, s{sGB[4]}, {7168*(4-n)}\ns_cmp_lt_u32 s{sRT}, {4-n}\ns_cselect_b32 s{sGB[n]}, s{sWS+2}, s3")
            P(f"s_mul_i32 s3, s{sU}, 10\nv_lshrrev_b32 v132, 1, v0\nv_add_u32 v132, s3, v132\nv_lshl_add_u32 v133, s{sRT}, 3, v132\nv_cmp_le_u32 vcc, 32, v133")
            P(f"v_mov_b32 v129, 0x3f803f80\nv_and_b32 v133, 1, v0\nv_cndmask_b32 v128, 0, v129, vcc\nv_lshlrev_b32 v133, 6, v133\nv_lshl_add_u32 v132, v132, 10, v133")
            P(f"v_mov_b32 v129, v128\nv_mov_b32 v130, v128\nv_mov_b32 v131, v128\nv_add_u32 v134, {L_F}, v{vD0}")
        def ones():
            P(f"s_mov_b64 exec, 0xfffff\nds_write_b128 v132, v[128:131] offset:{L_VT + 896}\ns_mov_b64 exec, -1")
        for f in (role_setup, lambda: flag_setup(self.P)):
            B = Prog(); self.into(B, f); F += B.lines
            if o.get("verbose"): print("filler length", len(F) - len(B.lines), len(F))
        def die_tell():
            P(f"s_getreg_b32 s4, hwreg(HW_REG_XCC_ID, 0, 4)\ns_lshl_b32 s{sT5}, s{sRT}, 7\ns_add_u32 s{sT2}, s{sT5}, {WS_XF:#x}\ns_lshl2_add_u32 s{sT5}, s{sP}, s{sT2}")
            P(f"s_add_u32 s16, s4, s{sNONCE}\ns_mov_b32 s17, s16\ns_atomic_swap s17, s[18:19], s{sT5}")
        def die_ask(): P(f"s_load_dwordx8 s[20:27], s[18:19], s{sT2} glc")
        def die_check():
            Lx = P.label("xm")
            P(f"s_mov_b32 s{sT5}, {SPIN}\n{Lx}:\ns_waitcnt lgkmcnt(0)")
            for k in range(4): P(f"s_cmp_lg_u64 {sr(20+2*k,2)}, s[16:17]\ns_cbranch_scc1 {Lx}_n")
            self.lds_set(vFL, 3, 21, 1 if o['olocal'] else 0)
            P(f"s_mov_b32 s17, {0 if o['olocal'] else WS_SIZE}\n{Lx}_e:\ns_waitcnt lgkmcnt(0)")
            T(f"{Lx}_n:\ns_sub_u32 s20, s20, s6")
            for k in range(1, 8): T(f"s_sub_u32 s{20+k}, s{20+k}, s6\ns_max_u32 s20, s20, s{20+k}")
            T(f"s_cmp_lt_u32 s20, 16\ns_cbranch_scc1 {Lx}_s\ns_load_dwordx8 s[20:27], s[18:19], s{sT2} glc\ns_sub_u32 s{sT5}, s{sT5}, 1\ns_cbranch_scc0 {Lx}\n{Lx}_s:\ns_mov_b32 s17, s{sWS+2}\ns_branch {Lx}_e")
        p7state = {}
        def run(sched, extra={}):
            for tok in sched.split():
                if tok in extra: extra[tok]()
                elif tok[0] in "KVQAX" and tok[1:].isdigit(): ld(tok[0], int(tok[1:]))
                elif tok[0] == "f" and tok != "fs": fill(len(F) if tok == "f*" else int(tok[1:]))
                elif tok[0] == "w": vm.wait((tok[1], int(tok[2:])))
                elif tok[0] == "b": bar(tok[1:], (tok[1], int(tok[2:])) if tok[1] != "S" else None)
                elif tok == "nonce": P(f"s_waitcnt lgkmcnt(0)\n{NONCE}")
                elif tok == "lg0": lgx.all()
                elif tok[:2] == "r:": xr(*map(int, tok[2:].split("-")))
                elif tok[:2] == "m:": xm(*map(int, tok[2:].split("-")))
                elif tok == "F": fr()
                elif tok == "kp1": only(f"s_cmp_eq_u32 s{sU}, 1", self.inbox_issue)
                elif tok == "oad": out_addr()
                elif tok == "fs": flag_setup(P)
                elif tok == "kf": sflag(["s[18:19]"], False)
                elif tok == "vf": sflag(["s[4:5]"], False)
                elif tok == "ef": sflag(["s[18:19]", "s[4:5]"], True)
                elif tok == "a1": a1(0, 14)
                elif tok == "a1a": a1(0, o["a1cut"])
                elif tok == "a1b": a1(o["a1cut"], 14)
                elif tok == "lva": lva()
                elif tok == "lvb": lvb()
                elif tok == "lvc": lvc()
                elif tok == "lvw": lvw()
                elif tok == "a1p": a1(0, o["a1cut"], "")
                elif tok == "rs": role_setup()
                elif tok == "one": ones()
                elif tok == "hop":
                    if o["hops"] & 1:
                        for k, ch in enumerate(self.HOPS[:-1]): P(f"s_cmp_eq_u32 s{sU}, {k}\ns_cbranch_scc1 L_pad_{ch[0]}")
                        P(f"s_branch L_pad_{self.HOPS[-1][0]}\nL_hopret:")
                elif tok == "tl":
                    if o["touch"] & 2:
                        P(f"s_lshl_b32 s3, s2, 7\ns_add_u32 s7, s{sU}, 1\ns_lshl_b32 s7, s7, 21\ns_add_u32 s7, s7, s3\ns_load_dword s1, s[18:19], s7 glc")
                        P(f"s_lshl_b32 s7, s{sR}, 21\ns_lshl_b32 s{sT5}, s{sCI}, 15\ns_add_u32 s7, s7, s{sT5}\ns_add_u32 s7, s7, s3\ns_load_dword s0, {sr(sOUT,2)}, s7 glc")
                    if o["touch"] & 8:
                        P(f"s_lshl3_add_u32 s3, s{sRT}, s{sP}\ns_lshl_b32 s3, s3, 7\ns_lshl_b32 s7, s{sU}, 15\ns_add_u32 s3, s3, s7\ns_add_u32 s3, s3, {WS_KF:#x}\ns_load_dword s1, s[18:19], s3 glc")
                elif tok == "xt": only(f"s_cmp_eq_u32 s{sU}, 3", die_tell)
                elif tok == "xa": only(f"s_cmp_eq_u32 s{sU}, 3", die_ask)
                elif tok == "xc": only(f"s_cmp_eq_u32 s{sU}, 3", die_check)
                elif tok == "p7":
                    P(f"s_cmp_eq_u32 s{sP}, 7\ns_cbranch_scc1 L_p7")
                    p7state.update(fi=fi, q=list(vm.q))
                elif tok == "join": P("L_p7join:")
                elif tok == "page": P("@JUMPALIGN g2p1"); self.pad("g2p1"); P("L_ja_g2p1:")
                else: raise ValueError(tok)
        run(o["sched"])
        P(f"s_mov_b32 s{sLS}, 0")
        P(f"s_cmp_eq_u32 s{sU}, 3\ns_cbranch_scc1 L_roleV\ns_cmp_eq_u32 s{sU}, 2\ns_cbranch_scc1 L_roleT\ns_cmp_eq_u32 s{sU}, 0\ns_cbranch_scc1 L_roleN")
        vq_saved = list(vm.q); nb_saved = nbar
        def k_ld(n):
            for z in range(7):
                if z in (0, 4): P(f"s_mov_b32 m0, {L_KT + n*7168 + z*1024}")
                P(f"buffer_load_dwordx4 v{vD0 if z < 4 else vD1}, {sr(sWS,4)}, s{sGB[n]} offen offset:{(z&3)*1024} sc1 lds"); vm.add(("k", n))
        ex = {"kp": self.inbox_issue, "kw": lambda: (self.inbox_wait(), self.stamp("r1"))}
        for n in range(5): ex[f"k{n}"] = (lambda n=n: k_ld(n))
        ex["s1"] = lambda: (vm.wait(("k", 3)), self.stamp("r2"), P("s_barrier"))
        P("v_mov_b32 v112, 1\nv_mov_b32 v113, 2")
        run(o["schedK"], ex)
        vm.all(); P(f"ds_write_b32 v{vFL}, v113")
        P("s_branch L_rolesdone")
        iN = len(P.lines)
        self.pad("roleN"); P("L_roleN:"); vm.q = list(vq_saved); nbar = nb_saved
        run(" ".join(t for t in o["schedT"].split() if t not in ("ts", "tst")))
        P("s_branch L_pad_fc" if o["hops"] & 2 else "s_branch L_rolesdone")
        self.pad("roleT"); P("L_roleT:"); vm.q = list(vq_saved); nbar = nb_saved
        def t_setup():
            self.lds_wait(vFL, 6, 4, 22)
            P(f"v_xor_b32 v21, v19, v0\nv_lshlrev_b32 v21, 4, v21\nv_add_u32 v21, {L_TS}, v21\nv_xor_b32 v22, 64, v21")
            for n in range(8): P(f"ds_read_b128 {vr(24+4*n,4)}, v{21+(n&1)} offset:{1024*n}")
            P(f"v_and_b32 v23, 0x70, v{vD0}\nv_bfe_u32 v22, v0, 3, 1\nv_lshl_add_u32 v23, v22, 13, v23\nv_mul_u32_u24 v22, {TST}, v19\nv_add_u32 v23, v22, v23")
            P(f"s_lshl_b32 s{sT0}, s{sS2}, 7\ns_lshl_b32 s3, s{sEG}, 14\ns_add_u32 s{sT0}, s{sT0}, s3\ns_add_u32 s{sT0}, s{sT0}, {WS_T:#x}")
            P(f"s_lshr_b32 s7, s{sS2}, 3\ns_lshl3_add_u32 s3, s{sEG}, s7\ns_lshl_b32 s3, s3, 7\ns_and_b32 s7, s{sS2}, 7\ns_lshl2_add_u32 s3, s7, s3")
            P(f"s_add_u32 s{sT2}, s3, {WS_TF:#x}")
        def t_store():
            if o["twait"] >= 0: self.lds_wait(vFL, o["twait"], 1, 22)
            else: P("s_waitcnt lgkmcnt(0)")
            for n in range(8):
                P(f"buffer_store_dwordx4 {vr(24+4*n,4)}, v23, {sr(sWS,4)}, s{sT0} offen sc1\ns_add_u32 s{sT0}, s{sT0}, {4*TST}"); vm.add(("T", 0))
        run(o["schedT"], {"ts": t_setup, "tst": t_store})
        P(f"s_waitcnt vmcnt(0)\ns_atomic_swap s{sNONCE}, s[18:19], s{sT2}")
        self.stamp("r1")
        P("s_branch L_rolesdone")
        iV = len(P.lines)
        self.pad("roleV"); P("L_roleV:"); vm.q = list(vq_saved); nbar = nb_saved
        run(o["schedV"], {"vp": self.inbox_issue})
        if o["otouch"] == 4:
            P(f"s_mul_i32 s3, s{sRT}, {2*28672}\ns_mul_i32 s7, s{sP}, 3584\ns_add_u32 s3, s3, s7\ns_add_u32 s3, s3, {WS_O:#x}\nv_cmp_gt_u32 vcc, 28, v0\nv_lshl_add_u32 v30, v0, 7, s3")
            P(f"v_add_u32 v31, {28672 - 3584}, v30\ns_lshl_b32 s7, s{sRT}, 7\nv_cndmask_b32 v30, v31, v30, vcc\nv_cmp_gt_u32 vcc, 56, v0\ns_add_u32 s7, s7, {WS_OF:#x}\nv_mov_b32 v31, s7\nv_cndmask_b32 v30, v31, v30, vcc")
        P(f"v_mov_b32 v112, 1\nv_mov_b32 v113, 2\ns_mov_b32 exec_hi, 0x00ffffff")
        self.inbox_wait()
        self.stamp("r1")
        for n in (4, 3, 2, 1, 0):
            for z in range(8):
                P(f"s_mov_b32 m0, {L_VT + n*8192 + (z>>2)*4096 + (z&3)*128}")
                P(f"buffer_load_dwordx4 v{vD1 if z >> 2 else vD0}, {sr(sWS,4)}, s{sGB[n]} offen offset:{896*(z&3)} sc1 lds"); vm.add(("v", n))
            if n == o.get("vi", 1): P(f"ds_write_b32 v{vFL}, v112 offset:20")
        P(f"s_mov_b64 exec, -1")
        if o["otouch"] == 4:
            P(f"buffer_load_dword v29, v30, {sr(sWS,4)}, s17 offen sc1"); vm.add(("t", 0))
        P(f"v_lshrrev_b32 v{vWO}, 3, v0\nv_mul_u32_u24 v{vWO}, 896, v{vWO}\nv_lshrrev_b32 v28, 2, v0\nv_and_b32 v28, 4, v28\nv_xor_b32 v28, v28, v0\nv_and_b32 v28, 7, v28")
        P(f"s_lshl_b32 s3, s{sP}, 7\nv_lshl_add_u32 v{vWO}, v28, 4, v{vWO}\nv_add_u32 v{vWO}, s3, v{vWO}")
        P(f"s_and_b32 s{sROT}, s{sRT}, 3\ns_mul_i32 s{sROT}, s{sROT}, {o.get('worot', 2)}")
        def wo_loop(nch):
            Lw = P.label("wo")
            P(f"s_mov_b32 s{sT2}, {nch}\n{Lw}:\ns_lshl_b32 s{sT1}, s{sROT}, 13\ns_add_u32 m0, s{sT1}, {L_WQ(0)}\ns_mul_i32 s{sT0}, s{sROT}, {64*896}")
            for z in range(8):
                P(f"buffer_load_dwordx4 v{vWO}, {sr(sWO,4)}, s{sT0} offen lds")
                if z < 7: P(f"s_addk_i32 m0, 1024\ns_addk_i32 s{sT0}, 7168")
            P(f"s_add_u32 s{sROT}, s{sROT}, 1\ns_cmp_eq_u32 s{sROT}, 7\ns_cselect_b32 s{sROT}, 0, s{sROT}\ns_sub_u32 s{sT2}, s{sT2}, 1\ns_cmp_lg_u32 s{sT2}, 0\ns_cbranch_scc1 {Lw}")
            for _ in range(8 * nch): vm.add(("w", 0))
        vm.wait(("v", 3)); P(f"ds_write_b32 v{vFL}, v112 offset:4"); self.stamp("r2")
        P(f"s_cmp_eq_u32 s{sP}, 7\ns_cbranch_scc1 L_v7end")
        T(f"L_v7end:\ns_waitcnt vmcnt(0)\nds_write_b32 v{vFL}, v113 offset:4\ns_branch L_g2end")
        nw = o.get("wo1", 1)
        if nw: wo_loop(nw)
        vm.wait(("v", 0)); P(f"ds_write_b32 v{vFL}, v113 offset:4"); self.stamp("r3")
        wo_loop(7 - nw)
        vm.all()
        P("s_branch L_rolesdone")
        P.lines = P.lines[:iN] + P.lines[iV:] + ["@ALIGN"] + P.lines[iN:iV-1]
        if o.get("aligndone", False): P("@JUMPALIGN done")
        P(f"L_ja_done:\nL_rolesdone:")
        self.stamp("roled")
        P(f"s_cmp_eq_u32 s{sP}, 7\ns_cbranch_scc1 L_g2end\ns_waitcnt lgkmcnt(0)")
        P("s_barrier")
        self.stamp("bw")
        P(f"s_lshl_b32 s{sT0}, s{sCI}, 6\ns_add_u32 s3, s{sT0}, {L_WQ(0)}")
        self.tr_addr(vTR, 116, 117, True, 3)
        WF = 144
        for ks in range(28):
            for t in range(2):
                P(f"ds_read_b64_tr_b16 {vr(WF+4*ks+2*t,2)}, v{vTR} offset:{ks*2048 + t*512}")
        out_addr()
        P("s_setprio 2\ns_waitcnt lgkmcnt(0)")
        lg = Cnt(P, "lgkmcnt", 15)
        oa = LdsAddr(P, vOR)
        OF = 32
        nm = 0
        def omf():
            nonlocal nm
            q, s = nm >> 2, nm & 3
            lg.wait((q, s))
            P(MF32(64, WF + 4*nm, OF + 16*(q & 1) + 4*s, "0" if nm == 0 else 64)); nm += 1
        for q in range(7):
            P("s_barrier"); self.stamp(f"bo{q}")
            for s in range(4):
                if nm < 4 * q: omf()
                for t in range(2):
                    off = oa.off(L_O(q) + (4*s + t) * 256)
                    P(f"ds_read_b64 {vr(OF + 16*(q&1) + 4*s + 2*t, 2)}, v{vOR} offset:{off}"); lg.add((q, s))
            while nm < 4 * q + 4 - o.get("lago", 3): omf()
        while nm < 28: omf()
        self.out_epilogue(64, 24, vWR, vRD, vG0, vG1, f"s{sOB}", o["outmod"])
        self.stamp("fin")
        P(f"L_g2end:")
        self.stamp_out()
        P("s_endpgm")
        P("L_p7:")
        fi = p7state["fi"]; vm.q = p7state["q"]; nbar = 99
        run(o["sched7"])
        P("s_branch L_p7join")

    def g1(self):
        P = self.P; o = self.o; T = self.tail
        vXA, vWK, vWV, vWQ, vKS, vVS, vZ, vDA, vKR, vVR, vOS, vOP, vNON, vFL, vL, vH = 1, 5, 6, 7, 8, 10, 11, 13, 14, 15, 16, 17, 18, 19, 12, 20
        vSA, vSB = 22, 23
        QF, FM = 24, 32
        AK, AV, AQ, CD, WF, XF = 48, 64, 80, 96, 112, 144
        sG, sKO, sVO, sMODE, sFB, sOFo, sOO = sSW, sSW + 1, sSW + 2, sSW + 3, sSW + 4, sSW + 5, sSW + 6
        c = math.log2(math.e) / math.sqrt(28)
        P("L_g1:")
        self.stamp("G.in")
        P(f"s_waitcnt lgkmcnt(0)\ns_load_dword s{sNONCE}, s[18:19], {WS_E}")
        srd(P, sWS, 18, WS_SIZE); srd(P, sWO, 12, 448*896)
        P(f"s_mov_b32 s{sXA+2}, {2048*896:#x}\ns_mov_b32 s{sXA+3}, 0x20000")
        if o["warm"] > 1:
            P(f"s_lshl2_add_u32 s10, s2, s{sU}\ns_mulk_i32 s10, 392\nv_lshlrev_b32 v40, 3, v0\nbuffer_load_dword v47, v40, {sr(sWO,4)}, s10 offen")
        PF = Prog(); keep = P
        if o["pf7"] == 2: P = PF; PF._lab = 700; P(f"s_and_b32 s3, s2, 7")
        if o["pf7"]:
            Lp = P.label("pf")
            P(f"s_cmp_lg_u32 s{sP}, 7\ns_cbranch_scc1 {Lp}")
            P(f"s_and_b32 s7, s{sRT}, 3\ns_lshl2_add_u32 s7, s7, s{sU}\ns_mul_i32 s10, s7, {128*896}\ns_mul_i32 s11, s3, {8*896}\ns_add_u32 s10, s10, s11")
            P(f"v_lshlrev_b32 v40, 7, v0\ns_mov_b32 exec_hi, 0x00ffffff")
            for seg in range(2):
                P(f"buffer_load_dword v47, v40, {sr(sXA,4)}, s10 offen\ns_add_u32 s10, s10, {64*896}")
            if o["pfwo"]: P(f"s_mul_i32 s10, s7, 25088\ns_mov_b32 exec_hi, 0x0001ffff")
            for k in range(o["pfwo"]):
                P(f"buffer_load_dword v47, v40, {sr(sWO,4)}, s10 offen\ns_add_u32 s10, s10, {49*128}")
            P(f"s_mov_b64 exec, -1\n{Lp}:")
        P = keep
        if o["touch"] & 1:
            Lt = P.label("tch")
            srd(P, sOUT, 14, 2048*1792)
            P(f"s_cmp_lg_u32 s{sU}, 0\ns_cbranch_scc1 {Lt}\nv_lshlrev_b32 v40, 21, v0\nv_add_u32 v41, 0x800, v40\ns_mov_b64 exec, {(1 << NPAGE) - 1}")
            P(f"buffer_load_dword v47, v41, {sr(sWS,4)}, 0 offen\nbuffer_load_dword v47, v40, {sr(sXA,4)}, 0 offen")
            if o["touch"] & 4:
                P(f"s_mul_i32 s7, s{sRT}, 1792\nv_mul_u32_u24 v40, {1024*1792 + 512*1792}, v0\nbuffer_load_dword v47, v40, {sr(sOUT,4)}, s7 offen")
            P(f"s_mov_b64 exec, -1\n{Lt}:")
        P(f"v_and_b32 v{vL}, 31, v0\nv_lshrrev_b32 v{vH}, 5, v0\nv_bfe_u32 v42, v0, 1, 3\nv_xor_b32 v42, v42, v{vH}")
        P(f"s_lshl_b32 s3, s{sR}, 12\nv_lshl_add_u32 v43, v{vL}, 7, s3\nv_lshl_add_u32 v{vXA}, v42, 4, v43")
        for s in range(1, 4): P(f"v_xor_b32 v{vXA+s}, {32*s}, v{vXA}")
        P(f"s_lshl_b32 s{sT0}, s{sCI}, 6")
        self.tr_addr(vWK, 42, 43, True, sT0)
        P(f"s_add_u32 s{sT0}, s{sT0}, {L_WV(0)}")
        self.tr_addr(vWV, 42, 43, False, sT0)
        P(f"s_lshl1_add_u32 s{sG}, s{sRT}, s{sR}")
        P(f"s_lshl1_add_u32 s3, s{sP}, s{sCI}\ns_mov_b32 s7, {PAIR - 7*512}\nv_lshl_add_u32 v42, s3, 2, v{vH}")
        for s in range(2):
            P(f"v_mul_u32_u24 v43, 37, v42\nv_lshrrev_b32 v43, 8, v43\nv_mul_lo_u32 v43, v43, s7\nv_lshl_add_u32 v43, v42, 9, v43\nv_lshl_add_u32 v{vKS+s}, v{vL}, 4, v43")
            if s == 0: P("v_add_u32 v42, 2, v42")
        P(f"s_mul_i32 s3, s{sG}, 3584\ns_add_u32 s{sKO}, s3, {WS_K:#x}\ns_add_u32 s{sVO}, s3, {WS_V:#x}")
        P(f"v_mov_b32 v{vZ}, 0\nv_mov_b32 v{vFL}, {L_FLAG}\nv_and_b32 v42, 7, v0\nv_lshl_add_u32 v42, v42, 2, v{vFL}\nds_write_b32 v42, v{vZ}")
        self.stamp("G.set")
        lg = Cnt(P, "lgkmcnt", 15)
        xa = [LdsAddr(P, vXA + s) for s in range(4)]
        wa = {"K": LdsAddr(P, vWK), "V": LdsAddr(P, vWV, L_WV(0)), "Q": LdsAddr(P, vWQ, L_WQ(0))}
        wl = {"K": L_WK, "V": L_WV, "Q": L_WQ}
        acc = {"K": AK, "V": AV, "Q": AQ}
        def pack(a, half):
            for i in range(4): P(f"v_cvt_pk_bf16_f32 v{QF+4*half+i}, v{a+8*half+2*i}, v{a+8*half+2*i+1}")
        def proj(items, pre={}, lagn={}, post={}, mid={}):
            nm = 0
            def mf():
                nonlocal nm
                i, s = nm >> 2, nm & 3; kind, q, _ = items[i]
                lg.wait((i, s))
                w, x, a = WF + 16*(i & 1) + 4*s, XF + 16*q + 4*s, acc[kind]
                cc = "0" if (q == 0 and s == 0) else a
                P(MF32(a, x, w, cc) if kind == "V" else MF32(a, w, x, cc)); nm += 1
            for i, (kind, q, br) in enumerate(items):
                if i in pre: pre[i]()
                if br: P("s_barrier"); self.stamp(f"G.b{kind}{q}")
                for s in range(4):
                    if nm < 4 * i: mf()
                    if kind == "K":
                        off = xa[s].off(L_X(q))
                        P(f"ds_read_b128 {vr(XF + 16*q + 4*s, 4)}, v{vXA+s} offset:{off}"); lg.add((i, s))
                    for t in range(2):
                        off = wa[kind].off(wl[kind](q) + s*2048 + t*512)
                        P(f"ds_read_b64_tr_b16 {vr(WF + 16*(i&1) + 4*s + 2*t, 2)}, v{wa[kind].reg} offset:{off}"); lg.add((i, s))
                    if (i, s) in mid: mid[(i, s)]()
                while nm < 4 * i + 4 - lagn.get(i, 4): mf()
                if i in post: post[i]()
            while nm < 4 * len(items): mf()
        D = Prog()
        vE, vB, vA, vC, vS = 80, 81, 82, 84, 88
        D(f"v_and_b32 v{vA}, 15, v0\nv_lshl_add_u32 v{vA}, s{sR}, 4, v{vA}\nv_cvt_f32_u32 v{vA}, v{vA}\nv_mul_f32 v{vE}, {fl(1/32)}, v{vA}")
        D(f"v_lshrrev_b32 v{vA}, 2, v0\nv_and_b32 v{vA}, 12, v{vA}\nv_cvt_f32_u32 v{vA}, v{vA}\ns_mul_i32 s3, s{sCI}, {f2u(-0.25):#x}\nv_fma_f32 v{vB}, v{vE}, v{vA}, s3")
        for j in range(8): D(f"v_fmamk_f32 v{vC+j}, v{vE}, {fl(16*(j>>2)+(j&3))}, v{vB}")
        for j in range(8): D(f"v_cos_f32 v{vC+j}, v{vC+j}")
        for jj in range(4): D(f"v_cvt_pk_bf16_f32 v{CD+8+jj}, v{vC+2*jj}, v{vC+2*jj+1}")
        D2 = Prog()
        D2(f"v_lshl_add_u32 v{vA}, v{vL}, 5, s{sRT}\nv_cvt_f32_u32 v{vA}, v{vA}\nv_mul_f32 v{vE}, {fl(1/2048)}, v{vA}")
        D2(f"v_lshl_add_u32 v{vA}, s{sU}, 1, v{vH}\nv_lshlrev_b32 v{vA}, 3, v{vA}\nv_cvt_f32_u32 v{vA}, v{vA}\nv_mul_f32 v{vB}, v{vE}, v{vA}")
        for par in range(2):
            for jj in range(4): D2(f"v_fmamk_f32 v{vS+jj}, v{vE}, {fl(2*jj + par)}, v{vB}")
            for jj in range(4): D2(f"v_cos_f32 v{vC+jj}, v{vS+jj}")
            for jj in range(4): D2(f"v_sin_f32 v{vS+jj}, v{vS+jj}")
            for jj in range(4): D2(f"v_cvt_pk_bf16_f32 v{CD+4*par+jj}, v{vC+jj}, -v{vS+jj}")
        keep = P; P = D2; self.P = D2
        P(f"s_mul_i32 s{sT0}, s{sCI}, 48\ns_add_u32 s{sT0}, s{sT0}, {L_WQ(0)}")
        self.tr_addr(vWQ, 42, 43, True, sT0)
        P(f"s_lshl_b32 s3, s{sRT}, 7\nv_lshl_add_u32 v{vOP}, v{vL}, 2, s3")
        P(f"v_lshlrev_b32 v42, 2, v{vH}\nv_sub_u32 v21, v{vL}, v42\ns_mov_b32 s11, {fl(c)}")
        D3 = Prog(); P = D3; self.P = D3
        P(f"s_mov_b32 s3, 0x0b0b0909")
        for k in range(8):
            k0 = 8 * (k >> 1) + 2 * (k & 1)
            P(f"v_subrev_u32 v42, {k0}, v21\nv_subrev_u32 v43, {k0+1}, v21\nv_perm_b32 v{FM+k}, v43, v42, s3")
        P(f"s_mul_i32 s3, s{sR}, 3584\ns_mul_i32 s7, s{sCI}, 1536\ns_add_u32 s3, s3, s7\ns_add_u32 s3, s3, {L_KT}\nv_lshl_add_u32 v{vKR}, v0, 4, s3")
        P(f"v_cmp_gt_u32 vcc, 28, v{vL}\ns_mul_i32 s3, s{sCI}, 28\nv_add_u32 v42, s3, v{vL}\ns_lshl_b32 s7, s{sCI}, 2\ns_sub_u32 s7, 60, s7\nv_mov_b32 v43, s7")
        P(f"v_cndmask_b32 v42, v43, v42, vcc\ns_lshl_b32 s3, s{sR}, 12\nv_lshl_add_u32 v42, v42, 4, s3\nv_lshl_add_u32 v{vVR}, v{vH}, 10, v42")
        P(f"v_cmp_gt_u32 vcc, s{sCI}, v{vH}\nv_cmp_lt_u32 s[30:31], s{sCI}, v{vH}\nv_lshlrev_b32 v42, 3, v{vL}\nv_lshl_add_u32 v{vOS}, v{vH}, 8, v42\nv_mov_b32 v42, {fl(c)}")
        P(f"v_cndmask_b32 v{vSA}, v42, v{vZ}, vcc\nv_cndmask_b32 v{vSB}, v42, v{vZ}, s[30:31]")
        P = D; self.P = D
        P(f"s_lshl1_add_u32 s3, s{sP}, s{sCI}\nv_lshl_add_u32 v42, s3, 5, v{vL}\nv_mul_u32_u24 v43, 1171, v42\nv_lshrrev_b32 v43, 16, v43\ns_mov_b32 s7, {PAIR - 896}")
        P(f"v_mul_lo_u32 v43, v43, s7\nv_lshl_add_u32 v43, v42, 4, v43\nv_mul_u32_u24 v42, 896, v{vH}\nv_add_u32 v{vVS}, v42, v43")
        P(f"s_mul_i32 s3, s3, 1792\ns_mul_i32 s7, s{sG}, 28672\ns_add_u32 s3, s3, s7\ns_add_u32 s{sOO}, s3, {WS_O:#x}")
        P(f"s_lshl3_add_u32 s3, s{sRT}, s{sP}\ns_lshl2_add_u32 s3, s3, s{sU}\ns_lshl_b32 s3, s3, 2\ns_add_u32 s{sOFo}, s3, {WS_OF:#x}\ns_mov_b32 s{sFB}, 0\ns_mov_b32 s{sLS}, 0")
        P(f"v_cmp_gt_u32 vcc, 14, v0\nv_lshl_add_u32 v{vDA}, v0, 4, s{sT4}\nv_lshl_add_u32 v42, v0, 7, s{sOO}\nv_mov_b32 v43, s{sOFo}\nv_cndmask_b32 v45, v43, v42, vcc")
        P = keep; self.P = keep
        if o["two"] or o["stream"]: D.extend(D2.lines); D2.lines = []
        if o["stream"] or o.get("d3early"): D.extend(D3.lines); D3.lines = []
        A2 = Prog(); P = A2; self.P = A2
        vWR, vRD, vG0, vG1, vTA, MF_, TF_, AE = 1, 3, 4, 5, 8, 176, 144, 64
        self.scratch_addr(vWR, vRD, L_TS, 52)
        P(f"s_lshl_b32 s3, s{sR}, 10\ns_add_u32 s3, s3, s{sRT}\nv_lshl_add_u32 v56, v54, 5, s3\ns_cmp_eq_u32 s{sCI}, 1\ns_cselect_b64 vcc, -1, 0")
        for dst in (vG0, vG1):
            P(f"v_sub_u32 v57, 0, v56\nv_and_b32 v57, 2047, v57\nv_cndmask_b32 v57, v56, v57, vcc\nv_mul_u32_u24 v57, 1792, v57\nv_add_u32 v{dst}, v57, v55")
            if dst == vG0: P("v_add_u32 v56, 512, v56")
        P(f"v_and_b32 v54, 19, v0\nv_bfe_u32 v55, v0, 2, 1\nv_lshl_add_u32 v54, v55, 3, v54\nv_bfe_u32 v55, v0, 3, 1\nv_lshl_add_u32 v54, v55, 2, v54")
        P(f"v_sub_u32 v55, 32, v54\nv_cndmask_b32 v54, v54, v55, vcc\nv_lshrrev_b32 v55, 5, v54\nv_and_b32 v54, 31, v54\nv_lshlrev_b32 v54, 2, v54")
        P(f"v_lshl_add_u32 v54, v55, 13, v54\nv_lshl_add_u32 v54, v{vH}, 10, v54\nv_add_u32 v{vTA}, {L_TT}, v54\nv_add_u32 v{vTA+1}, 128, v{vTA}")
        P(f"s_lshl_b32 s3, s{sP}, 6\ns_sub_u32 s7, 832, s3\ns_cmp_eq_u32 s{sCI}, 1\ns_cselect_b32 s10, s7, s3")
        srd(D, sOUT, 14, 2048*1792)
        P = keep; self.P = keep
        n0 = o.get("g1f0", 30)
        P.extend(D.lines[:n0])
        P(f"s_cmp_eq_u32 s{sP}, 7\ns_cbranch_scc1 L_x7\ns_setprio 1")
        self.stamp("G.set2")
        def fm_write(E):
            E(f"v_add_u32 v46, {L_F}, v{vDA}\nds_write_b128 v46, {vr(CD+8,4)}")
        def otouch(E):
            E(f"v_readfirstlane_b32 s{sMODE}, v44\ns_nop 0\ns_cmp_eq_u32 s{sMODE}, 0\ns_cselect_b32 s3, s{sWS+2}, 0\nbuffer_load_dword v47, v45, {sr(sWS,4)}, s3 offen sc1")
        B7 = Prog(); B7._lab = 600
        B7("L_x7:"); B7.extend(D.lines[n0:]); B7.extend([l.replace("s11", "s9") for l in PF.lines]); fm_write(B7); B7("s_waitcnt lgkmcnt(0)\ns_barrier")
        xa7 = [LdsAddr(B7, vXA + s) for s in range(4)]
        for q in range(7):
            for s in range(4):
                off = xa7[s].off(L_X(q))
                B7(f"ds_read_b128 {vr(XF + 16*q + 4*s, 4)}, v{vXA+s} offset:{off}")
        B7(f"s_waitcnt lgkmcnt(0)\ns_barrier\nds_read_b32 v44, v{vFL} offset:12\n" + "s_barrier\n" * (o["sched"].split("join")[1] + o["ina1"]).count("bV") + "s_waitcnt lgkmcnt(0)")
        if o["otouch"] == 3: otouch(B7)
        B7("s_setprio 1\ns_branch L_vdone")
        T.extend(B7.lines)
        items = [(t[0], int(t[1]), t.endswith("b")) for t in o["items"].split()]
        kst = o["kst"]
        def kstore(h):
            pack(AK, h)
            P(f"buffer_store_dwordx4 {vr(QF+4*h,4)}, v{vKS+h}, {sr(sWS,4)}, s{sKO} offen sc1")
            if h: self.stamp("G.kst")
        cuts = o["g1cuts"]
        di = n0
        def slot(i):
            nonlocal di
            P.extend(D.lines[di:di + cuts.get(i, 0)]); di += cuts.get(i, 0)
        fmw = lambda: (fm_write(P), lg.add("w"))
        otc = lambda: (lg.wait("m"), otouch(P)) if o["otouch"] == 3 else None
        mrd = lambda: (P(f"ds_read_b32 v44, v{vFL} offset:12"), lg.add("m"))
        if o["two"]:
            proj(items[:7], lagn={5: 2, 6: 2}, post={i: (lambda i=i: slot(i)) for i in range(7)})
            kstore(0); kstore(1)
            P("s_barrier\ns_setprio 0")
            P.extend(D.lines[di:])
            fm_write(P)
            P.extend(A2.lines)
            P("s_setprio 1")
            self.stamp("G.i1")
            proj(items[7:], pre={o.get("kack2", 2): lambda: (self.stamp("G.ka0"), P("s_waitcnt vmcnt(0)"), self.stamp("G.ka1"))}, mid={(0, 3): mrd, (o.get('otp', 3), 1): otc})
        else:
            ks0, ks1 = o.get("kst2", ((kst, 0), (kst, 2)))
            proj(items, lagn=o.get("lagkv", {}), post={i: (lambda i=i: slot(i)) for i in range(8)}, pre={o.get("kack", -1): lambda: P("s_waitcnt vmcnt(0)")},
                 mid={ks0: lambda: kstore(0), ks1: lambda: kstore(1), (o['fmw'], 1): fmw, (9, 3): mrd, (kst + 1, 1): otc})
            assert di >= len(D.lines)
        for h in range(2):
            pack(AV, h)
            P(f"buffer_store_dwordx4 {vr(QF+4*h,4)}, v{vVS}, {sr(sWS,4)}, s{sVO} offen offset:{1792*h} sc1")
        P(f"L_vdone:")
        nt = 0
        if o["otouch"] == 1: otouch(P); nt = 1
        if o["otouch"] == 4: P(f"v_readfirstlane_b32 s{sMODE}, v44")
        self.stamp("G.vst")
        if not o["stream"]: P("s_barrier\ns_setprio 0")
        mainP = P
        if o["stream"]: P("L_g1page:"); self.pad("g1p1", True); P = Prog(); self.P = P
        P.extend(D2.lines)
        if not o["stream"]: P("L_g1page:"); self.pad("g1p1", True)
        P(f"{NONCE}\nv_mov_b32 v{vNON}, s{sNONCE}")
        P(f"ds_write_b128 v46, {vr(CD,4)} offset:{L_M - L_F}\nds_write_b128 v46, {vr(CD+4,4)} offset:{L_M - L_F + 4096}")
        def mask(E, dst, far):
            E(f"v_cvt_f32_i32 v42, v21\nv_mul_f32 v42, {fl(-BIG if far else BIG)}, v42")
            for i in range(16):
                k = 8*(i >> 2) + (i & 3)
                E(f"v_add_f32 v{dst+i}, {fl((k-1)*BIG if far else -k*BIG)}, v42")
            for i in range(16): E(f"v_min_f32 v{dst+i}, 0, v{dst+i}")
        mask(P, AV, False)
        P.extend(D3.lines)
        if not o["two"]: P.extend(A2.lines)
        vTP = (6, 10)
        P(f"v_lshrrev_b32 v42, 3, v0\nv_lshlrev_b32 v42, 7, v42\nv_and_b32 v43, 7, v0\nv_lshl_add_u32 v42, v43, 2, v42\nv_add_u32 v42, {WS_TF - WS_OF}, v42")
        P(f"s_lshr_b32 s3, s{sP}, 1\ns_and_b32 s7, s{sP}, 1\nv_lshl_add_u32 v{vTP[0]}, s3, 10, v42\nv_lshl_add_u32 v{vTP[1]}, s7, 10, v{vTP[0]}")
        P(f"s_mul_i32 s{sT3}, s{sRT}, {TST}\ns_lshl_b32 s3, s{sP}, 13\ns_add_u32 s{sT3}, s{sT3}, s3\ns_lshl2_add_u32 s3, s{sT4}, {WS_T:#x}\ns_add_u32 s{sT3}, s{sT3}, s3")
        P(f"s_mov_b32 s{sT0}, {WS_OF:#x}\ns_lshl1_add_u32 s3, s{sRT}, s{sCI}\ns_mul_i32 s{sT1}, s3, 28672\ns_lshl_b32 s3, s{sR}, 11\ns_add_u32 s{sT1}, s{sT1}, s3\ns_add_u32 s{sT1}, s{sT1}, {WS_O:#x}")
        P(f"s_lshl_b32 s{sT2}, s{sT4}, 1\nv_lshlrev_b32 v{vDA}, 4, v0")
        if o["stream"]:
            L2 = P.lines; P = mainP; self.P = P
            c0 = o["qcuts"]; cs = [sum(c0[:k]) for k in range(len(c0) + 1)]; assert cs[-1] >= len(L2)
            P.extend(L2[:cs[1]])
            proj([("Q", q, q in o["qbars"]) for q in range(7)], pre={o["vack"]: lambda: P(f"s_waitcnt vmcnt(0)")},
                 lagn=o.get("lagq", {5: 2, 6: 2}), post={k: (lambda k=k: P.extend(L2[cs[k+1]:cs[k+2]])) for k in range(len(c0) - 1)})
        else:
            P(f"s_setprio 1")
            self.stamp("G.i2")
            proj([("Q", q, q in o["qbars"]) for q in range(7)], pre={0: lambda: P(f"s_waitcnt vmcnt(3)"), o.get("vack", 0): lambda: (self.stamp("G.va0"), P(f"s_waitcnt vmcnt({nt})"), self.stamp("G.va1"))},
                 lagn=o.get("lagq", {o.get("vack", 0) - 1: 0}))
        S = lambda n: AK if n == 0 else (AV if n == 8 else XF + 16 * (n - 1))
        vM = 40
        KB, VB = WF, WF + 16
        pend = []
        def kread(i):
            for s in range(2):
                pend.append((f"ds_read_b128 {vr(KB + 8*((i+2)&3) + 4*s, 4)}, v{vKR} offset:{(8-i)*3584 + s*1024}", ("k", i)))
        def vread(i):
            for s in range(2):
                pend.append((f"ds_read_b128 {vr(S(8-i) + 8*s + 4, 4)}, v{vVR} offset:{(8-i)*4096 + s*2048}", ("v", i)))
        def flagrd(idx): pend.append((f"ds_read_b32 v44, v{vFL} offset:{4*idx}", "flag"))
        def drain(n=99):
            while pend and n > 0:
                t, tag = pend.pop(0); P(t); lg.add(tag); n -= 1
        def flagchk(idx, val, name, redo=[]):
            L = P.label("fc")
            lg.wait("flag")
            P(f"v_cmp_gt_u32 vcc, {val}, v44\ns_cbranch_vccnz {L}\n{L}_b:")
            if name == "G.k2": self.pad("fc", E=T)
            T(f"{L}:\nds_read_b32 v44, v{vFL} offset:{4*idx}")
            for t in redo: T(t)
            T(bound(L + "_b"))
            T(f"s_waitcnt lgkmcnt(0)\nv_cmp_gt_u32 vcc, {val}, v44\ns_nop 0\ns_cbranch_vccnz {L}\ns_branch {L}_b")
            self.stamp(name)
        kb = o.get("kbar", 0)
        def kbar(): P("s_barrier"); self.stamp("G.ck"); kread(0); kread(1); drain()
        if kb == 0: kbar()
        for i in range(8):
            sc, sel = (f"v[{vSA}:{vSA+1}]", "op_sel_hi:[0,1]") if i < 2 else ((f"v[{vSA}:{vSA+1}]", "op_sel:[1,0]") if i >= 6 else ("s[10:11]", "op_sel:[1,0]"))
            P(f"v_pk_mul_f32 {vr(AQ+2*i,2)}, {sc}, {vr(AQ+2*i,2)} {sel}")
        pack(AQ, 0); pack(AQ, 1)
        self.stamp("G.q")
        if kb == 1: kbar()
        def qk(i, s, nd=2):
            n = 8 - i
            lg.wait(("k", i))
            P(MF32(S(n), KB + 8*((i+2) & 3) + 4*s, QF + 4*s, S(n) if (s == 1 or n == 8) else CD)); drain(nd)
        npv = 0
        def pv(nd=2):
            nonlocal npv
            i, s = npv >> 1, npv & 1
            assert not any(t == ("v", i) for _, t in pend)
            lg.wait(("v", i))
            P(MF32(AQ, S(8 - i) + 8*s + 4, S(8 - i) + 8*s, "0" if npv == 0 else AQ)); npv += 1; drain(nd)
        def pvl(s):
            lg.wait(("v", 8)); P(MF32(AQ, KB + 4*s, S(0) + 8*s, AQ))
        kread(2)
        qk(0, 0); qk(0, 1)
        b = S(8)
        P(f"s_mov_b32 s3, {fl(-40.0)}\nv_max_f32 v{vM}, v{b}, v{b+1}\nv_max_f32 v{vM+1}, v{b+2}, v{b+3}")
        for k in range(2, 7): P(f"v_max3_f32 v{vM+(k&1)}, v{vM+(k&1)}, v{b+2*k}, v{b+2*k+1}")
        P(f"v_max3_f32 v{vM+1}, v{vM+1}, v{b+14}, v{b+15}\nv_max_f32 v42, v{vM}, v{vM+1}\nv_max_f32 v{vM+1}, v{vM}, v{vM+1}\nv_permlane32_swap_b32 v42, v{vM+1}\nv_max_f32 v{vM}, v42, v{vM+1}")
        P(f"v_sub_f32 v{vM}, s3, v{vM}")
        if o.get("pka", 1):
            for k in range(8): P(f"v_pk_mul_f32 {vr(CD+2*k,2)}, {vr(vM,2)}, 1.0 op_sel_hi:[0,0]")
            for k in range(8): P(f"v_pk_add_f32 {vr(b+2*k,2)}, {vr(vM,2)}, {vr(b+2*k,2)} op_sel_hi:[0,1]")
        else:
            for k in range(16): P(f"v_mov_b32 v{CD+k}, v{vM}")
            for k in range(16): P(f"v_add_f32 v{b+k}, v{vM}, v{b+k}")
        flagrd(0)
        self.stamp("G.p1")
        lag = o["pvlag"]
        vnext = 0
        for i in range(9):
            b = S(8 - i)
            if i == 1: flagchk(0, 2, "G.k2"); kread(3); kread(4)
            if 2 <= i and i + 3 < 9: kread(i + 3)
            if i == lag - 1: flagchk(1, 1, "G.fv")
            if i == lag: flagchk(1, 2, "G.v2")
            if i >= lag - 1:
                lim = min(i, 3 if i == lag - 1 else 9, vnext + (3 if lag > 4 else 2))
                while vnext < lim: vread(vnext); vnext += 1
            if i == 7:
                for s in range(2): pend.append((f"ds_read_b128 {vr(KB + 4*s, 4)}, v{vVR} offset:{s*2048}", ("v", 8)))
            if i in (lag - 2, lag - 1): flagrd(1)
            mfs = []
            if i < 8: mfs += [lambda i=i: qk(i + 1, 0, 3), lambda i=i: qk(i + 1, 1, 3)]
            ready = 2 * len([t for t in range(vnext) if not any(tag == ("v", t) for _, tag in pend)])
            k_ = 0
            while npv + k_ < ready and k_ < 4: mfs.append(pv); k_ += 1
            rest = []
            if i == 8:
                mfs = [pv] * (16 - npv) + [lambda: pvl(0)]
                mfs, rest = mfs[:6], mfs[6:]
            slots = {0: [], 1: [1], 2: [0, 5], 3: [0, 5, 11], 4: [0, 4, 8, 12], 5: [0, 4, 8, 11, 14], 6: [0, 3, 6, 8, 11, 14]}[len(mfs)]
            for pos in range(16):
                P(f"v_exp_f32 v{b+pos}, v{b+pos}")
                if pos in slots: mfs.pop(0)()
                if pos in (7, 15):
                    h = pos >> 3
                    for k in range(4): P(f"v_cvt_pk_bf16_f32 v{b+8*h+k}, v{b+8*h+2*k}, v{b+8*h+2*k+1}")
                    if i == 8:
                        for k in range(4): P(f"v_and_b32 v{b+8*h+k}, v{b+8*h+k}, v{FM+4*h+k}")
            drain()
        assert vnext == 8
        for f in rest: f()
        pvl(1)
        vWR, vRD, vG0, vG1, vTA, MF_, TF_, AE = 1, 3, 4, 5, 8, 176, 144, 64
        P(f"L_onorm:\ns_cmp_eq_u32 s{sMODE}, 0")
        P(f"v_mov_b32 v40, v{AQ+12}\nv_mov_b32 v41, v{AQ+12}\nv_permlane32_swap_b32 v40, v41\nv_rcp_f32 v41, v41\ns_cbranch_scc1 L_oslow")
        def ostore(E, mod):
            for a in range(4):
                for k in range(2): E(f"v_pk_mul_f32 {vr(CD+4*a+2*k,2)}, v[40:41], {vr(AQ+4*a+2*k,2)} op_sel:[1,0]")
                for k in range(2): E(f"v_cvt_pk_bf16_f32 v{VB+2*a+k}, v{CD+4*a+2*k}, v{CD+4*a+2*k+1}")
                if a == 3: E("s_mov_b32 exec_hi, 0")
                E(f"buffer_store_dwordx2 {vr(VB+2*a,2)}, v{vOS}, {sr(sWS,4)}, s{sOO} offen offset:{512*a} {mod}")
            E("s_mov_b64 exec, -1")
        ostore(P, o["omod"])
        P("L_ostored:")
        T("L_oslow:"); ostore(T, "sc1"); T("s_branch L_ostored")
        self.stamp("G.ost")
        P(f"v_mul_f32 v42, {fl(2.0**16)}, v{AQ+12}\nv_mul_f32 v40, 0, v{AQ}\nv_mul_f32 v41, 0, v{AQ+1}\nv_fmac_f32 v40, 0, v42")
        for k in range(2, 16): P(f"v_fmac_f32 v{40+(k&1)}, 0, v{AQ+k}")
        P(f"v_cmp_u_f32 vcc, v40, v41")
        if o["force_fb"]: P("s_mov_b64 vcc, -1")
        P(f"v_add_u32 v42, {L_M}, v{vDA}\ns_cbranch_vccnz L_fallback\nL_ochecked:")
        for s in range(8): P(f"ds_read_b128 {vr(MF_+4*s,4)}, v42 offset:{1024*s}")
        P("@JUMP2 g1p2"); self.pad("g1p2"); P("L_ja_g1p2:")
        P(f"s_mul_i32 s3, s{sR}, 0x80008000\nv_mov_b32 v43, 1\ns_waitcnt lgkmcnt(0)")
        for k in range(16): P(f"v_xor_b32 v{MF_+16+k}, s3, v{MF_+16+k}")
        P(f"s_mov_b64 exec, 1\ns_cmp_eq_u32 s{sMODE}, 0\ns_waitcnt vmcnt(0)\ns_cbranch_scc1 L_ofslow")
        P(f"buffer_store_dword v{vNON}, v{vZ}, {sr(sWS,4)}, s{sOFo} offen\nL_oflagged:\ns_mov_b64 exec, -1")
        T(f"L_ofslow:\nbuffer_store_dword v{vNON}, v{vZ}, {sr(sWS,4)}, s{sOFo} offen sc1\ns_branch L_oflagged")
        self.stamp("G.oack")
        P(f"s_cmp_eq_u32 s{sP}, 7\ns_cbranch_scc1 L_epoch\ns_add_u32 m0, s{sT2}, {L_O(0)}\ns_barrier")
        vm = Cnt(P, "vmcnt", 63)
        def tpoll():
            for k in range(2): P(f"buffer_load_dword v{45+k}, v{vTP[k]}, {sr(sWS,4)}, s{sT0} offen sc1"); vm.add("p")
        tp = o.get("tpos", -1)
        if tp < 0: tpoll()
        self.poll([(vOP, 0)], 44, sT0)
        vm.q = []
        self.stamp("G.op")
        def odma(q):
            if q: P(f"s_add_u32 m0, s{sT2}, {L_O(q)}\ns_add_u32 s{sT1}, s{sT1}, 4096")
            for k in range(2):
                P(f"buffer_load_dwordx4 v{vDA}, {sr(sWS,4)}, s{sT1} offen offset:{1024*k} sc1 lds"); vm.add(q)
            if q == tp: tpoll()
        def tdma():
            P(f"s_lshl1_add_u32 m0, s{sT2}, {L_TT}\ns_nop 0")
            for q in range(4):
                P(f"buffer_load_dwordx4 v{vDA}, {sr(sWS,4)}, s{sT3} offen offset:{1024*q} sc1 lds"); vm.add("t")
        def obar(q): vm.wait(q); P("s_barrier")
        nb = 0
        for t in o.get("osched", "0 1 2 3 b 4 5 b 6 b").split():
            if t == "b": obar(nb); nb += 1
            else: odma(int(t))
        while nb <= tp: obar(nb); nb += 1
        vm.wait("p")
        P(f"v_cmp_ne_u32 vcc, s{sNONCE}, v45\nv_cmp_ne_u32 s[8:9], s{sNONCE}, v46\ns_nop 0\ns_or_b64 vcc, vcc, s[8:9]\ns_cbranch_scc1 L_tlate")
        late_q = list(vm.q)
        tdma()
        for q in range(nb, 7): obar(q)
        P(f"L_tgo:\ns_mov_b64 exec, 1\ns_waitcnt vmcnt(0)\nds_add_u32 v{vFL}, v43 offset:16\ns_mov_b64 exec, -1")
        P(f"L_tread:\nds_read_b32 v44, v{vFL} offset:16")
        lg.q = ["c"]
        def tread(s):
            for t in range(2):
                o0 = 8*(s & 3) + 2*t
                P(f"ds_read2st64_b32 {vr(TF_+4*s+2*t,2)}, v{vTA+(s>>2)} offset0:{o0} offset1:{o0+1}"); lg.add(s)
        for s in range(4): tread(s)
        P(bound("L_tread_d"))
        lg.wait("c")
        P(f"v_cmp_gt_u32 vcc, 4, v44\ns_cbranch_vccnz L_tread\nL_tread_d:")
        self.stamp("G.tl")
        for s in range(8):
            lg.wait(s); P(MF32(AE, TF_ + 4*s, MF_ + 4*s, AE if s else "0"))
            if s < 4: tread(s + 4)
        self.out_epilogue(AE, 24, vWR, vRD, vG0, vG1, "s10", o["outmod"])
        self.stamp("G.fin")
        P("L_g1end:")
        self.stamp_out()
        P("L_end:\ns_endpgm")
        P("L_tlate:")
        vm.q = late_q
        for q in range(nb, 7): obar(q)
        self.poll([(vTP[0], 0), (vTP[1], 0)], 45, sT0)
        tdma()
        P("s_branch L_tgo")
        P("L_epoch:")
        if not o.get("pft", True): P(f"s_cmp_lg_u32 s{sRT}, 31\ns_cbranch_scc1 L_g1end")
        P(f"s_cmp_lg_u32 s{sU}, 0\ns_cbranch_scc1 L_g1end\ns_sub_u32 s{sT0}, s{sT0}, 3072\ns_sub_u32 s{sT3}, s{sT3}, {7*8192}\nv_lshlrev_b32 v42, 7, v0")
        self.poll([(vTP[0], 0), (vTP[0], 1024), (vTP[0], 2048), (vTP[0], 3072)], 50, sT0)
        if o.get("pft", True):
            for k in range(8): P(f"buffer_load_dword v47, v42, {sr(sWS,4)}, s{sT3} offen sc1\ns_add_u32 s{sT3}, s{sT3}, 8192")
        P(f"s_cmp_lg_u32 s{sRT}, 31\ns_cbranch_scc1 L_g1end")
        P(f"s_mov_b64 exec, 1\nbuffer_store_dword v{vNON}, v{vZ}, {sr(sWS,4)}, 0 offen offset:{WS_E} sc1\ns_branch L_g1end")
        P("L_fallback:")
        P(f"s_cmp_lg_u32 s{sFB}, 0\ns_cbranch_scc1 L_ochecked\ns_mov_b32 s{sFB}, 1\ns_waitcnt vmcnt(0)")
        mask(P, AK, True); mask(P, AV, False)
        P(f"v_mov_b32 v{vM}, {fl(-BIG)}")
        for n in range(9):
            P(f"ds_read_b128 {vr(KB,4)}, v{vKR} offset:{n*3584}\nds_read_b128 {vr(KB+4,4)}, v{vKR} offset:{n*3584+1024}")
            if n <= 7:
                P(f"s_cmp_lt_u32 s{sG}, {8-n}\ns_cselect_b32 s3, {fl(-BIG)}, 0")
                for k in range(16): P(f"v_mov_b32 v{S(n)+k}, s3" if n else f"v_min_f32 v{S(n)+k}, s3, v{S(n)+k}")
            P("s_waitcnt lgkmcnt(0)")
            for s in range(2): P(MF32(S(n), KB + 4*s, QF + 4*s, S(n)))
            for k in range(8): P(f"v_max3_f32 v{vM}, v{vM}, v{S(n)+2*k}, v{S(n)+2*k+1}")
        P(f"v_mov_b32 v{vM+1}, v{vM}\nv_permlane32_swap_b32 v{vM}, v{vM+1}\nv_max_f32 v{vM}, v{vM}, v{vM+1}")
        for n in range(9):
            b = S(n)
            P(f"ds_read_b128 {vr(VB,4)}, v{vVR} offset:{n*4096}\nds_read_b128 {vr(VB+4,4)}, v{vVR} offset:{n*4096+2048}")
            for k in range(16): P(f"v_sub_f32 v{b+k}, v{b+k}, v{vM}")
            for k in range(16): P(f"v_exp_f32 v{b+k}, v{b+k}")
            for k in range(8): P(f"v_cvt_pk_bf16_f32 v{b+k}, v{b+2*k}, v{b+2*k+1}")
            P("s_waitcnt lgkmcnt(0)")
            for s in range(2): P(MF32(AQ, VB + 4*s, b + 4*s, "0" if (n == 0 and s == 0) else AQ))
        P("s_nop 11\ns_branch L_onorm")

    def addrs(self, lines):
        import subprocess, tempfile
        src = '.amdgcn_target "amdgcn-amd-amdhsa--gfx950"\n.text\n' + "".join(f"Z{i}:\n" + ("" if l.startswith("@") else l) + "\n" for i, l in enumerate(lines))
        with tempfile.TemporaryDirectory() as d:
            open(d + "/a.s", "w").write(src)
            subprocess.run(["clang", "-x", "assembler", "-target", "amdgcn-amd-amdhsa", "-mcpu=gfx950", "-c", d + "/a.s", "-o", d + "/a.o"], check=True)
            out = subprocess.run(["llvm-objdump", "-t", d + "/a.o"], capture_output=True, text=True).stdout
        ad = {}
        for l in out.splitlines():
            w = l.split()
            if len(w) > 3 and w[-1][0] == "Z": ad[int(w[-1][1:])] = int(w[0], 16)
        return [ad[i] for i in range(len(lines))]

    def layout(self, body):
        fill = lambda n: [f".fill {n//4}, 4, 0xbf800000"] if n else []
        on = self.o["align"]
        while True:
            k = [i for i, l in enumerate(body) if l.startswith("@JUMPALIGN")]
            if not k: break
            i = k[0]; name = body[i].split()[1]
            a = self.addrs(body)[i] + 4
            body = body[:i] + [f"s_branch L_ja_{name}"] + (fill(-a % 4096) if on else []) + body[i+1:]
        i = body.index("@ALIGN"); a = self.addrs(body)[i]
        body = body[:i] + (fill(-a % 4096) if on and -a % 4096 < 1536 else []) + body[i+1:]
        ad = self.addrs(body)
        g = body.index("L_g1:")
        if on: body = body[:g] + fill(-ad[body.index("L_g1page:")] % 4096) + body[g:]
        ad = self.addrs(body)
        i = body.index("@JUMP2 g1p2"); a = ad[i] + 4
        if a - ad[body.index("L_g1page:")] > 4096: print("warning: attention page overflows")
        body = body[:i] + [f"s_branch L_ja_g1p2"] + (fill(-a % 4096) if on else []) + body[i+1:]
        return body

    def build(self):
        self.prologue(); self.g2()
        g2 = list(self.P.lines); self.P.lines = []
        self.g1()
        fb = self.P.lines.index("L_fallback:")
        lines = g2 + self.tail.lines + self.P.lines[:fb] + ["L_codeend:"] + self.P.lines[fb:]
        body, pad = pad_hazards(lines)
        body = self.layout(body)
        hdr = open(os.path.join(os.path.dirname(os.path.abspath(__file__)), "header.txt")).read()
        if self.o["stamps"]: hdr += "; STAMPS " + self.o["stamps"] + (" MIXED" if self.o["mixed"] else "") + (" REALTIME" if self.o.get("rt") else "") + "\n"
        s = hdr + "; @launch grid=(256,1,1) block=(512,1,1) lds=163840\n"
        s += '.amdgcn_target "amdgcn-amd-amdhsa--gfx950"\n.text\n'
        if self.o["align"]: s += ".p2align 12\n.fill 832, 4, 0xbf810000\n"
        s += f".globl {NAME}\n.p2align 8\n.type {NAME},@function\n{NAME}:\n"
        s += "\n".join(("" if l.endswith(":") else "    ") + l for l in body) + "\n    s_endpgm\n"
        s += f""".section .rodata,"a"
.p2align 6
.amdhsa_kernel {NAME}
  .amdhsa_next_free_vgpr 256
  .amdhsa_next_free_sgpr 102
  .amdhsa_accum_offset 256
  .amdhsa_group_segment_fixed_size 0
  .amdhsa_kernarg_size 88
  .amdhsa_user_sgpr_count 2
  .amdhsa_user_sgpr_kernarg_segment_ptr 1
  .amdhsa_system_sgpr_workgroup_id_x 1
.end_amdhsa_kernel
"""
        return s, pad

if __name__ == "__main__":
    opts = {}
    out = sys.argv[1]
    for a in sys.argv[2:]:
        k, v = a.split("=", 1); opts[k] = v if k in STR_OPTS else eval(v)
    s, pad = Gen(**opts).build()
    open(out, "w").write(s)
    print("written", out, "pad states", pad, "lines", s.count("\n"))
```

```python
import sys, math, struct, os
sys.path.insert(0, os.path.dirname(os.path.abspath(__file__)))
from asmlib import *

NAME = "concat_heads__spectral_fnet__sliding_block__prompt_kernel"

def f2u(x): return struct.unpack("<I", struct.pack("<f", x))[0]
def fl(x): return f"{f2u(x):#x}"

WS_E = 0
WS_KF, WS_VF, WS_OF, WS_TF, WS_XF = 0x10000, 0x18000, 0x20000, 0x28000, 0x30000
WS_K, WS_V, WS_O, WS_T = 0x201000, 0x401000, 0x601000, 0x7F0000
NPAGE = 4
WS_STAMP = 0xA80000
WS_SIZE = 0xB00000
PAIR = 64 * 3584
TST = 65536 + 384
SL = 8192
def L_X(q): return 2 * q * SL
def L_WK(q): return (2 * q + 1) * SL
def L_WQ(q): return (18 + q) * SL if q < 2 else (q - 2) * SL
L_XA = 14 * SL
def L_WV(q): return (5 + q) * SL
L_WO = 5 * SL
L_KT = 13 * SL
L_VT = 0
L_F = 13 * SL
L_FLAG = 18 * SL - 64
L_TS = 12 * SL
L_OUT = 12 * SL
L_M = 12 * SL
L_TT = 18 * SL
def L_O(q): return q * SL if q < 5 else (13 + q - 5) * SL
sNONCE = 6
sXB, sW, sWKV, sXA, sWO, sOUT, sWS = 20, 48, 28, 32, 36, 40, 44
sU, sRT, sP, sS2, sEG, sR, sCI, sWV = 52, 53, 54, 55, 56, 57, 58, 59
sSX, sSW = 60, 67
sT0, sT1, sT2, sT3, sT4, sT5 = 74, 75, 76, 77, 78, 79
sROT, sFO = 8, 9
sGB = [12, 13, 14, 15, 8]
sSTAMP = 80
NSTAMP = 11
SPIN = 1 << 14
sLS = 60
def bound(lab): return f"s_add_u32 s{sLS}, s{sLS}, 1\ns_cmp_gt_u32 s{sLS}, 0x100000\ns_cbranch_scc1 {lab}"
BIG = 2.0 ** 100

class Cnt:
    def __init__(self, prog, name, maxn):
        self.p, self.name, self.maxn = prog, name, maxn
        self.q = []
    def add(self, tag=None): self.q.append(tag)
    def wait(self, tag):
        idx = [i for i, t in enumerate(self.q) if t == tag]
        if not idx: return
        n = min(len(self.q) - 1 - idx[-1], self.maxn)
        self.p(f"s_waitcnt {self.name}({n})")
        self.q = self.q[len(self.q) - n:] if n else []
    def all(self):
        self.p(f"s_waitcnt {self.name}(0)"); self.q = []

def srd(P, d, lo, nrec):
    P(f"s_mov_b64 {sr(d,2)}, {sr(lo,2)}\ns_mov_b32 s{d+2}, {nrec:#x}\ns_mov_b32 s{d+3}, 0x20000")

def MF32(d, a, b, c): return f"v_mfma_f32_32x32x16_bf16 {vr(d,16)}, {vr(a,4)}, {vr(b,4)}, {c if isinstance(c,str) else vr(c,16)}"
def MF16(d, a, b, c): return f"v_mfma_f32_16x16x32_bf16 {vr(d,4)}, {vr(a,4)}, {vr(b,4)}, {c if isinstance(c,str) else vr(c,4)}"
NONCE = f"s_mul_i32 s{sNONCE}, s{sNONCE}, 0x9E3779C1\ns_add_u32 s{sNONCE}, s{sNONCE}, 0x7FEB3560"

STR_OPTS = ("sched7b", "ina7", "osched", "pre", "items", "stamps", "sched", "sched7", "schedT", "schedK", "schedV", "ina1", "outmod", "omod")

class Gen:
    def __init__(self, **o):
        self.o = dict(stamps=False, codepf=True, mixed=False, outmod="nt", olocal=True, omod="nt", pf7=True,
            hops=3, align=True, force_fb=False, pfwo=0, touch=8, pre="X0 W0 X1 W1", rot=3, warm=2, wo1=7,
            items="Q0b Q1 Q2 Q3b Q4 Q5b Q6b V0b V1b V2b V3b V4b V5b V6b", kack=0, lagqv={},
            g1f0=20, g1cuts={0: 16, 1: 16, 2: 16, 3: 16, 4: 16}, bk2=1, bva=0, otp=7, worot=0, k1st=3, vbars=(3, 2, 1, 0), btpos=0,
            sched="f226 nonce xt tl p7 K2 bK0 K3 f18 bK1 K4 hop bK2 K5 f18 bK3 K6 f18 bK4 A0 A1 A2 A3 f18 xa bK5 A4 A5 A6 bK6 Q0 Q1 f* xc page wA6 bS0 a1 join "
                  "lva Q5 lvb lvc lvw Q6 bQ2 p7b kf V0 V1 g30 bQ4 V2 V3 g16 bQ5 V4 g8 bQ6 V5 g8 bV0 V6 tst kp1 bV1 g12 bV2 g* bV3 kw1 bV4 k4 k3 bV5 bV6 one wk3 join2 "
                  "bS1 p:2 k2 k1 k0 tf O0 bS3 vf O1 O2 wk0 bS2 O3 O4 vp3 O5 O6",
            sched7b="tst kp1 g* bQ4 bQ5 kw1 bQ6 k4 k3 bS5 one wk3",
            sched7="X2 X3 f* ef X4 X5 X6 xa A0 A1 A2 A3 A4 A5 A6 bK6 Q0 Q1 xc lg0 bA6 a17",
            ina1="0:Q2 10:Q3 13:Q4", ina7="3:bS0,Q2 6:Q3 9:Q4")
        self.o.update(o)
        self.P = Prog()
        self.tail = Prog()

    def stamp(self, name):
        if self.o.get("jit") is not None:
            P = self.P
            if name == 0:
                P(f"s_memtime s[98:99]\ns_waitcnt lgkmcnt(0)\nv_readfirstlane_b32 s97, v0\ns_nop 0\ns_lshl_b32 s96, s2, 10\ns_add_u32 s97, s97, s96\ns_add_u32 s98, s98, s97\ns_mul_i32 s98, s98, 0x9E3779B1")
                return
            self._jl = getattr(self, "_jl", 0) + 1
            L = f"jit_{self._jl}"
            P(f"s_cselect_b32 s96, 1, 0\ns_mul_i32 s98, s98, 0x41C64E6D\ns_add_u32 s98, s98, 12345\ns_lshr_b32 s97, s98, {32 - self.o['jit']}\ns_cmp_lg_u32 s97, 0\ns_cbranch_scc1 {L}\ns_sleep {self.o.get('jitn', 24)}\n{L}:\ns_cmp_lg_u32 s96, 0")
            return
        if not self.o["stamps"]: return
        if name == 0: self.P(f"s_memtime {sr(sSTAMP, 2)}"); return
        for lst in self.o["stamps"].split("|"):
            l = lst.split(",")
            if name in l: self.P(f"{'s_memrealtime' if self.o.get('rt') else 's_memtime'} {sr(sSTAMP + 2*(1+l.index(name)), 2)}")

    def stamp_out(self):
        if not self.o["stamps"]: return
        P = self.P
        P(f"s_waitcnt vmcnt(0)\ns_memtime {sr(sSTAMP+16,2)}\ns_memrealtime {sr(sSTAMP+18,2)}\ns_waitcnt lgkmcnt(0)\ns_mov_b64 exec, 1")
        if self.o.get("enc") is not None:
            k = self.o["enc"]; L = P.label("enc"); D = P.label("encd")
            P(f"s_cmp_lg_u32 s{sWV}, {self.o['encwv']}\ns_cbranch_scc1 {D}\ns_cmp_eq_u32 s{sP}, 7\ns_cbranch_scc1 {D}")
            if self.o.get("encwg", -1) >= 0: P(f"s_cmp_lg_u32 s2, {self.o['encwg']}\ns_cbranch_scc1 {D}")
            if k == 9: P(f"s_sub_u32 s3, s{sSTAMP+18}, s{sSTAMP+20}\ns_lshl_b32 s3, s3, 2")
            else: P(f"s_sub_u32 s3, s{sSTAMP+2*k}, s{sSTAMP}\ns_lshr_b32 s3, s3, 2")
            P(f"s_min_u32 s3, s3, 50000\ns_add_u32 s3, s3, 5000")
            P(f"{L}:\ns_memrealtime s[4:5]\ns_waitcnt lgkmcnt(0)\ns_sub_u32 s4, s4, s{sSTAMP+20}\ns_cmp_lt_u32 s4, s3\ns_cbranch_scc1 {L}\n{D}:")
            return
        for i in range(NSTAMP): P(f"v_mov_b32 v{4+i}, s{sSTAMP+2*i}")
        P(f"s_getreg_b32 s3, hwreg(HW_REG_XCC_ID)\nv_mov_b32 v15, s3")
        P(f"s_lshl_b32 s3, s2, 3\ns_add_u32 s3, s3, s{sWV}\ns_lshl_b32 s3, s3, 6\ns_add_u32 s3, s3, {WS_STAMP:#x}\nv_mov_b32 v1, 0")
        for k in range(3): P(f"buffer_store_dwordx4 v[{4+4*k}:{7+4*k}], v1, {sr(sWS,4)}, s3 offen offset:{16*k}")

    def into(self, prog, f, *a):
        keep = self.P; lab = keep._lab
        self.P = prog; prog._lab = max(prog._lab, lab)
        f(*a)
        keep._lab = max(prog._lab, lab); self.P = keep

    HOPS = (("roleT",), ("g1p1",))
    LATE = ("fc", "g1p2")
    def pad(self, name, inline=False, E=None):
        E = E or self.P
        if name in self.LATE:
            if not self.o["hops"] & 2: return
            nxt = "L_pad_g1p2" if name == "fc" else "L_rolesdone"
        else:
            if not self.o["hops"] & 1 or name in ("done", "g2p1"): return
            nxt = "L_hopret"
            for ch in self.HOPS:
                if name in ch[:-1]: nxt = "L_pad_" + ch[ch.index(name) + 1]
        if inline: E(f"s_branch L_over_{name}\nL_pad_{name}:\ns_branch {nxt}\nL_over_{name}:")
        else: E(f"L_pad_{name}:\ns_branch {nxt}")

    def tr_addr(self, dst, t0, t1, perm, sbase):
        P = self.P
        P(f"v_bfe_u32 v{t0}, v0, 4, 1\nv_lshl_add_u32 v{t0}, v{t0}, 5, s{sbase}")
        if perm:
            P(f"v_and_b32 v{t1}, 1, v0\nv_lshl_add_u32 v{t0}, v{t1}, 4, v{t0}")
            P(f"v_bfe_u32 v{t1}, v0, 1, 1\nv_lshl_add_u32 v{t0}, v{t1}, 3, v{t0}")
        else:
            P(f"v_and_b32 v{t1}, 3, v0\nv_lshl_add_u32 v{t0}, v{t1}, 3, v{t0}")
        P(f"v_and_b32 v{t1}, 8, v0\nv_lshlrev_b32 v{t1}, 3, v{t1}\nv_xor_b32 v{t0}, v{t0}, v{t1}")
        P(f"v_and_b32 v{t1}, 44, v0\nv_lshl_add_u32 v{dst}, v{t1}, 5, v{t0}")

    def inbox_setup(self, base):
        self.P(f"s_lshl3_add_u32 s3, s{sRT}, s{sP}\ns_lshl_b32 s3, s3, 7\ns_add_u32 s{sT3}, s3, {base:#x}")
    def inbox_issue(self, E=None):
        (E or self.P)(f"s_load_dwordx16 s[20:35], s[18:19], s{sT3} glc")
    def inbox_wait(self):
        P = self.P; L = P.label("kvp")
        P(f"s_mov_b32 s{sT5}, {SPIN}\ns_mov_b32 s7, s{sNONCE}\n{L}:\ns_waitcnt lgkmcnt(0)")
        P("s_xor_b64 s[20:21], s[20:21], s[6:7]")
        for n in range(1, 5):
            P(f"s_xor_b64 {sr(20+2*n,2)}, {sr(20+2*n,2)}, s[6:7]\ns_or_b64 s[20:21], s[20:21], {sr(20+2*n,2)}")
        P(f"s_cbranch_scc0 {L}_d")
        self.inbox_issue()
        P(f"s_sub_u32 s{sT5}, s{sT5}, 1\ns_cbranch_scc0 {L}\ns_waitcnt lgkmcnt(0)\n{L}_d:")
    def group_bases(self, base):
        P = self.P
        P(f"s_mul_i32 s{sT1}, s{sP}, {PAIR}\ns_mul_i32 s3, s{sRT}, 7168\ns_add_u32 s3, s3, s{sT1}\ns_add_u32 s{sSX+4}, s3, {base:#x}")
        for n in range(4):
            P(f"s_sub_u32 s3, s{sSX+4}, {7168*(4-n)}\ns_cmp_lt_u32 s{sRT}, {4-n}\ns_cselect_b32 s{sSX+n}, s{sWS+2}, s3")

    def poll(self, addrs, vt, sbase):
        P = self.P
        L = P.label("poll")
        P(f"s_mov_b32 s{sT5}, 0\n{L}:")
        for k, (va, imm) in enumerate(addrs):
            P(f"buffer_load_dword v{vt+k}, v{va}, {sr(sWS,4)}, s{sbase} offen offset:{imm} sc1")
        P(f"s_add_u32 s{sT5}, s{sT5}, 1\ns_cmp_gt_u32 s{sT5}, {SPIN}\ns_cbranch_scc1 {L}_d\ns_waitcnt vmcnt(0)")
        for k in range(len(addrs)):
            P(f"v_cmp_ne_u32 vcc, s{sNONCE}, v{vt+k}\ns_cbranch_vccnz {L}")
        P(f"{L}_d:")

    def lds_wait(self, vflag, idx, val, vt):
        P = self.P
        L = P.label("lw")
        P(f"{L}:\nds_read_b32 v{vt}, v{vflag} offset:{4*idx}\n{bound(L + '_d')}\ns_waitcnt lgkmcnt(0)\nv_cmp_gt_u32 vcc, {val}, v{vt}\ns_cbranch_vccnz {L}\n{L}_d:")
    def lds_signal(self, vflag, idx, vt):
        self.P(f"v_mov_b32 v{vt}, 1\ns_mov_b64 exec, 1\nds_add_u32 v{vflag}, v{vt} offset:{4*idx}\ns_mov_b64 exec, -1")
    def lds_set(self, vflag, idx, vt, val):
        self.P(f"v_mov_b32 v{vt}, {val}\nds_write_b32 v{vflag}, v{vt} offset:{4*idx}")

    def scratch_addr(self, vWR, vRD, base, t):
        P = self.P
        P(f"s_lshl_b32 s3, s{sU}, 11\ns_add_u32 s3, s3, {base}")
        P(f"v_and_b32 v{t}, 31, v0\nv_lshrrev_b32 v{t+1}, 5, v0\nv_bfe_u32 v{t+2}, v0, 1, 2\nv_xor_b32 v{t+2}, v{t+2}, v{t+1}")
        P(f"v_lshl_add_u32 v{t+3}, v{t}, 6, s3\nv_lshl_add_u32 v{vWR}, v{t+2}, 4, v{t+3}\nv_xor_b32 v{vWR+1}, 32, v{vWR}")
        P(f"v_lshl_add_u32 v{vRD}, v0, 4, s3")
        P(f"v_lshrrev_b32 v{t+2}, 2, v0\nv_lshrrev_b32 v{t+3}, 3, v0\nv_xor_b32 v{t+3}, v{t+3}, v0\nv_and_b32 v{t+3}, 3, v{t+3}\nv_lshlrev_b32 v{t+3}, 4, v{t+3}")

    def out_epilogue(self, acc, pk, vwr, vrd, vg0, vg1, soff, mod):
        P = self.P
        for h in range(2):
            for i in range(4): P(f"v_cvt_pk_bf16_f32 v{pk+4*h+i}, v{acc+8*h+2*i}, v{acc+8*h+2*i+1}")
            P(f"ds_write_b128 v{vwr+h}, {vr(pk+4*h,4)}")
        P(f"ds_read_b128 {vr(pk,4)}, v{vrd}\nds_read_b128 {vr(pk+4,4)}, v{vrd} offset:1024")
        P(f"s_waitcnt lgkmcnt(1)\nbuffer_store_dwordx4 {vr(pk,4)}, v{vg0}, {sr(sOUT,4)}, {soff} offen {mod}")
        P(f"s_waitcnt lgkmcnt(0)\nbuffer_store_dwordx4 {vr(pk+4,4)}, v{vg1}, {sr(sOUT,4)}, {soff} offen {mod}")

    def prologue(self):
        P = self.P; o = self.o
        P(f"s_cmpk_ge_u32 s2, 256\ns_cbranch_scc1 L_end")
        P(f"s_load_dwordx2 {sr(sXB,2)}, s[0:1], 40\ns_load_dwordx2 {sr(sWKV,2)}, s[0:1], 48\ns_load_dwordx8 s[12:19], s[0:1], 56\ns_load_dwordx2 {sr(sXA,2)}, s[0:1], 0")
        if o["stamps"]:
            P(f"s_memrealtime {sr(sSTAMP + 2*(NSTAMP-1), 2)}")
        self.stamp(0)
        P(f"v_readfirstlane_b32 s{sWV}, v0\nv_and_b32 v0, 63, v0\ns_and_b32 s3, s2, 7\ns_lshr_b32 s7, s2, 3\ns_lshr_b32 s{sWV}, s{sWV}, 6")
        if o["mixed"]:
            P(f"s_and_b32 s{sP}, s3, 1\ns_lshl_b32 s{sP}, s{sP}, 2\ns_and_b32 s{sT1}, s7, 3\ns_add_u32 s{sP}, s{sP}, s{sT1}\ns_lshr_b32 s{sT0}, s7, 2")
            P(f"s_lshr_b32 s{sRT}, s3, 1\ns_lshl3_add_u32 s{sRT}, s{sRT}, s{sT0}\ns_lshl1_add_u32 s{sT0}, s{sT1}, s{sT0}")
        else:
            P(f"s_and_b32 s{sP}, s7, 7\ns_lshr_b32 s{sT0}, s7, 3\ns_lshl2_add_u32 s{sRT}, s3, s{sT0}")
            P({0: f"s_lshl1_add_u32 s{sT0}, s{sT0}, s{sP}", 1: f"s_mov_b32 s{sT0}, s{sP}", 2: f"s_add_u32 s{sT0}, s{sT0}, s{sP}",
               3: f"s_and_b32 s{sT0}, s{sT0}, 1\ns_lshl2_add_u32 s{sT0}, s{sT0}, s{sP}"}[o["rot"]])
        P(f"s_and_b32 s{sU}, s{sWV}, 3\ns_and_b32 s{sR}, s{sU}, 1\ns_lshr_b32 s{sCI}, s{sU}, 1\ns_lshl_b32 s{sT4}, s{sU}, 10")
        P(f"s_cmp_lt_u32 s{sWV}, 4\ns_cbranch_scc1 L_g2")
        if o["codepf"]:
            P(f"s_getpc_b64 s[{sT2}:{sT3}]\nL_pc:")
            P(f"s_lshl2_add_u32 s{sT1}, s7, s{sU}\ns_lshl_b32 s{sT1}, s{sT1}, 8\nv_lshl_add_u32 v2, v0, 2, s{sT1}\nv_min_u32 v2, L_codeend-L_pc-4, v2")
            P(f"v_mov_b32 v3, s{sT3}\nv_add_co_u32 v2, vcc, s{sT2}, v2\nv_addc_co_u32 v3, vcc, 0, v3, vcc")
            P(f"global_load_dword v47, v[2:3], off")
        if o["warm"]:
            P(f"s_lshl2_add_u32 s{sT1}, s2, s{sU}\ns_mulk_i32 s{sT1}, 1184\nv_mul_u32_u24 v2, 20, v0\ns_mov_b32 s{sWKV+2}, {448*2688:#x}\ns_mov_b32 s{sWKV+3}, 0x20000")
            P(f"s_waitcnt lgkmcnt(0)\nbuffer_load_dword v47, v2, {sr(sWKV,4)}, s{sT1} offen")
        P(f"s_branch L_g1")
        P(f"L_g2:")

    def const_stream(self):
        F = []
        vE, vB, vK, vA, vC = 12, 13, 10, 40, 42
        CC, SS = 144, 172
        F += [f"s_lshl2_add_u32 s3, s{sEG}, s{sU}", f"v_and_b32 v{vA}, 15, v0", f"v_lshl_add_u32 v{vA}, s3, 4, v{vA}", f"v_cvt_f32_u32 v{vA}, v{vA}",
              f"v_mul_f32 v{vE}, {fl(1/448)}, v{vA}", f"v_cos_f32 v{vK}, v{vE}",
              f"v_lshrrev_b32 v{vA}, 1, v0", f"v_and_b32 v{vA}, 24, v{vA}", f"v_cvt_f32_u32 v{vA}, v{vA}", f"v_mul_f32 v{vB}, v{vE}, v{vA}",
              f"v_add_f32 v{vK}, v{vK}, v{vK}", f"v_mov_b32 v{vK+1}, v{vK}"]
        for ks in range(7):
            for j in range(2): F.append(f"v_fmamk_f32 v{vA+j}, v{vE}, {fl(32*ks+j)}, v{vB}")
            for j in range(2): F += [f"v_cos_f32 v{vC+2*j}, v{vA+j}", f"v_sin_f32 v{vC+2*j+1}, v{vA+j}"]
            def cv(jj):
                return [f"v_cvt_pk_bf16_f32 v{CC+4*ks+jj}, v{vC+4*jj}, v{vC+4*jj+2}", f"v_cvt_pk_bf16_f32 v{SS+4*ks+jj}, v{vC+4*jj+1}, v{vC+4*jj+3}"]
            pend = cv(0)
            for j in range(2, 8):
                F.append(pend.pop(0))
                if self.o.get("pk", True):
                    F.append(f"v_pk_fma_f32 {vr(vC+2*j,2)}, {vr(vK,2)}, {vr(vC+2*j-2,2)}, {vr(vC+2*j-4,2)} neg_lo:[0,0,1] neg_hi:[0,0,1]")
                else:
                    F += [f"v_fma_f32 v{vC+2*j+h}, v{vK}, v{vC+2*j-2+h}, -v{vC+2*j-4+h}" for h in range(2)]
                if j & 1: pend += cv(j >> 1)
            F += pend
        F += [f"v_and_b32 v{vA}, 15, v0", f"v_cvt_f32_u32 v{vA}, v{vA}", f"v_mul_f32 v{vE}, {fl(1/32)}, v{vA}",
              f"v_lshrrev_b32 v{vA}, 2, v0", f"v_and_b32 v{vA}, 12, v{vA}", f"v_cvt_f32_u32 v{vA}, v{vA}", f"v_mul_f32 v{vC}, v{vE}, v{vA}"]
        for j in range(1, 4): F.append(f"v_add_f32 v{vC+j}, v{vE}, v{vC+j-1}")
        for j in range(4): F.append(f"v_sin_f32 v{vC+4+j}, v{vC+j}")
        for j in range(4): F.append(f"v_cos_f32 v{vC+j}, v{vC+j}")
        F += [f"v_and_b32 v{vA}, 1, v0", f"s_mov_b32 s3, 0x80008000", f"v_mul_lo_u32 v{vA}, v{vA}, s3", f"s_brev_b32 s3, 1"]
        for m in range(2):
            for jj in range(2): F.append(f"v_cvt_pk_bf16_f32 v{96+8*m+jj}, v{vC+4*m+2*jj}, v{vC+4*m+2*jj+1}")
        for m in range(2):
            for jj in range(2): F.append(f"v_xor_b32 v{96+8*m+2+jj}, v{vA}, v{96+8*m+jj}")
        for m in range(2):
            for jj in range(4): F.append(f"v_xor_b32 v{96+8*m+4+jj}, s3, v{96+8*m+jj}")
        F += [f"v_and_b32 v{vA}, 15, v0", f"v_lshrrev_b32 v{vA+1}, 1, v{vA}", f"v_lshlrev_b32 v{vA}, 7, v{vA}",
              f"v_add_u32 v{vA}, {L_XA}, v{vA}",
              f"v_lshrrev_b32 v{vC}, 4, v0", f"v_xor_b32 v{vC}, v{vC}, v{vA+1}",
              f"v_lshl_add_u32 v8, v{vC}, 4, v{vA}", f"v_xor_b32 v9, 64, v8", f"v_lshl_or_b32 v11, v0, 31, 1.0",
              f"v_mov_b32 v15, {L_FLAG}"]
        return F

    def g2(self):
        P = self.P; o = self.o; T = self.tail
        vx0, vx1, vw0, vw1, vq0, vq1, vxa = 1, 2, 3, 4, 5, 6, 7
        P(f"v_lshrrev_b32 v16, 3, v0\nv_lshl_add_u32 v16, s{sU}, 3, v16")
        P(f"v_lshrrev_b32 v17, 1, v16\nv_xor_b32 v17, v17, v0\nv_and_b32 v17, 7, v17\nv_lshlrev_b32 v17, 4, v17")
        P(f"v_mul_u32_u24 v{vx0}, 896, v16\nv_add_u32 v{vx0}, v{vx0}, v17\nv_add_u32 v{vx1}, {32*896}, v{vx0}")
        P(f"v_lshrrev_b32 v18, 2, v0\nv_and_b32 v18, 4, v18\nv_xor_b32 v18, v18, v0\nv_and_b32 v18, 7, v18")
        P(f"v_mul_u32_u24 v19, 2688, v16\ns_add_u32 s{sT1}, s{sP}, 7\ns_lshl_b32 s{sT1}, s{sT1}, 7")
        P(f"v_lshl_add_u32 v{vw0}, v18, 4, v19\nv_add_u32 v{vw0}, s{sT1}, v{vw0}\nv_add_u32 v{vw1}, {32*2688}, v{vw0}")
        P(f"s_sub_u32 s{sT1}, s{sT0}, 7\ns_cselect_b32 s{sROT}, s{sT0}, s{sT1}\ns_mul_i32 s{sT2}, s{sRT}, {64*896}")
        P(f"s_lshl_b32 s{sT1}, s{sROT}, 7\ns_add_u32 s{sSX}, s{sT1}, s{sT2}\ns_mul_i32 s{sSW}, s{sROT}, {64*2688}")
        P(f"s_add_u32 s{sSW+1}, s{sSW}, {64*2688}\ns_add_u32 s{sSX+1}, s{sSX}, 128\ns_cmp_eq_u32 s{sROT}, 6\ns_cselect_b32 s{sSW+1}, 0, s{sSW+1}\ns_cselect_b32 s{sSX+1}, s{sT2}, s{sSX+1}")
        P(f"s_cmp_eq_u32 s{sP}, 7\ns_cselect_b32 s{sWKV+2}, 0, {448*2688:#x}")
        P(f"s_mov_b32 s{sWKV+3}, 0x20000\ns_mov_b32 s{sXB+2}, {2048*896:#x}\ns_mov_b32 s{sXB+3}, 0x20000\ns_mov_b32 m0, s{sT4}")
        P(f"s_waitcnt lgkmcnt(0)")
        self.stamp("karg")
        vm = Cnt(P, "vmcnt", 63)
        cur = 0
        pre = []
        for t in o["pre"].split():
            q = int(t[1])
            if t[0] == "X": pre += [(("K", q), L_X(q), vx0, sXB, sSX + q, 0), (("K", q), L_X(q) + 4096, vx1, sXB, sSX + q, 0)]
            if t[0] == "W": pre += [(("K", q), L_WK(q), vw0, sWKV, sSW + q, 0), (("K", q), L_WK(q) + 4096, vw1, sWKV, sSW + q, 0)]
            if t[0] == "V": pre += [(("V", q), L_WV(q), vw0, sWKV, sSW + q, 896), (("V", q), L_WV(q) + 4096, vw1, sWKV, sSW + q, 896)]
        for tag, lds, va, sd, so, imm in pre:
            d = lds - imm - cur; cur = lds - imm
            if d: P(f"s_addk_i32 m0, {d}" if abs(d) < 32768 else f"s_add_u32 m0, s{sT4}, {cur}")
            P(f"buffer_load_dwordx4 v{va}, {sr(sd,4)}, s{so} offen" + (f" offset:{imm}" if imm else "") + " lds"); vm.add(tag)
        self.stamp("dma0")
        P(f"s_load_dword s{sNONCE}, s[18:19], {WS_E}")
        P(f"s_lshr_b32 s{sT1}, s7, 2\ns_lshl3_add_u32 s{sS2}, s3, s{sT1}\ns_and_b32 s{sEG}, s7, 3")
        for q in range(2, 7):
            P(f"s_add_u32 s{sSX+q}, s{sSX+q-1}, 128\ns_add_u32 s{sSW+q}, s{sSW+q-1}, {64*2688}\ns_cmp_eq_u32 s{sROT}, {7-q}\ns_cselect_b32 s{sSX+q}, s{sT2}, s{sSX+q}\ns_cselect_b32 s{sSW+q}, 0, s{sSW+q}")
        A = Prog()
        srd(A, sW, sWKV, 448*2688); srd(A, sWS, 18, WS_SIZE); srd(A, sWO, 12, 448*896); srd(A, sOUT, 14, 2048*1792)
        A(f"s_mov_b32 s{sXA+2}, {2048*896:#x}\ns_mov_b32 s{sXA+3}, 0x20000\ns_mul_i32 s3, s{sS2}, 896")
        A(f"v_mul_u32_u24 v{vxa}, {64*896}, v16\nv_add3_u32 v{vxa}, v{vxa}, v17, s3")
        A(f"v_min_u32 v20, 6, v18\ns_mul_i32 s3, s{sP}, 112\nv_lshl_add_u32 v{vq0}, v20, 4, v19\nv_add_u32 v{vq0}, s3, v{vq0}\nv_add_u32 v{vq1}, {32*2688}, v{vq0}")
        A(f"s_cmp_eq_u32 s{sP}, 7\ns_cselect_b32 s{sFO}, 1, 0\ns_cmp_eq_u32 s{sR}, 0\ns_cselect_b32 s{sFO}, s{sFO}, 2")
        F = A.lines + self.const_stream()
        fi = 0
        def fill(n):
            nonlocal fi
            while fi + n < len(F) and F[fi + n].startswith(("s_cselect", "s_addc")): n += 1
            for l in F[fi:fi + n]: P(l)
            fi = min(len(F), fi + n)
        nbar = 0
        safe = {k: min(k // 2 + 3, 8) for k in range(14)}
        def dma(tag, lds, va, srdn, soff):
            if tag[0] != "K" and (lds // SL) in safe: assert nbar >= safe[lds // SL], ("WAR", tag, nbar)
            P(f"s_add_u32 m0, s{sT4}, {lds}\nbuffer_load_dwordx4 v{va}, {sr(srdn,4)}, s{soff} offen lds"); vm.add(tag)
        def ld(kind, q):
            if kind == "K":
                dma(("K", q), L_X(q), vx0, sXB, sSX + q); dma(("K", q), L_WK(q), vw0, sWKV, sSW + q)
                dma(("K", q), L_X(q) + 4096, vx1, sXB, sSX + q); dma(("K", q), L_WK(q) + 4096, vw1, sWKV, sSW + q)
            elif kind == "X":
                dma(("K", q), L_X(q), vx0, sXB, sSX + q); dma(("K", q), L_X(q) + 4096, vx1, sXB, sSX + q)
            elif kind == "V":
                if q == 0: P(f"v_add_u32 v{vw0}, 896, v{vw0}\nv_add_u32 v{vw1}, 896, v{vw1}\ns_mov_b64 s[60:61], {sr(sWKV,2)}\ns_mov_b32 s62, s{sWKV+2}\ns_mov_b32 s63, 0x20000")
                dma(("V", q), L_WV(q), vw0, 60, sSW + q); dma(("V", q), L_WV(q) + 4096, vw1, 60, sSW + q)
            elif kind == "Q":
                dma(("Q", q), L_WQ(q), vq0, sW, sSW + q); dma(("Q", q), L_WQ(q) + 4096, vq1, sW, sSW + q)
            elif kind == "O":
                if q == 0: pass
                else:
                    P(f"s_add_u32 s65, s65, 1\ns_cmp_eq_u32 s65, 7\ns_cselect_b32 s65, 0, s65")
                P(f"s_lshl_b32 s3, s65, 13\ns_add_u32 m0, s3, s66\ns_mul_i32 s3, s65, {64*896}\nbuffer_load_dwordx4 v12, {sr(sWO,4)}, s3 offen lds")
                P(f"s_addk_i32 m0, 4096\nbuffer_load_dwordx4 v13, {sr(sWO,4)}, s3 offen lds"); vm.add(("O", q)); vm.add(("O", q))
            elif kind == "A":
                P(f"s_add_u32 m0, s{sT4}, {L_XA + q*(4096-128)}\nbuffer_load_dwordx4 v{vxa}, {sr(sXA,4)}, 0 offen offset:{q*128} lds"); vm.add(("A", q))
        def bar(name, tag=None):
            nonlocal nbar
            self.stamp("f" + name)
            if tag: vm.wait(tag)
            self.stamp("w" + name)
            P("s_barrier"); nbar += 1
            self.stamp("b" + name)
        def only(cond, f):
            L = P.label("sk")
            P(f"{cond}\ns_cbranch_scc0 {L}"); f(); P(f"{L}:")
        FO = [24, 25, 26, 27, 11]
        def flag_setup(E):
            E(f"s_add_u32 s3, s{sP}, s{sCI}\ns_and_b32 s3, s3, 7\ns_lshl_b32 s3, s3, 5\ns_sub_u32 s3, s3, s{sCI}\ns_lshl2_add_u32 s3, s3, {WS_KF + 4:#x}")
            for d in range(5):
                E(f"s_add_u32 s7, s{sRT}, {d}\ns_and_b32 s7, s7, 31\ns_lshl_b32 s7, s7, 10\ns_add_u32 s{FO[d]}, s7, s3\ns_add_u32 s3, s3, 8")
            E(f"s_add_u32 s4, s18, {WS_VF - WS_KF:#x}\ns_addc_u32 s5, s19, 0")
        def sflag(bases, early):
            def f():
                for bs in bases:
                    for d in range(5): P(f"s_atomic_swap s{sNONCE}, {bs}, s{FO[d]}")
            only(f"s_cmp_eq_u32 s{sFO}, {int(early)}", f)
        CC, SS, ZC, ZS, ZH = 144, 172, 64, 72, 136
        vFL = 15
        lgx = Cnt(P, "lgkmcnt", 15)
        MM, M2 = 216, 80
        def a1(ina):
            NX = 6
            def xreg(ks): return (24, 32, 40, 48, 56, 112)[ks % NX]
            def xread(ks):
                for mt in range(2):
                    P(f"ds_read_b128 {vr(xreg(ks) + 4*mt, 4)}, v{8 + (ks & 1)} offset:{(ks>>1)*4096 + mt*2048}"); lgx.add(("x", ks))
            for ks in range(NX - 1): xread(ks)
            inl = dict(t.split(":") for t in ina.split())
            for ks in range(14):
                if str(ks) in inl:
                    if "kf" in inl[str(ks)] or "kp1" in inl[str(ks)]: assert not lgx.q and ks >= 15 - NX
                    run(inl[str(ks)].replace(",", " "))
                lgx.wait(("x", ks))
                x = xreg(ks); z = ZH if ks >= 7 else 0; kk = 4 * (ks % 7)
                c = (lambda r: "0" if kk == 0 else r)
                P(MF16(ZC + z, x, CC + kk, c(ZC + z)))
                P(MF16(ZS + z, x, SS + kk, c(ZS + z)))
                if ks + NX - 1 < 14: xread(ks + NX - 1)
                P(MF16(ZC + z + 4, x + 4, CC + kk, c(ZC + z + 4)))
                P(MF16(ZS + z + 4, x + 4, SS + kk, c(ZS + z + 4)))
            self.stamp("a1")
        def fm_read():
            assert not lgx.q
            for k in range(4): P(f"ds_read_b128 {vr(96+4*k,4)}, v134 offset:{L_F - L_M + 1024*k}"); lgx.add("F")
            for k in range(8): P(f"ds_read_b128 {vr(MM+4*k,4)}, v134 offset:{1024*k}"); lgx.add("F")
        ZR, ZP, ZN, TA = 80, 84, 88, 40
        vTR, vWR, vRD, vG0, vG1, vOR, vA0, vA1, vTA, vTW, vTG = 120, 122, 121, 124, 125, 126, 136, 137, 138, 140, 141
        sOB, sAB = 10, 64
        def lva():
            for i in range(16): P(f"v_fmac_f32 v{ZC+i}, v11, v{ZC+ZH+i}")
            for i in range(4): P(f"v_cvt_pk_bf16_f32 v{ZR+i}, v{ZC+2*i}, v{ZC+2*i+1}")
            for i in range(4): P(f"v_cvt_pk_bf16_f32 v{ZP+i}, v{ZS+2*i}, v{ZS+2*i+1}")
            for i in range(4): P(f"v_cvt_pk_bf16_f32 v{ZN+i}, -v{ZS+2*i}, -v{ZS+2*i+1}")
        def lvb():
            for nt in range(2):
                P(MF16(TA + 8*nt, ZR, 96 + 4*nt, "0")); P(MF16(TA + 8*nt + 4, ZR, 104 + 4*nt, "0"))
            for nt in range(2):
                P(MF16(TA + 8*nt, ZN, 104 + 4*nt, TA + 8*nt)); P(MF16(TA + 8*nt + 4, ZP, 96 + 4*nt, TA + 8*nt + 4))
        def lvc():
            for nt in range(2):
                for r_ in range(4): P(f"v_cvt_pk_bf16_f32 v{56+4*nt+r_}, v{TA+8*nt+r_}, v{TA+8*nt+4+r_}")
        def lvw():
            for nt in range(2): P(f"ds_write_b128 v{vTW}, {vr(56+4*nt,4)} offset:{SL + 1024*nt}"); lgx.add("w")
            for nt in range(2): P(f"ds_read_b128 {vr(24+4*nt,4)}, v{vRD} offset:{SL + 1024*nt}"); lgx.add("t")
        def t_store():
            lgx.wait("t")
            P(f"buffer_store_dwordx4 v[24:27], v{vTG}, {sr(sWS,4)}, s{sT0} offen sc1\ns_add_u32 s{sT0}, s{sT0}, {16*TST}\nbuffer_store_dwordx4 v[28:31], v{vTG}, {sr(sWS,4)}, s{sT0} offen sc1")
            vm.add(("T", 0)); vm.add(("T", 0)); self.stamp("tst")
        def t_addr():
            P = self.P
            P(f"s_lshl1_add_u32 s3, s{sT4}, {L_OUT}\nv_lshl_add_u32 v{vRD}, v0, 4, s3\nv_and_b32 v18, 15, v0\nv_lshl_add_u32 v19, v18, 6, s3")
            P(f"v_lshrrev_b32 v18, 3, v0\nv_xor_b32 v20, v18, v0\nv_bfe_u32 v21, v20, 1, 2\nv_lshl_add_u32 v{vTW}, v21, 4, v19")
            P(f"v_and_b32 v20, 3, v20\nv_lshlrev_b32 v142, 4, v20\nv_lshrrev_b32 v143, 2, v0\nv_mul_u32_u24 v18, {TST}, v143\nv_add_u32 v{vTG}, v18, v142")
            P(f"s_lshl1_add_u32 s3, s{sEG}, s{sCI}\ns_lshl_b32 s3, s3, 13\ns_lshl1_add_u32 s7, s{sS2}, s{sR}\ns_lshl_b32 s7, s7, 6\ns_add_u32 s3, s3, s7\ns_add_u32 s{sT0}, s3, {WS_T:#x}")
        def t_flag():
            def f():
                P(f"s_lshr_b32 s7, s{sS2}, 3\ns_lshl3_add_u32 s3, s{sEG}, s7\ns_lshl_b32 s3, s3, 7\ns_and_b32 s7, s{sS2}, 7\ns_lshl2_add_u32 s3, s7, s3")
                P(f"s_add_u32 s3, s3, {WS_TF:#x}\ns_atomic_swap s{sNONCE}, s[18:19], s3")
            only(f"s_cmp_eq_u32 s{sU}, 1", f)
        def addr1():
            P = self.P
            P(f"v_and_b32 v16, 31, v0\nv_lshrrev_b32 v17, 5, v0\nv_bfe_u32 v18, v0, 1, 2\nv_xor_b32 v18, v18, v17\ns_lshl1_add_u32 s3, s{sT4}, {L_OUT}")
            P(f"v_lshl_add_u32 v19, v16, 6, s3\nv_lshl_add_u32 v{vWR}, v18, 4, v19\nv_xor_b32 v{vWR+1}, 32, v{vWR}")
            P(f"v_mul_u32_u24 v{vG0}, 1792, v143\nv_add_u32 v{vG0}, v{vG0}, v142\nv_add_u32 v{vG1}, {16*1792}, v{vG0}")
            P(f"s_lshl_b32 s3, s{sR}, 12\nv_lshl_add_u32 v{vOR}, v16, 3, s3\nv_lshl_add_u32 v{vOR}, v17, 9, v{vOR}")
            P(f"s_lshl1_add_u32 s3, s{sRT}, s{sR}\ns_mul_i32 s3, s3, {32*1792}\ns_lshl1_add_u32 s7, s{sP}, s{sCI}\ns_lshl_b32 s7, s7, 6\ns_add_u32 s3, s3, s7\ns_add_u32 s{sOB}, s3, 896")
            P(f"s_lshl_b32 s3, s{sCI}, 6\ns_add_u32 s3, s3, {L_WO}")
            self.tr_addr(vTR, 18, 19, True, 3)
        def addr2():
            P = self.P
            P(f"s_lshl_b32 s3, s{sR}, 10\ns_add_u32 s3, s3, s{sRT}\nv_lshl_add_u32 v18, v143, 5, s3\ns_cmp_eq_u32 s{sCI}, 1\ns_cselect_b64 vcc, -1, 0")
            for dst in (vA0, vA1):
                P(f"v_sub_u32 v19, 0, v18\nv_and_b32 v19, 2047, v19\nv_cndmask_b32 v19, v18, v19, vcc\nv_mul_u32_u24 v19, 1792, v19\nv_add_u32 v{dst}, v19, v142")
                if dst == vA0: P("v_add_u32 v18, 512, v18")
            P(f"v_and_b32 v18, 19, v0\nv_bfe_u32 v19, v0, 2, 1\nv_lshl_add_u32 v18, v19, 3, v18\nv_bfe_u32 v19, v0, 3, 1\nv_lshl_add_u32 v18, v19, 2, v18")
            P(f"v_sub_u32 v19, 32, v18\nv_cndmask_b32 v18, v18, v19, vcc\nv_lshrrev_b32 v19, 5, v18\nv_and_b32 v18, 31, v18\nv_lshlrev_b32 v18, 2, v18")
            P(f"v_lshl_add_u32 v18, v19, 13, v18\nv_lshl_add_u32 v18, v17, 10, v18\nv_add_u32 v{vTA}, {L_TT}, v18\nv_add_u32 v{vTA+1}, 128, v{vTA}")
            P(f"s_lshl_b32 s3, s{sP}, 6\ns_sub_u32 s7, 832, s3\ns_cmp_eq_u32 s{sCI}, 1\ns_cselect_b32 s{sAB}, s7, s3")
        def addr3():
            P = self.P
            P(f"v_lshrrev_b32 v18, 3, v0\nv_lshl_add_u32 v18, s{sU}, 3, v18\nv_mul_u32_u24 v12, 896, v18\nv_and_b32 v18, 4, v143\nv_xor_b32 v18, v18, v0\nv_and_b32 v18, 7, v18")
            P(f"s_lshl_b32 s3, s{sP}, 7\nv_lshl_add_u32 v12, v18, 4, v12\nv_add_u32 v12, s3, v12\nv_add_u32 v13, {32*896}, v12")
            P(f"s_and_b32 s65, s{sRT}, 3\ns_mul_i32 s65, s65, {o.get('worot', 2)}\ns_cmp_eq_u32 s{sP}, 7\ns_cselect_b32 s{sWO+2}, 0, s{sWO+2}\ns_add_u32 s66, s{sT4}, {L_WO}")
        G = []; gi = 0
        for f in (addr3, addr1, addr2):
            B = Prog(); self.into(B, f); G += B.lines
        if o.get("verbose"): print("second filler", len(G))
        def fill2(n):
            nonlocal gi
            while gi + n < len(G) and G[gi + n].startswith(("s_cselect", "s_addc")): n += 1
            for l in G[gi:gi + n]: P(l)
            gi = min(len(G), gi + n)
        vD0, vKA, vKB, vWO = 14, 127, 135, 13
        sKB = 0
        def role_setup():
            P = self.P
            P(f"v_lshlrev_b32 v{vD0}, 4, v0\nv_add_u32 v{vKA}, s{sT4}, v{vD0}\ns_add_u32 s3, s{sT4}, 4096\ns_min_u32 s{sKB}, s3, 6144\nv_add_u32 v{vKB}, s{sKB}, v{vD0}")
            P(f"s_lshl3_add_u32 s3, s{sRT}, s{sP}\ns_lshl_b32 s3, s3, 7\ns_mul_i32 s7, s{sCI}, {WS_VF - WS_KF:#x}\ns_add_u32 s3, s3, s7\ns_add_u32 s{sT3}, s3, {WS_KF:#x}")
            P(f"s_mul_i32 s{sT1}, s{sP}, {PAIR}\ns_mul_i32 s3, s{sRT}, 7168\ns_add_u32 s3, s3, s{sT1}\ns_add_u32 s{sGB[4]}, s3, {WS_K:#x}")
            for n in range(4):
                P(f"s_sub_u32 s3, s{sGB[4]}, {7168*(4-n)}\ns_cmp_lt_u32 s{sRT}, {4-n}\ns_cselect_b32 s{sGB[n]}, s{sWS+2}, s3")
            P(f"s_mul_i32 s3, s{sU}, 10\nv_lshrrev_b32 v132, 1, v0\nv_add_u32 v132, s3, v132\nv_lshl_add_u32 v133, s{sRT}, 3, v132\nv_cmp_le_u32 vcc, 32, v133")
            P(f"v_mov_b32 v129, 0x3f803f80\nv_and_b32 v133, 1, v0\nv_cndmask_b32 v128, 0, v129, vcc\nv_lshlrev_b32 v133, 6, v133\nv_lshl_add_u32 v132, v132, 10, v133")
            P(f"v_mov_b32 v129, v128\nv_mov_b32 v130, v128\nv_mov_b32 v131, v128\nv_add_u32 v134, {L_M}, v{vD0}")
        def ones():
            P(f"s_mov_b64 exec, 0xfffff\nds_write_b128 v132, v[128:131] offset:{L_VT + 896}\ns_mov_b64 exec, -1"); lgx.add("o")
        def k_ld(n):
            for sb, va in ((sT4, vKA), (sKB, vKB)):
                P(f"s_add_u32 m0, s{sb}, {L_KT + n*7168}\nbuffer_load_dwordx4 v{va}, {sr(sWS,4)}, s{sGB[n]} offen sc1 lds"); vm.add(("k", n))
        for f in (role_setup, lambda: flag_setup(self.P), t_addr):
            B = Prog(); self.into(B, f); F += B.lines
            if o.get("verbose"): print("filler length", len(F) - len(B.lines), len(F))
        def die_tell():
            P(f"s_getreg_b32 s4, hwreg(HW_REG_XCC_ID, 0, 4)\ns_lshl_b32 s{sT5}, s{sRT}, 7\ns_add_u32 s{sT2}, s{sT5}, {WS_XF:#x}\ns_lshl2_add_u32 s{sT5}, s{sP}, s{sT2}")
            P(f"s_add_u32 s16, s4, s{sNONCE}\ns_mov_b32 s17, s16\ns_atomic_swap s17, s[18:19], s{sT5}")
        def die_ask(): P(f"s_load_dwordx8 s[20:27], s[18:19], s{sT2} glc")
        def die_check():
            Lx = P.label("xm")
            P(f"s_mov_b32 s{sT5}, {SPIN}\n{Lx}:\ns_waitcnt lgkmcnt(0)")
            for k in range(4): P(f"s_cmp_lg_u64 {sr(20+2*k,2)}, s[16:17]\ns_cbranch_scc1 {Lx}_n")
            P(f"v_mov_b32 v21, {1 if o['olocal'] else 0}\n{Lx}_e:\nds_write_b32 v{vFL}, v21 offset:12\ns_waitcnt lgkmcnt(0)")
            T(f"{Lx}_n:\ns_sub_u32 s20, s20, s6")
            for k in range(1, 8): T(f"s_sub_u32 s{20+k}, s{20+k}, s6\ns_max_u32 s20, s20, s{20+k}")
            T(f"s_cmp_lt_u32 s20, 16\ns_cbranch_scc1 {Lx}_s\ns_load_dwordx8 s[20:27], s[18:19], s{sT2} glc\ns_sub_u32 s{sT5}, s{sT5}, 1\ns_cbranch_scc0 {Lx}\n{Lx}_s:\nv_mov_b32 v21, 0\ns_branch {Lx}_e")
        p7state = {}
        def run(sched, extra={}):
            for tok in sched.split():
                if tok in extra: extra[tok]()
                elif tok[0] in "KVQAXO" and tok[1:].isdigit(): ld(tok[0], int(tok[1:]))
                elif tok[0] == "f" and tok != "fs": fill(len(F) if tok == "f*" else int(tok[1:]))
                elif tok[0] == "w": vm.wait((tok[1], int(tok[2:])))
                elif tok[0] == "b": bar(tok[1:], (tok[1], int(tok[2:])) if tok[1] != "S" else None)
                elif tok == "nonce": P(f"s_waitcnt lgkmcnt(0)\n{NONCE}")
                elif tok == "lg0": lgx.all()
                elif tok == "FM": fm_read()
                elif tok == "kp1": only(f"s_cmp_eq_u32 s{sU}, 1", self.inbox_issue)
                elif tok == "kw1": only(f"s_cmp_eq_u32 s{sU}, 1", self.inbox_wait); self.stamp("kw")
                elif tok[0] == "k" and tok[1:].isdigit(): k_ld(int(tok[1:]))
                elif tok == "kf": sflag(["s[18:19]"], False)
                elif tok == "vf": sflag(["s[4:5]"], False)
                elif tok == "ef": sflag(["s[18:19]", "s[4:5]"], True)
                elif tok == "tf": t_flag()
                elif tok == "tst": t_store()
                elif tok == "a1": a1(o["ina1"])
                elif tok == "a17": a1(o["ina7"])
                elif tok == "lva": lva()
                elif tok == "lvb": lvb()
                elif tok == "lvc": lvc()
                elif tok == "lvw": lvw()
                elif tok[0] == "g": fill2(len(G) if tok == "g*" else int(tok[1:]))
                elif tok[:2] == "p:": P(f"s_setprio {tok[2:]}")
                elif tok == "one": ones()
                elif tok == "hop":
                    if o["hops"] & 1:
                        for k, ch in enumerate(self.HOPS[:-1]): P(f"s_cmp_eq_u32 s{sU}, {k}\ns_cbranch_scc1 L_pad_{ch[0]}")
                        P(f"s_branch L_pad_{self.HOPS[-1][0]}\nL_hopret:")
                elif tok == "tl":
                    if o["touch"] & 2:
                        P(f"s_lshl_b32 s3, s2, 7\ns_add_u32 s7, s{sU}, 1\ns_lshl_b32 s7, s7, 21\ns_add_u32 s7, s7, s3\ns_load_dword s1, s[18:19], s7 glc")
                        P(f"s_lshl_b32 s7, s{sR}, 21\ns_lshl_b32 s{sT5}, s{sCI}, 15\ns_add_u32 s7, s7, s{sT5}\ns_add_u32 s7, s7, s3\ns_load_dword s1, {sr(sOUT,2)}, s7 glc")
                    if o["touch"] & 8:
                        P(f"s_lshl3_add_u32 s3, s{sRT}, s{sP}\ns_lshl_b32 s3, s3, 7\ns_lshl_b32 s7, s{sU}, 15\ns_add_u32 s3, s3, s7\ns_add_u32 s3, s3, {WS_KF:#x}\ns_load_dword s1, s[18:19], s3 glc")
                elif tok == "xt": only(f"s_cmp_eq_u32 s{sU}, 3", die_tell)
                elif tok == "xa": only(f"s_cmp_eq_u32 s{sU}, 3", die_ask)
                elif tok == "xc": only(f"s_cmp_eq_u32 s{sU}, 3", die_check)
                elif tok == "p7":
                    P(f"s_cmp_eq_u32 s{sP}, 7\ns_cbranch_scc1 L_p7")
                    p7state.update(fi=fi, q=list(vm.q))
                elif tok == "join": P("L_p7join:")
                elif tok == "p7b":
                    P(f"s_cmp_eq_u32 s{sP}, 7\ns_cbranch_scc1 L_p7b")
                    p7state.update(q2=list(vm.q), l2=list(lgx.q))
                elif tok == "join2": P("L_p7join2:")
                elif tok == "vp3": only(f"s_cmp_eq_u32 s{sU}, 3", self.inbox_issue)
                elif tok == "page": P("@JUMPALIGN g2p1"); self.pad("g2p1"); P("L_ja_g2p1:")
                else: raise ValueError(tok)
        run(o["sched"])
        n1 = o["wo1"]; WF = 144
        def wo_frag(q0, q1):
            for ks in range(4*q0, 4*q1):
                for t in range(2):
                    P(f"ds_read_b64_tr_b16 {vr(WF+4*ks+2*t,2)}, v{vTR} offset:{ks*2048 + t*512}")
        P(f"s_cmp_eq_u32 s{sU}, 2\ns_cbranch_scc1 L_roleT\ns_cmp_eq_u32 s{sU}, 0\ns_cbranch_scc1 L_rolesdone\ns_cmp_eq_u32 s{sU}, 1")
        P("s_cbranch_scc1 " + ("L_pad_g1p2" if o["hops"] & 2 else "L_rolesdone"))
        for n in range(5): P(f"s_add_u32 s{sGB[n]}, s{sGB[n]}, {WS_V - WS_K:#x}")
        P(f"v_add_u32 v{vKB}, 3584, v{vD0}\ns_nop 0")
        P(f"s_mov_b32 exec_hi, 0x00ffffff")
        self.inbox_wait()
        self.stamp("r1")
        for n in o.get("vorder", (4, 3, 2, 1, 0)):
            for z in range(8):
                P(f"s_mov_b32 m0, {L_VT + n*8192 + (z>>2)*4096 + (z&3)*128}")
                P(f"buffer_load_dwordx4 v{vKB if z >> 2 else vD0}, {sr(sWS,4)}, s{sGB[n]} offen offset:{896*(z&3)} sc1 lds"); vm.add(("v", n))
        P(f"s_mov_b64 exec, -1")
        NV = len(o["vbars"])
        for k, n in enumerate(o["vbars"]):
            vm.wait(("v", n)); self.stamp("r2" if k == 0 else ("r3" if n == 0 else "-")); P("s_barrier")
        P("s_branch L_a2")
        P("@ALIGN")
        self.pad("roleT"); P("L_roleT:"); vm.q = []
        P(f"v_lshrrev_b32 v18, 3, v0\nv_lshlrev_b32 v18, 7, v18\nv_and_b32 v19, 7, v0\nv_lshl_add_u32 v18, v19, 2, v18\ns_mov_b32 s{sT1}, {WS_TF:#x}")
        P(f"s_cmp_eq_u32 s{sP}, 7\ns_cbranch_scc1 L_epoch")
        P(f"s_lshr_b32 s3, s{sP}, 1\ns_and_b32 s7, s{sP}, 1\nv_lshl_add_u32 v18, s3, 10, v18\nv_lshl_add_u32 v19, s7, 10, v18")
        P(f"s_mul_i32 s{sT0}, s{sRT}, {TST}\ns_lshl_b32 s3, s{sP}, 13\ns_add_u32 s{sT0}, s{sT0}, s3\ns_add_u32 s{sT0}, s{sT0}, {WS_T:#x}")
        P("s_waitcnt vmcnt(0) lgkmcnt(0)" if o.get("tdelay", 0) else "s_waitcnt lgkmcnt(0)")
        self.poll([(18, 0), (19, 0)], 20, sT1)
        self.stamp("r1")
        P("s_barrier")
        tq = [(q, z) for q in range(4) for z in range(4)]; per = o.get("tper", 8)
        for k in range(NV):
            for q, z in tq[k*per:(k+1)*per]:
                if z == 0: P(f"s_mov_b32 m0, {L_TT + q*4096}" + (f"\ns_add_u32 s{sT0}, s{sT0}, 4096" if q else ""))
                P(f"buffer_load_dwordx4 v{vD0}, {sr(sWS,4)}, s{sT0} offen offset:{1024*z} sc1 lds")
            if k < NV - 1: P("s_barrier")
        P("s_branch L_a2")
        P(f"L_rolesdone:\ns_waitcnt vmcnt(0) lgkmcnt(0)")
        self.stamp("roled")
        P("s_barrier\n" * NV + "L_a2:\ns_setprio 0")
        P(f"s_cmp_eq_u32 s{sP}, 7\ns_cbranch_scc1 L_g2end")
        E = Prog(); E._lab = 800; self.P = E
        E(f"L_epoch:\ns_waitcnt lgkmcnt(0)\n" + "s_barrier\n" * NV + f"s_cmp_lg_u32 s{sRT}, 31\ns_cbranch_scc1 L_g2end")
        self.poll([(18, 0), (18, 1024), (18, 2048), (18, 3072)], 20, sT1)
        E(f"s_atomic_swap s{sNONCE}, s[18:19], {WS_E}\ns_branch L_g2end")
        self.P = P; T.extend(E.lines)
        lg = Cnt(P, "lgkmcnt", 15)
        def tread(s):
            for t in range(2):
                o0 = 8*(s & 3) + 2*t
                P(f"ds_read2st64_b32 {vr(32+4*s+2*t,2)}, v{vTA+(s>>2)} offset0:{o0} offset1:{o0+1}"); lg.add(s)
        for k in range(8): P(f"ds_read_b128 {vr(M2+4*k,4)}, v134 offset:{1024*k}")
        nf = o.get("nf", 2)
        wo_frag(0, nf)
        P(f"s_mul_i32 s3, s{sR}, 0x80008000\ns_waitcnt lgkmcnt(0)")
        for k in range(16): P(f"v_xor_b32 v{M2+16+k}, s3, v{M2+16+k}")
        P("s_waitcnt vmcnt(0)\ns_barrier")
        self.stamp("bw")
        for s in range(6): tread(s)
        for s in range(8):
            lg.wait(s); P(MF32(64, 32 + 4*s, M2 + 4*s, 64 if s else "0"))
            if s < 2: tread(s + 6)
        AO = 112
        for h in range(2):
            for i in range(4): P(f"v_cvt_pk_bf16_f32 v{24+4*h+i}, v{64+8*h+2*i}, v{64+8*h+2*i+1}")
            P(f"ds_write_b128 v{vWR+h}, {vr(24+4*h,4)}")
        P(f"ds_read_b128 {vr(AO,4)}, v{vRD}\nds_read_b128 {vr(AO+4,4)}, v{vRD} offset:1024")
        wo_frag(nf, 7)
        self.stamp("a2")
        P("s_setprio 2\ns_waitcnt lgkmcnt(0)")
        lg = Cnt(P, "lgkmcnt", 15)
        oa = LdsAddr(P, vOR)
        OF = 32
        nm = 0
        def omf():
            nonlocal nm
            q, s = nm >> 2, nm & 3
            lg.wait((q, s))
            P(MF32(64, WF + 4*nm, OF + 16*(q & 1) + 4*s, "0" if nm == 0 else 64)); nm += 1
        for q in range(7):
            P("s_barrier"); self.stamp(f"bo{q}")
            for s in range(4):
                if nm < 4 * q: omf()
                for t in range(2):
                    off = oa.off(L_O(q) + (4*s + t) * 256)
                    P(f"ds_read_b64 {vr(OF + 16*(q&1) + 4*s + 2*t, 2)}, v{vOR} offset:{off}"); lg.add((q, s))
            while nm < 4 * q + 4 - o.get("lago", 3): omf()
            if q - o.get("aout", 3) in (0, 1):
                h = q - o.get("aout", 3)
                P(f"buffer_store_dwordx4 {vr(AO+4*h,4)}, v{(vA0, vA1)[h]}, {sr(sOUT,4)}, s{sAB} offen {o['outmod']}")
        while nm < 28: omf()
        self.out_epilogue(64, 24, vWR, vRD, vG0, vG1, f"s{sOB}", o["outmod"])
        self.stamp("fin")
        P(f"L_g2end:")
        self.stamp_out()
        P("s_endpgm")
        P("L_p7:")
        fi = p7state["fi"]; vm.q = p7state["q"]; nbar = 99; lgx.q = []
        run(o["sched7"])
        P("s_branch L_p7join\nL_p7b:")
        vm.q = p7state["q2"]; lgx.q = p7state["l2"]; gi = 0
        run(o["sched7b"])
        P("s_branch L_p7join2")

    def g1(self):
        P = self.P; o = self.o; T = self.tail
        vXA, vWK, vWV, vWQ, vKS, vVS, vZ, vDA, vKR, vVR, vOS, vOP, vNON, vFL, vL, vH = 1, 5, 6, 7, 8, 10, 11, 13, 14, 15, 16, 17, 18, 19, 12, 20
        vSA, vSB = 22, 23
        QF, FM = 24, 32
        AK, AV, AQ, CD, WF, XF = 48, 64, 80, 96, 112, 144
        sG, sKO, sVO, sMODE, sFB, sOFo, sOO = sSW, sSW + 1, sSW + 2, sSW + 3, sSW + 4, sSW + 5, sSW + 6
        c = math.log2(math.e) / math.sqrt(28)
        P("L_g1:")
        self.stamp("G.in")
        P(f"s_waitcnt lgkmcnt(0)\ns_load_dword s{sNONCE}, s[18:19], {WS_E}")
        srd(P, sWS, 18, WS_SIZE); srd(P, sWO, 12, 448*896)
        P(f"s_mov_b32 s{sXA+2}, {2048*896:#x}\ns_mov_b32 s{sXA+3}, 0x20000")
        if o["warm"] > 1:
            P(f"s_lshl2_add_u32 s10, s2, s{sU}\ns_mulk_i32 s10, 392\nv_lshlrev_b32 v40, 3, v0\nbuffer_load_dword v47, v40, {sr(sWO,4)}, s10 offen")
        PF = Prog(); keep = P
        if o["pf7"] == 2: P = PF; PF._lab = 700; P(f"s_and_b32 s3, s2, 7")
        if o["pf7"]:
            Lp = P.label("pf")
            P(f"s_cmp_lg_u32 s{sP}, 7\ns_cbranch_scc1 {Lp}")
            P(f"s_and_b32 s7, s{sRT}, 3\ns_lshl2_add_u32 s7, s7, s{sU}\ns_mul_i32 s10, s7, {128*896}\ns_mul_i32 s11, s3, {8*896}\ns_add_u32 s10, s10, s11")
            P(f"v_lshlrev_b32 v40, 7, v0\ns_mov_b32 exec_hi, 0x00ffffff")
            for seg in range(2):
                P(f"buffer_load_dword v47, v40, {sr(sXA,4)}, s10 offen\ns_add_u32 s10, s10, {64*896}")
            if o["pfwo"]: P(f"s_mul_i32 s10, s7, 25088\ns_mov_b32 exec_hi, 0x0001ffff")
            for k in range(o["pfwo"]):
                P(f"buffer_load_dword v47, v40, {sr(sWO,4)}, s10 offen\ns_add_u32 s10, s10, {49*128}")
            P(f"s_mov_b64 exec, -1\n{Lp}:")
        P = keep
        if o["touch"] & 1:
            Lt = P.label("tch")
            srd(P, sOUT, 14, 2048*1792)
            P(f"s_cmp_lg_u32 s{sU}, 0\ns_cbranch_scc1 {Lt}\nv_lshlrev_b32 v40, 21, v0\nv_add_u32 v41, 0x800, v40\ns_mov_b64 exec, {(1 << NPAGE) - 1}")
            P(f"buffer_load_dword v47, v41, {sr(sWS,4)}, 0 offen\nbuffer_load_dword v47, v40, {sr(sXA,4)}, 0 offen")
            if o["touch"] & 4:
                P(f"s_mul_i32 s7, s{sRT}, 1792\nv_mul_u32_u24 v40, {1024*1792 + 512*1792}, v0\nbuffer_load_dword v47, v40, {sr(sOUT,4)}, s7 offen")
            P(f"s_mov_b64 exec, -1\n{Lt}:")
        P(f"v_and_b32 v{vL}, 31, v0\nv_lshrrev_b32 v{vH}, 5, v0\nv_bfe_u32 v42, v0, 1, 3\nv_xor_b32 v42, v42, v{vH}")
        P(f"s_lshl_b32 s3, s{sR}, 12\nv_lshl_add_u32 v43, v{vL}, 7, s3\nv_lshl_add_u32 v{vXA}, v42, 4, v43")
        for s in range(1, 4): P(f"v_xor_b32 v{vXA+s}, {32*s}, v{vXA}")
        P(f"s_lshl_b32 s{sT0}, s{sCI}, 6")
        self.tr_addr(vWK, 42, 43, True, sT0)
        P(f"s_add_u32 s{sT0}, s{sT0}, {L_WV(0)}")
        self.tr_addr(vWV, 42, 43, False, sT0)
        P(f"s_lshl1_add_u32 s{sG}, s{sRT}, s{sR}")
        P(f"s_lshl1_add_u32 s3, s{sP}, s{sCI}\ns_mov_b32 s7, {PAIR - 7*512}\nv_lshl_add_u32 v42, s3, 2, v{vH}")
        for s in range(2):
            P(f"v_mul_u32_u24 v43, 37, v42\nv_lshrrev_b32 v43, 8, v43\nv_mul_lo_u32 v43, v43, s7\nv_lshl_add_u32 v43, v42, 9, v43\nv_lshl_add_u32 v{vKS+s}, v{vL}, 4, v43")
            if s == 0: P("v_add_u32 v42, 2, v42")
        P(f"s_mul_i32 s3, s{sG}, 3584\ns_add_u32 s{sKO}, s3, {WS_K:#x}\ns_add_u32 s{sVO}, s3, {WS_V:#x}")
        P(f"v_mov_b32 v{vZ}, 0\nv_mov_b32 v{vFL}, {L_FLAG}")
        self.stamp("G.set")
        lg = Cnt(P, "lgkmcnt", 15)
        xa = [LdsAddr(P, vXA + s) for s in range(4)]
        wa = {"K": LdsAddr(P, vWK), "V": LdsAddr(P, vWV, L_WV(0)), "Q": LdsAddr(P, vWQ, L_WQ(0))}
        wl = {"K": L_WK, "V": L_WV, "Q": L_WQ}
        acc = {"K": AK, "V": AV, "Q": AQ}
        def pack(a, half):
            for i in range(4): P(f"v_cvt_pk_bf16_f32 v{QF+4*half+i}, v{a+8*half+2*i}, v{a+8*half+2*i+1}")
        def proj(items, pre={}, lagn={}, post={}, mid={}):
            nm = 0
            def mf():
                nonlocal nm
                i, s = nm >> 2, nm & 3; kind, q, _ = items[i]
                lg.wait((i, s))
                w, x, a = WF + 16*(i & 1) + 4*s, XF + 16*q + 4*s, acc[kind]
                cc = "0" if (q == 0 and s == 0) else a
                P(MF32(a, x, w, cc) if kind == "V" else MF32(a, w, x, cc)); nm += 1
            for i, (kind, q, br) in enumerate(items):
                if i in pre: pre[i]()
                if br: P("s_barrier"); self.stamp(f"G.b{kind}{q}")
                for s in range(4):
                    if nm < 4 * i: mf()
                    if kind == "K":
                        off = xa[s].off(L_X(q))
                        P(f"ds_read_b128 {vr(XF + 16*q + 4*s, 4)}, v{vXA+s} offset:{off}"); lg.add((i, s))
                    for t in range(2):
                        off = wa[kind].off(wl[kind](q) + s*2048 + t*512)
                        P(f"ds_read_b64_tr_b16 {vr(WF + 16*(i&1) + 4*s + 2*t, 2)}, v{wa[kind].reg} offset:{off}"); lg.add((i, s))
                    if (i, s) in mid: mid[(i, s)]()
                while nm < 4 * i + 4 - lagn.get(i, 4): mf()
                if i in post: post[i]()
            while nm < 4 * len(items): mf()
        D = Prog()
        vE, vB, vA, vC, vS = 1, 2, 3, 80, 84
        D2 = Prog()
        D2(f"v_lshl_add_u32 v{vA}, v{vL}, 5, s{sRT}\nv_cvt_f32_u32 v{vA}, v{vA}\nv_mul_f32 v{vE}, {fl(1/2048)}, v{vA}")
        D2(f"v_lshl_add_u32 v{vA}, s{sU}, 1, v{vH}\nv_lshlrev_b32 v{vA}, 3, v{vA}\nv_cvt_f32_u32 v{vA}, v{vA}\nv_mul_f32 v{vB}, v{vE}, v{vA}")
        for par in range(2):
            for jj in range(4): D2(f"v_fmamk_f32 v{vS+jj}, v{vE}, {fl(2*jj + par)}, v{vB}")
            for jj in range(4): D2(f"v_cos_f32 v{vC+jj}, v{vS+jj}")
            for jj in range(4): D2(f"v_sin_f32 v{vS+jj}, v{vS+jj}")
            for jj in range(4): D2(f"v_cvt_pk_bf16_f32 v{88+4*par+jj}, v{vC+jj}, -v{vS+jj}")
        MG = D2; D2 = Prog()
        MG(f"s_add_u32 s3, s{sT4}, {L_M}\nv_lshl_add_u32 v46, v0, 4, s3\nds_write_b128 v46, v[88:91]\nds_write_b128 v46, v[92:95] offset:4096")
        keep = P; P = D2; self.P = D2
        P(f"s_mul_i32 s{sT0}, s{sCI}, 48\ns_add_u32 s{sT0}, s{sT0}, {L_WQ(0)}")
        self.tr_addr(vWQ, 42, 43, True, sT0)
        P(f"s_lshl_b32 s3, s{sRT}, 7\nv_lshl_add_u32 v{vOP}, v{vL}, 2, s3")
        P(f"v_lshlrev_b32 v42, 2, v{vH}\nv_sub_u32 v21, v{vL}, v42\ns_mov_b32 s11, {fl(c)}")
        D3 = Prog(); P = D3; self.P = D3
        P(f"s_mov_b32 s3, 0x0b0b0909")
        for k in range(8):
            k0 = 8 * (k >> 1) + 2 * (k & 1)
            P(f"v_subrev_u32 v42, {k0}, v21\nv_subrev_u32 v43, {k0+1}, v21\nv_perm_b32 v{FM+k}, v43, v42, s3")
        P(f"s_mul_i32 s3, s{sR}, 3584\ns_mul_i32 s7, s{sCI}, 1536\ns_add_u32 s3, s3, s7\ns_add_u32 s3, s3, {L_KT}\nv_lshl_add_u32 v{vKR}, v0, 4, s3")
        P(f"v_cmp_gt_u32 vcc, 28, v{vL}\ns_mul_i32 s3, s{sCI}, 28\nv_add_u32 v42, s3, v{vL}\ns_lshl_b32 s7, s{sCI}, 2\ns_sub_u32 s7, 60, s7\nv_mov_b32 v43, s7")
        P(f"v_cndmask_b32 v42, v43, v42, vcc\ns_lshl_b32 s3, s{sR}, 12\nv_lshl_add_u32 v42, v42, 4, s3\nv_lshl_add_u32 v{vVR}, v{vH}, 10, v42")
        P(f"v_cmp_gt_u32 vcc, s{sCI}, v{vH}\nv_cmp_lt_u32 s[30:31], s{sCI}, v{vH}\nv_lshlrev_b32 v42, 3, v{vL}\nv_lshl_add_u32 v{vOS}, v{vH}, 8, v42\nv_mov_b32 v42, {fl(c)}")
        P(f"v_cndmask_b32 v{vSA}, v42, v{vZ}, vcc\nv_cndmask_b32 v{vSB}, v42, v{vZ}, s[30:31]")
        P = D; self.P = D
        P(f"s_lshl1_add_u32 s3, s{sP}, s{sCI}\nv_lshl_add_u32 v42, s3, 5, v{vL}\nv_mul_u32_u24 v43, 1171, v42\nv_lshrrev_b32 v43, 16, v43\ns_mov_b32 s7, {PAIR - 896}")
        P(f"v_mul_lo_u32 v43, v43, s7\nv_lshl_add_u32 v43, v42, 4, v43\nv_mul_u32_u24 v42, 896, v{vH}\nv_add_u32 v{vVS}, v42, v43")
        P(f"s_mul_i32 s3, s3, 1792\ns_mul_i32 s7, s{sG}, 28672\ns_add_u32 s3, s3, s7\ns_add_u32 s{sOO}, s3, {WS_O:#x}")
        P(f"s_lshl3_add_u32 s3, s{sRT}, s{sP}\ns_lshl2_add_u32 s3, s3, s{sU}\ns_lshl_b32 s3, s3, 2\ns_add_u32 s{sOFo}, s3, {WS_OF:#x}\ns_mov_b32 s{sFB}, 0")
        P(f"v_cmp_gt_u32 vcc, 14, v0\nv_lshl_add_u32 v42, v0, 7, s{sOO}\nv_mov_b32 v43, s{sOFo}\nv_cndmask_b32 v45, v43, v42, vcc")
        P = keep; self.P = keep
        D.extend(D2.lines); D.extend(D3.lines)
        n0 = o["g1f0"]
        P.extend(D.lines[:n0])
        P(f"s_cmp_eq_u32 s{sP}, 7\ns_cbranch_scc1 L_x7\ns_setprio 1")
        self.stamp("G.set2")
        OT = f"buffer_load_dword v47, v45, {sr(sWS,4)}, 0 offen sc1"; otp = o.get("otp", 6)
        B7 = Prog(); B7._lab = 600
        B7("L_x7:"); B7.extend(D.lines[n0:]); B7.extend([l.replace("s11", "s9") for l in PF.lines]); B7("s_barrier")
        xa7 = [LdsAddr(B7, vXA + s) for s in range(4)]
        for q in range(7):
            for s in range(4):
                off = xa7[s].off(L_X(q))
                B7(f"ds_read_b128 {vr(XF + 16*q + 4*s, 4)}, v{vXA+s} offset:{off}")
        B7(f"s_barrier\n{OT if otp < 7 else ''}\ns_waitcnt lgkmcnt(0)\ns_branch L_s0")
        T.extend(B7.lines)
        cuts = o["g1cuts"]
        di = n0
        def slot(i):
            nonlocal di
            n = cuts.get(i, 0) if i < max(cuts) else 999
            P.extend(D.lines[di:di + n]); di += n
        proj([("K", q, True) for q in range(7)], lagn={5: 2, 6: 2}, post={i: (lambda i=i: slot(i)) for i in range(7)}, mid={(otp, 1): lambda: P(OT)})
        for h in range(2):
            pack(AK, h)
            P(f"buffer_store_dwordx4 {vr(QF+4*h,4)}, v{vKS+h}, {sr(sWS,4)}, s{sKO} offen sc1")
        self.stamp("G.kst")
        P("L_s0:\ns_barrier\ns_setprio 0")
        if otp == 7: P(OT)
        P.extend(MG.lines)
        P(f"ds_read_b32 v44, v{vFL} offset:12")
        P("L_g1page:"); self.pad("g1p1", True)
        P(f"{NONCE}\nv_mov_b32 v{vNON}, s{sNONCE}")
        S = lambda n: AV if n == 0 else (AK if n == 8 else XF + 16 * (n - 1))
        def mask(E, dst, far):
            E(f"v_cvt_f32_i32 v42, v21\nv_mul_f32 v42, {fl(-BIG if far else BIG)}, v42")
            for i in range(16):
                k = 8*(i >> 2) + (i & 3)
                E(f"v_add_f32 v{dst+i}, {fl((k-1)*BIG if far else -k*BIG)}, v42")
            for i in range(16): E(f"v_min_f32 v{dst+i}, 0, v{dst+i}")
        mask(P, S(8), False)
        P(f"s_mov_b32 s{sT0}, {WS_OF:#x}\ns_lshl1_add_u32 s3, s{sRT}, s{sCI}\ns_mul_i32 s{sT1}, s3, 28672\ns_lshl_b32 s3, s{sR}, 11\ns_add_u32 s{sT1}, s{sT1}, s3\ns_add_u32 s{sT1}, s{sT1}, {WS_O:#x}")
        P(f"s_lshl_b32 s{sT2}, s{sT4}, 1\nv_lshlrev_b32 v{vDA}, 4, v0\ns_waitcnt lgkmcnt(0)\nv_readfirstlane_b32 s{sMODE}, v44\ns_setprio 1")
        self.stamp("G.i1")
        if "bS4" in o["ina1"]: P("s_barrier")
        items = [(t[0], int(t[1]), t.endswith("b")) for t in o["items"].split()]
        QE = []
        for i in range(8):
            sc = f"v{vSA}" if i < 2 else (f"v{vSB}" if i >= 6 else "s11")
            QE.append(f"v_mul_f32 v{AQ+2*i}, {sc}, v{AQ+2*i}\nv_mul_f32 v{AQ+2*i+1}, {sc}, v{AQ+2*i+1}\nv_cvt_pk_bf16_f32 v{QF+i}, v{AQ+2*i}, v{AQ+2*i+1}")
        def q7():
            P(f"s_cmp_eq_u32 s{sP}, 7\ns_cbranch_scc1 L_q7")
            T("L_q7:\ns_waitcnt lgkmcnt(0)")
            for s in range(4): T(MF32(AQ, WF + 4*s, XF + 96 + 4*s, AQ))
            T("s_barrier")
            for t in QE: T(t)
            T("s_branch L_vdone")
        proj(items, pre={o["kack"]: lambda: (self.stamp("G.ka0"), P("s_waitcnt vmcnt(0)"), self.stamp("G.ka1"))}, lagn=o.get("lagqv", {1: 0}), post={6: q7},
             mid={(9 + (k >> 2), k & 3): (lambda k=k: P(QE[k])) for k in range(8)})
        for h in range(2):
            for i in range(4): P(f"v_cvt_pk_bf16_f32 v{CD+4*h+i}, v{AV+8*h+2*i}, v{AV+8*h+2*i+1}")
            P(f"buffer_store_dwordx4 {vr(CD+4*h,4)}, v{vVS}, {sr(sWS,4)}, s{sVO} offen offset:{1792*h} sc1")
        P(f"L_vdone:")
        self.stamp("G.vst")
        vM = 40
        KB, VB = WF, WF + 16
        pend = []
        def kread(i):
            for s in range(2):
                pend.append((f"ds_read_b128 {vr(KB + 8*((i+2)&3) + 4*s, 4)}, v{vKR} offset:{(8-i)*3584 + s*1024}", ("k", i)))
        def vread(i):
            for s in range(2):
                pend.append((f"ds_read_b128 {vr(S(8-i) + 8*s + 4, 4)}, v{vVR} offset:{(8-i)*4096 + s*2048}", ("v", i)))
        def drain(n=99):
            while pend and n > 0:
                t, tag = pend.pop(0); P(t); lg.add(tag); n -= 1
        P("s_barrier")
        self.stamp("G.ck"); kread(0); kread(1); drain()
        def qk(i, s, nd=2):
            n = 8 - i
            lg.wait(("k", i))
            P(MF32(S(n), KB + 8*((i+2) & 3) + 4*s, QF + 4*s, S(n) if (s == 1 or n == 8) else CD)); drain(nd)
        npv = 0
        def pv(nd=2):
            nonlocal npv
            i, s = npv >> 1, npv & 1
            assert not any(t == ("v", i) for _, t in pend)
            lg.wait(("v", i))
            P(MF32(AQ, S(8 - i) + 8*s + 4, S(8 - i) + 8*s, "0" if npv == 0 else AQ)); npv += 1; drain(nd)
        def pvl(s):
            lg.wait(("v", 8)); P(MF32(AQ, KB + 4*s, S(0) + 8*s, AQ))
        kread(2)
        qk(0, 0); qk(0, 1)
        b = S(8)
        P(f"s_mov_b32 s3, {fl(-40.0)}\nv_max_f32 v{vM}, v{b}, v{b+1}\nv_max_f32 v{vM+1}, v{b+2}, v{b+3}")
        for k in range(2, 7): P(f"v_max3_f32 v{vM+(k&1)}, v{vM+(k&1)}, v{b+2*k}, v{b+2*k+1}")
        P(f"v_max3_f32 v{vM+1}, v{vM+1}, v{b+14}, v{b+15}\nv_max_f32 v42, v{vM}, v{vM+1}\nv_max_f32 v{vM+1}, v{vM}, v{vM+1}\nv_permlane32_swap_b32 v42, v{vM+1}\nv_max_f32 v{vM}, v42, v{vM+1}")
        P(f"v_sub_f32 v{vM}, s3, v{vM}")
        if o.get("pka", 1):
            for k in range(8): P(f"v_pk_mul_f32 {vr(CD+2*k,2)}, {vr(vM,2)}, 1.0 op_sel_hi:[0,0]")
            for k in range(8): P(f"v_pk_add_f32 {vr(b+2*k,2)}, {vr(vM,2)}, {vr(b+2*k,2)} op_sel_hi:[0,1]")
        else:
            for k in range(16): P(f"v_mov_b32 v{CD+k}, v{vM}")
            for k in range(16): P(f"v_add_f32 v{b+k}, v{vM}, v{b+k}")
        self.stamp("G.p1")
        knext = 3
        for i in range(9):
            b = S(8 - i)
            if i == o["bva"]: self.stamp("G.va0"); P(f"s_waitcnt vmcnt(0)"); self.stamp("G.va"); P("s_barrier")
            if i == o["bk2"]: P("s_barrier"); self.stamp("G.k2")
            while knext < min(9 if i >= o["bk2"] else o["k1st"], i + 4): kread(knext); knext += 1
            assert knext >= min(9, i + 3)
            mfs = [lambda i=i: qk(i + 1, 0, 3), lambda i=i: qk(i + 1, 1, 3)] if i < 8 else []
            for pos in range(16):
                P(f"v_exp_f32 v{b+pos}, v{b+pos}")
                if pos in (0, 5) and mfs: mfs.pop(0)()
                if pos in (7, 15):
                    h = pos >> 3
                    for k in range(4): P(f"v_cvt_pk_bf16_f32 v{b+8*h+k}, v{b+8*h+2*k}, v{b+8*h+2*k+1}")
                    if i == 8:
                        for k in range(4): P(f"v_and_b32 v{b+8*h+k}, v{b+8*h+k}, v{FM+4*h+k}")
            drain()
        self.stamp("G.ex")
        P("@JUMP2 g1p2"); self.pad("g1p2"); P("L_ja_g1p2:")
        vn = 0
        for k, n in enumerate(o["vbars"]):
            P("s_barrier"); self.stamp("G.fv" if k == 0 else ("G.v2" if n == 0 else "-"))
            old = 2 * vn
            while vn <= 8 - 2*n: vread(vn); vn += 1
            if npv == old: drain()
            while npv < old: pv(4)
            drain()
            while npv < 2 * vn - (o.get("pvk", 2) if n else 0): pv()
        vWR, vRD, vG0, vG1, vTA, MF_, TF_, AE = 1, 3, 4, 5, 8, 176, 144, 64
        P(f"L_onorm:\ns_cmp_eq_u32 s{sMODE}, 0")
        P(f"v_mov_b32 v40, v{AQ+12}\nv_mov_b32 v41, v{AQ+12}\nv_permlane32_swap_b32 v40, v41\nv_rcp_f32 v41, v41\ns_cbranch_scc1 L_oslow")
        def ostore(E, mod):
            for a in range(4):
                for k in range(2): E(f"v_pk_mul_f32 {vr(CD+4*a+2*k,2)}, v[40:41], {vr(AQ+4*a+2*k,2)} op_sel:[1,0]")
                for k in range(2): E(f"v_cvt_pk_bf16_f32 v{VB+2*a+k}, v{CD+4*a+2*k}, v{CD+4*a+2*k+1}")
                if a == 3: E("s_mov_b32 exec_hi, 0")
                E(f"buffer_store_dwordx2 {vr(VB+2*a,2)}, v{vOS}, {sr(sWS,4)}, s{sOO} offen offset:{512*a} {mod}")
            E("s_mov_b64 exec, -1")
        ostore(P, o["omod"])
        P("L_ostored:")
        T("L_oslow:"); ostore(T, "sc1"); T("s_branch L_ostored")
        self.stamp("G.ost")
        P(f"v_mul_f32 v42, {fl(2.0**16)}, v{AQ+12}\nv_mul_f32 v40, 0, v{AQ}\nv_mul_f32 v41, 0, v{AQ+1}\nv_fmac_f32 v40, 0, v42")
        for k in range(2, 16): P(f"v_fmac_f32 v{40+(k&1)}, 0, v{AQ+k}")
        P(f"v_cmp_u_f32 vcc, v40, v41")
        if o["force_fb"]: P("s_mov_b64 vcc, -1")
        P(f"s_cbranch_vccnz L_fallback\nL_ochecked:")
        BT = o.get("btpos", 0)
        if BT == 0: P(f"s_cmp_eq_u32 s{sP}, 7\ns_cbranch_scc1 L_nobt\ns_barrier\nL_nobt:")
        P(f"s_mov_b64 exec, 1\ns_cmp_eq_u32 s{sMODE}, 0\ns_waitcnt vmcnt(0)\ns_cbranch_scc1 L_ofslow")
        P(f"buffer_store_dword v{vNON}, v{vZ}, {sr(sWS,4)}, s{sOFo} offen\nL_oflagged:\ns_mov_b64 exec, -1")
        T(f"L_ofslow:\nbuffer_store_dword v{vNON}, v{vZ}, {sr(sWS,4)}, s{sOFo} offen sc1\ns_branch L_oflagged")
        self.stamp("G.oack")
        P(f"s_cmp_eq_u32 s{sP}, 7\ns_cbranch_scc1 L_g1end\ns_add_u32 m0, s{sT2}, {L_O(0)}")
        if BT == 1: P("s_barrier")
        vm = Cnt(P, "vmcnt", 63)
        self.poll([(vOP, 0)], 44, sT0)
        self.stamp("G.op")
        nb = 0
        for t in o.get("osched", "0 1 2 3 b 4 5 b 6 b b b b b").split():
            if t == "b": vm.wait(nb); P("s_barrier"); nb += 1
            else:
                q = int(t)
                if q: P(f"s_add_u32 m0, s{sT2}, {L_O(q)}\ns_add_u32 s{sT1}, s{sT1}, 4096")
                for k in range(2):
                    P(f"buffer_load_dwordx4 v{vDA}, {sr(sWS,4)}, s{sT1} offen offset:{1024*k} sc1 lds"); vm.add(q)
        P("L_g1end:")
        self.stamp_out()
        P("L_end:\ns_endpgm")
        P("L_fallback:")
        P(f"s_cmp_lg_u32 s{sFB}, 0\ns_cbranch_scc1 L_ochecked\ns_mov_b32 s{sFB}, 1\ns_waitcnt vmcnt(0)")
        mask(P, S(0), True); mask(P, S(8), False)
        P(f"v_mov_b32 v{vM}, {fl(-BIG)}")
        for n in range(9):
            P(f"ds_read_b128 {vr(KB,4)}, v{vKR} offset:{n*3584}\nds_read_b128 {vr(KB+4,4)}, v{vKR} offset:{n*3584+1024}")
            if n <= 7:
                P(f"s_cmp_lt_u32 s{sG}, {8-n}\ns_cselect_b32 s3, {fl(-BIG)}, 0")
                for k in range(16): P(f"v_mov_b32 v{S(n)+k}, s3" if n else f"v_min_f32 v{S(n)+k}, s3, v{S(n)+k}")
            P("s_waitcnt lgkmcnt(0)")
            for s in range(2): P(MF32(S(n), KB + 4*s, QF + 4*s, S(n)))
            for k in range(8): P(f"v_max3_f32 v{vM}, v{vM}, v{S(n)+2*k}, v{S(n)+2*k+1}")
        P(f"v_mov_b32 v{vM+1}, v{vM}\nv_permlane32_swap_b32 v{vM}, v{vM+1}\nv_max_f32 v{vM}, v{vM}, v{vM+1}")
        for n in range(9):
            b = S(n)
            P(f"ds_read_b128 {vr(VB,4)}, v{vVR} offset:{n*4096}\nds_read_b128 {vr(VB+4,4)}, v{vVR} offset:{n*4096+2048}")
            for k in range(16): P(f"v_sub_f32 v{b+k}, v{b+k}, v{vM}")
            for k in range(16): P(f"v_exp_f32 v{b+k}, v{b+k}")
            for k in range(8): P(f"v_cvt_pk_bf16_f32 v{b+k}, v{b+2*k}, v{b+2*k+1}")
            P("s_waitcnt lgkmcnt(0)")
            for s in range(2): P(MF32(AQ, VB + 4*s, b + 4*s, "0" if (n == 0 and s == 0) else AQ))
        P("s_nop 11\ns_branch L_onorm")

    def addrs(self, lines):
        import subprocess, tempfile
        src = '.amdgcn_target "amdgcn-amd-amdhsa--gfx950"\n.text\n' + "".join(f"Z{i}:\n" + ("" if l.startswith("@") else l) + "\n" for i, l in enumerate(lines))
        with tempfile.TemporaryDirectory() as d:
            open(d + "/a.s", "w").write(src)
            subprocess.run(["clang", "-x", "assembler", "-target", "amdgcn-amd-amdhsa", "-mcpu=gfx950", "-c", d + "/a.s", "-o", d + "/a.o"], check=True)
            out = subprocess.run(["llvm-objdump", "-t", d + "/a.o"], capture_output=True, text=True).stdout
        ad = {}
        for l in out.splitlines():
            w = l.split()
            if len(w) > 3 and w[-1][0] == "Z": ad[int(w[-1][1:])] = int(w[0], 16)
        return [ad[i] for i in range(len(lines))]

    def layout(self, body):
        fill = lambda n: [f".fill {n//4}, 4, 0xbf800000"] if n else []
        on = self.o["align"]
        while True:
            k = [i for i, l in enumerate(body) if l.startswith("@JUMPALIGN")]
            if not k: break
            i = k[0]; name = body[i].split()[1]
            a = self.addrs(body)[i] + 4
            body = body[:i] + [f"s_branch L_ja_{name}"] + (fill(-a % 4096) if on else []) + body[i+1:]
        i = body.index("@ALIGN"); a = self.addrs(body)[i]
        body = body[:i] + (fill(-a % 4096) if on and -a % 4096 < 1536 else []) + body[i+1:]
        ad = self.addrs(body)
        g = body.index("L_g1:")
        if on: body = body[:g] + fill(-ad[body.index("L_g1page:")] % 4096) + body[g:]
        ad = self.addrs(body)
        i = body.index("@JUMP2 g1p2"); a = ad[i] + 4
        if a - ad[body.index("L_g1page:")] > 4096: print("warning: attention page overflows")
        body = body[:i] + [f"s_branch L_ja_g1p2"] + (fill(-a % 4096) if on else []) + body[i+1:]
        return body

    def build(self):
        self.prologue(); self.g2()
        g2 = list(self.P.lines); self.P.lines = []
        self.g1()
        fb = self.P.lines.index("L_fallback:")
        lines = g2 + self.tail.lines + self.P.lines[:fb] + ["L_codeend:"] + self.P.lines[fb:]
        body, pad = pad_hazards(lines)
        body = self.layout(body)
        hdr = open(os.path.join(os.path.dirname(os.path.abspath(__file__)), "header.txt")).read()
        if self.o["stamps"]: hdr += "; STAMPS " + self.o["stamps"] + (" MIXED" if self.o["mixed"] else "") + (" REALTIME" if self.o.get("rt") else "") + "\n"
        s = hdr + "; @launch grid=(256,1,1) block=(512,1,1) lds=163840\n"
        s += '.amdgcn_target "amdgcn-amd-amdhsa--gfx950"\n.text\n'
        if self.o["align"]: s += ".p2align 12\n.fill 832, 4, 0xbf810000\n"
        s += f".globl {NAME}\n.p2align 8\n.type {NAME},@function\n{NAME}:\n"
        s += "\n".join(("" if l.endswith(":") else "    ") + l for l in body) + "\n    s_endpgm\n"
        s += f""".section .rodata,"a"
.p2align 6
.amdhsa_kernel {NAME}
  .amdhsa_next_free_vgpr 256
  .amdhsa_next_free_sgpr 102
  .amdhsa_accum_offset 256
  .amdhsa_group_segment_fixed_size 0
  .amdhsa_kernarg_size 88
  .amdhsa_user_sgpr_count 2
  .amdhsa_user_sgpr_kernarg_segment_ptr 1
  .amdhsa_system_sgpr_workgroup_id_x 1
.end_amdhsa_kernel
"""
        return s, pad

if __name__ == "__main__":
    opts = {}
    out = sys.argv[1]
    for a in sys.argv[2:]:
        k, v = a.split("=", 1); opts[k] = v if k in STR_OPTS else eval(v)
    s, pad = Gen(**opts).build()
    open(out, "w").write(s)
    print("written", out, "pad states", pad, "lines", s.count("\n"))
```

```python
import sys, math, struct, os
sys.path.insert(0, os.path.dirname(os.path.abspath(__file__)))
from asmlib import *

NAME = "concat_heads__spectral_fnet__sliding_block__prompt_kernel"

def f2u(x): return struct.unpack("<I", struct.pack("<f", x))[0]
def fl(x): return f"{f2u(x):#x}"

WS_E = 0
WS_KF, WS_VF, WS_OF, WS_TF, WS_XF = 0x10000, 0x18000, 0x20000, 0x28000, 0x30000
WS_K, WS_V, WS_O, WS_T = 0x201000, 0x401000, 0x601000, 0x7F0000
NPAGE = 4
WS_STAMP = 0xA80000
WS_SIZE = 0xB00000
PAIR = 64 * 3584
TST = 65536 + 384
SL = 8192
def L_X(q): return 2 * q * SL
def L_WK(q): return (2 * q + 1) * SL
def L_WQ(q): return (18 + q) * SL if q < 2 else (q - 2) * SL
L_XA = 14 * SL
def L_WV(q): return (5 + q) * SL
L_WO = 5 * SL
L_KT = 13 * SL
L_VT = 0
L_F = 13 * SL
L_FLAG = 18 * SL - 64
L_TS = 12 * SL
L_OUT = 12 * SL
L_M = 12 * SL
L_TT = 18 * SL
def L_O(q): return q * SL if q < 5 else (13 + q - 5) * SL
sNONCE = 6
sXB, sW, sWKV, sXA, sWO, sOUT, sWS = 20, 48, 28, 32, 36, 40, 44
sU, sRT, sP, sS2, sEG, sR, sCI, sWV = 52, 53, 54, 55, 56, 57, 58, 59
sSX, sSW = 60, 67
sT0, sT1, sT2, sT3, sT4, sT5 = 74, 75, 76, 77, 78, 79
sROT, sFO = 8, 9
sGB = [12, 13, 14, 15, 8]
sSTAMP = 80
NSTAMP = 11
SPIN = 1 << 14
sLS = 60
def bound(lab): return f"s_add_u32 s{sLS}, s{sLS}, 1\ns_cmp_gt_u32 s{sLS}, 0x100000\ns_cbranch_scc1 {lab}"
BIG = 2.0 ** 100

class Cnt:
    def __init__(self, prog, name, maxn):
        self.p, self.name, self.maxn = prog, name, maxn
        self.q = []
    def add(self, tag=None): self.q.append(tag)
    def wait(self, tag):
        idx = [i for i, t in enumerate(self.q) if t == tag]
        if not idx: return
        n = min(len(self.q) - 1 - idx[-1], self.maxn)
        self.p(f"s_waitcnt {self.name}({n})")
        self.q = self.q[len(self.q) - n:] if n else []
    def all(self):
        self.p(f"s_waitcnt {self.name}(0)"); self.q = []

def srd(P, d, lo, nrec):
    P(f"s_mov_b64 {sr(d,2)}, {sr(lo,2)}\ns_mov_b32 s{d+2}, {nrec:#x}\ns_mov_b32 s{d+3}, 0x20000")

def MF32(d, a, b, c): return f"v_mfma_f32_32x32x16_bf16 {vr(d,16)}, {vr(a,4)}, {vr(b,4)}, {c if isinstance(c,str) else vr(c,16)}"
def MF16(d, a, b, c): return f"v_mfma_f32_16x16x32_bf16 {vr(d,4)}, {vr(a,4)}, {vr(b,4)}, {c if isinstance(c,str) else vr(c,4)}"
NONCE = f"s_mul_i32 s{sNONCE}, s{sNONCE}, 0x9E3779C1\ns_add_u32 s{sNONCE}, s{sNONCE}, 0x7FEB3560"

STR_OPTS = ("ldnt", "sched7b", "ina7", "osched", "pre", "items", "stamps", "sched", "sched7", "schedT", "schedK", "schedV", "ina1", "outmod", "omod")

DOC = '; ---------------------------------------------------------------------------------------------------------\n; One launch, 256 workgroups of 8 waves (one workgroup per CU).  Workgroup (rt, p): rt = 64-row tile, p = 0..7.\n;   (write-through stores, then one flag word per consumer); o goes through d_ws to the output projection.\n;   two passes with the true row max (L_fallback).\n; Part A: Re(DFT2(x)) as hidden DFT (448, only e <= 255) -> 32-point DFT over rows s2+64*s1 -> exchange through\n;   d_ws -> 64-point DFT with the twiddles folded in; columns 224..447 are the mirror image.  The constant DFT\n;   matrices are generated in registers.\n;   wait is bounded.  The o hand-off stays inside one L2 only after the 8 workgroups of a row tile have reported\n;   the same die; otherwise it uses write-through stores.\n; ---------------------------------------------------------------------------------------------------------\n'

class Gen:
    def __init__(self, **o):
        self.o = dict(stamps=False, codepf=True, mixed=False, outmod="nt", olocal=True, omod="nt", pf7=True,
            hops=3, align=True, force_fb=False, pfwo=0, touch=8, pre="X0 W0 X1 W1", rot=3, warm=2, wo1=7,
            items="Q0b Q1 Q2 Q3b Q4 Q5b Q6b V0b V1b V2b V3b V4b V5b V6b", kack=0, lagqv={},
            g1f0=20, g1cuts={0: 16, 1: 16, 2: 16, 3: 16, 4: 16}, bk2=2, bva=0, otp=7, worot=0, k1st=5, vbars=(3, 2, 1, 0), btpos=0, g1a=0, k56=1, aout=5, osched="0 1 2 3 4 b 5 6 b b b b b b",
            sched="f226 nonce xt tl p7 K2 bK0 K3 f18 bK1 K4 hop bK2 K5 f18 bK3 K6 f18 bK4 A0 A1 A2 A3 f18 bK5 A4 A5 A6 bK6 Q0 Q1 f* page wA6 bS0 a1 join "
                  "lva Q5 lvb lvc lvw Q6 bQ2 p7b kf V0 V1 g30 bQ4 V2 V3 g16 bQ5 V4 g8 bQ6 V5 g8 bV0 V6 tst kp1 bV1 g12 bV2 g* bV3 kw1 bV4 k4 k3 bV5 k2 bV6 one join2 "
                  "wT0 bS9 p:2 tf k1 k0 O0 wk2 bS1 O1 O2 bS3 vf O3 wk0 bS2 vp3 O4 O5 O6",
            sched7b="tst kp1 g* bQ4 bQ5 kw1 bQ6 k4 k3 k2 bS5 one",
            sched7="X2 X3 f* ef X4 X5 X6 A0 A1 A2 A3 A4 A5 A6 bK6 Q0 Q1 lg0 bA6 a17",
            ina1="0:Q2 10:Q3 13:Q4", ina7="3:bS0,Q2 6:Q3 9:Q4")
        self.o.update(o)
        self.P = Prog()
        self.tail = Prog()

    def stamp(self, name):
        if self.o.get("jit") is not None:
            P = self.P
            if name == 0:
                P(f"s_memtime s[98:99]\ns_waitcnt lgkmcnt(0)\nv_readfirstlane_b32 s97, v0\ns_nop 0\ns_lshl_b32 s96, s2, 10\ns_add_u32 s97, s97, s96\ns_add_u32 s98, s98, s97\ns_mul_i32 s98, s98, 0x9E3779B1")
                return
            self._jl = getattr(self, "_jl", 0) + 1
            L = f"jit_{self._jl}"
            P(f"s_cselect_b32 s96, 1, 0\ns_mul_i32 s98, s98, 0x41C64E6D\ns_add_u32 s98, s98, 12345\ns_lshr_b32 s97, s98, {32 - self.o['jit']}\ns_cmp_lg_u32 s97, 0\ns_cbranch_scc1 {L}\ns_sleep {self.o.get('jitn', 24)}\n{L}:\ns_cmp_lg_u32 s96, 0")
            return
        if not self.o["stamps"]: return
        if name == 0: self.P(f"s_memtime {sr(sSTAMP, 2)}"); return
        for lst in self.o["stamps"].split("|"):
            l = lst.split(",")
            if name in l: self.P(f"{'s_memrealtime' if self.o.get('rt') else 's_memtime'} {sr(sSTAMP + 2*(1+l.index(name)), 2)}")

    def stamp_out(self):
        if not self.o["stamps"]: return
        P = self.P
        P(f"s_waitcnt vmcnt(0)\ns_memtime {sr(sSTAMP+16,2)}\ns_memrealtime {sr(sSTAMP+18,2)}\ns_waitcnt lgkmcnt(0)\ns_mov_b64 exec, 1")
        if self.o.get("enc") is not None:
            k = self.o["enc"]; L = P.label("enc"); D = P.label("encd")
            P(f"s_cmp_lg_u32 s{sWV}, {self.o['encwv']}\ns_cbranch_scc1 {D}\ns_cmp_eq_u32 s{sP}, 7\ns_cbranch_scc1 {D}")
            if self.o.get("encwg", -1) >= 0: P(f"s_cmp_lg_u32 s2, {self.o['encwg']}\ns_cbranch_scc1 {D}")
            if k == 9: P(f"s_sub_u32 s3, s{sSTAMP+18}, s{sSTAMP+20}\ns_lshl_b32 s3, s3, 2")
            else: P(f"s_sub_u32 s3, s{sSTAMP+2*k}, s{sSTAMP}\ns_lshr_b32 s3, s3, 2")
            P(f"s_min_u32 s3, s3, 50000\ns_add_u32 s3, s3, 5000")
            P(f"{L}:\ns_memrealtime s[4:5]\ns_waitcnt lgkmcnt(0)\ns_sub_u32 s4, s4, s{sSTAMP+20}\ns_cmp_lt_u32 s4, s3\ns_cbranch_scc1 {L}\n{D}:")
            return
        for i in range(NSTAMP): P(f"v_mov_b32 v{4+i}, s{sSTAMP+2*i}")
        P(f"s_getreg_b32 s3, hwreg(HW_REG_XCC_ID)\nv_mov_b32 v15, s3")
        P(f"s_lshl_b32 s3, s2, 3\ns_add_u32 s3, s3, s{sWV}\ns_lshl_b32 s3, s3, 6\ns_add_u32 s3, s3, {WS_STAMP:#x}\nv_mov_b32 v1, 0")
        for k in range(3): P(f"buffer_store_dwordx4 v[{4+4*k}:{7+4*k}], v1, {sr(sWS,4)}, s3 offen offset:{16*k}")

    def into(self, prog, f, *a):
        keep = self.P; lab = keep._lab
        self.P = prog; prog._lab = max(prog._lab, lab)
        f(*a)
        keep._lab = max(prog._lab, lab); self.P = keep

    HOPS = (("roleT",), ("g1p1",))
    LATE = ("fc", "g1p2")
    def pad(self, name, inline=False, E=None):
        E = E or self.P
        if name in self.LATE:
            if not self.o["hops"] & 2: return
            nxt = "L_pad_g1p2" if name == "fc" else "L_rolesdone"
        else:
            if not self.o["hops"] & 1 or name in ("done", "g2p1"): return
            nxt = "L_hopret"
            for ch in self.HOPS:
                if name in ch[:-1]: nxt = "L_pad_" + ch[ch.index(name) + 1]
        if inline: E(f"s_branch L_over_{name}\nL_pad_{name}:\ns_branch {nxt}\nL_over_{name}:")
        else: E(f"L_pad_{name}:\ns_branch {nxt}")

    def tr_addr(self, dst, t0, t1, perm, sbase):
        P = self.P
        P(f"v_bfe_u32 v{t0}, v0, 4, 1\nv_lshl_add_u32 v{t0}, v{t0}, 5, s{sbase}")
        if perm:
            P(f"v_and_b32 v{t1}, 1, v0\nv_lshl_add_u32 v{t0}, v{t1}, 4, v{t0}")
            P(f"v_bfe_u32 v{t1}, v0, 1, 1\nv_lshl_add_u32 v{t0}, v{t1}, 3, v{t0}")
        else:
            P(f"v_and_b32 v{t1}, 3, v0\nv_lshl_add_u32 v{t0}, v{t1}, 3, v{t0}")
        P(f"v_and_b32 v{t1}, 8, v0\nv_lshlrev_b32 v{t1}, 3, v{t1}\nv_xor_b32 v{t0}, v{t0}, v{t1}")
        P(f"v_and_b32 v{t1}, 44, v0\nv_lshl_add_u32 v{dst}, v{t1}, 5, v{t0}")

    def inbox_setup(self, base):
        self.P(f"s_lshl3_add_u32 s3, s{sRT}, s{sP}\ns_lshl_b32 s3, s3, 7\ns_add_u32 s{sT3}, s3, {base:#x}")
    def inbox_issue(self, E=None):
        (E or self.P)(f"s_load_dwordx16 s[20:35], s[18:19], s{sT3} glc")
    def inbox_wait(self):
        P = self.P; L = P.label("kvp")
        P(f"s_mov_b32 s{sT5}, {SPIN}\ns_mov_b32 s7, s{sNONCE}\n{L}:\ns_waitcnt lgkmcnt(0)")
        P("s_xor_b64 s[20:21], s[20:21], s[6:7]")
        for n in range(1, 5):
            P(f"s_xor_b64 {sr(20+2*n,2)}, {sr(20+2*n,2)}, s[6:7]\ns_or_b64 s[20:21], s[20:21], {sr(20+2*n,2)}")
        P(f"s_cbranch_scc0 {L}_d")
        self.inbox_issue()
        P(f"s_sub_u32 s{sT5}, s{sT5}, 1\ns_cbranch_scc0 {L}\ns_waitcnt lgkmcnt(0)\n{L}_d:")
    def group_bases(self, base):
        P = self.P
        P(f"s_mul_i32 s{sT1}, s{sP}, {PAIR}\ns_mul_i32 s3, s{sRT}, 7168\ns_add_u32 s3, s3, s{sT1}\ns_add_u32 s{sSX+4}, s3, {base:#x}")
        for n in range(4):
            P(f"s_sub_u32 s3, s{sSX+4}, {7168*(4-n)}\ns_cmp_lt_u32 s{sRT}, {4-n}\ns_cselect_b32 s{sSX+n}, s{sWS+2}, s3")

    def poll(self, addrs, vt, sbase):
        P = self.P
        L = P.label("poll")
        P(f"s_mov_b32 s{sT5}, 0\n{L}:")
        for k, (va, imm) in enumerate(addrs):
            P(f"buffer_load_dword v{vt+k}, v{va}, {sr(sWS,4)}, s{sbase} offen offset:{imm} sc1")
        P(f"s_add_u32 s{sT5}, s{sT5}, 1\ns_cmp_gt_u32 s{sT5}, {SPIN}\ns_cbranch_scc1 {L}_d\ns_waitcnt vmcnt(0)")
        for k in range(len(addrs)):
            P(f"v_cmp_ne_u32 vcc, s{sNONCE}, v{vt+k}\ns_cbranch_vccnz {L}")
        P(f"{L}_d:")

    def lds_wait(self, vflag, idx, val, vt):
        P = self.P
        L = P.label("lw")
        P(f"{L}:\nds_read_b32 v{vt}, v{vflag} offset:{4*idx}\n{bound(L + '_d')}\ns_waitcnt lgkmcnt(0)\nv_cmp_gt_u32 vcc, {val}, v{vt}\ns_cbranch_vccnz {L}\n{L}_d:")
    def lds_signal(self, vflag, idx, vt):
        self.P(f"v_mov_b32 v{vt}, 1\ns_mov_b64 exec, 1\nds_add_u32 v{vflag}, v{vt} offset:{4*idx}\ns_mov_b64 exec, -1")
    def lds_set(self, vflag, idx, vt, val):
        self.P(f"v_mov_b32 v{vt}, {val}\nds_write_b32 v{vflag}, v{vt} offset:{4*idx}")

    def scratch_addr(self, vWR, vRD, base, t):
        P = self.P
        P(f"s_lshl_b32 s3, s{sU}, 11\ns_add_u32 s3, s3, {base}")
        P(f"v_and_b32 v{t}, 31, v0\nv_lshrrev_b32 v{t+1}, 5, v0\nv_bfe_u32 v{t+2}, v0, 1, 2\nv_xor_b32 v{t+2}, v{t+2}, v{t+1}")
        P(f"v_lshl_add_u32 v{t+3}, v{t}, 6, s3\nv_lshl_add_u32 v{vWR}, v{t+2}, 4, v{t+3}\nv_xor_b32 v{vWR+1}, 32, v{vWR}")
        P(f"v_lshl_add_u32 v{vRD}, v0, 4, s3")
        P(f"v_lshrrev_b32 v{t+2}, 2, v0\nv_lshrrev_b32 v{t+3}, 3, v0\nv_xor_b32 v{t+3}, v{t+3}, v0\nv_and_b32 v{t+3}, 3, v{t+3}\nv_lshlrev_b32 v{t+3}, 4, v{t+3}")

    def a_addr(self, d0, d1, vrow, vpiece, t, sd):
        P = self.P
        P(f"s_lshl_b32 s3, s{sR}, 10\ns_add_u32 s3, s3, s{sRT}\nv_lshl_add_u32 v{t}, v{vrow}, 5, s3")
        for dst in (d0, d1):
            P(f"v_sub_u32 v{t+1}, 0, v{t}\nv_and_b32 v{t+1}, 2047, v{t+1}\nv_cndmask_b32 v{t+1}, v{t}, v{t+1}, vcc\nv_mul_u32_u24 v{t+1}, 1792, v{t+1}\nv_add_u32 v{dst}, v{t+1}, v{vpiece}")
            if dst == d0: P(f"v_add_u32 v{t}, 512, v{t}")
        P(f"s_lshl_b32 s3, s{sP}, 6\ns_sub_u32 s7, 832, s3\ns_cmp_eq_u32 s{sCI}, 1\ns_cselect_b32 s{sd}, s7, s3")

    def out_epilogue(self, acc, pk, vwr, vrd, vg0, vg1, soff, mod):
        P = self.P
        for h in range(2):
            for i in range(4): P(f"v_cvt_pk_bf16_f32 v{pk+4*h+i}, v{acc+8*h+2*i}, v{acc+8*h+2*i+1}")
            P(f"ds_write_b128 v{vwr+h}, {vr(pk+4*h,4)}")
        P(f"ds_read_b128 {vr(pk,4)}, v{vrd}\nds_read_b128 {vr(pk+4,4)}, v{vrd} offset:1024")
        P(f"s_waitcnt lgkmcnt(1)\nbuffer_store_dwordx4 {vr(pk,4)}, v{vg0}, {sr(sOUT,4)}, {soff} offen {mod}")
        P(f"s_waitcnt lgkmcnt(0)\nbuffer_store_dwordx4 {vr(pk+4,4)}, v{vg1}, {sr(sOUT,4)}, {soff} offen {mod}")

    def prologue(self):
        P = self.P; o = self.o
        P(f"s_cmpk_ge_u32 s2, 256\ns_cbranch_scc1 L_end")
        P(f"s_load_dwordx2 {sr(sXB,2)}, s[0:1], 40\ns_load_dwordx2 {sr(sWKV,2)}, s[0:1], 48\ns_load_dwordx8 s[12:19], s[0:1], 56\ns_load_dwordx2 {sr(sXA,2)}, s[0:1], 0")
        if o["stamps"]:
            P(f"s_memrealtime {sr(sSTAMP + 2*(NSTAMP-1), 2)}")
        self.stamp(0)
        P(f"v_readfirstlane_b32 s{sWV}, v0\nv_and_b32 v0, 63, v0\ns_and_b32 s3, s2, 7\ns_lshr_b32 s7, s2, 3\ns_lshr_b32 s{sWV}, s{sWV}, 6")
        if o["mixed"]:
            P(f"s_and_b32 s{sP}, s3, 1\ns_lshl_b32 s{sP}, s{sP}, 2\ns_and_b32 s{sT1}, s7, 3\ns_add_u32 s{sP}, s{sP}, s{sT1}\ns_lshr_b32 s{sT0}, s7, 2")
            P(f"s_lshr_b32 s{sRT}, s3, 1\ns_lshl3_add_u32 s{sRT}, s{sRT}, s{sT0}\ns_lshl1_add_u32 s{sT0}, s{sT1}, s{sT0}")
        else:
            P(f"s_and_b32 s{sP}, s7, 7\ns_lshr_b32 s{sT0}, s7, 3\ns_lshl2_add_u32 s{sRT}, s3, s{sT0}")
            P({0: f"s_lshl1_add_u32 s{sT0}, s{sT0}, s{sP}", 1: f"s_mov_b32 s{sT0}, s{sP}", 2: f"s_add_u32 s{sT0}, s{sT0}, s{sP}",
               3: f"s_and_b32 s{sT0}, s{sT0}, 1\ns_lshl2_add_u32 s{sT0}, s{sT0}, s{sP}"}[o["rot"]])
        P(f"s_and_b32 s{sU}, s{sWV}, 3\ns_and_b32 s{sR}, s{sU}, 1\ns_lshr_b32 s{sCI}, s{sU}, 1\ns_lshl_b32 s{sT4}, s{sU}, 10")
        P(f"s_cmp_lt_u32 s{sWV}, 4\ns_cbranch_scc1 L_g2")
        if o["codepf"]:
            P(f"s_getpc_b64 s[{sT2}:{sT3}]\nL_pc:")
            P(f"s_lshl2_add_u32 s{sT1}, s7, s{sU}\ns_lshl_b32 s{sT1}, s{sT1}, 8\nv_lshl_add_u32 v2, v0, 2, s{sT1}\nv_min_u32 v2, L_codeend-L_pc-4, v2")
            P(f"v_mov_b32 v3, s{sT3}\nv_add_co_u32 v2, vcc, s{sT2}, v2\nv_addc_co_u32 v3, vcc, 0, v3, vcc")
            P(f"global_load_dword v47, v[2:3], off")
        if o["warm"]:
            if o.get("warmqv"):
                P(f"s_lshl1_add_u32 s{sT1}, s2, s{sCI}\ns_mulk_i32 s{sT1}, 2688\ns_mul_i32 s{sT5}, s{sR}, 1792\ns_add_u32 s{sT1}, s{sT1}, s{sT5}\nv_min_u32 v2, 55, v0\nv_lshlrev_b32 v2, 4, v2")
            else: P(f"s_lshl2_add_u32 s{sT1}, s2, s{sU}\ns_mulk_i32 s{sT1}, 1184\nv_mul_u32_u24 v2, 20, v0")
            P(f"s_mov_b32 s{sWKV+2}, {448*2688:#x}\ns_mov_b32 s{sWKV+3}, 0x20000")
            P(f"s_waitcnt lgkmcnt(0)\nbuffer_load_dword v47, v2, {sr(sWKV,4)}, s{sT1} offen")
        if o.get("early", 0): P("s_waitcnt lgkmcnt(0)"); self.g1_first()
        P(f"s_branch L_g1")
        P(f"L_g2:")

    def g1_first(self):
        P = self.P; o = self.o
        srd(P, sWS, 18, WS_SIZE); srd(P, sWO, 12, 448*896)
        P(f"s_mov_b32 s{sXA+2}, {2048*896:#x}\ns_mov_b32 s{sXA+3}, 0x20000")
        if o["warm"] > 1:
            P(f"s_lshl2_add_u32 s10, s2, s{sU}\ns_mulk_i32 s10, 392\nv_lshlrev_b32 v40, 3, v0\nbuffer_load_dword v47, v40, {sr(sWO,4)}, s10 offen")
        if o["pf7"]:
            Lp = P.label("pf")
            P(f"s_cmp_lg_u32 s{sP}, 7\ns_cbranch_scc1 {Lp}")
            P(f"s_and_b32 s7, s{sRT}, 3\ns_lshl2_add_u32 s7, s7, s{sU}\ns_mul_i32 s10, s7, {128*896}\ns_mul_i32 s11, s3, {8*896}\ns_add_u32 s10, s10, s11")
            P(f"v_lshlrev_b32 v40, 7, v0\ns_mov_b32 exec_hi, 0x00ffffff")
            for seg in range(2):
                P(f"buffer_load_dword v47, v40, {sr(sXA,4)}, s10 offen\ns_add_u32 s10, s10, {64*896}")
            if o["pfwo"]: P(f"s_mul_i32 s10, s7, 25088\ns_mov_b32 exec_hi, 0x0001ffff")
            for k in range(o["pfwo"]):
                P(f"buffer_load_dword v47, v40, {sr(sWO,4)}, s10 offen\ns_add_u32 s10, s10, {49*128}")
            P(f"s_mov_b64 exec, -1\n{Lp}:")

    def const_stream(self):
        F = []
        vE, vB, vK, vA, vC = 12, 13, 10, 40, 42
        CC, SS = 144, 172
        F += [f"s_lshl2_add_u32 s3, s{sEG}, s{sU}", f"v_and_b32 v{vA}, 15, v0", f"v_lshl_add_u32 v{vA}, s3, 4, v{vA}", f"v_cvt_f32_u32 v{vA}, v{vA}",
              f"v_mul_f32 v{vE}, {fl(1/448)}, v{vA}", f"v_cos_f32 v{vK}, v{vE}",
              f"v_lshrrev_b32 v{vA}, 1, v0", f"v_and_b32 v{vA}, 24, v{vA}", f"v_cvt_f32_u32 v{vA}, v{vA}", f"v_mul_f32 v{vB}, v{vE}, v{vA}",
              f"v_add_f32 v{vK}, v{vK}, v{vK}", f"v_mov_b32 v{vK+1}, v{vK}"]
        for ks in range(7):
            for j in range(2): F.append(f"v_fmamk_f32 v{vA+j}, v{vE}, {fl(32*ks+j)}, v{vB}")
            for j in range(2): F += [f"v_cos_f32 v{vC+2*j}, v{vA+j}", f"v_sin_f32 v{vC+2*j+1}, v{vA+j}"]
            def cv(jj):
                return [f"v_cvt_pk_bf16_f32 v{CC+4*ks+jj}, v{vC+4*jj}, v{vC+4*jj+2}", f"v_cvt_pk_bf16_f32 v{SS+4*ks+jj}, v{vC+4*jj+1}, v{vC+4*jj+3}"]
            pend = cv(0)
            for j in range(2, 8):
                F.append(pend.pop(0))
                if self.o.get("pk", True):
                    F.append(f"v_pk_fma_f32 {vr(vC+2*j,2)}, {vr(vK,2)}, {vr(vC+2*j-2,2)}, {vr(vC+2*j-4,2)} neg_lo:[0,0,1] neg_hi:[0,0,1]")
                else:
                    F += [f"v_fma_f32 v{vC+2*j+h}, v{vK}, v{vC+2*j-2+h}, -v{vC+2*j-4+h}" for h in range(2)]
                if j & 1: pend += cv(j >> 1)
            F += pend
        F += [f"v_and_b32 v{vA}, 15, v0", f"v_cvt_f32_u32 v{vA}, v{vA}", f"v_mul_f32 v{vE}, {fl(1/32)}, v{vA}",
              f"v_lshrrev_b32 v{vA}, 2, v0", f"v_and_b32 v{vA}, 12, v{vA}", f"v_cvt_f32_u32 v{vA}, v{vA}", f"v_mul_f32 v{vC}, v{vE}, v{vA}"]
        for j in range(1, 4): F.append(f"v_add_f32 v{vC+j}, v{vE}, v{vC+j-1}")
        for j in range(4): F.append(f"v_sin_f32 v{vC+4+j}, v{vC+j}")
        for j in range(4): F.append(f"v_cos_f32 v{vC+j}, v{vC+j}")
        F += [f"v_and_b32 v{vA}, 1, v0", f"s_mov_b32 s3, 0x80008000", f"v_mul_lo_u32 v{vA}, v{vA}, s3", f"s_brev_b32 s3, 1"]
        for m in range(2):
            for jj in range(2): F.append(f"v_cvt_pk_bf16_f32 v{96+8*m+jj}, v{vC+4*m+2*jj}, v{vC+4*m+2*jj+1}")
        for m in range(2):
            for jj in range(2): F.append(f"v_xor_b32 v{96+8*m+2+jj}, v{vA}, v{96+8*m+jj}")
        for m in range(2):
            for jj in range(4): F.append(f"v_xor_b32 v{96+8*m+4+jj}, s3, v{96+8*m+jj}")
        F += [f"v_and_b32 v{vA}, 15, v0", f"v_lshrrev_b32 v{vA+1}, 1, v{vA}", f"v_lshlrev_b32 v{vA}, 7, v{vA}",
              f"v_add_u32 v{vA}, {L_XA}, v{vA}",
              f"v_lshrrev_b32 v{vC}, 4, v0", f"v_xor_b32 v{vC}, v{vC}, v{vA+1}",
              f"v_lshl_add_u32 v8, v{vC}, 4, v{vA}", f"v_xor_b32 v9, 64, v8", f"v_lshl_or_b32 v11, v0, 31, 1.0",
              f"v_mov_b32 v15, {L_FLAG}"]
        return F

    def g2(self):
        P = self.P; o = self.o; T = self.tail
        vx0, vx1, vw0, vw1, vq0, vq1, vxa = 1, 2, 3, 4, 5, 6, 7
        NT = lambda k: "nt " if k in o.get("ldnt", "") else ""
        P("; ==== loader / DFT waves: first loads, DFT constants, staged loads of x, Wk, A_x, Wq, Wv")
        P(f"v_lshrrev_b32 v16, 3, v0\nv_lshl_add_u32 v16, s{sU}, 3, v16")
        P(f"v_lshrrev_b32 v17, 1, v16\nv_xor_b32 v17, v17, v0\nv_and_b32 v17, 7, v17\nv_lshlrev_b32 v17, 4, v17")
        P(f"v_mul_u32_u24 v{vx0}, 896, v16\nv_add_u32 v{vx0}, v{vx0}, v17\nv_add_u32 v{vx1}, {32*896}, v{vx0}")
        P(f"v_lshrrev_b32 v18, 2, v0\nv_and_b32 v18, 4, v18\nv_xor_b32 v18, v18, v0\nv_and_b32 v18, 7, v18")
        P(f"v_mul_u32_u24 v19, 2688, v16\ns_add_u32 s{sT1}, s{sP}, 7\ns_lshl_b32 s{sT1}, s{sT1}, 7")
        P(f"v_lshl_add_u32 v{vw0}, v18, 4, v19\nv_add_u32 v{vw0}, s{sT1}, v{vw0}\nv_add_u32 v{vw1}, {32*2688}, v{vw0}")
        P(f"s_sub_u32 s{sT1}, s{sT0}, 7\ns_cselect_b32 s{sROT}, s{sT0}, s{sT1}\ns_mul_i32 s{sT2}, s{sRT}, {64*896}")
        P(f"s_lshl_b32 s{sT1}, s{sROT}, 7\ns_add_u32 s{sSX}, s{sT1}, s{sT2}\ns_mul_i32 s{sSW}, s{sROT}, {64*2688}")
        P(f"s_add_u32 s{sSW+1}, s{sSW}, {64*2688}\ns_add_u32 s{sSX+1}, s{sSX}, 128\ns_cmp_eq_u32 s{sROT}, 6\ns_cselect_b32 s{sSW+1}, 0, s{sSW+1}\ns_cselect_b32 s{sSX+1}, s{sT2}, s{sSX+1}")
        P(f"s_cmp_eq_u32 s{sP}, 7\ns_cselect_b32 s{sWKV+2}, 0, {448*2688:#x}")
        P(f"s_mov_b32 s{sWKV+3}, 0x20000\ns_mov_b32 s{sXB+2}, {2048*896:#x}\ns_mov_b32 s{sXB+3}, 0x20000\ns_mov_b32 m0, s{sT4}")
        P(f"s_waitcnt lgkmcnt(0)")
        self.stamp("karg")
        vm = Cnt(P, "vmcnt", 63)
        cur = 0
        pre = []
        for t in o["pre"].split():
            q = int(t[1])
            if t[0] == "X": pre += [(("K", q), L_X(q), vx0, sXB, sSX + q, 0), (("K", q), L_X(q) + 4096, vx1, sXB, sSX + q, 0)]
            if t[0] == "W": pre += [(("K", q), L_WK(q), vw0, sWKV, sSW + q, 0), (("K", q), L_WK(q) + 4096, vw1, sWKV, sSW + q, 0)]
            if t[0] == "V": pre += [(("V", q), L_WV(q), vw0, sWKV, sSW + q, 896), (("V", q), L_WV(q) + 4096, vw1, sWKV, sSW + q, 896)]
        for tag, lds, va, sd, so, imm in pre:
            d = lds - imm - cur; cur = lds - imm
            if d: P(f"s_addk_i32 m0, {d}" if abs(d) < 32768 else f"s_add_u32 m0, s{sT4}, {cur}")
            P(f"buffer_load_dwordx4 v{va}, {sr(sd,4)}, s{so} offen" + (f" offset:{imm}" if imm else "") + f" {NT(tag[0])}lds"); vm.add(tag)
        self.stamp("dma0")
        P(f"s_load_dword s{sNONCE}, s[18:19], {WS_E}")
        P(f"s_lshr_b32 s{sT1}, s7, 2\ns_lshl3_add_u32 s{sS2}, s3, s{sT1}\ns_and_b32 s{sEG}, s7, 3")
        for q in range(2, 7):
            P(f"s_add_u32 s{sSX+q}, s{sSX+q-1}, 128\ns_add_u32 s{sSW+q}, s{sSW+q-1}, {64*2688}\ns_cmp_eq_u32 s{sROT}, {7-q}\ns_cselect_b32 s{sSX+q}, s{sT2}, s{sSX+q}\ns_cselect_b32 s{sSW+q}, 0, s{sSW+q}")
        A = Prog()
        srd(A, sW, sWKV, 448*2688); srd(A, sWS, 18, WS_SIZE); srd(A, sWO, 12, 448*896); srd(A, sOUT, 14, 2048*1792)
        A(f"s_mov_b32 s{sXA+2}, {2048*896:#x}\ns_mov_b32 s{sXA+3}, 0x20000\ns_mul_i32 s3, s{sS2}, 896")
        A(f"v_mul_u32_u24 v{vxa}, {64*896}, v16\nv_add3_u32 v{vxa}, v{vxa}, v17, s3")
        A(f"v_min_u32 v20, 6, v18\ns_mul_i32 s3, s{sP}, 112\nv_lshl_add_u32 v{vq0}, v20, 4, v19\nv_add_u32 v{vq0}, s3, v{vq0}\nv_add_u32 v{vq1}, {32*2688}, v{vq0}")
        A(f"s_cmp_eq_u32 s{sP}, 7\ns_cselect_b32 s{sFO}, 1, 0\ns_cmp_eq_u32 s{sR}, 0\ns_cselect_b32 s{sFO}, s{sFO}, 2")
        F = A.lines + self.const_stream()
        fi = 0
        def fill(n):
            nonlocal fi
            while fi + n < len(F) and F[fi + n].startswith(("s_cselect", "s_addc")): n += 1
            for l in F[fi:fi + n]: P(l)
            fi = min(len(F), fi + n)
        nbar = 0
        safe = {k: min(k // 2 + 3, 8) for k in range(14)}
        def dma(tag, lds, va, srdn, soff, step=0):
            if tag[0] != "K" and (lds // SL) in safe: assert nbar >= safe[lds // SL], ("WAR", tag, nbar)
            P((f"s_addk_i32 m0, {step}" if step else f"s_add_u32 m0, s{sT4}, {lds}") + f"\nbuffer_load_dwordx4 v{va}, {sr(srdn,4)}, s{soff} offen {NT(tag[0])}lds"); vm.add(tag)
        def ld(kind, q):
            if kind == "K":
                dma(("K", q), L_X(q), vx0, sXB, sSX + q); dma(("K", q), L_WK(q), vw0, sWKV, sSW + q)
                dma(("K", q), L_X(q) + 4096, vx1, sXB, sSX + q); dma(("K", q), L_WK(q) + 4096, vw1, sWKV, sSW + q)
            elif kind == "X":
                dma(("K", q), L_X(q), vx0, sXB, sSX + q); dma(("K", q), L_X(q) + 4096, vx1, sXB, sSX + q)
            elif kind == "V":
                if q == 0: P(f"v_add_u32 v{vw0}, 896, v{vw0}\nv_add_u32 v{vw1}, 896, v{vw1}\ns_mov_b64 s[60:61], {sr(sWKV,2)}\ns_mov_b32 s62, s{sWKV+2}\ns_mov_b32 s63, 0x20000")
                dma(("V", q), L_WV(q), vw0, 60, sSW + q); dma(("V", q), L_WV(q) + 4096, vw1, 60, sSW + q, 4096)
            elif kind == "Q":
                dma(("Q", q), L_WQ(q), vq0, sW, sSW + q); dma(("Q", q), L_WQ(q) + 4096, vq1, sW, sSW + q, 4096)
            elif kind == "O":
                if q == 0: pass
                else:
                    P(f"s_add_u32 s65, s65, 1\ns_cmp_eq_u32 s65, 7\ns_cselect_b32 s65, 0, s65")
                P(f"s_lshl_b32 s3, s65, 13\ns_add_u32 m0, s3, s66\ns_mul_i32 s3, s65, {64*896}\nbuffer_load_dwordx4 v12, {sr(sWO,4)}, s3 offen {NT('O')}lds")
                P(f"s_addk_i32 m0, 4096\nbuffer_load_dwordx4 v13, {sr(sWO,4)}, s3 offen {NT('O')}lds"); vm.add(("O", q)); vm.add(("O", q))
            elif kind == "A":
                P(f"s_add_u32 m0, s{sT4}, {L_XA + q*(4096-128)}\nbuffer_load_dwordx4 v{vxa}, {sr(sXA,4)}, 0 offen offset:{q*128} {NT('A')}lds"); vm.add(("A", q))
        def bar(name, tag=None):
            nonlocal nbar
            self.stamp("f" + name)
            if tag: vm.wait(tag)
            self.stamp("w" + name)
            P("s_barrier"); nbar += 1
            self.stamp("b" + name)
        def only(cond, f):
            L = P.label("sk")
            P(f"{cond}\ns_cbranch_scc0 {L}"); f(); P(f"{L}:")
        FO = [24, 25, 26, 27, 11]
        def flag_setup(E):
            E(f"s_add_u32 s3, s{sP}, s{sCI}\ns_and_b32 s3, s3, 7\ns_lshl_b32 s3, s3, 5\ns_sub_u32 s3, s3, s{sCI}\ns_lshl2_add_u32 s3, s3, {WS_KF + 4:#x}")
            for d in range(5):
                E(f"s_add_u32 s7, s{sRT}, {d}\ns_and_b32 s7, s7, 31\ns_lshl_b32 s7, s7, 10\ns_add_u32 s{FO[d]}, s7, s3\ns_add_u32 s3, s3, 8")
            E(f"s_add_u32 s4, s18, {WS_VF - WS_KF:#x}\ns_addc_u32 s5, s19, 0")
        def sflag(bases, early):
            def f():
                for bs in bases:
                    for d in range(5): P(f"s_atomic_swap s{sNONCE}, {bs}, s{FO[d]}")
            only(f"s_cmp_eq_u32 s{sFO}, {int(early)}", f)
        CC, SS, ZC, ZS, ZH = 144, 172, 64, 72, 136
        vFL = 15
        lgx = Cnt(P, "lgkmcnt", 15)
        MM, M2 = 216, 80
        def a1(ina):
            NX = 6
            def xreg(ks): return (24, 32, 40, 48, 56, 112)[ks % NX]
            def xread(ks):
                for mt in range(2):
                    P(f"ds_read_b128 {vr(xreg(ks) + 4*mt, 4)}, v{8 + (ks & 1)} offset:{(ks>>1)*4096 + mt*2048}"); lgx.add(("x", ks))
            P("; hidden DFT of 32 rows x 16 frequencies")
            for ks in range(NX - 1): xread(ks)
            inl = dict(t.split(":") for t in ina.split())
            for ks in range(14):
                if str(ks) in inl:
                    if "kf" in inl[str(ks)] or "kp1" in inl[str(ks)]: assert not lgx.q and ks >= 15 - NX
                    run(inl[str(ks)].replace(",", " "))
                lgx.wait(("x", ks))
                x = xreg(ks); z = ZH if ks >= 7 else 0; kk = 4 * (ks % 7)
                c = (lambda r: "0" if kk == 0 else r)
                P(MF16(ZC + z, x, CC + kk, c(ZC + z)))
                P(MF16(ZS + z, x, SS + kk, c(ZS + z)))
                if ks + NX - 1 < 14: xread(ks + NX - 1)
                P(MF16(ZC + z + 4, x + 4, CC + kk, c(ZC + z + 4)))
                P(MF16(ZS + z + 4, x + 4, SS + kk, c(ZS + z + 4)))
            self.stamp("a1")
        def fm_read():
            assert not lgx.q
            for k in range(4): P(f"ds_read_b128 {vr(96+4*k,4)}, v134 offset:{L_F - L_M + 1024*k}"); lgx.add("F")
            for k in range(8): P(f"ds_read_b128 {vr(MM+4*k,4)}, v134 offset:{1024*k}"); lgx.add("F")
        ZR, ZP, ZN, TA = 80, 84, 88, 40
        vTR, vWR, vRD, vG0, vG1, vOR, vA0, vA1, vTA, vTW, vTG = 120, 122, 121, 124, 125, 126, 136, 137, 138, 140, 141
        sOB, sAB = 10, 64
        def lva():
            P("; 32-point DFT over the rows")
            for i in range(16): P(f"v_fmac_f32 v{ZC+i}, v11, v{ZC+ZH+i}")
            for i in range(4): P(f"v_cvt_pk_bf16_f32 v{ZR+i}, v{ZC+2*i}, v{ZC+2*i+1}")
            for i in range(4): P(f"v_cvt_pk_bf16_f32 v{ZP+i}, v{ZS+2*i}, v{ZS+2*i+1}")
            for i in range(4): P(f"v_cvt_pk_bf16_f32 v{ZN+i}, -v{ZS+2*i}, -v{ZS+2*i+1}")
        def lvb():
            for nt in range(2):
                P(MF16(TA + 8*nt, ZR, 96 + 4*nt, "0")); P(MF16(TA + 8*nt + 4, ZR, 104 + 4*nt, "0"))
            for nt in range(2):
                P(MF16(TA + 8*nt, ZN, 104 + 4*nt, TA + 8*nt)); P(MF16(TA + 8*nt + 4, ZP, 96 + 4*nt, TA + 8*nt + 4))
        def lvc():
            for nt in range(2):
                for r_ in range(4): P(f"v_cvt_pk_bf16_f32 v{56+4*nt+r_}, v{TA+8*nt+r_}, v{TA+8*nt+4+r_}")
        def lvw():
            for nt in range(2): P(f"ds_write_b128 v{vTW}, {vr(56+4*nt,4)} offset:{SL + 1024*nt}"); lgx.add("w")
            for nt in range(2): P(f"ds_read_b128 {vr(24+4*nt,4)}, v{vRD} offset:{SL + 1024*nt}"); lgx.add("t")
        def t_store():
            lgx.wait("t")
            P(f"buffer_store_dwordx4 v[24:27], v{vTG}, {sr(sWS,4)}, s{sT0} offen sc1\ns_add_u32 s{sT0}, s{sT0}, {16*TST}\nbuffer_store_dwordx4 v[28:31], v{vTG}, {sr(sWS,4)}, s{sT0} offen sc1")
            vm.add(("T", 0)); vm.add(("T", 0)); self.stamp("tst")
        def t_addr():
            P = self.P
            P(f"s_lshl1_add_u32 s3, s{sT4}, {L_OUT}\nv_lshl_add_u32 v{vRD}, v0, 4, s3\nv_and_b32 v18, 15, v0\nv_lshl_add_u32 v19, v18, 6, s3")
            P(f"v_lshrrev_b32 v18, 3, v0\nv_xor_b32 v20, v18, v0\nv_bfe_u32 v21, v20, 1, 2\nv_lshl_add_u32 v{vTW}, v21, 4, v19")
            P(f"v_and_b32 v20, 3, v20\nv_lshlrev_b32 v142, 4, v20\nv_lshrrev_b32 v143, 2, v0\nv_mul_u32_u24 v18, {TST}, v143\nv_add_u32 v{vTG}, v18, v142")
            P(f"s_lshl1_add_u32 s3, s{sEG}, s{sCI}\ns_lshl_b32 s3, s3, 13\ns_lshl1_add_u32 s7, s{sS2}, s{sR}\ns_lshl_b32 s7, s7, 6\ns_add_u32 s3, s3, s7\ns_add_u32 s{sT0}, s3, {WS_T:#x}")
        def t_flag():
            def f():
                P(f"s_lshr_b32 s7, s{sS2}, 3\ns_lshl3_add_u32 s3, s{sEG}, s7\ns_lshl_b32 s3, s3, 7\ns_and_b32 s7, s{sS2}, 7\ns_lshl2_add_u32 s3, s7, s3")
                P(f"s_add_u32 s3, s3, {WS_TF:#x}\ns_atomic_swap s{sNONCE}, s[18:19], s3")
            only(f"s_cmp_eq_u32 s{sU}, 1", f)
        def addr1():
            P = self.P
            P(f"v_and_b32 v16, 31, v0\nv_lshrrev_b32 v17, 5, v0\nv_bfe_u32 v18, v0, 1, 2\nv_xor_b32 v18, v18, v17\ns_lshl1_add_u32 s3, s{sT4}, {L_OUT}")
            P(f"v_lshl_add_u32 v19, v16, 6, s3\nv_lshl_add_u32 v{vWR}, v18, 4, v19\nv_xor_b32 v{vWR+1}, 32, v{vWR}")
            P(f"v_mul_u32_u24 v{vG0}, 1792, v143\nv_add_u32 v{vG0}, v{vG0}, v142\nv_add_u32 v{vG1}, {16*1792}, v{vG0}")
            P(f"s_lshl_b32 s3, s{sR}, 12\nv_lshl_add_u32 v{vOR}, v16, 3, s3\nv_lshl_add_u32 v{vOR}, v17, 9, v{vOR}")
            P(f"s_lshl1_add_u32 s3, s{sRT}, s{sR}\ns_mul_i32 s3, s3, {32*1792}\ns_lshl1_add_u32 s7, s{sP}, s{sCI}\ns_lshl_b32 s7, s7, 6\ns_add_u32 s3, s3, s7\ns_add_u32 s{sOB}, s3, 896")
            P(f"s_lshl_b32 s3, s{sCI}, 6\ns_add_u32 s3, s3, {L_WO}")
            self.tr_addr(vTR, 18, 19, True, 3)
        def addr2():
            P = self.P
            P(f"s_cmp_eq_u32 s{sCI}, 1\ns_cselect_b64 vcc, -1, 0")
            if not o["g1a"]: self.a_addr(vA0, vA1, 143, 142, 18, sAB)
            P(f"v_and_b32 v18, 19, v0\nv_bfe_u32 v19, v0, 2, 1\nv_lshl_add_u32 v18, v19, 3, v18\nv_bfe_u32 v19, v0, 3, 1\nv_lshl_add_u32 v18, v19, 2, v18")
            P(f"v_sub_u32 v19, 32, v18\nv_cndmask_b32 v18, v18, v19, vcc\nv_lshrrev_b32 v19, 5, v18\nv_and_b32 v18, 31, v18\nv_lshlrev_b32 v18, 2, v18")
            P(f"v_lshl_add_u32 v18, v19, 13, v18\nv_lshl_add_u32 v18, v17, 10, v18\nv_add_u32 v{vTA}, {L_TT}, v18\nv_add_u32 v{vTA+1}, 128, v{vTA}")
        def addr3():
            P = self.P
            P(f"v_lshrrev_b32 v18, 3, v0\nv_lshl_add_u32 v18, s{sU}, 3, v18\nv_mul_u32_u24 v12, 896, v18\nv_and_b32 v18, 4, v143\nv_xor_b32 v18, v18, v0\nv_and_b32 v18, 7, v18")
            P(f"s_lshl_b32 s3, s{sP}, 7\nv_lshl_add_u32 v12, v18, 4, v12\nv_add_u32 v12, s3, v12\nv_add_u32 v13, {32*896}, v12")
            P(f"s_and_b32 s65, s{sRT}, 3\ns_mul_i32 s65, s65, {o.get('worot', 2)}\ns_cmp_eq_u32 s{sP}, 7\ns_cselect_b32 s{sWO+2}, 0, s{sWO+2}\ns_add_u32 s66, s{sT4}, {L_WO}")
        G = []; gi = 0
        for f in (addr3, addr1, addr2):
            B = Prog(); self.into(B, f); G += B.lines
        if o.get("verbose"): print("second filler", len(G))
        def fill2(n):
            nonlocal gi
            while gi + n < len(G) and G[gi + n].startswith(("s_cselect", "s_addc")): n += 1
            for l in G[gi:gi + n]: P(l)
            gi = min(len(G), gi + n)
        vD0, vKA, vKB, vWO = 14, 127, 135, 13
        sKB = 0
        def role_setup():
            P = self.P
            if o.get("k56"): P(f"v_lshlrev_b32 v{vD0}, 4, v0\ns_mul_i32 s{sKB}, s{sU}, 1792\nv_add_u32 v{vKA}, s{sKB}, v{vD0}\ns_nop 0\ns_nop 0")
            else: P(f"v_lshlrev_b32 v{vD0}, 4, v0\nv_add_u32 v{vKA}, s{sT4}, v{vD0}\ns_add_u32 s3, s{sT4}, 4096\ns_min_u32 s{sKB}, s3, 6144\nv_add_u32 v{vKB}, s{sKB}, v{vD0}")
            P(f"s_lshl3_add_u32 s3, s{sRT}, s{sP}\ns_lshl_b32 s3, s3, 7\ns_mul_i32 s7, s{sCI}, {WS_VF - WS_KF:#x}\ns_add_u32 s3, s3, s7\ns_add_u32 s{sT3}, s3, {WS_KF:#x}")
            P(f"s_mul_i32 s{sT1}, s{sP}, {PAIR}\ns_mul_i32 s3, s{sRT}, 7168\ns_add_u32 s3, s3, s{sT1}\ns_add_u32 s{sGB[4]}, s3, {WS_K:#x}")
            for n in range(4):
                P(f"s_sub_u32 s3, s{sGB[4]}, {7168*(4-n)}\ns_cmp_lt_u32 s{sRT}, {4-n}\ns_cselect_b32 s{sGB[n]}, s{sWS+2}, s3")
            P(f"s_mul_i32 s3, s{sU}, 10\nv_lshrrev_b32 v132, 1, v0\nv_add_u32 v132, s3, v132\nv_lshl_add_u32 v133, s{sRT}, 3, v132\nv_cmp_le_u32 vcc, 32, v133")
            P(f"v_mov_b32 v129, 0x3f803f80\nv_and_b32 v133, 1, v0\nv_cndmask_b32 v128, 0, v129, vcc\nv_lshlrev_b32 v133, 6, v133\nv_lshl_add_u32 v132, v132, 10, v133")
            P(f"v_mov_b32 v129, v128\nv_mov_b32 v130, v128\nv_mov_b32 v131, v128\nv_add_u32 v134, {L_M}, v{vD0}")
        def ones():
            P(f"s_mov_b64 exec, 0xfffff\nds_write_b128 v132, v[128:131] offset:{L_VT + 896}\ns_mov_b64 exec, -1"); lgx.add("o")
        def k_ld(n):
            if o.get("k56"):
                P(f"s_add_u32 m0, s{sKB}, {L_KT + n*7168}\ns_mov_b32 exec_hi, 0x00ffffff")
                for k in range(2): P(f"buffer_load_dwordx4 v{vKA}, {sr(sWS,4)}, s{sGB[n]} offen offset:{896*k} sc1 lds"); vm.add(("k", n))
                P("s_mov_b32 exec_hi, -1")
                return
            for sb, va in ((sT4, vKA), (sKB, vKB)):
                P(f"s_add_u32 m0, s{sb}, {L_KT + n*7168}\nbuffer_load_dwordx4 v{va}, {sr(sWS,4)}, s{sGB[n]} offen sc1 lds"); vm.add(("k", n))
        for f in (role_setup, lambda: flag_setup(self.P), t_addr):
            B = Prog(); self.into(B, f); F += B.lines
            if o.get("verbose"): print("filler length", len(F) - len(B.lines), len(F))
        def die_tell():
            P(f"s_getreg_b32 s16, hwreg(HW_REG_XCC_ID, 0, 4)\ns_lshl_b32 s{sT5}, s{sRT}, 7\ns_add_u32 s{sT2}, s{sT5}, {WS_XF:#x}\ns_lshl2_add_u32 s{sT5}, s{sP}, s{sT2}")
            P(f"s_add_u32 s16, s16, s{sNONCE}\ns_mov_b32 s17, s16\ns_atomic_swap s17, s[18:19], s{sT5}")
        def die_ask(): P(f"s_load_dwordx8 s[20:27], s[18:19], s{sT2} glc")
        def die_check():
            Lx = P.label("xm")
            P(f"s_mov_b32 s{sT5}, {SPIN}\n{Lx}:\ns_waitcnt lgkmcnt(0)")
            for k in range(4): P(f"s_cmp_lg_u64 {sr(20+2*k,2)}, s[16:17]\ns_cbranch_scc1 {Lx}_n")
            P(f"v_mov_b32 v21, {1 if o['olocal'] else 0}\n{Lx}_e:\nds_write_b32 v{vFL}, v21 offset:12\ns_waitcnt lgkmcnt(0)")
            T(f"{Lx}_n:\ns_sub_u32 s20, s20, s6")
            for k in range(1, 8): T(f"s_sub_u32 s{20+k}, s{20+k}, s6\ns_max_u32 s20, s20, s{20+k}")
            T(f"s_cmp_lt_u32 s20, 16\ns_cbranch_scc1 {Lx}_s\ns_load_dwordx8 s[20:27], s[18:19], s{sT2} glc\ns_sub_u32 s{sT5}, s{sT5}, 1\ns_cbranch_scc0 {Lx}\n{Lx}_s:\nv_mov_b32 v21, 0\ns_branch {Lx}_e")
        p7state = {}
        def run(sched, extra={}):
            for tok in sched.split():
                if tok in extra: extra[tok]()
                elif tok[0] in "KVQAXO" and tok[1:].isdigit(): ld(tok[0], int(tok[1:]))
                elif tok[0] == "f" and tok != "fs": fill(len(F) if tok == "f*" else int(tok[1:]))
                elif tok[0] == "w": vm.wait((tok[1], int(tok[2:])))
                elif tok[0] == "b": bar(tok[1:], (tok[1], int(tok[2:])) if tok[1] != "S" else None)
                elif tok == "nonce": P(f"s_waitcnt lgkmcnt(0)\n{NONCE}")
                elif tok == "lg0": lgx.all()
                elif tok == "FM": fm_read()
                elif tok == "kp1": only(f"s_cmp_eq_u32 s{sU}, 1", self.inbox_issue)
                elif tok == "kw1": only(f"s_cmp_eq_u32 s{sU}, 1", self.inbox_wait); self.stamp("kw")
                elif tok[0] == "k" and tok[1:].isdigit(): k_ld(int(tok[1:]))
                elif tok == "kf": sflag(["s[18:19]"], False)
                elif tok == "vf": sflag(["s[4:5]"], False)
                elif tok == "ef": sflag(["s[18:19]", "s[4:5]"], True)
                elif tok == "tf": t_flag()
                elif tok == "tst": t_store()
                elif tok == "a1": a1(o["ina1"])
                elif tok == "a17": a1(o["ina7"])
                elif tok == "lva": lva()
                elif tok == "lvb": lvb()
                elif tok == "lvc": lvc()
                elif tok == "lvw": lvw()
                elif tok[0] == "g": fill2(len(G) if tok == "g*" else int(tok[1:]))
                elif tok[:2] == "p:": P(f"s_setprio {tok[2:]}")
                elif tok == "one": ones()
                elif tok[:2] == "st":
                    if o["otp"] == 9:
                        a_, b_ = map(int, tok[2:].split("-"))
                        if a_ == 0:
                            P(f"s_lshl1_add_u32 s{sT5}, s{sRT}, s{sR}\ns_mul_i32 s{sT5}, s{sT5}, 28672\ns_lshl1_add_u32 s{sOB}, s{sP}, s{sCI}\ns_mul_i32 s{sOB}, s{sOB}, 1792\ns_add_u32 s{sOB}, s{sOB}, s{sT5}\ns_add_u32 s{sOB}, s{sOB}, {WS_O:#x}")
                        for k in range(a_, min(b_, 28)): P(f"s_load_dword s1, s[18:19], s{sOB} offset:{64*k}")
                        if b_ > 28: P(f"s_lshl1_add_u32 s{sT5}, s{sRT}, s{sR}\ns_lshl_b32 s{sT5}, s{sT5}, 6\ns_load_dword s1, s[18:19], s{sT5} offset:{WS_OF}")
                elif tok == "hop":
                    if o["hops"] & 1:
                        for k, ch in enumerate(self.HOPS[:-1]): P(f"s_cmp_eq_u32 s{sU}, {k}\ns_cbranch_scc1 L_pad_{ch[0]}")
                        P(f"s_branch L_pad_{self.HOPS[-1][0]}\nL_hopret:")
                elif tok == "tl":
                    if o["touch"] & 2:
                        P(f"s_lshl_b32 s3, s2, 7\ns_add_u32 s7, s{sU}, 1\ns_lshl_b32 s7, s7, 21\ns_add_u32 s7, s7, s3\ns_load_dword s1, s[18:19], s7 glc")
                        P(f"s_lshl_b32 s7, s{sR}, 21\ns_lshl_b32 s{sT5}, s{sCI}, 15\ns_add_u32 s7, s7, s{sT5}\ns_add_u32 s7, s7, s3\ns_load_dword s1, {sr(sOUT,2)}, s7 glc")
                    if o["touch"] & 8:
                        P(f"s_lshl3_add_u32 s3, s{sRT}, s{sP}\ns_lshl_b32 s3, s3, 7\ns_lshl_b32 s7, s{sU}, 15\ns_add_u32 s3, s3, s7\ns_add_u32 s3, s3, {WS_KF:#x}\ns_load_dword s1, s[18:19], s3 glc")
                elif tok == "xt": only(f"s_cmp_eq_u32 s{sU}, 0", die_tell)
                elif tok == "xa": only(f"s_cmp_eq_u32 s{sU}, 3", die_ask)
                elif tok == "xc": only(f"s_cmp_eq_u32 s{sU}, 3", die_check)
                elif tok == "p7":
                    P(f"s_cmp_eq_u32 s{sP}, 7\ns_cbranch_scc1 L_p7")
                    p7state.update(fi=fi, q=list(vm.q))
                elif tok == "join": P("L_p7join:")
                elif tok == "p7b":
                    P(f"s_cmp_eq_u32 s{sP}, 7\ns_cbranch_scc1 L_p7b")
                    p7state.update(q2=list(vm.q), l2=list(lgx.q))
                elif tok == "join2": P("L_p7join2:")
                elif tok == "vp3": only(f"s_cmp_eq_u32 s{sU}, 3", self.inbox_issue)
                elif tok == "page": P("@JUMPALIGN g2p1"); self.pad("g2p1"); P("L_ja_g2p1:")
                else: raise ValueError(tok)
        run(o["sched"])
        n1 = o["wo1"]; WF = 144
        def wo_frag(q0, q1):
            for ks in range(4*q0, 4*q1):
                for t in range(2):
                    P(f"ds_read_b64_tr_b16 {vr(WF+4*ks+2*t,2)}, v{vTR} offset:{ks*2048 + t*512}")
        P(f"s_cmp_eq_u32 s{sU}, 2\ns_cbranch_scc1 L_roleT\ns_cmp_eq_u32 s{sU}, 0\ns_cbranch_scc1 L_roleX\ns_cmp_eq_u32 s{sU}, 1")
        P("s_cbranch_scc1 " + ("L_pad_g1p2" if o["hops"] & 2 else "L_rolesdone"))
        iV = len(P.lines)
        for n in range(5): P(f"s_add_u32 s{sGB[n]}, s{sGB[n]}, {WS_V - WS_K:#x}")
        P(f"v_add_u32 v{vKB}, 3584, v{vD0}\ns_nop 0")
        if o["otp"] == 20:
            P(f"s_mul_i32 s3, s{sRT}, {2*28672}\ns_mul_i32 s7, s{sP}, 3584\ns_add_u32 s3, s3, s7\ns_add_u32 s3, s3, {WS_O:#x}\nv_cmp_gt_u32 vcc, 28, v0\nv_lshl_add_u32 v30, v0, 7, s3")
            P(f"v_add_u32 v31, {28672 - 3584}, v30\ns_lshl_b32 s7, s{sRT}, 7\nv_cndmask_b32 v30, v31, v30, vcc\nv_cmp_gt_u32 vcc, 56, v0\ns_add_u32 s7, s7, {WS_OF:#x}\nv_mov_b32 v31, s7\nv_cndmask_b32 v30, v31, v30, vcc")
        TV = o.get("tv")
        def t_prep():
            P(f"v_lshrrev_b32 v18, 3, v0\nv_lshlrev_b32 v18, 7, v18\nv_and_b32 v19, 7, v0\nv_lshl_add_u32 v18, v19, 2, v18\ns_mov_b32 s{sT1}, {WS_TF:#x}")
        def t_prep2():
            P(f"s_lshr_b32 s3, s{sP}, 1\ns_and_b32 s7, s{sP}, 1\nv_lshl_add_u32 v18, s3, 10, v18\nv_lshl_add_u32 v19, s7, 10, v18")
            P(f"s_mul_i32 s{sT0}, s{sRT}, {TST}\ns_lshl_b32 s3, s{sP}, 13\ns_add_u32 s{sT0}, s{sT0}, s3\ns_add_u32 s{sT0}, s{sT0}, {WS_T:#x}")
        def t_ld(q0, q1):
            for q in range(q0, q1):
                P(f"s_mov_b32 m0, {L_TT + q*4096}" + (f"\ns_add_u32 s{sT0}, s{sT0}, 4096" if q else ""))
                for z in range(4): P(f"buffer_load_dwordx4 v{vD0}, {sr(sWS,4)}, s{sT0} offen offset:{1024*z} sc1 lds"); vm.add(("t", 1))
        if TV is not None:
            t_prep(); t_prep2()
            P(f"s_cmp_eq_u32 s{sP}, 7\ns_cselect_b32 s{sT1}, s{sWS+2}, s{sT1}")
        P(f"s_mov_b32 exec_hi, 0x00ffffff")
        gate = o.get("vgate", 2)
        if not gate: self.inbox_wait()
        else: P(f"s_mov_b32 s{sT5}, {SPIN}\ns_mov_b32 s7, s{sNONCE}\ns_waitcnt lgkmcnt(0)")
        CP = [68, 62, 60, 50, 48]
        def copy_reissue(n):
            for m in range(n + 1): P(f"s_mov_b64 {sr(CP[m],2)}, {sr(28-2*m,2)}")
            self.inbox_issue()
        if gate == 2: copy_reissue(4)
        for n in (4, 3, 2, 1, 0):
            if gate == 2:
                L = P.label("vg")
                P(f"s_cmp_eq_u64 {sr(CP[n],2)}, s[6:7]\ns_cbranch_scc1 {L}_d\n{L}:\ns_waitcnt lgkmcnt(0)")
                copy_reissue(n)
                P(f"s_sub_u32 s{sT5}, s{sT5}, 1\ns_max_i32 s{sT5}, s{sT5}, 0\ns_cbranch_scc0 {L}_d\ns_cmp_lg_u64 {sr(CP[n],2)}, s[6:7]\ns_cbranch_scc1 {L}\n{L}_d:")
            elif gate:
                L = P.label("vg")
                P(f"s_cmp_eq_u64 {sr(28-2*n,2)}, s[6:7]\ns_cbranch_scc1 {L}_d\n{L}:")
                self.inbox_issue()
                P(f"s_sub_u32 s{sT5}, s{sT5}, 1\ns_max_i32 s{sT5}, s{sT5}, 0\ns_waitcnt lgkmcnt(0)\ns_cbranch_scc0 {L}_d\ns_cmp_lg_u64 {sr(28-2*n,2)}, s[6:7]\ns_cbranch_scc1 {L}\n{L}_d:")
            if n == 4: self.stamp("r1")
            if n == 0: self.stamp("r0")
            for z in range(8):
                P(f"s_mov_b32 m0, {L_VT + n*8192}" if z == 0 else f"s_addk_i32 m0, {4096 - 384 if z == 4 else 128}")
                P(f"buffer_load_dwordx4 v{vKB if z >> 2 else vD0}, {sr(sWS,4)}, s{sGB[n]} offen offset:{896*(z&3)} sc1 lds"); vm.add(("v", n))
            if n == TV:
                P("s_mov_b32 exec_hi, -1")
                for k in range(2): P(f"buffer_load_dword v{20+k}, v{18+k}, {sr(sWS,4)}, s{sT1} offen sc1"); vm.add(("v", n))
                P("s_mov_b32 exec_hi, 0x00ffffff")
        P(f"s_mov_b64 exec, -1")
        if o["otp"] == 20: P(f"buffer_load_dword v22, v30, {sr(sWS,4)}, 0 offen sc1"); vm.add(("t", 0))
        NV = len(o["vbars"]); olate = o.get("olate", {})
        for k, n in enumerate(o["vbars"]):
            vm.wait(("v", n)); self.stamp("r2" if k == 0 else ("r3" if n == 0 else "-")); P("s_barrier")
            run(olate.get(k, ""))
            if TV is not None:
                if n == TV:
                    P(f"v_cmp_ne_u32 vcc, s{sNONCE}, v20\nv_cmp_ne_u32 s[48:49], s{sNONCE}, v21\ns_nop 0\ns_or_b64 vcc, vcc, s[48:49]\ns_cbranch_scc1 L_tlate")
                    late = (k, list(vm.q)); t_ld(0, 2)
                if n == TV - 1: t_ld(2, 4)
        P("s_branch L_a2")
        P("@ALIGN")
        if TV is not None:
            P("L_tlate:"); vm.q = late[1]
            for n in o["vbars"][late[0] + 1:]: vm.wait(("v", n)); P("s_barrier")
            P(f"s_cmp_eq_u32 s{sP}, 7\ns_cbranch_scc1 L_g2end")
            self.poll([(18, 0), (19, 0)], 20, sT1)
            t_ld(0, 4)
            P("s_branch L_a2")
        self.pad("roleT"); P("L_roleT:"); vm.q = []
        P(f"v_lshrrev_b32 v18, 3, v0\nv_lshlrev_b32 v18, 7, v18\nv_and_b32 v19, 7, v0\nv_lshl_add_u32 v18, v19, 2, v18\ns_mov_b32 s{sT1}, {WS_TF:#x}")
        P(f"s_cmp_eq_u32 s{sP}, 7\ns_cbranch_scc1 L_epoch")
        if TV is not None: P("s_branch L_rolesdone")
        i_t = len(P.lines)
        P(f"s_lshr_b32 s3, s{sP}, 1\ns_and_b32 s7, s{sP}, 1\nv_lshl_add_u32 v18, s3, 10, v18\nv_lshl_add_u32 v19, s7, 10, v18")
        P(f"s_mul_i32 s{sT0}, s{sRT}, {TST}\ns_lshl_b32 s3, s{sP}, 13\ns_add_u32 s{sT0}, s{sT0}, s3\ns_add_u32 s{sT0}, s{sT0}, {WS_T:#x}")
        P("s_waitcnt vmcnt(0) lgkmcnt(0)" if o.get("tdelay", 0) else "s_waitcnt lgkmcnt(0)")
        self.poll([(18, 0), (19, 0)], 20, sT1)
        self.stamp("r1")
        P("s_barrier")
        tq = [(q, z) for q in range(4) for z in range(4)]; per = o.get("tper", 8)
        for k in range(NV):
            for q, z in tq[k*per:(k+1)*per]:
                if z == 0: P(f"s_mov_b32 m0, {L_TT + q*4096}" + (f"\ns_add_u32 s{sT0}, s{sT0}, 4096" if q else ""))
                P(f"buffer_load_dwordx4 v{vD0}, {sr(sWS,4)}, s{sT0} offen offset:{1024*z} sc1 lds")
            run(olate.get(k, ""))
            if k < NV - 1: P("s_barrier")
        P("s_branch L_a2")
        if TV is not None: P.lines = P.lines[:i_t]
        P("L_roleX:\ns_waitcnt lgkmcnt(0)"); die_ask(); die_check()
        if TV is not None:
            iA = P.lines.index("@ALIGN"); iT = P.lines.index("L_roleT:"); npad = 2 if o["hops"] & 1 else 0
            T.extend(P.lines[iA+1:iT-npad])
            P.lines = P.lines[:iV] + ["s_branch L_roleV"] + P.lines[iT:] + ["s_branch L_rolesdone", "@ALIGN"] + P.lines[iT-npad:iT] + ["L_roleV:"] + P.lines[iV:iA]
        P(f"L_rolesdone:\ns_waitcnt vmcnt(0) lgkmcnt(0)")
        self.stamp("roled")
        for k in range(NV): P("s_barrier"); run(olate.get(k, ""))
        P("L_a2:\ns_setprio 0")
        P(f"s_cmp_eq_u32 s{sP}, 7\ns_cbranch_scc1 L_g2end")
        E = Prog(); E._lab = 800; self.P = E
        E(f"L_epoch:\ns_waitcnt lgkmcnt(0)\n" + "s_barrier\n" * NV + f"s_cmp_lg_u32 s{sRT}, 31\ns_cbranch_scc1 L_g2end")
        self.poll([(18, 0), (18, 1024), (18, 2048), (18, 3072)], 20, sT1)
        E(f"s_atomic_swap s{sNONCE}, s[18:19], {WS_E}\ns_branch L_g2end")
        self.P = P; T.extend(E.lines)
        lg = Cnt(P, "lgkmcnt", 15)
        def tread(s):
            for t in range(2):
                o0 = 8*(s & 3) + 2*t
                P(f"ds_read2st64_b32 {vr(32+4*s+2*t,2)}, v{vTA+(s>>2)} offset0:{o0} offset1:{o0+1}"); lg.add(s)
        P("; 64-point DFT step (output columns 0..447)")
        for k in range(8): P(f"ds_read_b128 {vr(M2+4*k,4)}, v134 offset:{1024*k}")
        nf = o.get("nf", 2)
        wo_frag(0, nf)
        P(f"s_mul_i32 s3, s{sR}, 0x80008000\ns_waitcnt lgkmcnt(0)")
        for k in range(16): P(f"v_xor_b32 v{M2+16+k}, s3, v{M2+16+k}")
        P("s_waitcnt vmcnt(0)\ns_barrier")
        self.stamp("bw")
        for s in range(6): tread(s)
        for s in range(8):
            lg.wait(s); P(MF32(64, 32 + 4*s, M2 + 4*s, 64 if s else "0"))
            if s < 2: tread(s + 6)
            if s == o.get("ba"): P("s_barrier")
        AO = 112
        for h in range(2):
            for i in range(4): P(f"v_cvt_pk_bf16_f32 v{24+4*h+i}, v{64+8*h+2*i}, v{64+8*h+2*i+1}")
            P(f"ds_write_b128 v{vWR+h}, {vr(24+4*h,4)}")
        if not o["g1a"]: P(f"ds_read_b128 {vr(AO,4)}, v{vRD}\nds_read_b128 {vr(AO+4,4)}, v{vRD} offset:1024")
        wo_frag(nf, 7)
        self.stamp("a2")
        P("s_setprio 2\ns_waitcnt lgkmcnt(0)")
        lg = Cnt(P, "lgkmcnt", 15)
        oa = LdsAddr(P, vOR)
        OF = 32
        nm = 0
        def omf():
            nonlocal nm
            q, s = nm >> 2, nm & 3
            lg.wait((q, s))
            P(MF32(64, WF + 4*nm, OF + 16*(q & 1) + 4*s, "0" if nm == 0 else 64)); nm += 1
        for q in range(7):
            P("s_barrier"); self.stamp(f"bo{q}")
            for s in range(4):
                if nm < 4 * q: omf()
                for t in range(2):
                    off = oa.off(L_O(q) + (4*s + t) * 256)
                    P(f"ds_read_b64 {vr(OF + 16*(q&1) + 4*s + 2*t, 2)}, v{vOR} offset:{off}"); lg.add((q, s))
            while nm < 4 * q + 4 - o.get("lago", 3): omf()
            if q - o.get("aout", 3) in (0, 1) and not o["g1a"]:
                h = q - o.get("aout", 3)
                P(f"buffer_store_dwordx4 {vr(AO+4*h,4)}, v{(vA0, vA1)[h]}, {sr(sOUT,4)}, s{sAB} offen {o['outmod']}")
        while nm < 28: omf()
        self.out_epilogue(64, 24, vWR, vRD, vG0, vG1, f"s{sOB}", o["outmod"])
        self.stamp("fin")
        P(f"L_g2end:")
        self.stamp_out()
        P("s_endpgm")
        P("L_p7:")
        fi = p7state["fi"]; vm.q = p7state["q"]; nbar = 99; lgx.q = []
        run(o["sched7"])
        P("s_branch L_p7join\nL_p7b:")
        vm.q = p7state["q2"]; lgx.q = p7state["l2"]; gi = 0
        run(o["sched7b"])
        P("s_branch L_p7join2")

    def g1(self):
        P = self.P; o = self.o; T = self.tail
        vXA, vWK, vWV, vWQ, vKS, vVS, vZ, vDA, vKR, vVR, vOS, vOP, vNON, vFL, vL, vH = 1, 5, 6, 7, 8, 10, 11, 13, 14, 15, 16, 17, 18, 19, 12, 20
        vSA, vSB = 22, 23
        QF, FM = 24, 32
        AK, AV, AQ, CD, WF, XF = 48, 64, 80, 96, 112, 144
        sG, sKO, sVO, sMODE, sFB, sOFo, sOO = sSW, sSW + 1, sSW + 2, sSW + 3, sSW + 4, sSW + 5, sSW + 6
        c = math.log2(math.e) / math.sqrt(28)
        P("L_g1:")
        self.stamp("G.in")
        P(f"s_waitcnt lgkmcnt(0)\ns_load_dword s{sNONCE}, s[18:19], {WS_E}")
        PF = Prog()
        GQ = o.get("g1q", 0); sRO = 64
        if GQ: P(f"s_sub_u32 s10, s{sT0}, 7\ns_cselect_b32 s{sRO}, s{sT0}, s10")
        if not o.get("early", 0): self.g1_first()
        if o["touch"] & 1:
            Lt = P.label("tch")
            srd(P, sOUT, 14, 2048*1792)
            P(f"s_cmp_lg_u32 s{sU}, 0\ns_cbranch_scc1 {Lt}\nv_lshlrev_b32 v40, 21, v0\nv_add_u32 v41, 0x800, v40\ns_mov_b64 exec, {(1 << NPAGE) - 1}")
            P(f"buffer_load_dword v47, v41, {sr(sWS,4)}, 0 offen\nbuffer_load_dword v47, v40, {sr(sXA,4)}, 0 offen")
            if o["touch"] & 4:
                P(f"s_mul_i32 s7, s{sRT}, 1792\nv_mul_u32_u24 v40, {1024*1792 + 512*1792}, v0\nbuffer_load_dword v47, v40, {sr(sOUT,4)}, s7 offen")
            P(f"s_mov_b64 exec, -1\n{Lt}:")
        P(f"v_and_b32 v{vL}, 31, v0\nv_lshrrev_b32 v{vH}, 5, v0\nv_bfe_u32 v42, v0, 1, 3\nv_xor_b32 v42, v42, v{vH}")
        P(f"s_lshl_b32 s3, s{sR}, 12\nv_lshl_add_u32 v43, v{vL}, 7, s3\nv_lshl_add_u32 v{vXA}, v42, 4, v43")
        for s in range(1, 4): P(f"v_xor_b32 v{vXA+s}, {32*s}, v{vXA}")
        P(f"s_lshl_b32 s{sT0}, s{sCI}, 6")
        self.tr_addr(vWK, 42, 43, True, sT0)
        P(f"s_add_u32 s{sT0}, s{sT0}, {L_WV(0)}")
        self.tr_addr(vWV, 42, 43, False, sT0)
        P(f"s_lshl1_add_u32 s{sG}, s{sRT}, s{sR}")
        P(f"s_lshl1_add_u32 s3, s{sP}, s{sCI}\ns_mov_b32 s7, {PAIR - 7*512}\nv_lshl_add_u32 v42, s3, 2, v{vH}")
        for s in range(2):
            P(f"v_mul_u32_u24 v43, 37, v42\nv_lshrrev_b32 v43, 8, v43\nv_mul_lo_u32 v43, v43, s7\nv_lshl_add_u32 v43, v42, 9, v43\nv_lshl_add_u32 v{vKS+s}, v{vL}, 4, v43")
            if s == 0: P("v_add_u32 v42, 2, v42")
        P(f"s_mul_i32 s3, s{sG}, 3584\ns_add_u32 s{sKO}, s3, {WS_K:#x}\ns_add_u32 s{sVO}, s3, {WS_V:#x}")
        P(f"v_mov_b32 v{vZ}, 0\nv_mov_b32 v{vFL}, {L_FLAG}")
        self.stamp("G.set")
        lg = Cnt(P, "lgkmcnt", 15)
        xa = [LdsAddr(P, vXA + s) for s in range(4)]
        wa = {"K": LdsAddr(P, vWK), "V": LdsAddr(P, vWV, L_WV(0)), "Q": LdsAddr(P, vWQ, L_WQ(0))}
        wl = {"K": L_WK, "V": L_WV, "Q": L_WQ}
        acc = {"K": AK, "V": AV, "Q": AQ}
        def pack(a, half):
            for i in range(4): P(f"v_cvt_pk_bf16_f32 v{QF+4*half+i}, v{a+8*half+2*i}, v{a+8*half+2*i+1}")
        def proj(items, pre={}, lagn={}, post={}, mid={}):
            nm = 0
            def mf():
                nonlocal nm
                i, s = nm >> 2, nm & 3; kind, q, _ = items[i]
                lg.wait((i, s))
                w, x, a = WF + 16*(i & 1) + 4*s, XF + 16*q + 4*s, acc[kind]
                cc = "0" if (q == 0 and s == 0) else a
                P(MF32(a, x, w, cc) if kind == "V" else MF32(a, w, x, cc)); nm += 1
            for i, (kind, q, br) in enumerate(items):
                if i in pre: pre[i]()
                if br: P("s_barrier"); self.stamp(f"G.b{kind}{q}")
                for s in range(4):
                    if nm < 4 * i: mf()
                    if kind == "K":
                        off = xa[s].off(L_X(q))
                        P(f"ds_read_b128 {vr(XF + 16*q + 4*s, 4)}, v{vXA+s} offset:{off}"); lg.add((i, s))
                    for t in range(2):
                        off = wa[kind].off(wl[kind](q) + s*2048 + t*512)
                        P(f"ds_read_b64_tr_b16 {vr(WF + 16*(i&1) + 4*s + 2*t, 2)}, v{wa[kind].reg} offset:{off}"); lg.add((i, s))
                    if (i, s) in mid: mid[(i, s)]()
                while nm < 4 * i + 4 - lagn.get(i, 4): mf()
                if i in post: post[i]()
            while nm < 4 * len(items): mf()
        D = Prog()
        vE, vB, vA, vC, vS = 1, 2, 3, 80, 84
        D2 = Prog()
        D2(f"v_lshl_add_u32 v{vA}, v{vL}, 5, s{sRT}\nv_cvt_f32_u32 v{vA}, v{vA}\nv_mul_f32 v{vE}, {fl(1/2048)}, v{vA}")
        D2(f"v_lshl_add_u32 v{vA}, s{sU}, 1, v{vH}\nv_lshlrev_b32 v{vA}, 3, v{vA}\nv_cvt_f32_u32 v{vA}, v{vA}\nv_mul_f32 v{vB}, v{vE}, v{vA}")
        for par in range(2):
            for jj in range(4): D2(f"v_fmamk_f32 v{vS+jj}, v{vE}, {fl(2*jj + par)}, v{vB}")
            for jj in range(4): D2(f"v_cos_f32 v{vC+jj}, v{vS+jj}")
            for jj in range(4): D2(f"v_sin_f32 v{vS+jj}, v{vS+jj}")
            for jj in range(4): D2(f"v_cvt_pk_bf16_f32 v{88+4*par+jj}, v{vC+jj}, -v{vS+jj}")
        MG = D2; D2 = Prog()
        MG(f"s_add_u32 s3, s{sT4}, {L_M}\nv_lshl_add_u32 v46, v0, 4, s3\nds_write_b128 v46, v[88:91]\nds_write_b128 v46, v[92:95] offset:4096")
        keep = P; P = D2; self.P = D2
        P(f"s_mul_i32 s{sT0}, s{sCI}, 48\ns_add_u32 s{sT0}, s{sT0}, {L_WQ(0)}")
        self.tr_addr(vWQ, 42, 43, True, sT0)
        P(f"s_lshl_b32 s3, s{sRT}, 7\nv_lshl_add_u32 v{vOP}, v{vL}, 2, s3")
        P(f"v_lshlrev_b32 v42, 2, v{vH}\nv_sub_u32 v21, v{vL}, v42\ns_mov_b32 s11, {fl(c)}")
        D3 = Prog(); P = D3; self.P = D3
        P(f"s_mov_b32 s3, 0x0b0b0909")
        for k in range(8):
            k0 = 8 * (k >> 1) + 2 * (k & 1)
            P(f"v_subrev_u32 v42, {k0}, v21\nv_subrev_u32 v43, {k0+1}, v21\nv_perm_b32 v{FM+k}, v43, v42, s3")
        P(f"s_mul_i32 s3, s{sR}, 3584\ns_mul_i32 s7, s{sCI}, 1536\ns_add_u32 s3, s3, s7\ns_add_u32 s3, s3, {L_KT}\nv_lshl_add_u32 v{vKR}, v0, 4, s3")
        P(f"v_cmp_gt_u32 vcc, 28, v{vL}\ns_mul_i32 s3, s{sCI}, 28\nv_add_u32 v42, s3, v{vL}\ns_lshl_b32 s7, s{sCI}, 2\ns_sub_u32 s7, 60, s7\nv_mov_b32 v43, s7")
        P(f"v_cndmask_b32 v42, v43, v42, vcc\ns_lshl_b32 s3, s{sR}, 12\nv_lshl_add_u32 v42, v42, 4, s3\nv_lshl_add_u32 v{vVR}, v{vH}, 10, v42")
        P(f"v_cmp_gt_u32 vcc, s{sCI}, v{vH}\nv_cmp_lt_u32 s[26:27], s{sCI}, v{vH}\nv_lshlrev_b32 v42, 3, v{vL}\nv_lshl_add_u32 v{vOS}, v{vH}, 8, v42\nv_mov_b32 v42, {fl(c)}")
        P(f"v_cndmask_b32 v{vSA}, v42, v{vZ}, vcc\nv_cndmask_b32 v{vSB}, v42, v{vZ}, s[26:27]")
        P = D; self.P = D
        P(f"s_lshl1_add_u32 s3, s{sP}, s{sCI}\nv_lshl_add_u32 v42, s3, 5, v{vL}\nv_mul_u32_u24 v43, 1171, v42\nv_lshrrev_b32 v43, 16, v43\ns_mov_b32 s7, {PAIR - 896}")
        P(f"v_mul_lo_u32 v43, v43, s7\nv_lshl_add_u32 v43, v42, 4, v43\nv_mul_u32_u24 v42, 896, v{vH}\nv_add_u32 v{vVS}, v42, v43")
        P(f"s_mul_i32 s3, s3, 1792\ns_mul_i32 s7, s{sG}, 28672\ns_add_u32 s3, s3, s7\ns_add_u32 s{sOO}, s3, {WS_O:#x}")
        P(f"s_lshl3_add_u32 s3, s{sRT}, s{sP}\ns_lshl2_add_u32 s3, s3, s{sU}\ns_lshl_b32 s3, s3, 2\ns_add_u32 s{sOFo}, s3, {WS_OF:#x}\ns_mov_b32 s{sFB}, 0")
        P(f"v_cmp_gt_u32 vcc, 14, v0\nv_lshl_add_u32 v42, v0, 7, s{sOO}\nv_mov_b32 v43, s{sOFo}\nv_cndmask_b32 v45, v43, v42, vcc")
        P = keep; self.P = keep
        if GQ:
            D3(f"v_lshrrev_b32 v42, 3, v0\nv_lshl_add_u32 v42, s{sU}, 3, v42\nv_mul_u32_u24 v42, 2688, v42\nv_lshrrev_b32 v43, 2, v0\nv_and_b32 v43, 4, v43\nv_xor_b32 v43, v43, v0")
            D3(f"v_and_b32 v43, 7, v43\nv_min_u32 v43, 6, v43\ns_mul_i32 s3, s{sP}, 112\nv_lshl_add_u32 v42, v43, 4, v42\nv_add_u32 v40, s3, v42\nv_add_u32 v41, {32*2688}, v40")
        D.extend(D2.lines); D.extend(D3.lines)
        n0 = o["g1f0"]
        P.extend(D.lines[:n0])
        if o["otp"] == -1: P(f"buffer_load_dword v47, v45, {sr(sWS,4)}, 0 offen sc1")
        P(f"s_cmp_eq_u32 s{sP}, 7\ns_cbranch_scc1 L_x7\ns_setprio 1")
        self.stamp("G.set2")
        OT = f"buffer_load_dword v47, v45, {sr(sWS,4)}, 0 offen sc1"; otp = o.get("otp", 6)
        B7 = Prog(); B7._lab = 600
        B7("L_x7:"); B7.extend(D.lines[n0:]); B7.extend([l.replace("s11", "s9") for l in PF.lines]); B7("s_barrier")
        xa7 = [LdsAddr(B7, vXA + s) for s in range(4)]
        for q in range(7):
            for s in range(4):
                off = xa7[s].off(L_X(q))
                B7(f"ds_read_b128 {vr(XF + 16*q + 4*s, 4)}, v{vXA+s} offset:{off}")
        B7(f"s_barrier\n{OT if 0 <= otp < 7 or otp >= 30 else ''}\ns_waitcnt lgkmcnt(0)\ns_branch L_s0")
        T.extend(B7.lines)
        cuts = o["g1cuts"]
        di = n0
        def slot(i):
            nonlocal di
            n = cuts.get(i, 0) if i < max(cuts) else 999
            P.extend(D.lines[di:di + n]); di += n
        P("; K projection")
        proj([("K", q, True) for q in range(7)], lagn=o.get("lagk", {4: 2, 5: 0}), post={i: (lambda i=i: slot(i)) for i in range(7)}, mid={(otp, 1): lambda: P(OT)})
        for h in range(2):
            pack(AK, h)
            P(f"buffer_store_dwordx4 {vr(QF+4*h,4)}, v{vKS+h}, {sr(sWS,4)}, s{sKO} offen sc1")
        self.stamp("G.kst")
        P("L_s0:\ns_barrier\ns_setprio 0")
        if otp == 7: P(OT)
        vmq = Cnt(P, "vmcnt", 63)
        def qld(q):
            P(f"s_add_u32 s3, s{sRO}, {q}\ns_sub_u32 s7, s3, 7\ns_min_u32 s3, s3, s7\ns_add_u32 m0, s{sT4}, {L_WQ(q)}\ns_mul_i32 s3, s3, {64*2688}")
            P(f"buffer_load_dwordx4 v40, {sr(sWKV,4)}, s3 offen lds\ns_addk_i32 m0, 4096\nbuffer_load_dwordx4 v41, {sr(sWKV,4)}, s3 offen lds"); vmq.add(q); vmq.add(q)
        if GQ: qld(2)
        P.extend(MG.lines)
        if o["g1a"]:
            P(f"v_lshrrev_b32 v8, 2, v0\nv_lshrrev_b32 v9, 3, v0\nv_xor_b32 v9, v9, v0\nv_and_b32 v9, 3, v9\nv_lshlrev_b32 v9, 4, v9\ns_cmp_eq_u32 s{sCI}, 1\ns_cselect_b64 vcc, -1, 0")
            self.a_addr(4, 5, 8, 9, 42, 10)
            P(f"s_lshl1_add_u32 s3, s{sT4}, {L_OUT}\nv_lshl_add_u32 v3, v0, 4, s3")
            srd(P, sOUT, 14, 2048*1792)
        P(f"v_lshrrev_b32 v42, 2, v{vL}\nv_cmp_ne_u32 s[62:63], s{sP}, v42")
        P(f"{NONCE}\nv_mov_b32 v{vNON}, s{sNONCE}")
        S = lambda n: AV if n == 0 else (AK if n == 8 else XF + 16 * (n - 1))
        def mask(E, dst, far):
            E(f"v_cvt_f32_i32 v42, v21\nv_mul_f32 v42, {fl(-BIG if far else BIG)}, v42")
            for i in range(16):
                k = 8*(i >> 2) + (i & 3)
                E(f"v_add_f32 v{dst+i}, {fl((k-1)*BIG if far else -k*BIG)}, v42")
            for i in range(16): E(f"v_min_f32 v{dst+i}, 0, v{dst+i}")
        mask(P, S(8), False)
        P(f"s_mov_b32 s{sT0}, {WS_OF:#x}\ns_lshl1_add_u32 s3, s{sRT}, s{sCI}\ns_mul_i32 s{sT1}, s3, 28672\ns_lshl_b32 s3, s{sR}, 11\ns_add_u32 s{sT1}, s{sT1}, s3\ns_add_u32 s{sT1}, s{sT1}, {WS_O:#x}")
        P(f"s_lshl_b32 s{sT2}, s{sT4}, 1\nv_lshlrev_b32 v{vDA}, 4, v0\ns_waitcnt lgkmcnt(0)\ns_setprio 1")
        P("L_g1page:"); self.pad("g1p1", True)
        if GQ:
            for q in range(3, 2 + GQ): qld(q)
        self.stamp("G.i1")
        if "bS4" in o["ina1"]: P("s_barrier")
        items = [(t[0], int(t[1]), t.endswith("b")) for t in o["items"].split()]
        QE = []
        for i in range(8):
            sc = f"v{vSA}" if i < 2 else (f"v{vSB}" if i >= 6 else "s11")
            QE.append(f"v_mul_f32 v{AQ+2*i}, {sc}, v{AQ+2*i}\nv_mul_f32 v{AQ+2*i+1}, {sc}, v{AQ+2*i+1}\nv_cvt_pk_bf16_f32 v{QF+i}, v{AQ+2*i}, v{AQ+2*i+1}")
        def q7():
            P(f"s_cmp_eq_u32 s{sP}, 7\ns_cbranch_scc1 L_q7")
            T("L_q7:\ns_waitcnt lgkmcnt(0)")
            for s in range(4): T(MF32(AQ, WF + 4*s, XF + 96 + 4*s, AQ))
            T("s_barrier")
            for t in QE: T(t)
            T("s_branch L_vdone")
        pre = {o["kack"]: lambda: (self.stamp("G.ka0"), P("s_waitcnt vmcnt(0)"), self.stamp("G.ka1"))}
        if GQ:
            nb_ = [i for i in range(14) if items[i][2]]
            pre = {a_: (lambda m=min(b_ - 1, 1 + GQ): vmq.wait(m)) for a_, b_ in zip(nb_, nb_[1:]) if a_ <= 1 + GQ}
            assert nb_[1] > 2
        proj(items, pre=pre, lagn=o.get("lagqv", {1: 0}), post={6: q7},
             mid={**{(9 + (k >> 2), k & 3): (lambda k=k: P(QE[k])) for k in range(8)}, (otp - 30, 1): lambda: P(OT)})
        for h in range(2):
            for i in range(4): P(f"v_cvt_pk_bf16_f32 v{CD+4*h+i}, v{AV+8*h+2*i}, v{AV+8*h+2*i+1}")
            P(f"buffer_store_dwordx4 {vr(CD+4*h,4)}, v{vVS}, {sr(sWS,4)}, s{sVO} offen offset:{1792*h} sc1")
        P(f"L_vdone:")
        self.stamp("G.vst")
        vM = 40
        KB, VB = WF, WF + 16
        pend = []
        def kread(i):
            for s in range(2):
                pend.append((f"ds_read_b128 {vr(KB + 8*((i+2)&3) + 4*s, 4)}, v{vKR} offset:{(8-i)*3584 + s*1024}", ("k", i)))
        def vread(i):
            for s in range(2):
                pend.append((f"ds_read_b128 {vr(S(8-i) + 8*s + 4, 4)}, v{vVR} offset:{(8-i)*4096 + s*2048}", ("v", i)))
        def drain(n=99):
            while pend and n > 0:
                t, tag = pend.pop(0); P(t); lg.add(tag); n -= 1
        if "bS9" in o["sched"]: P("s_barrier")
        P("s_barrier")
        if o["bva"] < 0: P(f"s_waitcnt vmcnt(0)"); self.stamp("G.va"); P("s_barrier")
        self.stamp("G.ck"); kread(0); kread(1); drain()
        def qk(i, s, nd=2):
            n = 8 - i
            lg.wait(("k", i))
            P(MF32(S(n), KB + 8*((i+2) & 3) + 4*s, QF + 4*s, S(n) if (s == 1 or n == 8) else CD)); drain(nd)
        npv = 0
        def pv(nd=2):
            nonlocal npv
            i, s = npv >> 1, npv & 1
            assert not any(t == ("v", i) for _, t in pend)
            lg.wait(("v", i))
            P(MF32(AQ, S(8 - i) + 8*s + 4, S(8 - i) + 8*s, "0" if npv == 0 else AQ)); npv += 1; drain(nd)
        def pvl(s):
            lg.wait(("v", 8)); P(MF32(AQ, KB + 4*s, S(0) + 8*s, AQ))
        kread(2)
        qk(0, 0); qk(0, 1)
        b = S(8)
        P(f"s_mov_b32 s3, {fl(-40.0)}\nv_max_f32 v{vM}, v{b}, v{b+1}\nv_max_f32 v{vM+1}, v{b+2}, v{b+3}")
        for k in range(2, 7): P(f"v_max3_f32 v{vM+(k&1)}, v{vM+(k&1)}, v{b+2*k}, v{b+2*k+1}")
        P(f"v_max3_f32 v{vM+1}, v{vM+1}, v{b+14}, v{b+15}\nv_max_f32 v42, v{vM}, v{vM+1}\nv_max_f32 v{vM+1}, v{vM}, v{vM+1}\nv_permlane32_swap_b32 v42, v{vM+1}\nv_max_f32 v{vM}, v42, v{vM+1}")
        P(f"v_sub_f32 v{vM}, s3, v{vM}")
        if o.get("pka", 1):
            for k in range(8): P(f"v_pk_mul_f32 {vr(CD+2*k,2)}, {vr(vM,2)}, 1.0 op_sel_hi:[0,0]")
            for k in range(8): P(f"v_pk_add_f32 {vr(b+2*k,2)}, {vr(vM,2)}, {vr(b+2*k,2)} op_sel_hi:[0,1]")
        else:
            for k in range(16): P(f"v_mov_b32 v{CD+k}, v{vM}")
            for k in range(16): P(f"v_add_f32 v{b+k}, v{vM}, v{b+k}")
        self.stamp("G.p1")
        knext = 3
        for i in range(9):
            b = S(8 - i)
            if i == o["bva"]: self.stamp("G.va0"); P(f"s_waitcnt vmcnt(0)"); self.stamp("G.va"); P("s_barrier")
            if i == o["bk2"]: P("s_barrier"); self.stamp("G.k2")
            while knext < min(9 if i >= o["bk2"] else o["k1st"], i + 4): kread(knext); knext += 1
            assert knext >= min(9, i + 3)
            mfs = [lambda i=i: qk(i + 1, 0, 3), lambda i=i: qk(i + 1, 1, 3)] if i < 8 else []
            for pos in range(16):
                P(f"v_exp_f32 v{b+pos}, v{b+pos}")
                if pos in (0, 5) and mfs: mfs.pop(0)()
                if pos in (7, 15):
                    h = pos >> 3
                    for k in range(4): P(f"v_cvt_pk_bf16_f32 v{b+8*h+k}, v{b+8*h+2*k}, v{b+8*h+2*k+1}")
                    if i == 8:
                        for k in range(4): P(f"v_and_b32 v{b+8*h+k}, v{b+8*h+k}, v{FM+4*h+k}")
            drain()
        self.stamp("G.ex")
        P("@JUMP2 g1p2"); self.pad("g1p2"); P("L_ja_g1p2:")
        P("; P*V (a column of ones in V gives the row sums)")
        vn = 0
        for k, n in enumerate(o["vbars"]):
            P("s_barrier"); self.stamp("G.fv" if k == 0 else ("G.v2" if n == 0 else "-"))
            if otp == 10 + k or o.get("ot2") == k: P(OT)
            if k == 0: P(f"ds_read_b32 v44, v{vFL} offset:12"); lg.add("m")
            if k == 1: lg.wait("m"); P(f"v_readfirstlane_b32 s{sMODE}, v44")
            old = 2 * vn
            while vn <= 8 - 2*n: vread(vn); vn += 1
            if npv == old: drain()
            while npv < old: pv(4)
            drain()
            while npv < 2 * vn - (o.get("pvk", 2) if n else 0): pv()
        vWR, vRD, vG0, vG1, vTA, MF_, TF_, AE = 1, 3, 4, 5, 8, 176, 144, 64
        P(f"L_onorm:\ns_cmp_eq_u32 s{sMODE}, 0")
        P(f"v_mov_b32 v40, v{AQ+12}\nv_mov_b32 v41, v{AQ+12}\nv_permlane32_swap_b32 v40, v41\nv_rcp_f32 v41, v41\ns_cbranch_scc1 L_oslow")
        def ostore(E, mod):
            for a in range(4):
                for k in range(2): E(f"v_pk_mul_f32 {vr(CD+4*a+2*k,2)}, v[40:41], {vr(AQ+4*a+2*k,2)} op_sel:[1,0]")
                for k in range(2): E(f"v_cvt_pk_bf16_f32 v{VB+2*a+k}, v{CD+4*a+2*k}, v{CD+4*a+2*k+1}")
                if a == 3: E("s_mov_b32 exec_hi, 0")
                E(f"buffer_store_dwordx2 {vr(VB+2*a,2)}, v{vOS}, {sr(sWS,4)}, s{sOO} offen offset:{512*a} {mod}")
            E("s_mov_b64 exec, -1")
        ostore(P, o["omod"])
        P("L_ostored:")
        T("L_oslow:"); ostore(T, "sc1"); T("s_branch L_ostored")
        self.stamp("G.ost")
        P(f"v_mul_f32 v42, {fl(2.0**16)}, v{AQ+12}\nv_mul_f32 v40, 0, v{AQ}\nv_mul_f32 v41, 0, v{AQ+1}\nv_fmac_f32 v40, 0, v42")
        for k in range(2, 16): P(f"v_fmac_f32 v{40+(k&1)}, 0, v{AQ+k}")
        P(f"v_cmp_u_f32 vcc, v40, v41")
        if o["force_fb"]: P("s_mov_b64 vcc, -1")
        P(f"s_cbranch_vccnz L_fallback\nL_ochecked:")
        EP = o.get("epoll", 0)
        if EP: P(f"buffer_load_dword v44, v{vOP}, {sr(sWS,4)}, s{sT0} offen sc1")
        BT = (0 if o.get("ba") is not None else 1) if EP else o.get("btpos", 0)
        if BT == 0: P(f"s_cmp_eq_u32 s{sP}, 7\ns_cbranch_scc1 L_nobt\ns_barrier\nL_nobt:")
        P(f"s_mov_b64 exec, 1\ns_cmp_eq_u32 s{sMODE}, 0\ns_waitcnt vmcnt(0)\ns_cbranch_scc1 L_ofslow")
        P(f"buffer_store_dword v{vNON}, v{vZ}, {sr(sWS,4)}, s{sOFo} offen\nL_oflagged:\ns_mov_b64 exec, -1")
        T(f"L_ofslow:\nbuffer_store_dword v{vNON}, v{vZ}, {sr(sWS,4)}, s{sOFo} offen sc1\ns_branch L_oflagged")
        self.stamp("G.oack")
        P(f"s_cmp_eq_u32 s{sP}, 7\ns_cbranch_scc1 L_g1end\ns_add_u32 m0, s{sT2}, {L_O(0)}")
        if EP == 2: P(f"v_cmp_ne_u32 vcc, s{sNONCE}, v44\ns_mov_b32 s{sT5}, {SPIN}\ns_barrier\ns_and_b32 s61, vcc_lo, s62")
        elif EP: P(f"v_cmp_ne_u32 vcc, s{sNONCE}, v44\ns_barrier\ns_and_b64 vcc, vcc, s[62:63]\ns_cbranch_scc0 L_oall")
        elif BT == 1: P("s_barrier")
        vm = Cnt(P, "vmcnt", 63)
        if EP != 2: self.poll([(vOP, 0)], 44, sT0)
        P("L_oall:")
        self.stamp("G.op")
        nb = 0
        for t in o.get("osched", "0 1 2 3 b 4 5 b 6 b b a b b b").split():
            if t == "b":
                vm.wait(nb); P("s_barrier"); nb += 1
                if nb == 1 and o["g1a"]: P("ds_read_b128 v[24:27], v3\nds_read_b128 v[28:31], v3 offset:1024")
            elif t == "a":
                if o["g1a"]:
                    P("s_waitcnt lgkmcnt(0)")
                    for h in range(2): P(f"buffer_store_dwordx4 {vr(24+4*h,4)}, v{4+h}, {sr(sOUT,4)}, s10 offen {o['outmod']}"); vm.add("a")
            else:
                q = int(t)
                if EP == 2:
                    L = P.label("og"); mk = (0xff << 4*q) & 0xffffffff
                    P(f"s_and_b32 s3, s61, {mk:#x}\ns_cbranch_scc0 {L}_d\n{L}:\nbuffer_load_dword v44, v{vOP}, {sr(sWS,4)}, s{sT0} offen sc1")
                    P(f"s_sub_u32 s{sT5}, s{sT5}, 1\ns_max_i32 s{sT5}, s{sT5}, 0\ns_waitcnt vmcnt(0)\ns_cbranch_scc0 {L}_d\nv_cmp_ne_u32 vcc, s{sNONCE}, v44\ns_nop 0\ns_and_b32 s61, vcc_lo, s62\ns_and_b32 s3, s61, {mk:#x}\ns_cbranch_scc1 {L}\n{L}_d:")
                if q: P(f"s_add_u32 m0, s{sT2}, {L_O(q)}\ns_add_u32 s{sT1}, s{sT1}, 4096")
                for k in range(2):
                    P(f"buffer_load_dwordx4 v{vDA}, {sr(sWS,4)}, s{sT1} offen offset:{1024*k} sc1 lds"); vm.add(q)
        P("L_g1end:")
        self.stamp_out()
        P("L_end:\ns_endpgm")
        P("L_fallback:")
        P(f"s_cmp_lg_u32 s{sFB}, 0\ns_cbranch_scc1 L_ochecked\ns_mov_b32 s{sFB}, 1\ns_waitcnt vmcnt(0)")
        mask(P, S(0), True); mask(P, S(8), False)
        P(f"v_mov_b32 v{vM}, {fl(-BIG)}")
        for n in range(9):
            P(f"ds_read_b128 {vr(KB,4)}, v{vKR} offset:{n*3584}\nds_read_b128 {vr(KB+4,4)}, v{vKR} offset:{n*3584+1024}")
            if n <= 7:
                P(f"s_cmp_lt_u32 s{sG}, {8-n}\ns_cselect_b32 s3, {fl(-BIG)}, 0")
                for k in range(16): P(f"v_mov_b32 v{S(n)+k}, s3" if n else f"v_min_f32 v{S(n)+k}, s3, v{S(n)+k}")
            P("s_waitcnt lgkmcnt(0)")
            for s in range(2): P(MF32(S(n), KB + 4*s, QF + 4*s, S(n)))
            for k in range(8): P(f"v_max3_f32 v{vM}, v{vM}, v{S(n)+2*k}, v{S(n)+2*k+1}")
        P(f"v_mov_b32 v{vM+1}, v{vM}\nv_permlane32_swap_b32 v{vM}, v{vM+1}\nv_max_f32 v{vM}, v{vM}, v{vM+1}")
        for n in range(9):
            b = S(n)
            P(f"ds_read_b128 {vr(VB,4)}, v{vVR} offset:{n*4096}\nds_read_b128 {vr(VB+4,4)}, v{vVR} offset:{n*4096+2048}")
            for k in range(16): P(f"v_sub_f32 v{b+k}, v{b+k}, v{vM}")
            for k in range(16): P(f"v_exp_f32 v{b+k}, v{b+k}")
            for k in range(8): P(f"v_cvt_pk_bf16_f32 v{b+k}, v{b+2*k}, v{b+2*k+1}")
            P("s_waitcnt lgkmcnt(0)")
            for s in range(2): P(MF32(AQ, VB + 4*s, b + 4*s, "0" if (n == 0 and s == 0) else AQ))
        P("s_nop 11\ns_branch L_onorm")

    def addrs(self, lines):
        import subprocess, tempfile
        src = '.amdgcn_target "amdgcn-amd-amdhsa--gfx950"\n.text\n' + "".join(f"Z{i}:\n" + ("" if l.startswith("@") else l) + "\n" for i, l in enumerate(lines))
        with tempfile.TemporaryDirectory() as d:
            open(d + "/a.s", "w").write(src)
            subprocess.run(["clang", "-x", "assembler", "-target", "amdgcn-amd-amdhsa", "-mcpu=gfx950", "-c", d + "/a.s", "-o", d + "/a.o"], check=True)
            out = subprocess.run(["llvm-objdump", "-t", d + "/a.o"], capture_output=True, text=True).stdout
        ad = {}
        for l in out.splitlines():
            w = l.split()
            if len(w) > 3 and w[-1][0] == "Z": ad[int(w[-1][1:])] = int(w[0], 16)
        return [ad[i] for i in range(len(lines))]

    def layout(self, body):
        fill = lambda n: [f".fill {n//4}, 4, 0xbf810000"] if n else []
        on = self.o["align"]
        while True:
            k = [i for i, l in enumerate(body) if l.startswith("@JUMPALIGN")]
            if not k: break
            i = k[0]; name = body[i].split()[1]
            a = self.addrs(body)[i] + 4
            body = body[:i] + [f"s_branch L_ja_{name}"] + (fill(-a % 4096) if on else []) + body[i+1:]
        i = body.index("@ALIGN"); a = self.addrs(body)[i]
        body = body[:i] + (fill(-a % 4096) if on and -a % 4096 < 1536 else []) + body[i+1:]
        ad = self.addrs(body)
        g = body.index("L_g1:")
        if on: body = body[:g] + fill(-ad[body.index("L_g1page:")] % 4096) + body[g:]
        ad = self.addrs(body)
        i = body.index("@JUMP2 g1p2"); a = ad[i] + 4
        if a - ad[body.index("L_g1page:")] > 4096: print("warning: attention page overflows")
        body = body[:i] + [f"s_branch L_ja_g1p2"] + (fill(-a % 4096) if on else []) + body[i+1:]
        return body

    def build(self):
        self.prologue(); self.g2()
        g2 = list(self.P.lines); self.P.lines = []
        self.g1()
        fb = self.P.lines.index("L_fallback:")
        lines = g2 + self.tail.lines + self.P.lines[:fb] + ["L_codeend:"] + self.P.lines[fb:]
        body, pad = pad_hazards(lines)
        body = self.layout(body)
        hdr = open(os.path.join(os.path.dirname(os.path.abspath(__file__)), "header.txt")).read()
        if self.o["stamps"]: hdr += "; STAMPS " + self.o["stamps"] + (" MIXED" if self.o["mixed"] else "") + (" REALTIME" if self.o.get("rt") else "") + "\n"
        s = hdr + "; @launch grid=(256,1,1) block=(512,1,1) lds=163840\n"
        s += DOC + '.amdgcn_target "amdgcn-amd-amdhsa--gfx950"\n.text\n'
        if self.o["align"]: s += ".p2align 12\n.fill 832, 4, 0xbf810000\n"
        s += f".globl {NAME}\n.p2align 8\n.type {NAME},@function\n{NAME}:\n"
        s += "\n".join(("" if l.endswith(":") else "    ") + l for l in body) + "\n    s_endpgm\n"
        s += f""".section .rodata,"a"
.p2align 6
.amdhsa_kernel {NAME}
  .amdhsa_next_free_vgpr 256
  .amdhsa_next_free_sgpr 102
  .amdhsa_accum_offset 256
  .amdhsa_group_segment_fixed_size 0
  .amdhsa_kernarg_size 88
  .amdhsa_user_sgpr_count 2
  .amdhsa_user_sgpr_kernarg_segment_ptr 1
  .amdhsa_system_sgpr_workgroup_id_x 1
.end_amdhsa_kernel
"""
        return s, pad

if __name__ == "__main__":
    opts = {}
    out = sys.argv[1]
    for a in sys.argv[2:]:
        k, v = a.split("=", 1); opts[k] = v if k in STR_OPTS else eval(v)
    s, pad = Gen(**opts).build()
    open(out, "w").write(s)
    print("written", out, "pad states", pad, "lines", s.count("\n"))
```

```python
import sys, math, struct, os
sys.path.insert(0, os.path.dirname(os.path.abspath(__file__)))
from asmlib import *

NAME = "concat_heads__spectral_fnet__sliding_block__prompt_kernel"

def f2u(x): return struct.unpack("<I", struct.pack("<f", x))[0]
def fl(x): return f"{f2u(x):#x}"

WS_E = 0
WS_KF, WS_VF, WS_OF, WS_TF, WS_XF = 0x10000, 0x18000, 0x20000, 0x28000, 0x30000
WS_K, WS_V, WS_O, WS_T = 0x201000, 0x401000, 0x601000, 0x7F0000
NPAGE = 4
WS_STAMP = 0xA80000
WS_SIZE = 0xB00000
PAIR = 64 * 3584
TST = 65536 + 384
SL = 8192
def L_X(q): return 2 * q * SL
def L_WK(q): return (2 * q + 1) * SL
def L_WQ(q): return (18 + q) * SL if q < 2 else (q - 2) * SL
L_XA = 14 * SL
def L_WV(q): return (5 + q) * SL
L_WO = 5 * SL
L_KT = 13 * SL
L_VT = 0
L_F = 13 * SL
L_FLAG = 18 * SL - 64
L_TS = 12 * SL
L_OUT = 12 * SL
L_M = 12 * SL
L_TT = 18 * SL
def L_O(q): return q * SL if q < 5 else (13 + q - 5) * SL
sNONCE = 6
sXB, sW, sWKV, sXA, sWO, sOUT, sWS = 20, 48, 28, 32, 36, 40, 44
sU, sRT, sP, sS2, sEG, sR, sCI, sWV = 52, 53, 54, 55, 56, 57, 58, 59
sSX, sSW = 60, 67
sT0, sT1, sT2, sT3, sT4, sT5 = 74, 75, 76, 77, 78, 79
sROT, sFO = 8, 9
sGB = [12, 13, 14, 15, 8]
sSTAMP = 80
NSTAMP = 11
SPIN = 1 << 14
sLS = 60
def bound(lab): return f"s_add_u32 s{sLS}, s{sLS}, 1\ns_cmp_gt_u32 s{sLS}, 0x100000\ns_cbranch_scc1 {lab}"
BIG = 2.0 ** 100

class Cnt:
    def __init__(self, prog, name, maxn):
        self.p, self.name, self.maxn = prog, name, maxn
        self.q = []
    def add(self, tag=None): self.q.append(tag)
    def wait(self, tag):
        idx = [i for i, t in enumerate(self.q) if t == tag]
        if not idx: return
        n = min(len(self.q) - 1 - idx[-1], self.maxn)
        self.p(f"s_waitcnt {self.name}({n})")
        self.q = self.q[len(self.q) - n:] if n else []
    def all(self):
        self.p(f"s_waitcnt {self.name}(0)"); self.q = []

def srd(P, d, lo, nrec):
    P(f"s_mov_b64 {sr(d,2)}, {sr(lo,2)}\ns_mov_b32 s{d+2}, {nrec:#x}\ns_mov_b32 s{d+3}, 0x20000")

def MF32(d, a, b, c): return f"v_mfma_f32_32x32x16_bf16 {vr(d,16)}, {vr(a,4)}, {vr(b,4)}, {c if isinstance(c,str) else vr(c,16)}"
def MF16(d, a, b, c): return f"v_mfma_f32_16x16x32_bf16 {vr(d,4)}, {vr(a,4)}, {vr(b,4)}, {c if isinstance(c,str) else vr(c,4)}"
NONCE = f"s_mul_i32 s{sNONCE}, s{sNONCE}, 0x9E3779C1\ns_add_u32 s{sNONCE}, s{sNONCE}, 0x7FEB3560"

STR_OPTS = ("ldnt", "sched7b", "ina7", "osched", "pre", "items", "stamps", "sched", "sched7", "schedT", "schedK", "schedV", "ina1", "outmod", "omod")

DOC = '; ---------------------------------------------------------------------------------------------------------\n; One launch, 256 workgroups of 8 waves (one workgroup per CU).  Workgroup (rt, p): rt = 64-row tile, p = 0..7.\n;   (write-through stores, then one flag word per consumer); o goes through d_ws to the output projection.\n;   two passes with the true row max (L_fallback).\n; Part A: Re(DFT2(x)) as hidden DFT (448, only e <= 255) -> 32-point DFT over rows s2+64*s1 -> exchange through\n;   d_ws -> 64-point DFT with the twiddles folded in; columns 224..447 are the mirror image.  The constant DFT\n;   matrices are generated in registers.\n;   wait is bounded.  The o hand-off stays inside one L2 only after the 8 workgroups of a row tile have reported\n;   the same die; otherwise it uses write-through stores.\n; ---------------------------------------------------------------------------------------------------------\n'

class Gen:
    def __init__(self, **o):
        self.o = dict(stamps=False, codepf=True, mixed=False, outmod="nt", olocal=True, omod="nt", pf7=True,
            hops=3, align=True, force_fb=False, pfwo=0, touch=8, pre="X0 W0 X1 W1", rot=3, warm=2, wo1=7,
            items="Q0b Q1 Q2 Q3b Q4 Q5b Q6b V0b V1b V2b V3b V4b V5b V6b", kack=0, lagqv={},
            g1f0=20, g1cuts={0: 16, 1: 16, 2: 16, 3: 16, 4: 16}, bk2=2, bva=0, otp=7, worot=0, k1st=5, vbars=(3, 2, 1, 0), btpos=0, g1a=0, k56=1, aout=5, osched="0 1 2 3 4 b 5 6 b b b b b b",
            sched="f226 nonce xt tl p7 K2 bK0 K3 f18 bK1 K4 hop bK2 K5 f18 bK3 K6 f18 bK4 A0 A1 A2 A3 f18 bK5 A4 A5 A6 bK6 Q0 Q1 f* page wA6 bS0 a1 join "
                  "lva Q5 lvb lvc lvw Q6 bQ2 p7b kf V0 V1 g30 bQ4 V2 V3 g16 bQ5 V4 g8 bQ6 V5 g8 bV0 V6 tst kp1 bV1 g12 bV2 g* bV3 kw1 bV4 k4 k3 bV5 k2 bV6 one join2 "
                  "wT0 bS9 p:2 tf k1 k0 O0 wk2 bS1 O1 O2 bS3 vf O3 wk0 bS2 vp3 O4 O5 O6",
            sched7b="tst kp1 g* bQ4 bQ5 kw1 bQ6 k4 k3 k2 bS5 one",
            sched7="X2 X3 f* ef X4 X5 X6 A0 A1 A2 A3 A4 A5 A6 bK6 Q0 Q1 lg0 bA6 a17",
            ina1="0:Q2 10:Q3 13:Q4", ina7="3:bS0,Q2 6:Q3 9:Q4")
        self.o.update(o)
        self.P = Prog()
        self.tail = Prog()

    def stamp(self, name):
        if self.o.get("jit") is not None:
            P = self.P
            if name == 0:
                P(f"s_memtime s[98:99]\ns_waitcnt lgkmcnt(0)\nv_readfirstlane_b32 s97, v0\ns_nop 0\ns_lshl_b32 s96, s2, 10\ns_add_u32 s97, s97, s96\ns_add_u32 s98, s98, s97\ns_mul_i32 s98, s98, 0x9E3779B1")
                return
            self._jl = getattr(self, "_jl", 0) + 1
            L = f"jit_{self._jl}"
            P(f"s_cselect_b32 s96, 1, 0\ns_mul_i32 s98, s98, 0x41C64E6D\ns_add_u32 s98, s98, 12345\ns_lshr_b32 s97, s98, {32 - self.o['jit']}\ns_cmp_lg_u32 s97, 0\ns_cbranch_scc1 {L}\ns_sleep {self.o.get('jitn', 24)}\n{L}:\ns_cmp_lg_u32 s96, 0")
            return
        if not self.o["stamps"]: return
        if name == 0: self.P(f"s_memtime {sr(sSTAMP, 2)}"); return
        for lst in self.o["stamps"].split("|"):
            l = lst.split(",")
            if name in l: self.P(f"{'s_memrealtime' if self.o.get('rt') else 's_memtime'} {sr(sSTAMP + 2*(1+l.index(name)), 2)}")

    def stamp_out(self):
        if not self.o["stamps"]: return
        P = self.P
        P(f"s_waitcnt vmcnt(0)\ns_memtime {sr(sSTAMP+16,2)}\ns_memrealtime {sr(sSTAMP+18,2)}\ns_waitcnt lgkmcnt(0)\ns_mov_b64 exec, 1")
        if self.o.get("enc") is not None:
            k = self.o["enc"]; L = P.label("enc"); D = P.label("encd")
            P(f"s_cmp_lg_u32 s{sWV}, {self.o['encwv']}\ns_cbranch_scc1 {D}\ns_cmp_eq_u32 s{sP}, 7\ns_cbranch_scc1 {D}")
            if self.o.get("encwg", -1) >= 0: P(f"s_cmp_lg_u32 s2, {self.o['encwg']}\ns_cbranch_scc1 {D}")
            if k == 9: P(f"s_sub_u32 s3, s{sSTAMP+18}, s{sSTAMP+20}\ns_lshl_b32 s3, s3, 2")
            else: P(f"s_sub_u32 s3, s{sSTAMP+2*k}, s{sSTAMP}\ns_lshr_b32 s3, s3, 2")
            P(f"s_min_u32 s3, s3, 50000\ns_add_u32 s3, s3, 5000")
            P(f"{L}:\ns_memrealtime s[4:5]\ns_waitcnt lgkmcnt(0)\ns_sub_u32 s4, s4, s{sSTAMP+20}\ns_cmp_lt_u32 s4, s3\ns_cbranch_scc1 {L}\n{D}:")
            return
        for i in range(NSTAMP): P(f"v_mov_b32 v{4+i}, s{sSTAMP+2*i}")
        P(f"s_getreg_b32 s3, hwreg(HW_REG_XCC_ID)\nv_mov_b32 v15, s3")
        P(f"s_lshl_b32 s3, s2, 3\ns_add_u32 s3, s3, s{sWV}\ns_lshl_b32 s3, s3, 6\ns_add_u32 s3, s3, {WS_STAMP:#x}\nv_mov_b32 v1, 0")
        for k in range(3): P(f"buffer_store_dwordx4 v[{4+4*k}:{7+4*k}], v1, {sr(sWS,4)}, s3 offen offset:{16*k}")

    def into(self, prog, f, *a):
        keep = self.P; lab = keep._lab
        self.P = prog; prog._lab = max(prog._lab, lab)
        f(*a)
        keep._lab = max(prog._lab, lab); self.P = keep

    HOPS = (("roleT",), ("g1p1",))
    LATE = ("fc", "g1p2")
    def pad(self, name, inline=False, E=None):
        E = E or self.P
        if name in self.LATE:
            if not self.o["hops"] & 2: return
            nxt = "L_pad_g1p2" if name == "fc" else "L_rolesdone"
        else:
            if not self.o["hops"] & 1 or name in ("done", "g2p1"): return
            nxt = "L_hopret"
            for ch in self.HOPS:
                if name in ch[:-1]: nxt = "L_pad_" + ch[ch.index(name) + 1]
        if inline: E(f"s_branch L_over_{name}\nL_pad_{name}:\ns_branch {nxt}\nL_over_{name}:")
        else: E(f"L_pad_{name}:\ns_branch {nxt}")

    def tr_addr(self, dst, t0, t1, perm, sbase):
        P = self.P
        P(f"v_bfe_u32 v{t0}, v0, 4, 1\nv_lshl_add_u32 v{t0}, v{t0}, 5, s{sbase}")
        if perm:
            P(f"v_and_b32 v{t1}, 1, v0\nv_lshl_add_u32 v{t0}, v{t1}, 4, v{t0}")
            P(f"v_bfe_u32 v{t1}, v0, 1, 1\nv_lshl_add_u32 v{t0}, v{t1}, 3, v{t0}")
        else:
            P(f"v_and_b32 v{t1}, 3, v0\nv_lshl_add_u32 v{t0}, v{t1}, 3, v{t0}")
        P(f"v_and_b32 v{t1}, 8, v0\nv_lshlrev_b32 v{t1}, 3, v{t1}\nv_xor_b32 v{t0}, v{t0}, v{t1}")
        P(f"v_and_b32 v{t1}, 44, v0\nv_lshl_add_u32 v{dst}, v{t1}, 5, v{t0}")

    def inbox_setup(self, base):
        self.P(f"s_lshl3_add_u32 s3, s{sRT}, s{sP}\ns_lshl_b32 s3, s3, 7\ns_add_u32 s{sT3}, s3, {base:#x}")
    def inbox_issue(self, E=None):
        (E or self.P)(f"s_load_dwordx16 s[20:35], s[18:19], s{sT3} glc")
    def inbox_wait(self):
        P = self.P; L = P.label("kvp")
        P(f"s_mov_b32 s{sT5}, {SPIN}\ns_mov_b32 s7, s{sNONCE}\n{L}:\ns_waitcnt lgkmcnt(0)")
        P("s_xor_b64 s[20:21], s[20:21], s[6:7]")
        for n in range(1, 5):
            P(f"s_xor_b64 {sr(20+2*n,2)}, {sr(20+2*n,2)}, s[6:7]\ns_or_b64 s[20:21], s[20:21], {sr(20+2*n,2)}")
        P(f"s_cbranch_scc0 {L}_d")
        self.inbox_issue()
        P(f"s_sub_u32 s{sT5}, s{sT5}, 1\ns_cbranch_scc0 {L}\ns_waitcnt lgkmcnt(0)\n{L}_d:")
    def group_bases(self, base):
        P = self.P
        P(f"s_mul_i32 s{sT1}, s{sP}, {PAIR}\ns_mul_i32 s3, s{sRT}, 7168\ns_add_u32 s3, s3, s{sT1}\ns_add_u32 s{sSX+4}, s3, {base:#x}")
        for n in range(4):
            P(f"s_sub_u32 s3, s{sSX+4}, {7168*(4-n)}\ns_cmp_lt_u32 s{sRT}, {4-n}\ns_cselect_b32 s{sSX+n}, s{sWS+2}, s3")

    def poll(self, addrs, vt, sbase):
        P = self.P
        L = P.label("poll")
        P(f"s_mov_b32 s{sT5}, 0\n{L}:")
        for k, (va, imm) in enumerate(addrs):
            P(f"buffer_load_dword v{vt+k}, v{va}, {sr(sWS,4)}, s{sbase} offen offset:{imm} sc1")
        P(f"s_add_u32 s{sT5}, s{sT5}, 1\ns_cmp_gt_u32 s{sT5}, {SPIN}\ns_cbranch_scc1 {L}_d\ns_waitcnt vmcnt(0)")
        for k in range(len(addrs)):
            P(f"v_cmp_ne_u32 vcc, s{sNONCE}, v{vt+k}\ns_cbranch_vccnz {L}")
        P(f"{L}_d:")

    def lds_wait(self, vflag, idx, val, vt):
        P = self.P
        L = P.label("lw")
        P(f"{L}:\nds_read_b32 v{vt}, v{vflag} offset:{4*idx}\n{bound(L + '_d')}\ns_waitcnt lgkmcnt(0)\nv_cmp_gt_u32 vcc, {val}, v{vt}\ns_cbranch_vccnz {L}\n{L}_d:")
    def lds_signal(self, vflag, idx, vt):
        self.P(f"v_mov_b32 v{vt}, 1\ns_mov_b64 exec, 1\nds_add_u32 v{vflag}, v{vt} offset:{4*idx}\ns_mov_b64 exec, -1")
    def lds_set(self, vflag, idx, vt, val):
        self.P(f"v_mov_b32 v{vt}, {val}\nds_write_b32 v{vflag}, v{vt} offset:{4*idx}")

    def scratch_addr(self, vWR, vRD, base, t):
        P = self.P
        P(f"s_lshl_b32 s3, s{sU}, 11\ns_add_u32 s3, s3, {base}")
        P(f"v_and_b32 v{t}, 31, v0\nv_lshrrev_b32 v{t+1}, 5, v0\nv_bfe_u32 v{t+2}, v0, 1, 2\nv_xor_b32 v{t+2}, v{t+2}, v{t+1}")
        P(f"v_lshl_add_u32 v{t+3}, v{t}, 6, s3\nv_lshl_add_u32 v{vWR}, v{t+2}, 4, v{t+3}\nv_xor_b32 v{vWR+1}, 32, v{vWR}")
        P(f"v_lshl_add_u32 v{vRD}, v0, 4, s3")
        P(f"v_lshrrev_b32 v{t+2}, 2, v0\nv_lshrrev_b32 v{t+3}, 3, v0\nv_xor_b32 v{t+3}, v{t+3}, v0\nv_and_b32 v{t+3}, 3, v{t+3}\nv_lshlrev_b32 v{t+3}, 4, v{t+3}")

    def a_addr(self, d0, d1, vrow, vpiece, t, sd):
        P = self.P
        P(f"s_lshl_b32 s3, s{sR}, 10\ns_add_u32 s3, s3, s{sRT}\nv_lshl_add_u32 v{t}, v{vrow}, 5, s3")
        for dst in (d0, d1):
            P(f"v_sub_u32 v{t+1}, 0, v{t}\nv_and_b32 v{t+1}, 2047, v{t+1}\nv_cndmask_b32 v{t+1}, v{t}, v{t+1}, vcc\nv_mul_u32_u24 v{t+1}, 1792, v{t+1}\nv_add_u32 v{dst}, v{t+1}, v{vpiece}")
            if dst == d0: P(f"v_add_u32 v{t}, 512, v{t}")
        P(f"s_lshl_b32 s3, s{sP}, 6\ns_sub_u32 s7, 832, s3\ns_cmp_eq_u32 s{sCI}, 1\ns_cselect_b32 s{sd}, s7, s3")

    def out_epilogue(self, acc, pk, vwr, vrd, vg0, vg1, soff, mod):
        P = self.P
        for h in range(2):
            for i in range(4): P(f"v_cvt_pk_bf16_f32 v{pk+4*h+i}, v{acc+8*h+2*i}, v{acc+8*h+2*i+1}")
            P(f"ds_write_b128 v{vwr+h}, {vr(pk+4*h,4)}")
        P(f"ds_read_b128 {vr(pk,4)}, v{vrd}\nds_read_b128 {vr(pk+4,4)}, v{vrd} offset:1024")
        P(f"s_waitcnt lgkmcnt(1)\nbuffer_store_dwordx4 {vr(pk,4)}, v{vg0}, {sr(sOUT,4)}, {soff} offen {mod}")
        P(f"s_waitcnt lgkmcnt(0)\nbuffer_store_dwordx4 {vr(pk+4,4)}, v{vg1}, {sr(sOUT,4)}, {soff} offen {mod}")

    def prologue(self):
        P = self.P; o = self.o
        P(f"s_cmpk_ge_u32 s2, 256\ns_cbranch_scc1 L_end")
        P(f"s_load_dwordx2 {sr(sXB,2)}, s[0:1], 40\ns_load_dwordx2 {sr(sWKV,2)}, s[0:1], 48\ns_load_dwordx8 s[12:19], s[0:1], 56\ns_load_dwordx2 {sr(sXA,2)}, s[0:1], 0")
        if o["stamps"]:
            P(f"s_memrealtime {sr(sSTAMP + 2*(NSTAMP-1), 2)}")
        self.stamp(0)
        P(f"v_readfirstlane_b32 s{sWV}, v0\nv_and_b32 v0, 63, v0\ns_and_b32 s3, s2, 7\ns_lshr_b32 s7, s2, 3\ns_lshr_b32 s{sWV}, s{sWV}, 6")
        if o["mixed"]:
            P(f"s_and_b32 s{sP}, s3, 1\ns_lshl_b32 s{sP}, s{sP}, 2\ns_and_b32 s{sT1}, s7, 3\ns_add_u32 s{sP}, s{sP}, s{sT1}\ns_lshr_b32 s{sT0}, s7, 2")
            P(f"s_lshr_b32 s{sRT}, s3, 1\ns_lshl3_add_u32 s{sRT}, s{sRT}, s{sT0}\ns_lshl1_add_u32 s{sT0}, s{sT1}, s{sT0}")
        else:
            P(f"s_and_b32 s{sP}, s7, 7\ns_lshr_b32 s{sT0}, s7, 3\ns_lshl2_add_u32 s{sRT}, s3, s{sT0}")
            P({0: f"s_lshl1_add_u32 s{sT0}, s{sT0}, s{sP}", 1: f"s_mov_b32 s{sT0}, s{sP}", 2: f"s_add_u32 s{sT0}, s{sT0}, s{sP}",
               3: f"s_and_b32 s{sT0}, s{sT0}, 1\ns_lshl2_add_u32 s{sT0}, s{sT0}, s{sP}"}[o["rot"]])
        P(f"s_and_b32 s{sU}, s{sWV}, 3\ns_and_b32 s{sR}, s{sU}, 1\ns_lshr_b32 s{sCI}, s{sU}, 1\ns_lshl_b32 s{sT4}, s{sU}, 10")
        P(f"s_cmp_lt_u32 s{sWV}, 4\ns_cbranch_scc1 L_g2")
        if o["codepf"]:
            P(f"s_getpc_b64 s[{sT2}:{sT3}]\nL_pc:")
            P(f"s_lshl2_add_u32 s{sT1}, s7, s{sU}\ns_lshl_b32 s{sT1}, s{sT1}, 8\nv_lshl_add_u32 v2, v0, 2, s{sT1}\nv_min_u32 v2, L_codeend-L_pc-4, v2")
            P(f"v_mov_b32 v3, s{sT3}\nv_add_co_u32 v2, vcc, s{sT2}, v2\nv_addc_co_u32 v3, vcc, 0, v3, vcc")
            P(f"global_load_dword v47, v[2:3], off")
        if o["warm"]:
            if o.get("warmqv"):
                P(f"s_lshl1_add_u32 s{sT1}, s2, s{sCI}\ns_mulk_i32 s{sT1}, 2688\ns_mul_i32 s{sT5}, s{sR}, 1792\ns_add_u32 s{sT1}, s{sT1}, s{sT5}\nv_min_u32 v2, 55, v0\nv_lshlrev_b32 v2, 4, v2")
            else: P(f"s_lshl2_add_u32 s{sT1}, s2, s{sU}\ns_mulk_i32 s{sT1}, 1184\nv_mul_u32_u24 v2, 20, v0")
            P(f"s_mov_b32 s{sWKV+2}, {448*2688:#x}\ns_mov_b32 s{sWKV+3}, 0x20000")
            P(f"s_waitcnt lgkmcnt(0)\nbuffer_load_dword v47, v2, {sr(sWKV,4)}, s{sT1} offen")
        if o.get("early", 0): P("s_waitcnt lgkmcnt(0)"); self.g1_first()
        P(f"s_branch L_g1")
        P(f"L_g2:")

    def g1_first(self):
        P = self.P; o = self.o
        srd(P, sWS, 18, WS_SIZE); srd(P, sWO, 12, 448*896)
        P(f"s_mov_b32 s{sXA+2}, {2048*896:#x}\ns_mov_b32 s{sXA+3}, 0x20000")
        if o["warm"] > 1:
            P(f"s_lshl2_add_u32 s10, s2, s{sU}\ns_mulk_i32 s10, 392\nv_lshlrev_b32 v40, 3, v0\nbuffer_load_dword v47, v40, {sr(sWO,4)}, s10 offen")
        if o["pf7"]:
            Lp = P.label("pf")
            P(f"s_cmp_lg_u32 s{sP}, 7\ns_cbranch_scc1 {Lp}")
            P(f"s_and_b32 s7, s{sRT}, 3\ns_lshl2_add_u32 s7, s7, s{sU}\ns_mul_i32 s10, s7, {128*896}\ns_mul_i32 s11, s3, {8*896}\ns_add_u32 s10, s10, s11")
            P(f"v_lshlrev_b32 v40, 7, v0\ns_mov_b32 exec_hi, 0x00ffffff")
            for seg in range(2):
                P(f"buffer_load_dword v47, v40, {sr(sXA,4)}, s10 offen\ns_add_u32 s10, s10, {64*896}")
            if o["pfwo"]: P(f"s_mul_i32 s10, s7, 25088\ns_mov_b32 exec_hi, 0x0001ffff")
            for k in range(o["pfwo"]):
                P(f"buffer_load_dword v47, v40, {sr(sWO,4)}, s10 offen\ns_add_u32 s10, s10, {49*128}")
            P(f"s_mov_b64 exec, -1\n{Lp}:")

    def const_stream(self):
        F = []
        vE, vB, vK, vA, vC = 12, 13, 10, 40, 42
        CC, SS = 144, 172
        F += [f"s_lshl2_add_u32 s3, s{sEG}, s{sU}", f"v_and_b32 v{vA}, 15, v0", f"v_lshl_add_u32 v{vA}, s3, 4, v{vA}", f"v_cvt_f32_u32 v{vA}, v{vA}",
              f"v_mul_f32 v{vE}, {fl(1/448)}, v{vA}", f"v_cos_f32 v{vK}, v{vE}",
              f"v_lshrrev_b32 v{vA}, 1, v0", f"v_and_b32 v{vA}, 24, v{vA}", f"v_cvt_f32_u32 v{vA}, v{vA}", f"v_mul_f32 v{vB}, v{vE}, v{vA}",
              f"v_add_f32 v{vK}, v{vK}, v{vK}", f"v_mov_b32 v{vK+1}, v{vK}"]
        for ks in range(7):
            for j in range(2): F.append(f"v_fmamk_f32 v{vA+j}, v{vE}, {fl(32*ks+j)}, v{vB}")
            for j in range(2): F += [f"v_cos_f32 v{vC+2*j}, v{vA+j}", f"v_sin_f32 v{vC+2*j+1}, v{vA+j}"]
            def cv(jj):
                return [f"v_cvt_pk_bf16_f32 v{CC+4*ks+jj}, v{vC+4*jj}, v{vC+4*jj+2}", f"v_cvt_pk_bf16_f32 v{SS+4*ks+jj}, v{vC+4*jj+1}, v{vC+4*jj+3}"]
            pend = cv(0)
            for j in range(2, 8):
                F.append(pend.pop(0))
                if self.o.get("pk", True):
                    F.append(f"v_pk_fma_f32 {vr(vC+2*j,2)}, {vr(vK,2)}, {vr(vC+2*j-2,2)}, {vr(vC+2*j-4,2)} neg_lo:[0,0,1] neg_hi:[0,0,1]")
                else:
                    F += [f"v_fma_f32 v{vC+2*j+h}, v{vK}, v{vC+2*j-2+h}, -v{vC+2*j-4+h}" for h in range(2)]
                if j & 1: pend += cv(j >> 1)
            F += pend
        F += [f"v_and_b32 v{vA}, 15, v0", f"v_cvt_f32_u32 v{vA}, v{vA}", f"v_mul_f32 v{vE}, {fl(1/32)}, v{vA}",
              f"v_lshrrev_b32 v{vA}, 2, v0", f"v_and_b32 v{vA}, 12, v{vA}", f"v_cvt_f32_u32 v{vA}, v{vA}", f"v_mul_f32 v{vC}, v{vE}, v{vA}"]
        for j in range(1, 4): F.append(f"v_add_f32 v{vC+j}, v{vE}, v{vC+j-1}")
        for j in range(4): F.append(f"v_sin_f32 v{vC+4+j}, v{vC+j}")
        for j in range(4): F.append(f"v_cos_f32 v{vC+j}, v{vC+j}")
        F += [f"v_and_b32 v{vA}, 1, v0", f"s_mov_b32 s3, 0x80008000", f"v_mul_lo_u32 v{vA}, v{vA}, s3", f"s_brev_b32 s3, 1"]
        for m in range(2):
            for jj in range(2): F.append(f"v_cvt_pk_bf16_f32 v{96+8*m+jj}, v{vC+4*m+2*jj}, v{vC+4*m+2*jj+1}")
        for m in range(2):
            for jj in range(2): F.append(f"v_xor_b32 v{96+8*m+2+jj}, v{vA}, v{96+8*m+jj}")
        for m in range(2):
            for jj in range(4): F.append(f"v_xor_b32 v{96+8*m+4+jj}, s3, v{96+8*m+jj}")
        F += [f"v_and_b32 v{vA}, 15, v0", f"v_lshrrev_b32 v{vA+1}, 1, v{vA}", f"v_lshlrev_b32 v{vA}, 7, v{vA}",
              f"v_add_u32 v{vA}, {L_XA}, v{vA}",
              f"v_lshrrev_b32 v{vC}, 4, v0", f"v_xor_b32 v{vC}, v{vC}, v{vA+1}",
              f"v_lshl_add_u32 v8, v{vC}, 4, v{vA}", f"v_xor_b32 v9, 64, v8", f"v_lshl_or_b32 v11, v0, 31, 1.0",
              f"v_mov_b32 v15, {L_FLAG}"]
        return F

    def g2(self):
        P = self.P; o = self.o; T = self.tail
        vx0, vx1, vw0, vw1, vq0, vq1, vxa = 1, 2, 3, 4, 5, 6, 7
        NT = lambda k: "nt " if k in o.get("ldnt", "") else ""
        P("; ==== loader / DFT waves: first loads, DFT constants, staged loads of x, Wk, A_x, Wq, Wv")
        P(f"v_lshrrev_b32 v16, 3, v0\nv_lshl_add_u32 v16, s{sU}, 3, v16")
        P(f"v_lshrrev_b32 v17, 1, v16\nv_xor_b32 v17, v17, v0\nv_and_b32 v17, 7, v17\nv_lshlrev_b32 v17, 4, v17")
        P(f"v_mul_u32_u24 v{vx0}, 896, v16\nv_add_u32 v{vx0}, v{vx0}, v17\nv_add_u32 v{vx1}, {32*896}, v{vx0}")
        P(f"v_lshrrev_b32 v18, 2, v0\nv_and_b32 v18, 4, v18\nv_xor_b32 v18, v18, v0\nv_and_b32 v18, 7, v18")
        P(f"v_mul_u32_u24 v19, 2688, v16\ns_add_u32 s{sT1}, s{sP}, 7\ns_lshl_b32 s{sT1}, s{sT1}, 7")
        P(f"v_lshl_add_u32 v{vw0}, v18, 4, v19\nv_add_u32 v{vw0}, s{sT1}, v{vw0}\nv_add_u32 v{vw1}, {32*2688}, v{vw0}")
        P(f"s_sub_u32 s{sT1}, s{sT0}, 7\ns_cselect_b32 s{sROT}, s{sT0}, s{sT1}\ns_mul_i32 s{sT2}, s{sRT}, {64*896}")
        P(f"s_lshl_b32 s{sT1}, s{sROT}, 7\ns_add_u32 s{sSX}, s{sT1}, s{sT2}\ns_mul_i32 s{sSW}, s{sROT}, {64*2688}")
        P(f"s_add_u32 s{sSW+1}, s{sSW}, {64*2688}\ns_add_u32 s{sSX+1}, s{sSX}, 128\ns_cmp_eq_u32 s{sROT}, 6\ns_cselect_b32 s{sSW+1}, 0, s{sSW+1}\ns_cselect_b32 s{sSX+1}, s{sT2}, s{sSX+1}")
        P(f"s_cmp_eq_u32 s{sP}, 7\ns_cselect_b32 s{sWKV+2}, 0, {448*2688:#x}")
        P(f"s_mov_b32 s{sWKV+3}, 0x20000\ns_mov_b32 s{sXB+2}, {2048*896:#x}\ns_mov_b32 s{sXB+3}, 0x20000\ns_mov_b32 m0, s{sT4}")
        P(f"s_waitcnt lgkmcnt(0)")
        self.stamp("karg")
        vm = Cnt(P, "vmcnt", 63)
        cur = 0
        pre = []
        for t in o["pre"].split():
            q = int(t[1])
            if t[0] == "X": pre += [(("K", q), L_X(q), vx0, sXB, sSX + q, 0), (("K", q), L_X(q) + 4096, vx1, sXB, sSX + q, 0)]
            if t[0] == "W": pre += [(("K", q), L_WK(q), vw0, sWKV, sSW + q, 0), (("K", q), L_WK(q) + 4096, vw1, sWKV, sSW + q, 0)]
            if t[0] == "V": pre += [(("V", q), L_WV(q), vw0, sWKV, sSW + q, 896), (("V", q), L_WV(q) + 4096, vw1, sWKV, sSW + q, 896)]
        for tag, lds, va, sd, so, imm in pre:
            d = lds - imm - cur; cur = lds - imm
            if d: P(f"s_addk_i32 m0, {d}" if abs(d) < 32768 else f"s_add_u32 m0, s{sT4}, {cur}")
            P(f"buffer_load_dwordx4 v{va}, {sr(sd,4)}, s{so} offen" + (f" offset:{imm}" if imm else "") + f" {NT(tag[0])}lds"); vm.add(tag)
        self.stamp("dma0")
        P(f"s_load_dword s{sNONCE}, s[18:19], {WS_E}")
        P(f"s_lshr_b32 s{sT1}, s7, 2\ns_lshl3_add_u32 s{sS2}, s3, s{sT1}\ns_and_b32 s{sEG}, s7, 3")
        for q in range(2, 7):
            P(f"s_add_u32 s{sSX+q}, s{sSX+q-1}, 128\ns_add_u32 s{sSW+q}, s{sSW+q-1}, {64*2688}\ns_cmp_eq_u32 s{sROT}, {7-q}\ns_cselect_b32 s{sSX+q}, s{sT2}, s{sSX+q}\ns_cselect_b32 s{sSW+q}, 0, s{sSW+q}")
        A = Prog()
        srd(A, sW, sWKV, 448*2688); srd(A, sWS, 18, WS_SIZE); srd(A, sWO, 12, 448*896); srd(A, sOUT, 14, 2048*1792)
        A(f"s_mov_b32 s{sXA+2}, {2048*896:#x}\ns_mov_b32 s{sXA+3}, 0x20000\ns_mul_i32 s3, s{sS2}, 896")
        A(f"v_mul_u32_u24 v{vxa}, {64*896}, v16\nv_add3_u32 v{vxa}, v{vxa}, v17, s3")
        A(f"v_min_u32 v20, 6, v18\ns_mul_i32 s3, s{sP}, 112\nv_lshl_add_u32 v{vq0}, v20, 4, v19\nv_add_u32 v{vq0}, s3, v{vq0}\nv_add_u32 v{vq1}, {32*2688}, v{vq0}")
        A(f"s_cmp_eq_u32 s{sP}, 7\ns_cselect_b32 s{sFO}, 1, 0\ns_cmp_eq_u32 s{sR}, 0\ns_cselect_b32 s{sFO}, s{sFO}, 2")
        F = A.lines + self.const_stream()
        fi = 0
        def fill(n):
            nonlocal fi
            while fi + n < len(F) and F[fi + n].startswith(("s_cselect", "s_addc")): n += 1
            for l in F[fi:fi + n]: P(l)
            fi = min(len(F), fi + n)
        nbar = 0
        safe = {k: min(k // 2 + 3, 8) for k in range(14)}
        def dma(tag, lds, va, srdn, soff, step=0):
            if tag[0] != "K" and (lds // SL) in safe: assert nbar >= safe[lds // SL], ("WAR", tag, nbar)
            P((f"s_addk_i32 m0, {step}" if step else f"s_add_u32 m0, s{sT4}, {lds}") + f"\nbuffer_load_dwordx4 v{va}, {sr(srdn,4)}, s{soff} offen {NT(tag[0])}lds"); vm.add(tag)
        def ld(kind, q):
            if kind == "K":
                dma(("K", q), L_X(q), vx0, sXB, sSX + q); dma(("K", q), L_WK(q), vw0, sWKV, sSW + q)
                dma(("K", q), L_X(q) + 4096, vx1, sXB, sSX + q); dma(("K", q), L_WK(q) + 4096, vw1, sWKV, sSW + q)
            elif kind == "X":
                dma(("K", q), L_X(q), vx0, sXB, sSX + q); dma(("K", q), L_X(q) + 4096, vx1, sXB, sSX + q)
            elif kind == "V":
                if q == 0: P(f"v_add_u32 v{vw0}, 896, v{vw0}\nv_add_u32 v{vw1}, 896, v{vw1}\ns_mov_b64 s[60:61], {sr(sWKV,2)}\ns_mov_b32 s62, s{sWKV+2}\ns_mov_b32 s63, 0x20000")
                dma(("V", q), L_WV(q), vw0, 60, sSW + q); dma(("V", q), L_WV(q) + 4096, vw1, 60, sSW + q, 4096)
            elif kind == "Q":
                dma(("Q", q), L_WQ(q), vq0, sW, sSW + q); dma(("Q", q), L_WQ(q) + 4096, vq1, sW, sSW + q, 4096)
            elif kind == "O":
                if q == 0: pass
                else:
                    P(f"s_add_u32 s65, s65, 1\ns_cmp_eq_u32 s65, 7\ns_cselect_b32 s65, 0, s65")
                P(f"s_lshl_b32 s3, s65, 13\ns_add_u32 m0, s3, s66\ns_mul_i32 s3, s65, {64*896}\nbuffer_load_dwordx4 v12, {sr(sWO,4)}, s3 offen {NT('O')}lds")
                P(f"s_addk_i32 m0, 4096\nbuffer_load_dwordx4 v13, {sr(sWO,4)}, s3 offen {NT('O')}lds"); vm.add(("O", q)); vm.add(("O", q))
            elif kind == "A":
                P(f"s_add_u32 m0, s{sT4}, {L_XA + q*(4096-128)}\nbuffer_load_dwordx4 v{vxa}, {sr(sXA,4)}, 0 offen offset:{q*128} {NT('A')}lds"); vm.add(("A", q))
        def bar(name, tag=None):
            nonlocal nbar
            self.stamp("f" + name)
            if tag: vm.wait(tag)
            self.stamp("w" + name)
            P("s_barrier"); nbar += 1
            self.stamp("b" + name)
        def only(cond, f):
            L = P.label("sk")
            P(f"{cond}\ns_cbranch_scc0 {L}"); f(); P(f"{L}:")
        FO = [24, 25, 26, 27, 11]
        def flag_setup(E):
            E(f"s_add_u32 s3, s{sP}, s{sCI}\ns_and_b32 s3, s3, 7\ns_lshl_b32 s3, s3, 5\ns_sub_u32 s3, s3, s{sCI}\ns_lshl2_add_u32 s3, s3, {WS_KF + 4:#x}")
            for d in range(5):
                E(f"s_add_u32 s7, s{sRT}, {d}\ns_and_b32 s7, s7, 31\ns_lshl_b32 s7, s7, 10\ns_add_u32 s{FO[d]}, s7, s3\ns_add_u32 s3, s3, 8")
            E(f"s_add_u32 s4, s18, {WS_VF - WS_KF:#x}\ns_addc_u32 s5, s19, 0")
        def sflag(bases, early):
            def f():
                for bs in bases:
                    for d in range(5): P(f"s_atomic_swap s{sNONCE}, {bs}, s{FO[d]}")
            only(f"s_cmp_eq_u32 s{sFO}, {int(early)}", f)
        CC, SS, ZC, ZS, ZH = 144, 172, 64, 72, 136
        vFL = 15
        lgx = Cnt(P, "lgkmcnt", 15)
        MM, M2 = 216, 80
        def a1(ina):
            NX = 6
            def xreg(ks): return (24, 32, 40, 48, 56, 112)[ks % NX]
            def xread(ks):
                for mt in range(2):
                    P(f"ds_read_b128 {vr(xreg(ks) + 4*mt, 4)}, v{8 + (ks & 1)} offset:{(ks>>1)*4096 + mt*2048}"); lgx.add(("x", ks))
            P("; hidden DFT of 32 rows x 16 frequencies")
            for ks in range(NX - 1): xread(ks)
            inl = dict(t.split(":") for t in ina.split())
            for ks in range(14):
                if str(ks) in inl:
                    if "kf" in inl[str(ks)] or "kp1" in inl[str(ks)]: assert not lgx.q and ks >= 15 - NX
                    run(inl[str(ks)].replace(",", " "))
                lgx.wait(("x", ks))
                x = xreg(ks); z = ZH if ks >= 7 else 0; kk = 4 * (ks % 7)
                c = (lambda r: "0" if kk == 0 else r)
                P(MF16(ZC + z, x, CC + kk, c(ZC + z)))
                P(MF16(ZS + z, x, SS + kk, c(ZS + z)))
                if ks + NX - 1 < 14: xread(ks + NX - 1)
                P(MF16(ZC + z + 4, x + 4, CC + kk, c(ZC + z + 4)))
                P(MF16(ZS + z + 4, x + 4, SS + kk, c(ZS + z + 4)))
            self.stamp("a1")
        def fm_read():
            assert not lgx.q
            for k in range(4): P(f"ds_read_b128 {vr(96+4*k,4)}, v134 offset:{L_F - L_M + 1024*k}"); lgx.add("F")
            for k in range(8): P(f"ds_read_b128 {vr(MM+4*k,4)}, v134 offset:{1024*k}"); lgx.add("F")
        ZR, ZP, ZN, TA = 80, 84, 88, 40
        vTR, vWR, vRD, vG0, vG1, vOR, vA0, vA1, vTA, vTW, vTG = 120, 122, 121, 124, 125, 126, 136, 137, 138, 140, 141
        sOB, sAB = 10, 64
        def lva():
            P("; 32-point DFT over the rows")
            for i in range(16): P(f"v_fmac_f32 v{ZC+i}, v11, v{ZC+ZH+i}")
            for i in range(4): P(f"v_cvt_pk_bf16_f32 v{ZR+i}, v{ZC+2*i}, v{ZC+2*i+1}")
            for i in range(4): P(f"v_cvt_pk_bf16_f32 v{ZP+i}, v{ZS+2*i}, v{ZS+2*i+1}")
            for i in range(4): P(f"v_cvt_pk_bf16_f32 v{ZN+i}, -v{ZS+2*i}, -v{ZS+2*i+1}")
        def lvb():
            for nt in range(2):
                P(MF16(TA + 8*nt, ZR, 96 + 4*nt, "0")); P(MF16(TA + 8*nt + 4, ZR, 104 + 4*nt, "0"))
            for nt in range(2):
                P(MF16(TA + 8*nt, ZN, 104 + 4*nt, TA + 8*nt)); P(MF16(TA + 8*nt + 4, ZP, 96 + 4*nt, TA + 8*nt + 4))
        def lvc():
            for nt in range(2):
                for r_ in range(4): P(f"v_cvt_pk_bf16_f32 v{56+4*nt+r_}, v{TA+8*nt+r_}, v{TA+8*nt+4+r_}")
        def lvw():
            for nt in range(2): P(f"ds_write_b128 v{vTW}, {vr(56+4*nt,4)} offset:{SL + 1024*nt}"); lgx.add("w")
            for nt in range(2): P(f"ds_read_b128 {vr(24+4*nt,4)}, v{vRD} offset:{SL + 1024*nt}"); lgx.add("t")
        def t_store():
            lgx.wait("t")
            P(f"buffer_store_dwordx4 v[24:27], v{vTG}, {sr(sWS,4)}, s{sT0} offen sc1\ns_add_u32 s{sT0}, s{sT0}, {16*TST}\nbuffer_store_dwordx4 v[28:31], v{vTG}, {sr(sWS,4)}, s{sT0} offen sc1")
            vm.add(("T", 0)); vm.add(("T", 0)); self.stamp("tst")
        def t_addr():
            P = self.P
            P(f"s_lshl1_add_u32 s3, s{sT4}, {L_OUT}\nv_lshl_add_u32 v{vRD}, v0, 4, s3\nv_and_b32 v18, 15, v0\nv_lshl_add_u32 v19, v18, 6, s3")
            P(f"v_lshrrev_b32 v18, 3, v0\nv_xor_b32 v20, v18, v0\nv_bfe_u32 v21, v20, 1, 2\nv_lshl_add_u32 v{vTW}, v21, 4, v19")
            P(f"v_and_b32 v20, 3, v20\nv_lshlrev_b32 v142, 4, v20\nv_lshrrev_b32 v143, 2, v0\nv_mul_u32_u24 v18, {TST}, v143\nv_add_u32 v{vTG}, v18, v142")
            P(f"s_lshl1_add_u32 s3, s{sEG}, s{sCI}\ns_lshl_b32 s3, s3, 13\ns_lshl1_add_u32 s7, s{sS2}, s{sR}\ns_lshl_b32 s7, s7, 6\ns_add_u32 s3, s3, s7\ns_add_u32 s{sT0}, s3, {WS_T:#x}")
        def t_flag():
            def f():
                P(f"s_lshr_b32 s7, s{sS2}, 3\ns_lshl3_add_u32 s3, s{sEG}, s7\ns_lshl_b32 s3, s3, 7\ns_and_b32 s7, s{sS2}, 7\ns_lshl2_add_u32 s3, s7, s3")
                P(f"s_add_u32 s3, s3, {WS_TF:#x}\ns_atomic_swap s{sNONCE}, s[18:19], s3")
            only(f"s_cmp_eq_u32 s{sU}, 1", f)
        def addr1():
            P = self.P
            P(f"v_and_b32 v16, 31, v0\nv_lshrrev_b32 v17, 5, v0\nv_bfe_u32 v18, v0, 1, 2\nv_xor_b32 v18, v18, v17\ns_lshl1_add_u32 s3, s{sT4}, {L_OUT}")
            P(f"v_lshl_add_u32 v19, v16, 6, s3\nv_lshl_add_u32 v{vWR}, v18, 4, v19\nv_xor_b32 v{vWR+1}, 32, v{vWR}")
            P(f"v_mul_u32_u24 v{vG0}, 1792, v143\nv_add_u32 v{vG0}, v{vG0}, v142\nv_add_u32 v{vG1}, {16*1792}, v{vG0}")
            P(f"s_lshl_b32 s3, s{sR}, 12\nv_lshl_add_u32 v{vOR}, v16, 3, s3\nv_lshl_add_u32 v{vOR}, v17, 9, v{vOR}")
            P(f"s_lshl1_add_u32 s3, s{sRT}, s{sR}\ns_mul_i32 s3, s3, {32*1792}\ns_lshl1_add_u32 s7, s{sP}, s{sCI}\ns_lshl_b32 s7, s7, 6\ns_add_u32 s3, s3, s7\ns_add_u32 s{sOB}, s3, 896")
            P(f"s_lshl_b32 s3, s{sCI}, 6\ns_add_u32 s3, s3, {L_WO}")
            self.tr_addr(vTR, 18, 19, True, 3)
        def addr2():
            P = self.P
            P(f"s_cmp_eq_u32 s{sCI}, 1\ns_cselect_b64 vcc, -1, 0")
            if not o["g1a"]: self.a_addr(vA0, vA1, 143, 142, 18, sAB)
            P(f"v_and_b32 v18, 19, v0\nv_bfe_u32 v19, v0, 2, 1\nv_lshl_add_u32 v18, v19, 3, v18\nv_bfe_u32 v19, v0, 3, 1\nv_lshl_add_u32 v18, v19, 2, v18")
            P(f"v_sub_u32 v19, 32, v18\nv_cndmask_b32 v18, v18, v19, vcc\nv_lshrrev_b32 v19, 5, v18\nv_and_b32 v18, 31, v18\nv_lshlrev_b32 v18, 2, v18")
            P(f"v_lshl_add_u32 v18, v19, 13, v18\nv_lshl_add_u32 v18, v17, 10, v18\nv_add_u32 v{vTA}, {L_TT}, v18\nv_add_u32 v{vTA+1}, 128, v{vTA}")
        def addr3():
            P = self.P
            P(f"v_lshrrev_b32 v18, 3, v0\nv_lshl_add_u32 v18, s{sU}, 3, v18\nv_mul_u32_u24 v12, 896, v18\nv_and_b32 v18, 4, v143\nv_xor_b32 v18, v18, v0\nv_and_b32 v18, 7, v18")
            P(f"s_lshl_b32 s3, s{sP}, 7\nv_lshl_add_u32 v12, v18, 4, v12\nv_add_u32 v12, s3, v12\nv_add_u32 v13, {32*896}, v12")
            P(f"s_and_b32 s65, s{sRT}, 3\ns_mul_i32 s65, s65, {o.get('worot', 2)}\ns_cmp_eq_u32 s{sP}, 7\ns_cselect_b32 s{sWO+2}, 0, s{sWO+2}\ns_add_u32 s66, s{sT4}, {L_WO}")
        G = []; gi = 0
        for f in (addr3, addr1, addr2):
            B = Prog(); self.into(B, f); G += B.lines
        if o.get("verbose"): print("second filler", len(G))
        def fill2(n):
            nonlocal gi
            while gi + n < len(G) and G[gi + n].startswith(("s_cselect", "s_addc")): n += 1
            for l in G[gi:gi + n]: P(l)
            gi = min(len(G), gi + n)
        vD0, vKA, vKB, vWO = 14, 127, 135, 13
        sKB = 0
        def role_setup():
            P = self.P
            if o.get("k56"): P(f"v_lshlrev_b32 v{vD0}, 4, v0\ns_mul_i32 s{sKB}, s{sU}, 1792\nv_add_u32 v{vKA}, s{sKB}, v{vD0}\ns_nop 0\ns_nop 0")
            else: P(f"v_lshlrev_b32 v{vD0}, 4, v0\nv_add_u32 v{vKA}, s{sT4}, v{vD0}\ns_add_u32 s3, s{sT4}, 4096\ns_min_u32 s{sKB}, s3, 6144\nv_add_u32 v{vKB}, s{sKB}, v{vD0}")
            P(f"s_lshl3_add_u32 s3, s{sRT}, s{sP}\ns_lshl_b32 s3, s3, 7\ns_mul_i32 s7, s{sCI}, {WS_VF - WS_KF:#x}\ns_add_u32 s3, s3, s7\ns_add_u32 s{sT3}, s3, {WS_KF:#x}")
            P(f"s_mul_i32 s{sT1}, s{sP}, {PAIR}\ns_mul_i32 s3, s{sRT}, 7168\ns_add_u32 s3, s3, s{sT1}\ns_add_u32 s{sGB[4]}, s3, {WS_K:#x}")
            for n in range(4):
                P(f"s_sub_u32 s3, s{sGB[4]}, {7168*(4-n)}\ns_cmp_lt_u32 s{sRT}, {4-n}\ns_cselect_b32 s{sGB[n]}, s{sWS+2}, s3")
            P(f"s_mul_i32 s3, s{sU}, 10\nv_lshrrev_b32 v132, 1, v0\nv_add_u32 v132, s3, v132\nv_lshl_add_u32 v133, s{sRT}, 3, v132\nv_cmp_le_u32 vcc, 32, v133")
            P(f"v_mov_b32 v129, 0x3f803f80\nv_and_b32 v133, 1, v0\nv_cndmask_b32 v128, 0, v129, vcc\nv_lshlrev_b32 v133, 6, v133\nv_lshl_add_u32 v132, v132, 10, v133")
            P(f"v_mov_b32 v129, v128\nv_mov_b32 v130, v128\nv_mov_b32 v131, v128\nv_add_u32 v134, {L_M}, v{vD0}")
        def ones():
            P(f"s_mov_b64 exec, 0xfffff\nds_write_b128 v132, v[128:131] offset:{L_VT + 896}\ns_mov_b64 exec, -1"); lgx.add("o")
        def k_ld(n):
            if o.get("k56"):
                P(f"s_add_u32 m0, s{sKB}, {L_KT + n*7168}\ns_mov_b32 exec_hi, 0x00ffffff")
                for k in range(2): P(f"buffer_load_dwordx4 v{vKA}, {sr(sWS,4)}, s{sGB[n]} offen offset:{896*k} sc1 lds"); vm.add(("k", n))
                P("s_mov_b32 exec_hi, -1")
                return
            for sb, va in ((sT4, vKA), (sKB, vKB)):
                P(f"s_add_u32 m0, s{sb}, {L_KT + n*7168}\nbuffer_load_dwordx4 v{va}, {sr(sWS,4)}, s{sGB[n]} offen sc1 lds"); vm.add(("k", n))
        for f in (role_setup, lambda: flag_setup(self.P), t_addr):
            B = Prog(); self.into(B, f); F += B.lines
            if o.get("verbose"): print("filler length", len(F) - len(B.lines), len(F))
        def die_tell():
            P(f"s_getreg_b32 s16, hwreg(HW_REG_XCC_ID, 0, 4)\ns_lshl_b32 s{sT5}, s{sRT}, 7\ns_add_u32 s{sT2}, s{sT5}, {WS_XF:#x}\ns_lshl2_add_u32 s{sT5}, s{sP}, s{sT2}")
            P(f"s_add_u32 s16, s16, s{sNONCE}\ns_mov_b32 s17, s16\ns_atomic_swap s17, s[18:19], s{sT5}")
        def die_ask(): P(f"s_load_dwordx8 s[20:27], s[18:19], s{sT2} glc")
        def die_check():
            Lx = P.label("xm")
            P(f"s_mov_b32 s{sT5}, {SPIN}\n{Lx}:\ns_waitcnt lgkmcnt(0)")
            for k in range(4): P(f"s_cmp_lg_u64 {sr(20+2*k,2)}, s[16:17]\ns_cbranch_scc1 {Lx}_n")
            P(f"v_mov_b32 v21, {1 if o['olocal'] else 0}\n{Lx}_e:\nds_write_b32 v{vFL}, v21 offset:12\ns_waitcnt lgkmcnt(0)")
            T(f"{Lx}_n:\ns_sub_u32 s20, s20, s6")
            for k in range(1, 8): T(f"s_sub_u32 s{20+k}, s{20+k}, s6\ns_max_u32 s20, s20, s{20+k}")
            T(f"s_cmp_lt_u32 s20, 16\ns_cbranch_scc1 {Lx}_s\ns_load_dwordx8 s[20:27], s[18:19], s{sT2} glc\ns_sub_u32 s{sT5}, s{sT5}, 1\ns_cbranch_scc0 {Lx}\n{Lx}_s:\nv_mov_b32 v21, 0\ns_branch {Lx}_e")
        p7state = {}
        def run(sched, extra={}):
            for tok in sched.split():
                if tok in extra: extra[tok]()
                elif tok[0] in "KVQAXO" and tok[1:].isdigit(): ld(tok[0], int(tok[1:]))
                elif tok[0] == "f" and tok != "fs": fill(len(F) if tok == "f*" else int(tok[1:]))
                elif tok[0] == "w": vm.wait((tok[1], int(tok[2:])))
                elif tok[0] == "b": bar(tok[1:], (tok[1], int(tok[2:])) if tok[1] != "S" else None)
                elif tok == "nonce": P(f"s_waitcnt lgkmcnt(0)\n{NONCE}")
                elif tok == "lg0": lgx.all()
                elif tok == "FM": fm_read()
                elif tok == "kp1": only(f"s_cmp_eq_u32 s{sU}, 1", self.inbox_issue)
                elif tok == "kw1": only(f"s_cmp_eq_u32 s{sU}, 1", self.inbox_wait); self.stamp("kw")
                elif tok[0] == "k" and tok[1:].isdigit(): k_ld(int(tok[1:]))
                elif tok == "kf": sflag(["s[18:19]"], False)
                elif tok == "vf": sflag(["s[4:5]"], False)
                elif tok == "ef": sflag(["s[18:19]", "s[4:5]"], True)
                elif tok == "tf": t_flag()
                elif tok == "tst": t_store()
                elif tok == "a1": a1(o["ina1"])
                elif tok == "a17": a1(o["ina7"])
                elif tok == "lva": lva()
                elif tok == "lvb": lvb()
                elif tok == "lvc": lvc()
                elif tok == "lvw": lvw()
                elif tok[0] == "g": fill2(len(G) if tok == "g*" else int(tok[1:]))
                elif tok[:2] == "p:": P(f"s_setprio {tok[2:]}")
                elif tok == "one": ones()
                elif tok[:2] == "st":
                    if o["otp"] == 9:
                        a_, b_ = map(int, tok[2:].split("-"))
                        if a_ == 0:
                            P(f"s_lshl1_add_u32 s{sT5}, s{sRT}, s{sR}\ns_mul_i32 s{sT5}, s{sT5}, 28672\ns_lshl1_add_u32 s{sOB}, s{sP}, s{sCI}\ns_mul_i32 s{sOB}, s{sOB}, 1792\ns_add_u32 s{sOB}, s{sOB}, s{sT5}\ns_add_u32 s{sOB}, s{sOB}, {WS_O:#x}")
                        for k in range(a_, min(b_, 28)): P(f"s_load_dword s1, s[18:19], s{sOB} offset:{64*k}")
                        if b_ > 28: P(f"s_lshl1_add_u32 s{sT5}, s{sRT}, s{sR}\ns_lshl_b32 s{sT5}, s{sT5}, 6\ns_load_dword s1, s[18:19], s{sT5} offset:{WS_OF}")
                elif tok == "hop":
                    if o["hops"] & 1:
                        for k, ch in enumerate(self.HOPS[:-1]): P(f"s_cmp_eq_u32 s{sU}, {k}\ns_cbranch_scc1 L_pad_{ch[0]}")
                        P(f"s_branch L_pad_{self.HOPS[-1][0]}\nL_hopret:")
                elif tok == "tl":
                    if o["touch"] & 2:
                        P(f"s_lshl_b32 s3, s2, 7\ns_add_u32 s7, s{sU}, 1\ns_lshl_b32 s7, s7, 21\ns_add_u32 s7, s7, s3\ns_load_dword s1, s[18:19], s7 glc")
                        P(f"s_lshl_b32 s7, s{sR}, 21\ns_lshl_b32 s{sT5}, s{sCI}, 15\ns_add_u32 s7, s7, s{sT5}\ns_add_u32 s7, s7, s3\ns_load_dword s1, {sr(sOUT,2)}, s7 glc")
                    if o["touch"] & 8:
                        P(f"s_lshl3_add_u32 s3, s{sRT}, s{sP}\ns_lshl_b32 s3, s3, 7\ns_lshl_b32 s7, s{sU}, 15\ns_add_u32 s3, s3, s7\ns_add_u32 s3, s3, {WS_KF:#x}\ns_load_dword s1, s[18:19], s3 glc")
                elif tok == "xt": only(f"s_cmp_eq_u32 s{sU}, 0", die_tell)
                elif tok == "xa": only(f"s_cmp_eq_u32 s{sU}, 3", die_ask)
                elif tok == "xc": only(f"s_cmp_eq_u32 s{sU}, 3", die_check)
                elif tok == "p7":
                    P(f"s_cmp_eq_u32 s{sP}, 7\ns_cbranch_scc1 L_p7")
                    p7state.update(fi=fi, q=list(vm.q))
                elif tok == "join": P("L_p7join:")
                elif tok == "p7b":
                    P(f"s_cmp_eq_u32 s{sP}, 7\ns_cbranch_scc1 L_p7b")
                    p7state.update(q2=list(vm.q), l2=list(lgx.q))
                elif tok == "join2": P("L_p7join2:")
                elif tok == "vp3": only(f"s_cmp_eq_u32 s{sU}, 3", self.inbox_issue)
                elif tok == "page": P("@JUMPALIGN g2p1"); self.pad("g2p1"); P("L_ja_g2p1:")
                else: raise ValueError(tok)
        run(o["sched"])
        n1 = o["wo1"]; WF = 144
        def wo_frag(q0, q1):
            for ks in range(4*q0, 4*q1):
                for t in range(2):
                    P(f"ds_read_b64_tr_b16 {vr(WF+4*ks+2*t,2)}, v{vTR} offset:{ks*2048 + t*512}")
        P(f"s_cmp_eq_u32 s{sU}, 2\ns_cbranch_scc1 L_roleT\ns_cmp_eq_u32 s{sU}, 0\ns_cbranch_scc1 L_roleX\ns_cmp_eq_u32 s{sU}, 1")
        P("s_cbranch_scc1 " + ("L_pad_g1p2" if o["hops"] & 2 else "L_rolesdone"))
        iV = len(P.lines)
        for n in range(5): P(f"s_add_u32 s{sGB[n]}, s{sGB[n]}, {WS_V - WS_K:#x}")
        P(f"v_add_u32 v{vKB}, 3584, v{vD0}\ns_nop 0")
        if o["otp"] == 20:
            P(f"s_mul_i32 s3, s{sRT}, {2*28672}\ns_mul_i32 s7, s{sP}, 3584\ns_add_u32 s3, s3, s7\ns_add_u32 s3, s3, {WS_O:#x}\nv_cmp_gt_u32 vcc, 28, v0\nv_lshl_add_u32 v30, v0, 7, s3")
            P(f"v_add_u32 v31, {28672 - 3584}, v30\ns_lshl_b32 s7, s{sRT}, 7\nv_cndmask_b32 v30, v31, v30, vcc\nv_cmp_gt_u32 vcc, 56, v0\ns_add_u32 s7, s7, {WS_OF:#x}\nv_mov_b32 v31, s7\nv_cndmask_b32 v30, v31, v30, vcc")
        TV = o.get("tv")
        def t_prep():
            P(f"v_lshrrev_b32 v18, 3, v0\nv_lshlrev_b32 v18, 7, v18\nv_and_b32 v19, 7, v0\nv_lshl_add_u32 v18, v19, 2, v18\ns_mov_b32 s{sT1}, {WS_TF:#x}")
        def t_prep2():
            P(f"s_lshr_b32 s3, s{sP}, 1\ns_and_b32 s7, s{sP}, 1\nv_lshl_add_u32 v18, s3, 10, v18\nv_lshl_add_u32 v19, s7, 10, v18")
            P(f"s_mul_i32 s{sT0}, s{sRT}, {TST}\ns_lshl_b32 s3, s{sP}, 13\ns_add_u32 s{sT0}, s{sT0}, s3\ns_add_u32 s{sT0}, s{sT0}, {WS_T:#x}")
        def t_ld(q0, q1):
            for q in range(q0, q1):
                P(f"s_mov_b32 m0, {L_TT + q*4096}" + (f"\ns_add_u32 s{sT0}, s{sT0}, 4096" if q else ""))
                for z in range(4): P(f"buffer_load_dwordx4 v{vD0}, {sr(sWS,4)}, s{sT0} offen offset:{1024*z} sc1 lds"); vm.add(("t", 1))
        if TV is not None:
            t_prep(); t_prep2()
            P(f"s_cmp_eq_u32 s{sP}, 7\ns_cselect_b32 s{sT1}, s{sWS+2}, s{sT1}")
        P(f"s_mov_b32 exec_hi, 0x00ffffff")
        gate = o.get("vgate", 2)
        if not gate: self.inbox_wait()
        else: P(f"s_mov_b32 s{sT5}, {SPIN}\ns_mov_b32 s7, s{sNONCE}\ns_waitcnt lgkmcnt(0)")
        CP = [68, 62, 60, 50, 48]
        def copy_reissue(n):
            for m in range(n + 1): P(f"s_mov_b64 {sr(CP[m],2)}, {sr(28-2*m,2)}")
            self.inbox_issue()
        if gate == 2: copy_reissue(4)
        for n in (4, 3, 2, 1, 0):
            if gate == 2:
                L = P.label("vg")
                P(f"s_cmp_eq_u64 {sr(CP[n],2)}, s[6:7]\ns_cbranch_scc1 {L}_d\n{L}:\ns_waitcnt lgkmcnt(0)")
                copy_reissue(n)
                P(f"s_sub_u32 s{sT5}, s{sT5}, 1\ns_max_i32 s{sT5}, s{sT5}, 0\ns_cbranch_scc0 {L}_d\ns_cmp_lg_u64 {sr(CP[n],2)}, s[6:7]\ns_cbranch_scc1 {L}\n{L}_d:")
            elif gate:
                L = P.label("vg")
                P(f"s_cmp_eq_u64 {sr(28-2*n,2)}, s[6:7]\ns_cbranch_scc1 {L}_d\n{L}:")
                self.inbox_issue()
                P(f"s_sub_u32 s{sT5}, s{sT5}, 1\ns_max_i32 s{sT5}, s{sT5}, 0\ns_waitcnt lgkmcnt(0)\ns_cbranch_scc0 {L}_d\ns_cmp_lg_u64 {sr(28-2*n,2)}, s[6:7]\ns_cbranch_scc1 {L}\n{L}_d:")
            if n == 4: self.stamp("r1")
            if n == 0: self.stamp("r0")
            for z in range(8):
                P(f"s_mov_b32 m0, {L_VT + n*8192}" if z == 0 else f"s_addk_i32 m0, {4096 - 384 if z == 4 else 128}")
                P(f"buffer_load_dwordx4 v{vKB if z >> 2 else vD0}, {sr(sWS,4)}, s{sGB[n]} offen offset:{896*(z&3)} sc1 lds"); vm.add(("v", n))
            if n == TV:
                P("s_mov_b32 exec_hi, -1")
                for k in range(2): P(f"buffer_load_dword v{20+k}, v{18+k}, {sr(sWS,4)}, s{sT1} offen sc1"); vm.add(("v", n))
                P("s_mov_b32 exec_hi, 0x00ffffff")
        P(f"s_mov_b64 exec, -1")
        if o["otp"] == 20: P(f"buffer_load_dword v22, v30, {sr(sWS,4)}, 0 offen sc1"); vm.add(("t", 0))
        NV = len(o["vbars"]); olate = o.get("olate", {})
        for k, n in enumerate(o["vbars"]):
            vm.wait(("v", n)); self.stamp("r2" if k == 0 else ("r3" if n == 0 else "-")); P("s_barrier")
            run(olate.get(k, ""))
            if TV is not None:
                if n == TV:
                    P(f"v_cmp_ne_u32 vcc, s{sNONCE}, v20\nv_cmp_ne_u32 s[48:49], s{sNONCE}, v21\ns_nop 0\ns_or_b64 vcc, vcc, s[48:49]\ns_cbranch_scc1 L_tlate")
                    late = (k, list(vm.q)); t_ld(0, 2)
                if n == TV - 1: t_ld(2, 4)
        P("s_branch L_a2")
        P("@ALIGN")
        if TV is not None:
            P("L_tlate:"); vm.q = late[1]
            for n in o["vbars"][late[0] + 1:]: vm.wait(("v", n)); P("s_barrier")
            P(f"s_cmp_eq_u32 s{sP}, 7\ns_cbranch_scc1 L_g2end")
            self.poll([(18, 0), (19, 0)], 20, sT1)
            t_ld(0, 4)
            P("s_branch L_a2")
        self.pad("roleT"); P("L_roleT:"); vm.q = []
        P(f"v_lshrrev_b32 v18, 3, v0\nv_lshlrev_b32 v18, 7, v18\nv_and_b32 v19, 7, v0\nv_lshl_add_u32 v18, v19, 2, v18\ns_mov_b32 s{sT1}, {WS_TF:#x}")
        P(f"s_cmp_eq_u32 s{sP}, 7\ns_cbranch_scc1 L_epoch")
        if TV is not None: P("s_branch L_rolesdone")
        i_t = len(P.lines)
        P(f"s_lshr_b32 s3, s{sP}, 1\ns_and_b32 s7, s{sP}, 1\nv_lshl_add_u32 v18, s3, 10, v18\nv_lshl_add_u32 v19, s7, 10, v18")
        P(f"s_mul_i32 s{sT0}, s{sRT}, {TST}\ns_lshl_b32 s3, s{sP}, 13\ns_add_u32 s{sT0}, s{sT0}, s3\ns_add_u32 s{sT0}, s{sT0}, {WS_T:#x}")
        P("s_waitcnt vmcnt(0) lgkmcnt(0)" if o.get("tdelay", 0) else "s_waitcnt lgkmcnt(0)")
        self.poll([(18, 0), (19, 0)], 20, sT1)
        self.stamp("r1")
        P("s_barrier")
        tq = [(q, z) for q in range(4) for z in range(4)]; per = o.get("tper", 8)
        for k in range(NV):
            for q, z in tq[k*per:(k+1)*per]:
                if z == 0: P(f"s_mov_b32 m0, {L_TT + q*4096}" + (f"\ns_add_u32 s{sT0}, s{sT0}, 4096" if q else ""))
                P(f"buffer_load_dwordx4 v{vD0}, {sr(sWS,4)}, s{sT0} offen offset:{1024*z} sc1 lds")
            run(olate.get(k, ""))
            if k < NV - 1: P("s_barrier")
        P("s_branch L_a2")
        if TV is not None: P.lines = P.lines[:i_t]
        P("L_roleX:\ns_waitcnt lgkmcnt(0)"); die_ask(); die_check()
        if TV is not None:
            iA = P.lines.index("@ALIGN"); iT = P.lines.index("L_roleT:"); npad = 2 if o["hops"] & 1 else 0
            T.extend(P.lines[iA+1:iT-npad])
            P.lines = P.lines[:iV] + ["s_branch L_roleV"] + P.lines[iT:] + ["s_branch L_rolesdone", "@ALIGN"] + P.lines[iT-npad:iT] + ["L_roleV:"] + P.lines[iV:iA]
        P(f"L_rolesdone:\ns_waitcnt vmcnt(0) lgkmcnt(0)")
        self.stamp("roled")
        for k in range(NV): P("s_barrier"); run(olate.get(k, ""))
        P("L_a2:\ns_setprio 0")
        P(f"s_cmp_eq_u32 s{sP}, 7\ns_cbranch_scc1 L_g2end")
        E = Prog(); E._lab = 800; self.P = E
        E(f"L_epoch:\ns_waitcnt lgkmcnt(0)\n" + "s_barrier\n" * NV + f"s_cmp_lg_u32 s{sRT}, 31\ns_cbranch_scc1 L_g2end")
        self.poll([(18, 0), (18, 1024), (18, 2048), (18, 3072)], 20, sT1)
        E(f"s_atomic_swap s{sNONCE}, s[18:19], {WS_E}\ns_branch L_g2end")
        self.P = P; T.extend(E.lines)
        lg = Cnt(P, "lgkmcnt", 15)
        def tread(s):
            for t in range(2):
                o0 = 8*(s & 3) + 2*t
                P(f"ds_read2st64_b32 {vr(32+4*s+2*t,2)}, v{vTA+(s>>2)} offset0:{o0} offset1:{o0+1}"); lg.add(s)
        P("; 64-point DFT step (output columns 0..447)")
        for k in range(8): P(f"ds_read_b128 {vr(M2+4*k,4)}, v134 offset:{1024*k}")
        nf = o.get("nf", 2)
        wo_frag(0, nf)
        P(f"s_mul_i32 s3, s{sR}, 0x80008000\ns_waitcnt lgkmcnt(0)")
        for k in range(16): P(f"v_xor_b32 v{M2+16+k}, s3, v{M2+16+k}")
        P("s_waitcnt vmcnt(0)\ns_barrier")
        self.stamp("bw")
        for s in range(6): tread(s)
        for s in range(8):
            lg.wait(s); P(MF32(64, 32 + 4*s, M2 + 4*s, 64 if s else "0"))
            if s < 2: tread(s + 6)
            if s == o.get("ba"): P("s_barrier")
        AO = 112
        for h in range(2):
            for i in range(4): P(f"v_cvt_pk_bf16_f32 v{24+4*h+i}, v{64+8*h+2*i}, v{64+8*h+2*i+1}")
            P(f"ds_write_b128 v{vWR+h}, {vr(24+4*h,4)}")
        if not o["g1a"]: P(f"ds_read_b128 {vr(AO,4)}, v{vRD}\nds_read_b128 {vr(AO+4,4)}, v{vRD} offset:1024")
        wo_frag(nf, 7)
        self.stamp("a2")
        P("s_setprio 2\ns_waitcnt lgkmcnt(0)")
        lg = Cnt(P, "lgkmcnt", 15)
        oa = LdsAddr(P, vOR)
        OF = 32
        nm = 0
        def omf():
            nonlocal nm
            q, s = nm >> 2, nm & 3
            lg.wait((q, s))
            P(MF32(64, WF + 4*nm, OF + 16*(q & 1) + 4*s, "0" if nm == 0 else 64)); nm += 1
        for q in range(7):
            P("s_barrier"); self.stamp(f"bo{q}")
            for s in range(4):
                if nm < 4 * q: omf()
                for t in range(2):
                    off = oa.off(L_O(q) + (4*s + t) * 256)
                    P(f"ds_read_b64 {vr(OF + 16*(q&1) + 4*s + 2*t, 2)}, v{vOR} offset:{off}"); lg.add((q, s))
            while nm < 4 * q + 4 - o.get("lago", 3): omf()
            if q - o.get("aout", 3) in (0, 1) and not o["g1a"]:
                h = q - o.get("aout", 3)
                P(f"buffer_store_dwordx4 {vr(AO+4*h,4)}, v{(vA0, vA1)[h]}, {sr(sOUT,4)}, s{sAB} offen {o['outmod']}")
        while nm < 28: omf()
        self.out_epilogue(64, 24, vWR, vRD, vG0, vG1, f"s{sOB}", o["outmod"])
        self.stamp("fin")
        P(f"L_g2end:")
        self.stamp_out()
        P("s_endpgm")
        P("L_p7:")
        fi = p7state["fi"]; vm.q = p7state["q"]; nbar = 99; lgx.q = []
        run(o["sched7"])
        P("s_branch L_p7join\nL_p7b:")
        vm.q = p7state["q2"]; lgx.q = p7state["l2"]; gi = 0
        run(o["sched7b"])
        P("s_branch L_p7join2")

    def g1(self):
        P = self.P; o = self.o; T = self.tail
        vXA, vWK, vWV, vWQ, vKS, vVS, vZ, vDA, vKR, vVR, vOS, vOP, vNON, vFL, vL, vH = 1, 5, 6, 7, 8, 10, 11, 13, 14, 15, 16, 17, 18, 19, 12, 20
        vSA, vSB = 22, 23
        QF, FM = 24, 32
        AK, AV, AQ, CD, WF, XF = 48, 64, 80, 96, 112, 144
        sG, sKO, sVO, sMODE, sFB, sOFo, sOO = sSW, sSW + 1, sSW + 2, sSW + 3, sSW + 4, sSW + 5, sSW + 6
        c = math.log2(math.e) / math.sqrt(28)
        P("L_g1:")
        self.stamp("G.in")
        P(f"s_waitcnt lgkmcnt(0)\ns_load_dword s{sNONCE}, s[18:19], {WS_E}")
        PF = Prog()
        GQ = o.get("g1q", 0); sRO = 64
        if GQ: P(f"s_sub_u32 s10, s{sT0}, 7\ns_cselect_b32 s{sRO}, s{sT0}, s10")
        if not o.get("early", 0): self.g1_first()
        if o["touch"] & 1:
            Lt = P.label("tch")
            srd(P, sOUT, 14, 2048*1792)
            P(f"s_cmp_lg_u32 s{sU}, 0\ns_cbranch_scc1 {Lt}\nv_lshlrev_b32 v40, 21, v0\nv_add_u32 v41, 0x800, v40\ns_mov_b64 exec, {(1 << NPAGE) - 1}")
            P(f"buffer_load_dword v47, v41, {sr(sWS,4)}, 0 offen\nbuffer_load_dword v47, v40, {sr(sXA,4)}, 0 offen")
            if o["touch"] & 4:
                P(f"s_mul_i32 s7, s{sRT}, 1792\nv_mul_u32_u24 v40, {1024*1792 + 512*1792}, v0\nbuffer_load_dword v47, v40, {sr(sOUT,4)}, s7 offen")
            P(f"s_mov_b64 exec, -1\n{Lt}:")
        P(f"v_and_b32 v{vL}, 31, v0\nv_lshrrev_b32 v{vH}, 5, v0\nv_bfe_u32 v42, v0, 1, 3\nv_xor_b32 v42, v42, v{vH}")
        P(f"s_lshl_b32 s3, s{sR}, 12\nv_lshl_add_u32 v43, v{vL}, 7, s3\nv_lshl_add_u32 v{vXA}, v42, 4, v43")
        for s in range(1, 4): P(f"v_xor_b32 v{vXA+s}, {32*s}, v{vXA}")
        P(f"s_lshl_b32 s{sT0}, s{sCI}, 6")
        self.tr_addr(vWK, 42, 43, True, sT0)
        P(f"s_add_u32 s{sT0}, s{sT0}, {L_WV(0)}")
        self.tr_addr(vWV, 42, 43, False, sT0)
        P(f"s_lshl1_add_u32 s{sG}, s{sRT}, s{sR}")
        P(f"s_lshl1_add_u32 s3, s{sP}, s{sCI}\ns_mov_b32 s7, {PAIR - 7*512}\nv_lshl_add_u32 v42, s3, 2, v{vH}")
        for s in range(2):
            P(f"v_mul_u32_u24 v43, 37, v42\nv_lshrrev_b32 v43, 8, v43\nv_mul_lo_u32 v43, v43, s7\nv_lshl_add_u32 v43, v42, 9, v43\nv_lshl_add_u32 v{vKS+s}, v{vL}, 4, v43")
            if s == 0: P("v_add_u32 v42, 2, v42")
        P(f"s_mul_i32 s3, s{sG}, 3584\ns_add_u32 s{sKO}, s3, {WS_K:#x}\ns_add_u32 s{sVO}, s3, {WS_V:#x}")
        P(f"v_mov_b32 v{vZ}, 0\nv_mov_b32 v{vFL}, {L_FLAG}")
        self.stamp("G.set")
        lg = Cnt(P, "lgkmcnt", 15)
        xa = [LdsAddr(P, vXA + s) for s in range(4)]
        wa = {"K": LdsAddr(P, vWK), "V": LdsAddr(P, vWV, L_WV(0)), "Q": LdsAddr(P, vWQ, L_WQ(0))}
        wl = {"K": L_WK, "V": L_WV, "Q": L_WQ}
        acc = {"K": AK, "V": AV, "Q": AQ}
        def pack(a, half):
            for i in range(4): P(f"v_cvt_pk_bf16_f32 v{QF+4*half+i}, v{a+8*half+2*i}, v{a+8*half+2*i+1}")
        def proj(items, pre={}, lagn={}, post={}, mid={}):
            nm = 0
            def mf():
                nonlocal nm
                i, s = nm >> 2, nm & 3; kind, q, _ = items[i]
                lg.wait((i, s))
                w, x, a = WF + 16*(i & 1) + 4*s, XF + 16*q + 4*s, acc[kind]
                cc = "0" if (q == 0 and s == 0) else a
                P(MF32(a, x, w, cc) if kind == "V" else MF32(a, w, x, cc)); nm += 1
            for i, (kind, q, br) in enumerate(items):
                if i in pre: pre[i]()
                if br: P("s_barrier"); self.stamp(f"G.b{kind}{q}")
                for s in range(4):
                    if nm < 4 * i: mf()
                    if kind == "K":
                        off = xa[s].off(L_X(q))
                        P(f"ds_read_b128 {vr(XF + 16*q + 4*s, 4)}, v{vXA+s} offset:{off}"); lg.add((i, s))
                    for t in range(2):
                        off = wa[kind].off(wl[kind](q) + s*2048 + t*512)
                        P(f"ds_read_b64_tr_b16 {vr(WF + 16*(i&1) + 4*s + 2*t, 2)}, v{wa[kind].reg} offset:{off}"); lg.add((i, s))
                    if (i, s) in mid: mid[(i, s)]()
                while nm < 4 * i + 4 - lagn.get(i, 4): mf()
                if i in post: post[i]()
            while nm < 4 * len(items): mf()
        D = Prog()
        vE, vB, vA, vC, vS = 1, 2, 3, 80, 84
        D2 = Prog()
        D2(f"v_lshl_add_u32 v{vA}, v{vL}, 5, s{sRT}\nv_cvt_f32_u32 v{vA}, v{vA}\nv_mul_f32 v{vE}, {fl(1/2048)}, v{vA}")
        D2(f"v_lshl_add_u32 v{vA}, s{sU}, 1, v{vH}\nv_lshlrev_b32 v{vA}, 3, v{vA}\nv_cvt_f32_u32 v{vA}, v{vA}\nv_mul_f32 v{vB}, v{vE}, v{vA}")
        for par in range(2):
            for jj in range(4): D2(f"v_fmamk_f32 v{vS+jj}, v{vE}, {fl(2*jj + par)}, v{vB}")
            for jj in range(4): D2(f"v_cos_f32 v{vC+jj}, v{vS+jj}")
            for jj in range(4): D2(f"v_sin_f32 v{vS+jj}, v{vS+jj}")
            for jj in range(4): D2(f"v_cvt_pk_bf16_f32 v{88+4*par+jj}, v{vC+jj}, -v{vS+jj}")
        MG = D2; D2 = Prog()
        MG(f"s_add_u32 s3, s{sT4}, {L_M}\nv_lshl_add_u32 v46, v0, 4, s3\nds_write_b128 v46, v[88:91]\nds_write_b128 v46, v[92:95] offset:4096")
        keep = P; P = D2; self.P = D2
        P(f"s_mul_i32 s{sT0}, s{sCI}, 48\ns_add_u32 s{sT0}, s{sT0}, {L_WQ(0)}")
        self.tr_addr(vWQ, 42, 43, True, sT0)
        P(f"s_lshl_b32 s3, s{sRT}, 7\nv_lshl_add_u32 v{vOP}, v{vL}, 2, s3")
        P(f"v_lshlrev_b32 v42, 2, v{vH}\nv_sub_u32 v21, v{vL}, v42\ns_mov_b32 s11, {fl(c)}")
        D3 = Prog(); P = D3; self.P = D3
        P(f"s_mov_b32 s3, 0x0b0b0909")
        for k in range(8):
            k0 = 8 * (k >> 1) + 2 * (k & 1)
            P(f"v_subrev_u32 v42, {k0}, v21\nv_subrev_u32 v43, {k0+1}, v21\nv_perm_b32 v{FM+k}, v43, v42, s3")
        P(f"s_mul_i32 s3, s{sR}, 3584\ns_mul_i32 s7, s{sCI}, 1536\ns_add_u32 s3, s3, s7\ns_add_u32 s3, s3, {L_KT}\nv_lshl_add_u32 v{vKR}, v0, 4, s3")
        P(f"v_cmp_gt_u32 vcc, 28, v{vL}\ns_mul_i32 s3, s{sCI}, 28\nv_add_u32 v42, s3, v{vL}\ns_lshl_b32 s7, s{sCI}, 2\ns_sub_u32 s7, 60, s7\nv_mov_b32 v43, s7")
        P(f"v_cndmask_b32 v42, v43, v42, vcc\ns_lshl_b32 s3, s{sR}, 12\nv_lshl_add_u32 v42, v42, 4, s3\nv_lshl_add_u32 v{vVR}, v{vH}, 10, v42")
        P(f"v_cmp_gt_u32 vcc, s{sCI}, v{vH}\nv_cmp_lt_u32 s[26:27], s{sCI}, v{vH}\nv_lshlrev_b32 v42, 3, v{vL}\nv_lshl_add_u32 v{vOS}, v{vH}, 8, v42\nv_mov_b32 v42, {fl(c)}")
        P(f"v_cndmask_b32 v{vSA}, v42, v{vZ}, vcc\nv_cndmask_b32 v{vSB}, v42, v{vZ}, s[26:27]")
        P = D; self.P = D
        P(f"s_lshl1_add_u32 s3, s{sP}, s{sCI}\nv_lshl_add_u32 v42, s3, 5, v{vL}\nv_mul_u32_u24 v43, 1171, v42\nv_lshrrev_b32 v43, 16, v43\ns_mov_b32 s7, {PAIR - 896}")
        P(f"v_mul_lo_u32 v43, v43, s7\nv_lshl_add_u32 v43, v42, 4, v43\nv_mul_u32_u24 v42, 896, v{vH}\nv_add_u32 v{vVS}, v42, v43")
        P(f"s_mul_i32 s3, s3, 1792\ns_mul_i32 s7, s{sG}, 28672\ns_add_u32 s3, s3, s7\ns_add_u32 s{sOO}, s3, {WS_O:#x}")
        P(f"s_lshl3_add_u32 s3, s{sRT}, s{sP}\ns_lshl2_add_u32 s3, s3, s{sU}\ns_lshl_b32 s3, s3, 2\ns_add_u32 s{sOFo}, s3, {WS_OF:#x}\ns_mov_b32 s{sFB}, 0")
        P(f"v_cmp_gt_u32 vcc, 14, v0\nv_lshl_add_u32 v42, v0, 7, s{sOO}\nv_mov_b32 v43, s{sOFo}\nv_cndmask_b32 v45, v43, v42, vcc")
        P = keep; self.P = keep
        if GQ:
            D3(f"v_lshrrev_b32 v42, 3, v0\nv_lshl_add_u32 v42, s{sU}, 3, v42\nv_mul_u32_u24 v42, 2688, v42\nv_lshrrev_b32 v43, 2, v0\nv_and_b32 v43, 4, v43\nv_xor_b32 v43, v43, v0")
            D3(f"v_and_b32 v43, 7, v43\nv_min_u32 v43, 6, v43\ns_mul_i32 s3, s{sP}, 112\nv_lshl_add_u32 v42, v43, 4, v42\nv_add_u32 v40, s3, v42\nv_add_u32 v41, {32*2688}, v40")
        D.extend(D2.lines); D.extend(D3.lines)
        n0 = o["g1f0"]
        P.extend(D.lines[:n0])
        if o["otp"] == -1: P(f"buffer_load_dword v47, v45, {sr(sWS,4)}, 0 offen sc1")
        P(f"s_cmp_eq_u32 s{sP}, 7\ns_cbranch_scc1 L_x7\ns_setprio 1")
        self.stamp("G.set2")
        OT = f"buffer_load_dword v47, v45, {sr(sWS,4)}, 0 offen sc1"; otp = o.get("otp", 6)
        B7 = Prog(); B7._lab = 600
        B7("L_x7:"); B7.extend(D.lines[n0:]); B7.extend([l.replace("s11", "s9") for l in PF.lines]); B7("s_barrier")
        xa7 = [LdsAddr(B7, vXA + s) for s in range(4)]
        for q in range(7):
            for s in range(4):
                off = xa7[s].off(L_X(q))
                B7(f"ds_read_b128 {vr(XF + 16*q + 4*s, 4)}, v{vXA+s} offset:{off}")
        B7(f"s_barrier\n{OT if 0 <= otp < 7 or otp >= 30 else ''}\ns_waitcnt lgkmcnt(0)\ns_branch L_s0")
        T.extend(B7.lines)
        cuts = o["g1cuts"]
        di = n0
        def slot(i):
            nonlocal di
            n = cuts.get(i, 0) if i < max(cuts) else 999
            P.extend(D.lines[di:di + n]); di += n
        P("; K projection")
        proj([("K", q, True) for q in range(7)], lagn=o.get("lagk", {4: 2, 5: 0}), post={i: (lambda i=i: slot(i)) for i in range(7)}, mid={(otp, 1): lambda: P(OT)})
        for h in range(2):
            pack(AK, h)
            P(f"buffer_store_dwordx4 {vr(QF+4*h,4)}, v{vKS+h}, {sr(sWS,4)}, s{sKO} offen sc1")
        self.stamp("G.kst")
        P("L_s0:\ns_barrier\ns_setprio 0")
        if otp == 7: P(OT)
        vmq = Cnt(P, "vmcnt", 63)
        def qld(q):
            P(f"s_add_u32 s3, s{sRO}, {q}\ns_sub_u32 s7, s3, 7\ns_min_u32 s3, s3, s7\ns_add_u32 m0, s{sT4}, {L_WQ(q)}\ns_mul_i32 s3, s3, {64*2688}")
            P(f"buffer_load_dwordx4 v40, {sr(sWKV,4)}, s3 offen lds\ns_addk_i32 m0, 4096\nbuffer_load_dwordx4 v41, {sr(sWKV,4)}, s3 offen lds"); vmq.add(q); vmq.add(q)
        if GQ: qld(2)
        P.extend(MG.lines)
        if o["g1a"]:
            P(f"v_lshrrev_b32 v8, 2, v0\nv_lshrrev_b32 v9, 3, v0\nv_xor_b32 v9, v9, v0\nv_and_b32 v9, 3, v9\nv_lshlrev_b32 v9, 4, v9\ns_cmp_eq_u32 s{sCI}, 1\ns_cselect_b64 vcc, -1, 0")
            self.a_addr(4, 5, 8, 9, 42, 10)
            P(f"s_lshl1_add_u32 s3, s{sT4}, {L_OUT}\nv_lshl_add_u32 v3, v0, 4, s3")
            srd(P, sOUT, 14, 2048*1792)
        P(f"v_lshrrev_b32 v42, 2, v{vL}\nv_cmp_ne_u32 s[62:63], s{sP}, v42")
        P(f"{NONCE}\nv_mov_b32 v{vNON}, s{sNONCE}")
        S = lambda n: AV if n == 0 else (AK if n == 8 else XF + 16 * (n - 1))
        def mask(E, dst, far):
            E(f"v_cvt_f32_i32 v42, v21\nv_mul_f32 v42, {fl(-BIG if far else BIG)}, v42")
            for i in range(16):
                k = 8*(i >> 2) + (i & 3)
                E(f"v_add_f32 v{dst+i}, {fl((k-1)*BIG if far else -k*BIG)}, v42")
            for i in range(16): E(f"v_min_f32 v{dst+i}, 0, v{dst+i}")
        mask(P, S(8), False)
        P(f"s_mov_b32 s{sT0}, {WS_OF:#x}\ns_lshl1_add_u32 s3, s{sRT}, s{sCI}\ns_mul_i32 s{sT1}, s3, 28672\ns_lshl_b32 s3, s{sR}, 11\ns_add_u32 s{sT1}, s{sT1}, s3\ns_add_u32 s{sT1}, s{sT1}, {WS_O:#x}")
        P(f"s_lshl_b32 s{sT2}, s{sT4}, 1\nv_lshlrev_b32 v{vDA}, 4, v0\ns_waitcnt lgkmcnt(0)\ns_setprio 1")
        P("L_g1page:"); self.pad("g1p1", True)
        if GQ:
            for q in range(3, 2 + GQ): qld(q)
        self.stamp("G.i1")
        if "bS4" in o["ina1"]: P("s_barrier")
        items = [(t[0], int(t[1]), t.endswith("b")) for t in o["items"].split()]
        QE = []
        for i in range(8):
            sc = f"v{vSA}" if i < 2 else (f"v{vSB}" if i >= 6 else "s11")
            QE.append(f"v_mul_f32 v{AQ+2*i}, {sc}, v{AQ+2*i}\nv_mul_f32 v{AQ+2*i+1}, {sc}, v{AQ+2*i+1}\nv_cvt_pk_bf16_f32 v{QF+i}, v{AQ+2*i}, v{AQ+2*i+1}")
        def q7():
            P(f"s_cmp_eq_u32 s{sP}, 7\ns_cbranch_scc1 L_q7")
            T("L_q7:\ns_waitcnt lgkmcnt(0)")
            for s in range(4): T(MF32(AQ, WF + 4*s, XF + 96 + 4*s, AQ))
            T("s_barrier")
            for t in QE: T(t)
            T("s_branch L_vdone")
        pre = {o["kack"]: lambda: (self.stamp("G.ka0"), P("s_waitcnt vmcnt(0)"), self.stamp("G.ka1"))}
        if GQ:
            nb_ = [i for i in range(14) if items[i][2]]
            pre = {a_: (lambda m=min(b_ - 1, 1 + GQ): vmq.wait(m)) for a_, b_ in zip(nb_, nb_[1:]) if a_ <= 1 + GQ}
            assert nb_[1] > 2
        proj(items, pre=pre, lagn=o.get("lagqv", {1: 0}), post={6: q7},
             mid={**{(9 + (k >> 2), k & 3): (lambda k=k: P(QE[k])) for k in range(8)}, (otp - 30, 1): lambda: P(OT)})
        for h in range(2):
            for i in range(4): P(f"v_cvt_pk_bf16_f32 v{CD+4*h+i}, v{AV+8*h+2*i}, v{AV+8*h+2*i+1}")
            P(f"buffer_store_dwordx4 {vr(CD+4*h,4)}, v{vVS}, {sr(sWS,4)}, s{sVO} offen offset:{1792*h} sc1")
        P(f"L_vdone:")
        self.stamp("G.vst")
        vM = 40
        KB, VB = WF, WF + 16
        pend = []
        def kread(i):
            for s in range(2):
                pend.append((f"ds_read_b128 {vr(KB + 8*((i+2)&3) + 4*s, 4)}, v{vKR} offset:{(8-i)*3584 + s*1024}", ("k", i)))
        def vread(i):
            for s in range(2):
                pend.append((f"ds_read_b128 {vr(S(8-i) + 8*s + 4, 4)}, v{vVR} offset:{(8-i)*4096 + s*2048}", ("v", i)))
        def drain(n=99):
            while pend and n > 0:
                t, tag = pend.pop(0); P(t); lg.add(tag); n -= 1
        if "bS9" in o["sched"]: P("s_barrier")
        P("s_barrier")
        if o["bva"] < 0: P(f"s_waitcnt vmcnt(0)"); self.stamp("G.va"); P("s_barrier")
        self.stamp("G.ck"); kread(0); kread(1); drain()
        def qk(i, s, nd=2):
            n = 8 - i
            lg.wait(("k", i))
            P(MF32(S(n), KB + 8*((i+2) & 3) + 4*s, QF + 4*s, S(n) if (s == 1 or n == 8) else CD)); drain(nd)
        npv = 0
        def pv(nd=2):
            nonlocal npv
            i, s = npv >> 1, npv & 1
            assert not any(t == ("v", i) for _, t in pend)
            lg.wait(("v", i))
            P(MF32(AQ, S(8 - i) + 8*s + 4, S(8 - i) + 8*s, "0" if npv == 0 else AQ)); npv += 1; drain(nd)
        def pvl(s):
            lg.wait(("v", 8)); P(MF32(AQ, KB + 4*s, S(0) + 8*s, AQ))
        kread(2)
        qk(0, 0); qk(0, 1)
        b = S(8)
        P(f"s_mov_b32 s3, {fl(-40.0)}\nv_max_f32 v{vM}, v{b}, v{b+1}\nv_max_f32 v{vM+1}, v{b+2}, v{b+3}")
        for k in range(2, 7): P(f"v_max3_f32 v{vM+(k&1)}, v{vM+(k&1)}, v{b+2*k}, v{b+2*k+1}")
        P(f"v_max3_f32 v{vM+1}, v{vM+1}, v{b+14}, v{b+15}\nv_max_f32 v42, v{vM}, v{vM+1}\nv_max_f32 v{vM+1}, v{vM}, v{vM+1}\nv_permlane32_swap_b32 v42, v{vM+1}\nv_max_f32 v{vM}, v42, v{vM+1}")
        P(f"v_sub_f32 v{vM}, s3, v{vM}")
        if o.get("pka", 1):
            for k in range(8): P(f"v_pk_mul_f32 {vr(CD+2*k,2)}, {vr(vM,2)}, 1.0 op_sel_hi:[0,0]")
            for k in range(8): P(f"v_pk_add_f32 {vr(b+2*k,2)}, {vr(vM,2)}, {vr(b+2*k,2)} op_sel_hi:[0,1]")
        else:
            for k in range(16): P(f"v_mov_b32 v{CD+k}, v{vM}")
            for k in range(16): P(f"v_add_f32 v{b+k}, v{vM}, v{b+k}")
        self.stamp("G.p1")
        knext = 3
        for i in range(9):
            b = S(8 - i)
            if i == o["bva"]: self.stamp("G.va0"); P(f"s_waitcnt vmcnt(0)"); self.stamp("G.va"); P("s_barrier")
            if i == o["bk2"]: P("s_barrier"); self.stamp("G.k2")
            while knext < min(9 if i >= o["bk2"] else o["k1st"], i + 4): kread(knext); knext += 1
            assert knext >= min(9, i + 3)
            mfs = [lambda i=i: qk(i + 1, 0, 3), lambda i=i: qk(i + 1, 1, 3)] if i < 8 else []
            for pos in range(16):
                P(f"v_exp_f32 v{b+pos}, v{b+pos}")
                if pos in (0, 5) and mfs: mfs.pop(0)()
                if pos in (7, 15):
                    h = pos >> 3
                    for k in range(4): P(f"v_cvt_pk_bf16_f32 v{b+8*h+k}, v{b+8*h+2*k}, v{b+8*h+2*k+1}")
                    if i == 8:
                        for k in range(4): P(f"v_and_b32 v{b+8*h+k}, v{b+8*h+k}, v{FM+4*h+k}")
            drain()
        self.stamp("G.ex")
        P("@JUMP2 g1p2"); self.pad("g1p2"); P("L_ja_g1p2:")
        P("; P*V (a column of ones in V gives the row sums)")
        vn = 0
        for k, n in enumerate(o["vbars"]):
            P("s_barrier"); self.stamp("G.fv" if k == 0 else ("G.v2" if n == 0 else "-"))
            if otp == 10 + k or o.get("ot2") == k: P(OT)
            if k == 0: P(f"ds_read_b32 v44, v{vFL} offset:12"); lg.add("m")
            if k == 1: lg.wait("m"); P(f"v_readfirstlane_b32 s{sMODE}, v44")
            old = 2 * vn
            while vn <= 8 - 2*n: vread(vn); vn += 1
            if npv == old: drain()
            while npv < old: pv(4)
            drain()
            while npv < 2 * vn - (o.get("pvk", 2) if n else 0): pv()
        vWR, vRD, vG0, vG1, vTA, MF_, TF_, AE = 1, 3, 4, 5, 8, 176, 144, 64
        P(f"L_onorm:\ns_cmp_eq_u32 s{sMODE}, 0")
        P(f"v_mov_b32 v40, v{AQ+12}\nv_mov_b32 v41, v{AQ+12}\nv_permlane32_swap_b32 v40, v41\nv_rcp_f32 v41, v41\ns_cbranch_scc1 L_oslow")
        def ostore(E, mod):
            for a in range(4):
                for k in range(2): E(f"v_pk_mul_f32 {vr(CD+4*a+2*k,2)}, v[40:41], {vr(AQ+4*a+2*k,2)} op_sel:[1,0]")
                for k in range(2): E(f"v_cvt_pk_bf16_f32 v{VB+2*a+k}, v{CD+4*a+2*k}, v{CD+4*a+2*k+1}")
                if a == 3: E("s_mov_b32 exec_hi, 0")
                E(f"buffer_store_dwordx2 {vr(VB+2*a,2)}, v{vOS}, {sr(sWS,4)}, s{sOO} offen offset:{512*a} {mod}")
            E("s_mov_b64 exec, -1")
        ostore(P, o["omod"])
        P("L_ostored:")
        T("L_oslow:"); ostore(T, "sc1"); T("s_branch L_ostored")
        self.stamp("G.ost")
        P(f"v_mul_f32 v42, {fl(2.0**16)}, v{AQ+12}\nv_mul_f32 v40, 0, v{AQ}\nv_mul_f32 v41, 0, v{AQ+1}\nv_fmac_f32 v40, 0, v42")
        for k in range(2, 16): P(f"v_fmac_f32 v{40+(k&1)}, 0, v{AQ+k}")
        P(f"v_cmp_u_f32 vcc, v40, v41")
        if o["force_fb"]: P("s_mov_b64 vcc, -1")
        P(f"s_cbranch_vccnz L_fallback\nL_ochecked:")
        EP = o.get("epoll", 0)
        if EP: P(f"buffer_load_dword v44, v{vOP}, {sr(sWS,4)}, s{sT0} offen sc1")
        BT = (0 if o.get("ba") is not None else 1) if EP else o.get("btpos", 0)
        if BT == 0: P(f"s_cmp_eq_u32 s{sP}, 7\ns_cbranch_scc1 L_nobt\ns_barrier\nL_nobt:")
        P(f"s_mov_b64 exec, 1\ns_cmp_eq_u32 s{sMODE}, 0\ns_waitcnt vmcnt(0)\ns_cbranch_scc1 L_ofslow")
        P(f"buffer_store_dword v{vNON}, v{vZ}, {sr(sWS,4)}, s{sOFo} offen\nL_oflagged:\ns_mov_b64 exec, -1")
        T(f"L_ofslow:\nbuffer_store_dword v{vNON}, v{vZ}, {sr(sWS,4)}, s{sOFo} offen sc1\ns_branch L_oflagged")
        self.stamp("G.oack")
        P(f"s_cmp_eq_u32 s{sP}, 7\ns_cbranch_scc1 L_g1end\ns_add_u32 m0, s{sT2}, {L_O(0)}")
        if EP == 2: P(f"v_cmp_ne_u32 vcc, s{sNONCE}, v44\ns_mov_b32 s{sT5}, {SPIN}\ns_barrier\ns_and_b32 s61, vcc_lo, s62")
        elif EP: P(f"v_cmp_ne_u32 vcc, s{sNONCE}, v44\ns_barrier\ns_and_b64 vcc, vcc, s[62:63]\ns_cbranch_scc0 L_oall")
        elif BT == 1: P("s_barrier")
        vm = Cnt(P, "vmcnt", 63)
        if EP != 2: self.poll([(vOP, 0)], 44, sT0)
        P("L_oall:")
        self.stamp("G.op")
        nb = 0
        for t in o.get("osched", "0 1 2 3 b 4 5 b 6 b b a b b b").split():
            if t == "b":
                vm.wait(nb); P("s_barrier"); nb += 1
                if nb == 1 and o["g1a"]: P("ds_read_b128 v[24:27], v3\nds_read_b128 v[28:31], v3 offset:1024")
            elif t == "a":
                if o["g1a"]:
                    P("s_waitcnt lgkmcnt(0)")
                    for h in range(2): P(f"buffer_store_dwordx4 {vr(24+4*h,4)}, v{4+h}, {sr(sOUT,4)}, s10 offen {o['outmod']}"); vm.add("a")
            else:
                q = int(t)
                if EP == 2:
                    L = P.label("og"); mk = (0xff << 4*q) & 0xffffffff
                    P(f"s_and_b32 s3, s61, {mk:#x}\ns_cbranch_scc0 {L}_d\n{L}:\nbuffer_load_dword v44, v{vOP}, {sr(sWS,4)}, s{sT0} offen sc1")
                    P(f"s_sub_u32 s{sT5}, s{sT5}, 1\ns_max_i32 s{sT5}, s{sT5}, 0\ns_waitcnt vmcnt(0)\ns_cbranch_scc0 {L}_d\nv_cmp_ne_u32 vcc, s{sNONCE}, v44\ns_nop 0\ns_and_b32 s61, vcc_lo, s62\ns_and_b32 s3, s61, {mk:#x}\ns_cbranch_scc1 {L}\n{L}_d:")
                if q: P(f"s_add_u32 m0, s{sT2}, {L_O(q)}\ns_add_u32 s{sT1}, s{sT1}, 4096")
                for k in range(2):
                    P(f"buffer_load_dwordx4 v{vDA}, {sr(sWS,4)}, s{sT1} offen offset:{1024*k} sc1 lds"); vm.add(q)
        P("L_g1end:")
        self.stamp_out()
        P("L_end:\ns_endpgm")
        P("L_fallback:")
        P(f"s_cmp_lg_u32 s{sFB}, 0\ns_cbranch_scc1 L_ochecked\ns_mov_b32 s{sFB}, 1\ns_waitcnt vmcnt(0)")
        mask(P, S(0), True); mask(P, S(8), False)
        P(f"v_mov_b32 v{vM}, {fl(-BIG)}")
        for n in range(9):
            P(f"ds_read_b128 {vr(KB,4)}, v{vKR} offset:{n*3584}\nds_read_b128 {vr(KB+4,4)}, v{vKR} offset:{n*3584+1024}")
            if n <= 7:
                P(f"s_cmp_lt_u32 s{sG}, {8-n}\ns_cselect_b32 s3, {fl(-BIG)}, 0")
                for k in range(16): P(f"v_mov_b32 v{S(n)+k}, s3" if n else f"v_min_f32 v{S(n)+k}, s3, v{S(n)+k}")
            P("s_waitcnt lgkmcnt(0)")
            for s in range(2): P(MF32(S(n), KB + 4*s, QF + 4*s, S(n)))
            for k in range(8): P(f"v_max3_f32 v{vM}, v{vM}, v{S(n)+2*k}, v{S(n)+2*k+1}")
        P(f"v_mov_b32 v{vM+1}, v{vM}\nv_permlane32_swap_b32 v{vM}, v{vM+1}\nv_max_f32 v{vM}, v{vM}, v{vM+1}")
        for n in range(9):
            b = S(n)
            P(f"ds_read_b128 {vr(VB,4)}, v{vVR} offset:{n*4096}\nds_read_b128 {vr(VB+4,4)}, v{vVR} offset:{n*4096+2048}")
            for k in range(16): P(f"v_sub_f32 v{b+k}, v{b+k}, v{vM}")
            for k in range(16): P(f"v_exp_f32 v{b+k}, v{b+k}")
            for k in range(8): P(f"v_cvt_pk_bf16_f32 v{b+k}, v{b+2*k}, v{b+2*k+1}")
            P("s_waitcnt lgkmcnt(0)")
            for s in range(2): P(MF32(AQ, VB + 4*s, b + 4*s, "0" if (n == 0 and s == 0) else AQ))
        P("s_nop 11\ns_branch L_onorm")

    def addrs(self, lines):
        import subprocess, tempfile
        src = '.amdgcn_target "amdgcn-amd-amdhsa--gfx950"\n.text\n' + "".join(f"Z{i}:\n" + ("" if l.startswith("@") else l) + "\n" for i, l in enumerate(lines))
        with tempfile.TemporaryDirectory() as d:
            open(d + "/a.s", "w").write(src)
            subprocess.run(["clang", "-x", "assembler", "-target", "amdgcn-amd-amdhsa", "-mcpu=gfx950", "-c", d + "/a.s", "-o", d + "/a.o"], check=True)
            out = subprocess.run(["llvm-objdump", "-t", d + "/a.o"], capture_output=True, text=True).stdout
        ad = {}
        for l in out.splitlines():
            w = l.split()
            if len(w) > 3 and w[-1][0] == "Z": ad[int(w[-1][1:])] = int(w[0], 16)
        return [ad[i] for i in range(len(lines))]

    def layout(self, body):
        fill = lambda n: [f".fill {n//4}, 4, 0xbf810000"] if n else []
        on = self.o["align"]; AL = [".p2alignl 12, 0xbf810000"]
        while True:
            k = [i for i, l in enumerate(body) if l.startswith("@JUMPALIGN")]
            if not k: break
            i = k[0]; name = body[i].split()[1]
            a = self.addrs(body)[i] + 4
            body = body[:i] + [f"s_branch L_ja_{name}"] + (AL if on else []) + body[i+1:]
        i = body.index("@ALIGN"); a = self.addrs(body)[i]
        body = body[:i] + (AL if on and -a % 4096 < 1536 else []) + body[i+1:]
        ad = self.addrs(body)
        g = body.index("L_g1:")
        if on:
            n = -ad[body.index("L_g1page:")] % 4096; up = -ad[g] % 4096
            body = body[:g] + (AL + fill(n - up) if up <= n else fill(n)) + body[g:]
        ad = self.addrs(body)
        i = body.index("@JUMP2 g1p2"); a = ad[i] + 4
        if a - ad[body.index("L_g1page:")] > 4096: print("warning: attention page overflows")
        body = body[:i] + [f"s_branch L_ja_g1p2"] + (AL if on else []) + body[i+1:]
        return body

    def build(self):
        self.prologue(); self.g2()
        g2 = list(self.P.lines); self.P.lines = []
        self.g1()
        fb = self.P.lines.index("L_fallback:")
        lines = g2 + self.tail.lines + self.P.lines[:fb] + ["L_codeend:"] + self.P.lines[fb:]
        body, pad = pad_hazards(lines)
        body = self.layout(body)
        hdr = open(os.path.join(os.path.dirname(os.path.abspath(__file__)), "header.txt")).read()
        if self.o["stamps"]: hdr += "; STAMPS " + self.o["stamps"] + (" MIXED" if self.o["mixed"] else "") + (" REALTIME" if self.o.get("rt") else "") + "\n"
        s = hdr + "; @launch grid=(256,1,1) block=(512,1,1) lds=163840\n"
        s += DOC + '.amdgcn_target "amdgcn-amd-amdhsa--gfx950"\n.text\n'
        if self.o["align"]: s += ".p2align 12\n.fill 832, 4, 0xbf810000\n"
        s += f".globl {NAME}\n.p2align 8\n.type {NAME},@function\n{NAME}:\n"
        s += "\n".join(("" if l.endswith(":") else "    ") + l for l in body) + "\n    s_endpgm\n"
        s += f""".section .rodata,"a"
.p2align 6
.amdhsa_kernel {NAME}
  .amdhsa_next_free_vgpr 256
  .amdhsa_next_free_sgpr 102
  .amdhsa_accum_offset 256
  .amdhsa_group_segment_fixed_size 0
  .amdhsa_kernarg_size 88
  .amdhsa_user_sgpr_count 2
  .amdhsa_user_sgpr_kernarg_segment_ptr 1
  .amdhsa_system_sgpr_workgroup_id_x 1
.end_amdhsa_kernel
"""
        return s, pad

if __name__ == "__main__":
    opts = {}
    out = sys.argv[1]
    for a in sys.argv[2:]:
        k, v = a.split("=", 1); opts[k] = v if k in STR_OPTS else eval(v)
    s, pad = Gen(**opts).build()
    open(out, "w").write(s)
    print("written", out, "pad states", pad, "lines", s.count("\n"))
```

```python
import sys, math, struct, os
sys.path.insert(0, os.path.dirname(os.path.abspath(__file__)))
from asmlib import *

NAME = "concat_heads__spectral_fnet__sliding_block__prompt_kernel"

def f2u(x): return struct.unpack("<I", struct.pack("<f", x))[0]
def fl(x): return f"{f2u(x):#x}"

WS_E = 0
WS_KF, WS_VF, WS_OF, WS_TF, WS_XF = 0x10000, 0x18000, 0x20000, 0x28000, 0x30000
WS_K, WS_V, WS_O, WS_T = 0x201000, 0x401000, 0x601000, 0x7F0000
NPAGE = 4
WS_STAMP = 0xA80000
WS_SIZE = 0xB00000
PAIR = 64 * 3584
TST = 65536 + 384
SL = 8192
def L_X(q): return 2 * q * SL
def L_WK(q): return (2 * q + 1) * SL
def L_WQ(q): return (18 + q) * SL if q < 2 else (q - 2) * SL
L_XA = 14 * SL
def L_WV(q): return (5 + q) * SL
L_WO = 5 * SL
L_KT = 13 * SL
L_VT = 0
L_F = 13 * SL
L_FLAG = 18 * SL - 64
L_TS = 12 * SL
L_OUT = 12 * SL
L_M = 12 * SL
L_TT = 18 * SL
def L_O(q): return q * SL if q < 5 else (13 + q - 5) * SL
sNONCE = 6
sXB, sW, sWKV, sXA, sWO, sOUT, sWS = 20, 48, 28, 32, 36, 40, 44
sU, sRT, sP, sS2, sEG, sR, sCI, sWV = 52, 53, 54, 55, 56, 57, 58, 59
sSX, sSW = 60, 67
sT0, sT1, sT2, sT3, sT4, sT5 = 74, 75, 76, 77, 78, 79
sROT, sFO = 8, 9
sGB = [12, 13, 14, 15, 8]
sSTAMP = 80
NSTAMP = 11
SPIN = 1 << 14
sLS = 60
def bound(lab): return f"s_add_u32 s{sLS}, s{sLS}, 1\ns_cmp_gt_u32 s{sLS}, 0x100000\ns_cbranch_scc1 {lab}"
BIG = 2.0 ** 100

class Cnt:
    def __init__(self, prog, name, maxn):
        self.p, self.name, self.maxn = prog, name, maxn
        self.q = []
    def add(self, tag=None): self.q.append(tag)
    def wait(self, tag):
        idx = [i for i, t in enumerate(self.q) if t == tag]
        if not idx: return
        n = min(len(self.q) - 1 - idx[-1], self.maxn)
        self.p(f"s_waitcnt {self.name}({n})")
        self.q = self.q[len(self.q) - n:] if n else []
    def all(self):
        self.p(f"s_waitcnt {self.name}(0)"); self.q = []

def srd(P, d, lo, nrec):
    P(f"s_mov_b64 {sr(d,2)}, {sr(lo,2)}\ns_mov_b32 s{d+2}, {nrec:#x}\ns_mov_b32 s{d+3}, 0x20000")

def MF32(d, a, b, c): return f"v_mfma_f32_32x32x16_bf16 {vr(d,16)}, {vr(a,4)}, {vr(b,4)}, {c if isinstance(c,str) else vr(c,16)}"
def MF16(d, a, b, c): return f"v_mfma_f32_16x16x32_bf16 {vr(d,4)}, {vr(a,4)}, {vr(b,4)}, {c if isinstance(c,str) else vr(c,4)}"
NONCE = f"s_mul_i32 s{sNONCE}, s{sNONCE}, 0x9E3779C1\ns_add_u32 s{sNONCE}, s{sNONCE}, 0x7FEB3560"

STR_OPTS = ("ldnt", "sched7b", "ina7", "osched", "pre", "items", "stamps", "sched", "sched7", "schedT", "schedK", "schedV", "ina1", "outmod", "omod")

DOC = '; ---------------------------------------------------------------------------------------------------------\n; One launch, 256 workgroups of 8 waves (one workgroup per CU).  Workgroup (rt, p): rt = 64-row tile, p = 0..7.\n;   (write-through stores, then one flag word per consumer); o goes through d_ws to the output projection.\n;   two passes with the true row max (L_fallback).\n; Part A: Re(DFT2(x)) as hidden DFT (448, only e <= 255) -> 32-point DFT over rows s2+64*s1 -> exchange through\n;   d_ws -> 64-point DFT with the twiddles folded in; columns 224..447 are the mirror image.  The constant DFT\n;   matrices are generated in registers.\n;   wait is bounded.  The o hand-off stays inside one L2 only after the 8 workgroups of a row tile have reported\n;   the same die; otherwise it uses write-through stores.\n; ---------------------------------------------------------------------------------------------------------\n'

class Gen:
    def __init__(self, **o):
        self.o = dict(stamps=False, codepf=True, mixed=False, outmod="nt", olocal=True, omod="nt", pf7=True,
            hops=3, align=True, force_fb=False, pfwo=0, touch=8, pre="X0 W0 X1 W1", rot=6, wlate=2, warm=2, wo1=7,
            items="Q0b Q1 Q2 Q3b Q4 Q5b Q6b V0b V1b V2b V3b V4b V5b V6b", kack=0, lagqv={},
            g1f0=20, g1cuts={0: 16, 1: 16, 2: 16, 3: 16, 4: 16}, bk2=2, bva=0, otp=7, worot=0, k1st=5, vbars=(3, 2, 1, 0), btpos=0, g1a=0, k56=1, aout=5, osched="0 1 2 3 4 b 5 6 b b b b b b",
            sched="f226 nonce xt tl p7 K2 bK0 K3 f18 bK1 K4 hop bK2 K5 f18 bK3 K6 f18 bK4 A0 A1 A2 A3 f18 bK5 A4 A5 A6 bK6 Q0 Q1 f* page wA6 bS0 a1 join "
                  "lva Q5 lvb lvc lvw Q6 bQ2 p7b kf V0 V1 g30 bQ4 V2 V3 g16 bQ5 V4 g8 bQ6 V5 g8 bV0 V6 tst kp1 bV1 g12 bV2 g* bV3 kw1 bV4 k4 k3 bV5 k2 bV6 one join2 "
                  "wT0 bS9 p:2 tf k1 k0 O0 wk2 bS1 O1 O2 bS3 vf O3 wk0 bS2 vp3 O4 O5 O6",
            sched7b="tst kp1 g* bQ4 bQ5 kw1 bQ6 k4 k3 k2 bS5 one",
            sched7="X2 X3 f* ef X4 X5 X6 A0 A1 A2 A3 A4 A5 A6 bK6 Q0 Q1 lg0 bA6 a17",
            ina1="0:Q2 10:Q3 13:Q4", ina7="3:bS0,Q2 6:Q3 9:Q4")
        self.o.update(o)
        self.P = Prog()
        self.tail = Prog()

    def stamp(self, name):
        if self.o.get("jit") is not None:
            P = self.P
            if name == 0:
                P(f"s_memtime s[98:99]\ns_waitcnt lgkmcnt(0)\nv_readfirstlane_b32 s97, v0\ns_nop 0\ns_lshl_b32 s96, s2, 10\ns_add_u32 s97, s97, s96\ns_add_u32 s98, s98, s97\ns_mul_i32 s98, s98, 0x9E3779B1")
                return
            self._jl = getattr(self, "_jl", 0) + 1
            L = f"jit_{self._jl}"
            P(f"s_cselect_b32 s96, 1, 0\ns_mul_i32 s98, s98, 0x41C64E6D\ns_add_u32 s98, s98, 12345\ns_lshr_b32 s97, s98, {32 - self.o['jit']}\ns_cmp_lg_u32 s97, 0\ns_cbranch_scc1 {L}\ns_sleep {self.o.get('jitn', 24)}\n{L}:\ns_cmp_lg_u32 s96, 0")
            return
        if not self.o["stamps"]: return
        if name == 0: self.P(f"s_memtime {sr(sSTAMP, 2)}"); return
        for lst in self.o["stamps"].split("|"):
            l = lst.split(",")
            if name in l: self.P(f"{'s_memrealtime' if self.o.get('rt') else 's_memtime'} {sr(sSTAMP + 2*(1+l.index(name)), 2)}")

    def stamp_out(self):
        if not self.o["stamps"]: return
        P = self.P
        P(f"s_waitcnt vmcnt(0)\ns_memtime {sr(sSTAMP+16,2)}\ns_memrealtime {sr(sSTAMP+18,2)}\ns_waitcnt lgkmcnt(0)\ns_mov_b64 exec, 1")
        if self.o.get("enc") is not None:
            k = self.o["enc"]; L = P.label("enc"); D = P.label("encd")
            P(f"s_cmp_lg_u32 s{sWV}, {self.o['encwv']}\ns_cbranch_scc1 {D}\ns_cmp_eq_u32 s{sP}, 7\ns_cbranch_scc1 {D}")
            if self.o.get("encwg", -1) >= 0: P(f"s_cmp_lg_u32 s2, {self.o['encwg']}\ns_cbranch_scc1 {D}")
            if k == 9: P(f"s_sub_u32 s3, s{sSTAMP+18}, s{sSTAMP+20}\ns_lshl_b32 s3, s3, 2")
            else: P(f"s_sub_u32 s3, s{sSTAMP+2*k}, s{sSTAMP}\ns_lshr_b32 s3, s3, 2")
            P(f"s_min_u32 s3, s3, 50000\ns_add_u32 s3, s3, 5000")
            P(f"{L}:\ns_memrealtime s[4:5]\ns_waitcnt lgkmcnt(0)\ns_sub_u32 s4, s4, s{sSTAMP+20}\ns_cmp_lt_u32 s4, s3\ns_cbranch_scc1 {L}\n{D}:")
            return
        for i in range(NSTAMP): P(f"v_mov_b32 v{4+i}, s{sSTAMP+2*i}")
        P(f"s_getreg_b32 s3, hwreg(HW_REG_XCC_ID)\nv_mov_b32 v15, s3")
        P(f"s_lshl_b32 s3, s2, 3\ns_add_u32 s3, s3, s{sWV}\ns_lshl_b32 s3, s3, 6\ns_add_u32 s3, s3, {WS_STAMP:#x}\nv_mov_b32 v1, 0")
        for k in range(3): P(f"buffer_store_dwordx4 v[{4+4*k}:{7+4*k}], v1, {sr(sWS,4)}, s3 offen offset:{16*k}")

    def into(self, prog, f, *a):
        keep = self.P; lab = keep._lab
        self.P = prog; prog._lab = max(prog._lab, lab)
        f(*a)
        keep._lab = max(prog._lab, lab); self.P = keep

    HOPS = (("roleT",), ("g1p1",))
    LATE = ("fc", "g1p2")
    def pad(self, name, inline=False, E=None):
        E = E or self.P
        if name in self.LATE:
            if not self.o["hops"] & 2: return
            nxt = "L_pad_g1p2" if name == "fc" else "L_rolesdone"
        else:
            if not self.o["hops"] & 1 or name in ("done", "g2p1"): return
            nxt = "L_hopret"
            for ch in self.HOPS:
                if name in ch[:-1]: nxt = "L_pad_" + ch[ch.index(name) + 1]
        if inline: E(f"s_branch L_over_{name}\nL_pad_{name}:\ns_branch {nxt}\nL_over_{name}:")
        else: E(f"L_pad_{name}:\ns_branch {nxt}")

    def tr_addr(self, dst, t0, t1, perm, sbase):
        P = self.P
        P(f"v_bfe_u32 v{t0}, v0, 4, 1\nv_lshl_add_u32 v{t0}, v{t0}, 5, s{sbase}")
        if perm:
            P(f"v_and_b32 v{t1}, 1, v0\nv_lshl_add_u32 v{t0}, v{t1}, 4, v{t0}")
            P(f"v_bfe_u32 v{t1}, v0, 1, 1\nv_lshl_add_u32 v{t0}, v{t1}, 3, v{t0}")
        else:
            P(f"v_and_b32 v{t1}, 3, v0\nv_lshl_add_u32 v{t0}, v{t1}, 3, v{t0}")
        P(f"v_and_b32 v{t1}, 8, v0\nv_lshlrev_b32 v{t1}, 3, v{t1}\nv_xor_b32 v{t0}, v{t0}, v{t1}")
        P(f"v_and_b32 v{t1}, 44, v0\nv_lshl_add_u32 v{dst}, v{t1}, 5, v{t0}")

    def inbox_setup(self, base):
        self.P(f"s_lshl3_add_u32 s3, s{sRT}, s{sP}\ns_lshl_b32 s3, s3, 7\ns_add_u32 s{sT3}, s3, {base:#x}")
    def inbox_issue(self, E=None):
        (E or self.P)(f"s_load_dwordx16 s[20:35], s[18:19], s{sT3} glc")
    def inbox_wait(self):
        P = self.P; L = P.label("kvp")
        P(f"s_mov_b32 s{sT5}, {SPIN}\ns_mov_b32 s7, s{sNONCE}\n{L}:\ns_waitcnt lgkmcnt(0)")
        P("s_xor_b64 s[20:21], s[20:21], s[6:7]")
        for n in range(1, 5):
            P(f"s_xor_b64 {sr(20+2*n,2)}, {sr(20+2*n,2)}, s[6:7]\ns_or_b64 s[20:21], s[20:21], {sr(20+2*n,2)}")
        P(f"s_cbranch_scc0 {L}_d")
        self.inbox_issue()
        P(f"s_sub_u32 s{sT5}, s{sT5}, 1\ns_cbranch_scc0 {L}\ns_waitcnt lgkmcnt(0)\n{L}_d:")
    def group_bases(self, base):
        P = self.P
        P(f"s_mul_i32 s{sT1}, s{sP}, {PAIR}\ns_mul_i32 s3, s{sRT}, 7168\ns_add_u32 s3, s3, s{sT1}\ns_add_u32 s{sSX+4}, s3, {base:#x}")
        for n in range(4):
            P(f"s_sub_u32 s3, s{sSX+4}, {7168*(4-n)}\ns_cmp_lt_u32 s{sRT}, {4-n}\ns_cselect_b32 s{sSX+n}, s{sWS+2}, s3")

    def poll(self, addrs, vt, sbase):
        P = self.P
        L = P.label("poll")
        P(f"s_mov_b32 s{sT5}, 0\n{L}:")
        for k, (va, imm) in enumerate(addrs):
            P(f"buffer_load_dword v{vt+k}, v{va}, {sr(sWS,4)}, s{sbase} offen offset:{imm} sc1")
        P(f"s_add_u32 s{sT5}, s{sT5}, 1\ns_cmp_gt_u32 s{sT5}, {SPIN}\ns_cbranch_scc1 {L}_d\ns_waitcnt vmcnt(0)")
        for k in range(len(addrs)):
            P(f"v_cmp_ne_u32 vcc, s{sNONCE}, v{vt+k}\ns_cbranch_vccnz {L}")
        P(f"{L}_d:")

    def lds_wait(self, vflag, idx, val, vt):
        P = self.P
        L = P.label("lw")
        P(f"{L}:\nds_read_b32 v{vt}, v{vflag} offset:{4*idx}\n{bound(L + '_d')}\ns_waitcnt lgkmcnt(0)\nv_cmp_gt_u32 vcc, {val}, v{vt}\ns_cbranch_vccnz {L}\n{L}_d:")
    def lds_signal(self, vflag, idx, vt):
        self.P(f"v_mov_b32 v{vt}, 1\ns_mov_b64 exec, 1\nds_add_u32 v{vflag}, v{vt} offset:{4*idx}\ns_mov_b64 exec, -1")
    def lds_set(self, vflag, idx, vt, val):
        self.P(f"v_mov_b32 v{vt}, {val}\nds_write_b32 v{vflag}, v{vt} offset:{4*idx}")

    def scratch_addr(self, vWR, vRD, base, t):
        P = self.P
        P(f"s_lshl_b32 s3, s{sU}, 11\ns_add_u32 s3, s3, {base}")
        P(f"v_and_b32 v{t}, 31, v0\nv_lshrrev_b32 v{t+1}, 5, v0\nv_bfe_u32 v{t+2}, v0, 1, 2\nv_xor_b32 v{t+2}, v{t+2}, v{t+1}")
        P(f"v_lshl_add_u32 v{t+3}, v{t}, 6, s3\nv_lshl_add_u32 v{vWR}, v{t+2}, 4, v{t+3}\nv_xor_b32 v{vWR+1}, 32, v{vWR}")
        P(f"v_lshl_add_u32 v{vRD}, v0, 4, s3")
        P(f"v_lshrrev_b32 v{t+2}, 2, v0\nv_lshrrev_b32 v{t+3}, 3, v0\nv_xor_b32 v{t+3}, v{t+3}, v0\nv_and_b32 v{t+3}, 3, v{t+3}\nv_lshlrev_b32 v{t+3}, 4, v{t+3}")

    def a_addr(self, d0, d1, vrow, vpiece, t, sd):
        P = self.P
        P(f"s_lshl_b32 s3, s{sR}, 10\ns_add_u32 s3, s3, s{sRT}\nv_lshl_add_u32 v{t}, v{vrow}, 5, s3")
        for dst in (d0, d1):
            P(f"v_sub_u32 v{t+1}, 0, v{t}\nv_and_b32 v{t+1}, 2047, v{t+1}\nv_cndmask_b32 v{t+1}, v{t}, v{t+1}, vcc\nv_mul_u32_u24 v{t+1}, 1792, v{t+1}\nv_add_u32 v{dst}, v{t+1}, v{vpiece}")
            if dst == d0: P(f"v_add_u32 v{t}, 512, v{t}")
        P(f"s_lshl_b32 s3, s{sP}, 6\ns_sub_u32 s7, 832, s3\ns_cmp_eq_u32 s{sCI}, 1\ns_cselect_b32 s{sd}, s7, s3")

    def out_epilogue(self, acc, pk, vwr, vrd, vg0, vg1, soff, mod):
        P = self.P
        for h in range(2):
            for i in range(4): P(f"v_cvt_pk_bf16_f32 v{pk+4*h+i}, v{acc+8*h+2*i}, v{acc+8*h+2*i+1}")
            P(f"ds_write_b128 v{vwr+h}, {vr(pk+4*h,4)}")
        P(f"ds_read_b128 {vr(pk,4)}, v{vrd}\nds_read_b128 {vr(pk+4,4)}, v{vrd} offset:1024")
        P(f"s_waitcnt lgkmcnt(1)\nbuffer_store_dwordx4 {vr(pk,4)}, v{vg0}, {sr(sOUT,4)}, {soff} offen {mod}")
        P(f"s_waitcnt lgkmcnt(0)\nbuffer_store_dwordx4 {vr(pk+4,4)}, v{vg1}, {sr(sOUT,4)}, {soff} offen {mod}")

    def prologue(self):
        P = self.P; o = self.o
        P(f"s_cmpk_ge_u32 s2, 256\ns_cbranch_scc1 L_end")
        if o.get("skew"):
            P(f"s_and_b32 s3, s2, 7\ns_cmp_lg_u32 s3, 3\ns_cbranch_scc1 L_nosk\ns_sleep {o['skew']}\nL_nosk:")
        P(f"s_load_dwordx2 {sr(sXB,2)}, s[0:1], 40\ns_load_dwordx2 {sr(sWKV,2)}, s[0:1], 48\ns_load_dwordx8 s[12:19], s[0:1], 56\ns_load_dwordx2 {sr(sXA,2)}, s[0:1], 0")
        if o["stamps"]:
            P(f"s_memrealtime {sr(sSTAMP + 2*(NSTAMP-1), 2)}")
        self.stamp(0)
        P(f"v_readfirstlane_b32 s{sWV}, v0\nv_and_b32 v0, 63, v0\ns_and_b32 s3, s2, 7\ns_lshr_b32 s7, s2, 3\ns_lshr_b32 s{sWV}, s{sWV}, 6")
        if o["mixed"]:
            P(f"s_and_b32 s{sP}, s3, 1\ns_lshl_b32 s{sP}, s{sP}, 2\ns_and_b32 s{sT1}, s7, 3\ns_add_u32 s{sP}, s{sP}, s{sT1}\ns_lshr_b32 s{sT0}, s7, 2")
            P(f"s_lshr_b32 s{sRT}, s3, 1\ns_lshl3_add_u32 s{sRT}, s{sRT}, s{sT0}\ns_lshl1_add_u32 s{sT0}, s{sT1}, s{sT0}")
        else:
            P(f"s_and_b32 s{sP}, s7, 7\ns_lshr_b32 s{sT0}, s7, 3\ns_lshl2_add_u32 s{sRT}, s3, s{sT0}")
            P({0: f"s_lshl1_add_u32 s{sT0}, s{sT0}, s{sP}", 1: f"s_mov_b32 s{sT0}, s{sP}", 2: f"s_add_u32 s{sT0}, s{sT0}, s{sP}",
               3: f"s_and_b32 s{sT0}, s{sT0}, 1\ns_lshl2_add_u32 s{sT0}, s{sT0}, s{sP}",
               4: f"s_add_u32 s{sT0}, s{sT0}, s{sP}\ns_and_b32 s{sT1}, s3, 1\ns_mul_i32 s{sT1}, s{sT1}, 3\ns_add_u32 s{sT0}, s{sT0}, s{sT1}",
               5: f"s_and_b32 s{sT1}, s3, 3\ns_lshl1_add_u32 s{sT0}, s{sT1}, s{sP}",
               6: f"s_and_b32 s{sT0}, s{sT0}, 1\ns_and_b32 s{sT1}, s3, 1\ns_lshl1_add_u32 s{sT0}, s{sT1}, s{sT0}\ns_lshl1_add_u32 s{sT0}, s{sT0}, s{sP}"}[o["rot"]])
        P(f"s_and_b32 s{sU}, s{sWV}, 3\ns_and_b32 s{sR}, s{sU}, 1\ns_lshr_b32 s{sCI}, s{sU}, 1\ns_lshl_b32 s{sT4}, s{sU}, 10")
        P(f"s_cmp_lt_u32 s{sWV}, 4\ns_cbranch_scc1 L_g2")
        if o["codepf"]:
            P(f"s_getpc_b64 s[{sT2}:{sT3}]\nL_pc:")
            P(f"s_lshl2_add_u32 s{sT1}, s7, s{sU}\ns_lshl_b32 s{sT1}, s{sT1}, 8\nv_lshl_add_u32 v2, v0, 2, s{sT1}\nv_min_u32 v2, L_codeend-L_pc-4, v2")
            P(f"v_mov_b32 v3, s{sT3}\nv_add_co_u32 v2, vcc, s{sT2}, v2\nv_addc_co_u32 v3, vcc, 0, v3, vcc")
            P(f"global_load_dword v47, v[2:3], off")
        if o["warm"]:
            if o.get("wlate") == 2:
                P(f"s_lshl1_add_u32 s{sT1}, s2, s{sCI}\ns_mulk_i32 s{sT1}, 2688\ns_mul_i32 s{sT5}, s{sR}, 448\ns_add_u32 s{sT1}, s{sT1}, s{sT5}\nv_min_u32 v2, 55, v0\nv_lshlrev_b32 v2, 3, v2")
            elif o.get("wlate"):
                P(f"s_lshl1_add_u32 s{sT1}, s2, s{sCI}\ns_mulk_i32 s{sT1}, 2688\ns_mul_i32 s{sT5}, s{sR}, 896\ns_add_u32 s{sT1}, s{sT1}, s{sT5}\nv_min_u32 v2, 55, v0\nv_lshlrev_b32 v2, 4, v2")
            elif o.get("warmqv"):
                P(f"s_lshl1_add_u32 s{sT1}, s2, s{sCI}\ns_mulk_i32 s{sT1}, 2688\ns_mul_i32 s{sT5}, s{sR}, 1792\ns_add_u32 s{sT1}, s{sT1}, s{sT5}\nv_min_u32 v2, 55, v0\nv_lshlrev_b32 v2, 4, v2")
            else: P(f"s_lshl2_add_u32 s{sT1}, s2, s{sU}\ns_mulk_i32 s{sT1}, 1184\nv_mul_u32_u24 v2, 20, v0")
            P(f"s_mov_b32 s{sWKV+2}, {448*2688:#x}\ns_mov_b32 s{sWKV+3}, 0x20000")
            if o.get("wlate") != 3: P(f"s_waitcnt lgkmcnt(0)\nbuffer_load_dword v47, v2, {sr(sWKV,4)}, s{sT1} offen")
        if o.get("early", 0): P("s_waitcnt lgkmcnt(0)"); self.g1_first()
        P(f"s_branch L_g1")
        P(f"L_g2:")

    def g1_first(self):
        P = self.P; o = self.o
        srd(P, sWS, 18, WS_SIZE); srd(P, sWO, 12, 448*896)
        P(f"s_mov_b32 s{sXA+2}, {2048*896:#x}\ns_mov_b32 s{sXA+3}, 0x20000")
        if o["warm"] > 1 and not o.get("wlate") and not o.get("olate2"):
            P(f"s_lshl2_add_u32 s10, s2, s{sU}\ns_mulk_i32 s10, 392\nv_lshlrev_b32 v40, 3, v0\nbuffer_load_dword v47, v40, {sr(sWO,4)}, s10 offen")
        if o["pf7"]:
            Lp = P.label("pf")
            P(f"s_cmp_lg_u32 s{sP}, 7\ns_cbranch_scc1 {Lp}")
            P(f"s_and_b32 s7, s{sRT}, 3\ns_lshl2_add_u32 s7, s7, s{sU}\ns_mul_i32 s10, s7, {128*896}\ns_mul_i32 s11, s3, {8*896}\ns_add_u32 s10, s10, s11")
            P(f"v_lshlrev_b32 v40, 7, v0\ns_mov_b32 exec_hi, 0x00ffffff")
            for seg in range(2):
                P(f"buffer_load_dword v47, v40, {sr(sXA,4)}, s10 offen\ns_add_u32 s10, s10, {64*896}")
            if o["pfwo"]: P(f"s_mul_i32 s10, s7, 25088\ns_mov_b32 exec_hi, 0x0001ffff")
            for k in range(o["pfwo"]):
                P(f"buffer_load_dword v47, v40, {sr(sWO,4)}, s10 offen\ns_add_u32 s10, s10, {49*128}")
            P(f"s_mov_b64 exec, -1\n{Lp}:")

    def const_stream(self):
        F = []
        vE, vB, vK, vA, vC = 12, 13, 10, 40, 42
        CC, SS = 144, 172
        F += [f"s_lshl2_add_u32 s3, s{sEG}, s{sU}", f"v_and_b32 v{vA}, 15, v0", f"v_lshl_add_u32 v{vA}, s3, 4, v{vA}", f"v_cvt_f32_u32 v{vA}, v{vA}",
              f"v_mul_f32 v{vE}, {fl(1/448)}, v{vA}", f"v_cos_f32 v{vK}, v{vE}",
              f"v_lshrrev_b32 v{vA}, 1, v0", f"v_and_b32 v{vA}, 24, v{vA}", f"v_cvt_f32_u32 v{vA}, v{vA}", f"v_mul_f32 v{vB}, v{vE}, v{vA}",
              f"v_add_f32 v{vK}, v{vK}, v{vK}", f"v_mov_b32 v{vK+1}, v{vK}"]
        for ks in range(7):
            for j in range(2): F.append(f"v_fmamk_f32 v{vA+j}, v{vE}, {fl(32*ks+j)}, v{vB}")
            for j in range(2): F += [f"v_cos_f32 v{vC+2*j}, v{vA+j}", f"v_sin_f32 v{vC+2*j+1}, v{vA+j}"]
            def cv(jj):
                return [f"v_cvt_pk_bf16_f32 v{CC+4*ks+jj}, v{vC+4*jj}, v{vC+4*jj+2}", f"v_cvt_pk_bf16_f32 v{SS+4*ks+jj}, v{vC+4*jj+1}, v{vC+4*jj+3}"]
            pend = cv(0)
            for j in range(2, 8):
                F.append(pend.pop(0))
                if self.o.get("pk", True):
                    F.append(f"v_pk_fma_f32 {vr(vC+2*j,2)}, {vr(vK,2)}, {vr(vC+2*j-2,2)}, {vr(vC+2*j-4,2)} neg_lo:[0,0,1] neg_hi:[0,0,1]")
                else:
                    F += [f"v_fma_f32 v{vC+2*j+h}, v{vK}, v{vC+2*j-2+h}, -v{vC+2*j-4+h}" for h in range(2)]
                if j & 1: pend += cv(j >> 1)
            F += pend
        F += [f"v_and_b32 v{vA}, 15, v0", f"v_cvt_f32_u32 v{vA}, v{vA}", f"v_mul_f32 v{vE}, {fl(1/32)}, v{vA}",
              f"v_lshrrev_b32 v{vA}, 2, v0", f"v_and_b32 v{vA}, 12, v{vA}", f"v_cvt_f32_u32 v{vA}, v{vA}", f"v_mul_f32 v{vC}, v{vE}, v{vA}"]
        for j in range(1, 4): F.append(f"v_add_f32 v{vC+j}, v{vE}, v{vC+j-1}")
        for j in range(4): F.append(f"v_sin_f32 v{vC+4+j}, v{vC+j}")
        for j in range(4): F.append(f"v_cos_f32 v{vC+j}, v{vC+j}")
        F += [f"v_and_b32 v{vA}, 1, v0", f"s_mov_b32 s3, 0x80008000", f"v_mul_lo_u32 v{vA}, v{vA}, s3", f"s_brev_b32 s3, 1"]
        for m in range(2):
            for jj in range(2): F.append(f"v_cvt_pk_bf16_f32 v{96+8*m+jj}, v{vC+4*m+2*jj}, v{vC+4*m+2*jj+1}")
        for m in range(2):
            for jj in range(2): F.append(f"v_xor_b32 v{96+8*m+2+jj}, v{vA}, v{96+8*m+jj}")
        for m in range(2):
            for jj in range(4): F.append(f"v_xor_b32 v{96+8*m+4+jj}, s3, v{96+8*m+jj}")
        F += [f"v_and_b32 v{vA}, 15, v0", f"v_lshrrev_b32 v{vA+1}, 1, v{vA}", f"v_lshlrev_b32 v{vA}, 7, v{vA}",
              f"v_add_u32 v{vA}, {L_XA}, v{vA}",
              f"v_lshrrev_b32 v{vC}, 4, v0", f"v_xor_b32 v{vC}, v{vC}, v{vA+1}",
              f"v_lshl_add_u32 v8, v{vC}, 4, v{vA}", f"v_xor_b32 v9, 64, v8", f"v_lshl_or_b32 v11, v0, 31, 1.0",
              f"v_mov_b32 v15, {L_FLAG}"]
        return F

    def g2(self):
        P = self.P; o = self.o; T = self.tail
        vx0, vx1, vw0, vw1, vq0, vq1, vxa = 1, 2, 3, 4, 5, 6, 7
        NT = lambda k: "nt " if k in o.get("ldnt", "") else ""
        P("; ==== loader / DFT waves: first loads, DFT constants, staged loads of x, Wk, A_x, Wq, Wv")
        P(f"v_lshrrev_b32 v16, 3, v0\nv_lshl_add_u32 v16, s{sU}, 3, v16")
        P(f"v_lshrrev_b32 v17, 1, v16\nv_xor_b32 v17, v17, v0\nv_and_b32 v17, 7, v17\nv_lshlrev_b32 v17, 4, v17")
        P(f"v_mul_u32_u24 v{vx0}, 896, v16\nv_add_u32 v{vx0}, v{vx0}, v17\nv_add_u32 v{vx1}, {32*896}, v{vx0}")
        P(f"v_lshrrev_b32 v18, 2, v0\nv_and_b32 v18, 4, v18\nv_xor_b32 v18, v18, v0\nv_and_b32 v18, 7, v18")
        P(f"v_mul_u32_u24 v19, 2688, v16\ns_add_u32 s{sT1}, s{sP}, 7\ns_lshl_b32 s{sT1}, s{sT1}, 7")
        P(f"v_lshl_add_u32 v{vw0}, v18, 4, v19\nv_add_u32 v{vw0}, s{sT1}, v{vw0}\nv_add_u32 v{vw1}, {32*2688}, v{vw0}")
        P(f"s_sub_u32 s{sT1}, s{sT0}, 7\ns_cselect_b32 s{sROT}, s{sT0}, s{sT1}\ns_mul_i32 s{sT2}, s{sRT}, {64*896}")
        P(f"s_lshl_b32 s{sT1}, s{sROT}, 7\ns_add_u32 s{sSX}, s{sT1}, s{sT2}\ns_mul_i32 s{sSW}, s{sROT}, {64*2688}")
        P(f"s_add_u32 s{sSW+1}, s{sSW}, {64*2688}\ns_add_u32 s{sSX+1}, s{sSX}, 128\ns_cmp_eq_u32 s{sROT}, 6\ns_cselect_b32 s{sSW+1}, 0, s{sSW+1}\ns_cselect_b32 s{sSX+1}, s{sT2}, s{sSX+1}")
        P(f"s_cmp_eq_u32 s{sP}, 7\ns_cselect_b32 s{sWKV+2}, 0, {448*2688:#x}")
        P(f"s_mov_b32 s{sWKV+3}, 0x20000\ns_mov_b32 s{sXB+2}, {2048*896:#x}\ns_mov_b32 s{sXB+3}, 0x20000\ns_mov_b32 m0, s{sT4}")
        P(f"s_waitcnt lgkmcnt(0)")
        self.stamp("karg")
        vm = Cnt(P, "vmcnt", 63)
        cur = 0
        pre = []
        for t in o["pre"].split():
            q = int(t[1])
            if t[0] == "X": pre += [(("K", q), L_X(q), vx0, sXB, sSX + q, 0), (("K", q), L_X(q) + 4096, vx1, sXB, sSX + q, 0)]
            if t[0] == "W": pre += [(("K", q), L_WK(q), vw0, sWKV, sSW + q, 0), (("K", q), L_WK(q) + 4096, vw1, sWKV, sSW + q, 0)]
            if t[0] == "V": pre += [(("V", q), L_WV(q), vw0, sWKV, sSW + q, 896), (("V", q), L_WV(q) + 4096, vw1, sWKV, sSW + q, 896)]
        for tag, lds, va, sd, so, imm in pre:
            d = lds - imm - cur; cur = lds - imm
            if d: P(f"s_addk_i32 m0, {d}" if abs(d) < 32768 else f"s_add_u32 m0, s{sT4}, {cur}")
            P(f"buffer_load_dwordx4 v{va}, {sr(sd,4)}, s{so} offen" + (f" offset:{imm}" if imm else "") + f" {NT(tag[0])}lds"); vm.add(tag)
        self.stamp("dma0")
        P(f"s_load_dword s{sNONCE}, s[18:19], {WS_E}")
        P(f"s_lshr_b32 s{sT1}, s7, 2\ns_lshl3_add_u32 s{sS2}, s3, s{sT1}\ns_and_b32 s{sEG}, s7, 3")
        for q in range(2, 7):
            P(f"s_add_u32 s{sSX+q}, s{sSX+q-1}, 128\ns_add_u32 s{sSW+q}, s{sSW+q-1}, {64*2688}\ns_cmp_eq_u32 s{sROT}, {7-q}\ns_cselect_b32 s{sSX+q}, s{sT2}, s{sSX+q}\ns_cselect_b32 s{sSW+q}, 0, s{sSW+q}")
        A = Prog()
        srd(A, sW, sWKV, 448*2688); srd(A, sWS, 18, WS_SIZE); srd(A, sWO, 12, 448*896); srd(A, sOUT, 14, 2048*1792)
        A(f"s_mov_b32 s{sXA+2}, {2048*896:#x}\ns_mov_b32 s{sXA+3}, 0x20000\ns_mul_i32 s3, s{sS2}, 896")
        A(f"v_mul_u32_u24 v{vxa}, {64*896}, v16\nv_add3_u32 v{vxa}, v{vxa}, v17, s3")
        A(f"v_min_u32 v20, 6, v18\ns_mul_i32 s3, s{sP}, 112\nv_lshl_add_u32 v{vq0}, v20, 4, v19\nv_add_u32 v{vq0}, s3, v{vq0}\nv_add_u32 v{vq1}, {32*2688}, v{vq0}")
        A(f"s_cmp_eq_u32 s{sP}, 7\ns_cselect_b32 s{sFO}, 1, 0\ns_cmp_eq_u32 s{sR}, 0\ns_cselect_b32 s{sFO}, s{sFO}, 2")
        F = A.lines + self.const_stream()
        fi = 0
        def fill(n):
            nonlocal fi
            while fi + n < len(F) and F[fi + n].startswith(("s_cselect", "s_addc")): n += 1
            for l in F[fi:fi + n]: P(l)
            fi = min(len(F), fi + n)
        nbar = 0
        safe = {k: min(k // 2 + 3, 8) for k in range(14)}
        def dma(tag, lds, va, srdn, soff, step=0):
            if tag[0] != "K" and (lds // SL) in safe: assert nbar >= safe[lds // SL], ("WAR", tag, nbar)
            P((f"s_addk_i32 m0, {step}" if step else f"s_add_u32 m0, s{sT4}, {lds}") + f"\nbuffer_load_dwordx4 v{va}, {sr(srdn,4)}, s{soff} offen {NT(tag[0])}lds"); vm.add(tag)
        def ld(kind, q):
            if kind == "K":
                dma(("K", q), L_X(q), vx0, sXB, sSX + q); dma(("K", q), L_WK(q), vw0, sWKV, sSW + q)
                dma(("K", q), L_X(q) + 4096, vx1, sXB, sSX + q); dma(("K", q), L_WK(q) + 4096, vw1, sWKV, sSW + q)
            elif kind == "X":
                dma(("K", q), L_X(q), vx0, sXB, sSX + q); dma(("K", q), L_X(q) + 4096, vx1, sXB, sSX + q)
            elif kind == "V":
                if q == 0: P(f"v_add_u32 v{vw0}, 896, v{vw0}\nv_add_u32 v{vw1}, 896, v{vw1}\ns_mov_b64 s[60:61], {sr(sWKV,2)}\ns_mov_b32 s62, s{sWKV+2}\ns_mov_b32 s63, 0x20000")
                dma(("V", q), L_WV(q), vw0, 60, sSW + q); dma(("V", q), L_WV(q) + 4096, vw1, 60, sSW + q, 4096)
            elif kind == "Q":
                dma(("Q", q), L_WQ(q), vq0, sW, sSW + q); dma(("Q", q), L_WQ(q) + 4096, vq1, sW, sSW + q, 4096)
            elif kind == "O":
                if q == 0: pass
                else:
                    P(f"s_add_u32 s65, s65, 1\ns_cmp_eq_u32 s65, 7\ns_cselect_b32 s65, 0, s65")
                P(f"s_lshl_b32 s3, s65, 13\ns_add_u32 m0, s3, s66\ns_mul_i32 s3, s65, {64*896}\nbuffer_load_dwordx4 v12, {sr(sWO,4)}, s3 offen {NT('O')}lds")
                P(f"s_addk_i32 m0, 4096\nbuffer_load_dwordx4 v13, {sr(sWO,4)}, s3 offen {NT('O')}lds"); vm.add(("O", q)); vm.add(("O", q))
            elif kind == "A":
                P(f"s_add_u32 m0, s{sT4}, {L_XA + q*(4096-128)}\nbuffer_load_dwordx4 v{vxa}, {sr(sXA,4)}, 0 offen offset:{q*128} {NT('A')}lds"); vm.add(("A", q))
        def bar(name, tag=None):
            nonlocal nbar
            self.stamp("f" + name)
            if tag: vm.wait(tag)
            self.stamp("w" + name)
            P("s_barrier"); nbar += 1
            self.stamp("b" + name)
        def only(cond, f):
            L = P.label("sk")
            P(f"{cond}\ns_cbranch_scc0 {L}"); f(); P(f"{L}:")
        FO = [24, 25, 26, 27, 11]
        def flag_setup(E):
            E(f"s_add_u32 s3, s{sP}, s{sCI}\ns_and_b32 s3, s3, 7\ns_lshl_b32 s3, s3, 5\ns_sub_u32 s3, s3, s{sCI}\ns_lshl2_add_u32 s3, s3, {WS_KF + 4:#x}")
            for d in range(5):
                E(f"s_add_u32 s7, s{sRT}, {d}\ns_and_b32 s7, s7, 31\ns_lshl_b32 s7, s7, 10\ns_add_u32 s{FO[d]}, s7, s3\ns_add_u32 s3, s3, 8")
            E(f"s_add_u32 s4, s18, {WS_VF - WS_KF:#x}\ns_addc_u32 s5, s19, 0")
        def sflag(bases, early):
            def f():
                for bs in bases:
                    for d in range(5): P(f"s_atomic_swap s{sNONCE}, {bs}, s{FO[d]}")
            only(f"s_cmp_eq_u32 s{sFO}, {int(early)}", f)
        CC, SS, ZC, ZS, ZH = 144, 172, 64, 72, 136
        vFL = 15
        lgx = Cnt(P, "lgkmcnt", 15)
        MM, M2 = 216, 80
        def a1(ina):
            NX = 6
            def xreg(ks): return (24, 32, 40, 48, 56, 112)[ks % NX]
            def xread(ks):
                for mt in range(2):
                    P(f"ds_read_b128 {vr(xreg(ks) + 4*mt, 4)}, v{8 + (ks & 1)} offset:{(ks>>1)*4096 + mt*2048}"); lgx.add(("x", ks))
            P("; hidden DFT of 32 rows x 16 frequencies")
            for ks in range(NX - 1): xread(ks)
            inl = dict(t.split(":") for t in ina.split())
            for ks in range(14):
                if str(ks) in inl:
                    if "kf" in inl[str(ks)] or "kp1" in inl[str(ks)]: assert not lgx.q and ks >= 15 - NX
                    run(inl[str(ks)].replace(",", " "))
                lgx.wait(("x", ks))
                x = xreg(ks); z = ZH if ks >= 7 else 0; kk = 4 * (ks % 7)
                c = (lambda r: "0" if kk == 0 else r)
                P(MF16(ZC + z, x, CC + kk, c(ZC + z)))
                P(MF16(ZS + z, x, SS + kk, c(ZS + z)))
                if ks + NX - 1 < 14: xread(ks + NX - 1)
                P(MF16(ZC + z + 4, x + 4, CC + kk, c(ZC + z + 4)))
                P(MF16(ZS + z + 4, x + 4, SS + kk, c(ZS + z + 4)))
            self.stamp("a1")
        def fm_read():
            assert not lgx.q
            for k in range(4): P(f"ds_read_b128 {vr(96+4*k,4)}, v134 offset:{L_F - L_M + 1024*k}"); lgx.add("F")
            for k in range(8): P(f"ds_read_b128 {vr(MM+4*k,4)}, v134 offset:{1024*k}"); lgx.add("F")
        ZR, ZP, ZN, TA = 80, 84, 88, 40
        vTR, vWR, vRD, vG0, vG1, vOR, vA0, vA1, vTA, vTW, vTG = 120, 122, 121, 124, 125, 126, 136, 137, 138, 140, 141
        sOB, sAB = 10, 64
        def lva():
            P("; 32-point DFT over the rows")
            for i in range(16): P(f"v_fmac_f32 v{ZC+i}, v11, v{ZC+ZH+i}")
            for i in range(4): P(f"v_cvt_pk_bf16_f32 v{ZR+i}, v{ZC+2*i}, v{ZC+2*i+1}")
            for i in range(4): P(f"v_cvt_pk_bf16_f32 v{ZP+i}, v{ZS+2*i}, v{ZS+2*i+1}")
            for i in range(4): P(f"v_cvt_pk_bf16_f32 v{ZN+i}, -v{ZS+2*i}, -v{ZS+2*i+1}")
        def lvb():
            for nt in range(2):
                P(MF16(TA + 8*nt, ZR, 96 + 4*nt, "0")); P(MF16(TA + 8*nt + 4, ZR, 104 + 4*nt, "0"))
            for nt in range(2):
                P(MF16(TA + 8*nt, ZN, 104 + 4*nt, TA + 8*nt)); P(MF16(TA + 8*nt + 4, ZP, 96 + 4*nt, TA + 8*nt + 4))
        def lvc():
            for nt in range(2):
                for r_ in range(4): P(f"v_cvt_pk_bf16_f32 v{56+4*nt+r_}, v{TA+8*nt+r_}, v{TA+8*nt+4+r_}")
        def lvw():
            for nt in range(2): P(f"ds_write_b128 v{vTW}, {vr(56+4*nt,4)} offset:{SL + 1024*nt}"); lgx.add("w")
            for nt in range(2): P(f"ds_read_b128 {vr(24+4*nt,4)}, v{vRD} offset:{SL + 1024*nt}"); lgx.add("t")
        def t_store():
            lgx.wait("t")
            P(f"buffer_store_dwordx4 v[24:27], v{vTG}, {sr(sWS,4)}, s{sT0} offen sc1\ns_add_u32 s{sT0}, s{sT0}, {16*TST}\nbuffer_store_dwordx4 v[28:31], v{vTG}, {sr(sWS,4)}, s{sT0} offen sc1")
            vm.add(("T", 0)); vm.add(("T", 0)); self.stamp("tst")
        def t_addr():
            P = self.P
            P(f"s_lshl1_add_u32 s3, s{sT4}, {L_OUT}\nv_lshl_add_u32 v{vRD}, v0, 4, s3\nv_and_b32 v18, 15, v0\nv_lshl_add_u32 v19, v18, 6, s3")
            P(f"v_lshrrev_b32 v18, 3, v0\nv_xor_b32 v20, v18, v0\nv_bfe_u32 v21, v20, 1, 2\nv_lshl_add_u32 v{vTW}, v21, 4, v19")
            P(f"v_and_b32 v20, 3, v20\nv_lshlrev_b32 v142, 4, v20\nv_lshrrev_b32 v143, 2, v0\nv_mul_u32_u24 v18, {TST}, v143\nv_add_u32 v{vTG}, v18, v142")
            P(f"s_lshl1_add_u32 s3, s{sEG}, s{sCI}\ns_lshl_b32 s3, s3, 13\ns_lshl1_add_u32 s7, s{sS2}, s{sR}\ns_lshl_b32 s7, s7, 6\ns_add_u32 s3, s3, s7\ns_add_u32 s{sT0}, s3, {WS_T:#x}")
        def t_flag():
            def f():
                P(f"s_lshr_b32 s7, s{sS2}, 3\ns_lshl3_add_u32 s3, s{sEG}, s7\ns_lshl_b32 s3, s3, 7\ns_and_b32 s7, s{sS2}, 7\ns_lshl2_add_u32 s3, s7, s3")
                P(f"s_add_u32 s3, s3, {WS_TF:#x}\ns_atomic_swap s{sNONCE}, s[18:19], s3")
            only(f"s_cmp_eq_u32 s{sU}, 1", f)
        def addr1():
            P = self.P
            P(f"v_and_b32 v16, 31, v0\nv_lshrrev_b32 v17, 5, v0\nv_bfe_u32 v18, v0, 1, 2\nv_xor_b32 v18, v18, v17\ns_lshl1_add_u32 s3, s{sT4}, {L_OUT}")
            P(f"v_lshl_add_u32 v19, v16, 6, s3\nv_lshl_add_u32 v{vWR}, v18, 4, v19\nv_xor_b32 v{vWR+1}, 32, v{vWR}")
            P(f"v_mul_u32_u24 v{vG0}, 1792, v143\nv_add_u32 v{vG0}, v{vG0}, v142\nv_add_u32 v{vG1}, {16*1792}, v{vG0}")
            P(f"s_lshl_b32 s3, s{sR}, 12\nv_lshl_add_u32 v{vOR}, v16, 3, s3\nv_lshl_add_u32 v{vOR}, v17, 9, v{vOR}")
            P(f"s_lshl1_add_u32 s3, s{sRT}, s{sR}\ns_mul_i32 s3, s3, {32*1792}\ns_lshl1_add_u32 s7, s{sP}, s{sCI}\ns_lshl_b32 s7, s7, 6\ns_add_u32 s3, s3, s7\ns_add_u32 s{sOB}, s3, 896")
            P(f"s_lshl_b32 s3, s{sCI}, 6\ns_add_u32 s3, s3, {L_WO}")
            self.tr_addr(vTR, 18, 19, True, 3)
        def addr2():
            P = self.P
            P(f"s_cmp_eq_u32 s{sCI}, 1\ns_cselect_b64 vcc, -1, 0")
            if not o["g1a"]: self.a_addr(vA0, vA1, 143, 142, 18, sAB)
            P(f"v_and_b32 v18, 19, v0\nv_bfe_u32 v19, v0, 2, 1\nv_lshl_add_u32 v18, v19, 3, v18\nv_bfe_u32 v19, v0, 3, 1\nv_lshl_add_u32 v18, v19, 2, v18")
            P(f"v_sub_u32 v19, 32, v18\nv_cndmask_b32 v18, v18, v19, vcc\nv_lshrrev_b32 v19, 5, v18\nv_and_b32 v18, 31, v18\nv_lshlrev_b32 v18, 2, v18")
            P(f"v_lshl_add_u32 v18, v19, 13, v18\nv_lshl_add_u32 v18, v17, 10, v18\nv_add_u32 v{vTA}, {L_TT}, v18\nv_add_u32 v{vTA+1}, 128, v{vTA}")
        def addr3():
            P = self.P
            P(f"v_lshrrev_b32 v18, 3, v0\nv_lshl_add_u32 v18, s{sU}, 3, v18\nv_mul_u32_u24 v12, 896, v18\nv_and_b32 v18, 4, v143\nv_xor_b32 v18, v18, v0\nv_and_b32 v18, 7, v18")
            P(f"s_lshl_b32 s3, s{sP}, 7\nv_lshl_add_u32 v12, v18, 4, v12\nv_add_u32 v12, s3, v12\nv_add_u32 v13, {32*896}, v12")
            P(f"s_and_b32 s65, s{sRT}, 3\ns_mul_i32 s65, s65, {o.get('worot', 2)}\ns_cmp_eq_u32 s{sP}, 7\ns_cselect_b32 s{sWO+2}, 0, s{sWO+2}\ns_add_u32 s66, s{sT4}, {L_WO}")
        G = []; gi = 0
        for f in (addr3, addr1, addr2):
            B = Prog(); self.into(B, f); G += B.lines
        if o.get("verbose"): print("second filler", len(G))
        def fill2(n):
            nonlocal gi
            while gi + n < len(G) and G[gi + n].startswith(("s_cselect", "s_addc")): n += 1
            for l in G[gi:gi + n]: P(l)
            gi = min(len(G), gi + n)
        vD0, vKA, vKB, vWO = 14, 127, 135, 13
        sKB = 0
        def role_setup():
            P = self.P
            if o.get("k56"): P(f"v_lshlrev_b32 v{vD0}, 4, v0\ns_mul_i32 s{sKB}, s{sU}, 1792\nv_add_u32 v{vKA}, s{sKB}, v{vD0}\ns_nop 0\ns_nop 0")
            else: P(f"v_lshlrev_b32 v{vD0}, 4, v0\nv_add_u32 v{vKA}, s{sT4}, v{vD0}\ns_add_u32 s3, s{sT4}, 4096\ns_min_u32 s{sKB}, s3, 6144\nv_add_u32 v{vKB}, s{sKB}, v{vD0}")
            P(f"s_lshl3_add_u32 s3, s{sRT}, s{sP}\ns_lshl_b32 s3, s3, 7\ns_mul_i32 s7, s{sCI}, {WS_VF - WS_KF:#x}\ns_add_u32 s3, s3, s7\ns_add_u32 s{sT3}, s3, {WS_KF:#x}")
            P(f"s_mul_i32 s{sT1}, s{sP}, {PAIR}\ns_mul_i32 s3, s{sRT}, 7168\ns_add_u32 s3, s3, s{sT1}\ns_add_u32 s{sGB[4]}, s3, {WS_K:#x}")
            for n in range(4):
                P(f"s_sub_u32 s3, s{sGB[4]}, {7168*(4-n)}\ns_cmp_lt_u32 s{sRT}, {4-n}\ns_cselect_b32 s{sGB[n]}, s{sWS+2}, s3")
            P(f"s_mul_i32 s3, s{sU}, 10\nv_lshrrev_b32 v132, 1, v0\nv_add_u32 v132, s3, v132\nv_lshl_add_u32 v133, s{sRT}, 3, v132\nv_cmp_le_u32 vcc, 32, v133")
            P(f"v_mov_b32 v129, 0x3f803f80\nv_and_b32 v133, 1, v0\nv_cndmask_b32 v128, 0, v129, vcc\nv_lshlrev_b32 v133, 6, v133\nv_lshl_add_u32 v132, v132, 10, v133")
            P(f"v_mov_b32 v129, v128\nv_mov_b32 v130, v128\nv_mov_b32 v131, v128\nv_add_u32 v134, {L_M}, v{vD0}")
        def ones():
            P(f"s_mov_b64 exec, 0xfffff\nds_write_b128 v132, v[128:131] offset:{L_VT + 896}\ns_mov_b64 exec, -1"); lgx.add("o")
        def k_ld(n):
            if o.get("k56"):
                P(f"s_add_u32 m0, s{sKB}, {L_KT + n*7168}\ns_mov_b32 exec_hi, 0x00ffffff")
                for k in range(2): P(f"buffer_load_dwordx4 v{vKA}, {sr(sWS,4)}, s{sGB[n]} offen offset:{896*k} sc1 lds"); vm.add(("k", n))
                P("s_mov_b32 exec_hi, -1")
                return
            for sb, va in ((sT4, vKA), (sKB, vKB)):
                P(f"s_add_u32 m0, s{sb}, {L_KT + n*7168}\nbuffer_load_dwordx4 v{va}, {sr(sWS,4)}, s{sGB[n]} offen sc1 lds"); vm.add(("k", n))
        for f in (role_setup, lambda: flag_setup(self.P), t_addr):
            B = Prog(); self.into(B, f); F += B.lines
            if o.get("verbose"): print("filler length", len(F) - len(B.lines), len(F))
        def die_tell():
            P(f"s_getreg_b32 s16, hwreg(HW_REG_XCC_ID, 0, 4)\ns_lshl_b32 s{sT5}, s{sRT}, 7\ns_add_u32 s{sT2}, s{sT5}, {WS_XF:#x}\ns_lshl2_add_u32 s{sT5}, s{sP}, s{sT2}")
            P(f"s_add_u32 s16, s16, s{sNONCE}\ns_mov_b32 s17, s16\ns_atomic_swap s17, s[18:19], s{sT5}")
        def die_ask(): P(f"s_load_dwordx8 s[20:27], s[18:19], s{sT2} glc")
        def die_check():
            Lx = P.label("xm")
            P(f"s_mov_b32 s{sT5}, {SPIN}\n{Lx}:\ns_waitcnt lgkmcnt(0)")
            for k in range(4): P(f"s_cmp_lg_u64 {sr(20+2*k,2)}, s[16:17]\ns_cbranch_scc1 {Lx}_n")
            P(f"v_mov_b32 v21, {1 if o['olocal'] else 0}\n{Lx}_e:\nds_write_b32 v{vFL}, v21 offset:12\ns_waitcnt lgkmcnt(0)")
            T(f"{Lx}_n:\ns_sub_u32 s20, s20, s6")
            for k in range(1, 8): T(f"s_sub_u32 s{20+k}, s{20+k}, s6\ns_max_u32 s20, s20, s{20+k}")
            T(f"s_cmp_lt_u32 s20, 16\ns_cbranch_scc1 {Lx}_s\ns_load_dwordx8 s[20:27], s[18:19], s{sT2} glc\ns_sub_u32 s{sT5}, s{sT5}, 1\ns_cbranch_scc0 {Lx}\n{Lx}_s:\nv_mov_b32 v21, 0\ns_branch {Lx}_e")
        p7state = {}
        def run(sched, extra={}):
            for tok in sched.split():
                if tok in extra: extra[tok]()
                elif tok[0] in "KVQAXO" and tok[1:].isdigit(): ld(tok[0], int(tok[1:]))
                elif tok[0] == "f" and tok != "fs": fill(len(F) if tok == "f*" else int(tok[1:]))
                elif tok[0] == "w": vm.wait((tok[1], int(tok[2:])))
                elif tok[0] == "b": bar(tok[1:], (tok[1], int(tok[2:])) if tok[1] != "S" else None)
                elif tok == "nonce": P(f"s_waitcnt lgkmcnt(0)\n{NONCE}")
                elif tok == "lg0": lgx.all()
                elif tok == "FM": fm_read()
                elif tok == "kp1": only(f"s_cmp_eq_u32 s{sU}, 1", self.inbox_issue)
                elif tok == "kw1": only(f"s_cmp_eq_u32 s{sU}, 1", self.inbox_wait); self.stamp("kw")
                elif tok[0] == "k" and tok[1:].isdigit(): k_ld(int(tok[1:]))
                elif tok == "kf": sflag(["s[18:19]"], False)
                elif tok == "vf": sflag(["s[4:5]"], False)
                elif tok == "ef": sflag(["s[18:19]", "s[4:5]"], True)
                elif tok == "tf": t_flag()
                elif tok == "tst": t_store()
                elif tok == "a1": a1(o["ina1"])
                elif tok == "a17": a1(o["ina7"])
                elif tok == "lva": lva()
                elif tok == "lvb": lvb()
                elif tok == "lvc": lvc()
                elif tok == "lvw": lvw()
                elif tok[0] == "g": fill2(len(G) if tok == "g*" else int(tok[1:]))
                elif tok[:2] == "p:": P(f"s_setprio {tok[2:]}")
                elif tok == "one": ones()
                elif tok[:2] == "st":
                    if o["otp"] == 9:
                        a_, b_ = map(int, tok[2:].split("-"))
                        if a_ == 0:
                            P(f"s_lshl1_add_u32 s{sT5}, s{sRT}, s{sR}\ns_mul_i32 s{sT5}, s{sT5}, 28672\ns_lshl1_add_u32 s{sOB}, s{sP}, s{sCI}\ns_mul_i32 s{sOB}, s{sOB}, 1792\ns_add_u32 s{sOB}, s{sOB}, s{sT5}\ns_add_u32 s{sOB}, s{sOB}, {WS_O:#x}")
                        for k in range(a_, min(b_, 28)): P(f"s_load_dword s1, s[18:19], s{sOB} offset:{64*k}")
                        if b_ > 28: P(f"s_lshl1_add_u32 s{sT5}, s{sRT}, s{sR}\ns_lshl_b32 s{sT5}, s{sT5}, 6\ns_load_dword s1, s[18:19], s{sT5} offset:{WS_OF}")
                elif tok == "hop":
                    if o["hops"] & 1:
                        for k, ch in enumerate(self.HOPS[:-1]): P(f"s_cmp_eq_u32 s{sU}, {k}\ns_cbranch_scc1 L_pad_{ch[0]}")
                        P(f"s_branch L_pad_{self.HOPS[-1][0]}\nL_hopret:")
                elif tok == "tl":
                    if o["touch"] & 2:
                        P(f"s_lshl_b32 s3, s2, 7\ns_add_u32 s7, s{sU}, 1\ns_lshl_b32 s7, s7, 21\ns_add_u32 s7, s7, s3\ns_load_dword s1, s[18:19], s7 glc")
                        P(f"s_lshl_b32 s7, s{sR}, 21\ns_lshl_b32 s{sT5}, s{sCI}, 15\ns_add_u32 s7, s7, s{sT5}\ns_add_u32 s7, s7, s3\ns_load_dword s1, {sr(sOUT,2)}, s7 glc")
                    if o["touch"] & 8:
                        P(f"s_lshl3_add_u32 s3, s{sRT}, s{sP}\ns_lshl_b32 s3, s3, 7\ns_lshl_b32 s7, s{sU}, 15\ns_add_u32 s3, s3, s7\ns_add_u32 s3, s3, {WS_KF:#x}\ns_load_dword s1, s[18:19], s3 glc")
                elif tok == "xt": only(f"s_cmp_eq_u32 s{sU}, 0", die_tell)
                elif tok == "xa": only(f"s_cmp_eq_u32 s{sU}, 3", die_ask)
                elif tok == "xc": only(f"s_cmp_eq_u32 s{sU}, 3", die_check)
                elif tok == "p7":
                    P(f"s_cmp_eq_u32 s{sP}, 7\ns_cbranch_scc1 L_p7")
                    p7state.update(fi=fi, q=list(vm.q))
                elif tok == "join": P("L_p7join:")
                elif tok == "p7b":
                    P(f"s_cmp_eq_u32 s{sP}, 7\ns_cbranch_scc1 L_p7b")
                    p7state.update(q2=list(vm.q), l2=list(lgx.q))
                elif tok == "join2": P("L_p7join2:")
                elif tok == "vp3": only(f"s_cmp_eq_u32 s{sU}, 3", self.inbox_issue)
                elif tok == "page": P("@JUMPALIGN g2p1"); self.pad("g2p1"); P("L_ja_g2p1:")
                else: raise ValueError(tok)
        run(o["sched"])
        n1 = o["wo1"]; WF = 144
        def wo_frag(q0, q1):
            for ks in range(4*q0, 4*q1):
                for t in range(2):
                    P(f"ds_read_b64_tr_b16 {vr(WF+4*ks+2*t,2)}, v{vTR} offset:{ks*2048 + t*512}")
        P(f"s_cmp_eq_u32 s{sU}, 2\ns_cbranch_scc1 L_roleT\ns_cmp_eq_u32 s{sU}, 0\ns_cbranch_scc1 L_roleX\ns_cmp_eq_u32 s{sU}, 1")
        P("s_cbranch_scc1 " + ("L_pad_g1p2" if o["hops"] & 2 else "L_rolesdone"))
        iV = len(P.lines)
        for n in range(5): P(f"s_add_u32 s{sGB[n]}, s{sGB[n]}, {WS_V - WS_K:#x}")
        P(f"v_add_u32 v{vKB}, 3584, v{vD0}\ns_nop 0")
        if o["otp"] == 20:
            P(f"s_mul_i32 s3, s{sRT}, {2*28672}\ns_mul_i32 s7, s{sP}, 3584\ns_add_u32 s3, s3, s7\ns_add_u32 s3, s3, {WS_O:#x}\nv_cmp_gt_u32 vcc, 28, v0\nv_lshl_add_u32 v30, v0, 7, s3")
            P(f"v_add_u32 v31, {28672 - 3584}, v30\ns_lshl_b32 s7, s{sRT}, 7\nv_cndmask_b32 v30, v31, v30, vcc\nv_cmp_gt_u32 vcc, 56, v0\ns_add_u32 s7, s7, {WS_OF:#x}\nv_mov_b32 v31, s7\nv_cndmask_b32 v30, v31, v30, vcc")
        TV = o.get("tv")
        def t_prep():
            P(f"v_lshrrev_b32 v18, 3, v0\nv_lshlrev_b32 v18, 7, v18\nv_and_b32 v19, 7, v0\nv_lshl_add_u32 v18, v19, 2, v18\ns_mov_b32 s{sT1}, {WS_TF:#x}")
        def t_prep2():
            P(f"s_lshr_b32 s3, s{sP}, 1\ns_and_b32 s7, s{sP}, 1\nv_lshl_add_u32 v18, s3, 10, v18\nv_lshl_add_u32 v19, s7, 10, v18")
            P(f"s_mul_i32 s{sT0}, s{sRT}, {TST}\ns_lshl_b32 s3, s{sP}, 13\ns_add_u32 s{sT0}, s{sT0}, s3\ns_add_u32 s{sT0}, s{sT0}, {WS_T:#x}")
        def t_ld(q0, q1):
            for q in range(q0, q1):
                P(f"s_mov_b32 m0, {L_TT + q*4096}" + (f"\ns_add_u32 s{sT0}, s{sT0}, 4096" if q else ""))
                for z in range(4): P(f"buffer_load_dwordx4 v{vD0}, {sr(sWS,4)}, s{sT0} offen offset:{1024*z} sc1 lds"); vm.add(("t", 1))
        if TV is not None:
            t_prep(); t_prep2()
            P(f"s_cmp_eq_u32 s{sP}, 7\ns_cselect_b32 s{sT1}, s{sWS+2}, s{sT1}")
        P(f"s_mov_b32 exec_hi, 0x00ffffff")
        gate = o.get("vgate", 2)
        if not gate: self.inbox_wait()
        else: P(f"s_mov_b32 s{sT5}, {SPIN}\ns_mov_b32 s7, s{sNONCE}\ns_waitcnt lgkmcnt(0)")
        CP = [68, 62, 60, 50, 48]
        def copy_reissue(n):
            for m in range(n + 1): P(f"s_mov_b64 {sr(CP[m],2)}, {sr(28-2*m,2)}")
            self.inbox_issue()
        if gate == 2: copy_reissue(4)
        for n in (4, 3, 2, 1, 0):
            if gate == 2:
                L = P.label("vg")
                P(f"s_cmp_eq_u64 {sr(CP[n],2)}, s[6:7]\ns_cbranch_scc1 {L}_d\n{L}:\ns_waitcnt lgkmcnt(0)")
                copy_reissue(n)
                P(f"s_sub_u32 s{sT5}, s{sT5}, 1\ns_max_i32 s{sT5}, s{sT5}, 0\ns_cbranch_scc0 {L}_d\ns_cmp_lg_u64 {sr(CP[n],2)}, s[6:7]\ns_cbranch_scc1 {L}\n{L}_d:")
            elif gate:
                L = P.label("vg")
                P(f"s_cmp_eq_u64 {sr(28-2*n,2)}, s[6:7]\ns_cbranch_scc1 {L}_d\n{L}:")
                self.inbox_issue()
                P(f"s_sub_u32 s{sT5}, s{sT5}, 1\ns_max_i32 s{sT5}, s{sT5}, 0\ns_waitcnt lgkmcnt(0)\ns_cbranch_scc0 {L}_d\ns_cmp_lg_u64 {sr(28-2*n,2)}, s[6:7]\ns_cbranch_scc1 {L}\n{L}_d:")
            if n == 4: self.stamp("r1")
            if n == 0: self.stamp("r0")
            for z in range(8):
                P(f"s_mov_b32 m0, {L_VT + n*8192}" if z == 0 else f"s_addk_i32 m0, {4096 - 384 if z == 4 else 128}")
                P(f"buffer_load_dwordx4 v{vKB if z >> 2 else vD0}, {sr(sWS,4)}, s{sGB[n]} offen offset:{896*(z&3)} sc1 lds"); vm.add(("v", n))
            if n == TV:
                P("s_mov_b32 exec_hi, -1")
                for k in range(2): P(f"buffer_load_dword v{20+k}, v{18+k}, {sr(sWS,4)}, s{sT1} offen sc1"); vm.add(("v", n))
                P("s_mov_b32 exec_hi, 0x00ffffff")
        P(f"s_mov_b64 exec, -1")
        if o["otp"] == 20: P(f"buffer_load_dword v22, v30, {sr(sWS,4)}, 0 offen sc1"); vm.add(("t", 0))
        NV = len(o["vbars"]); olate = o.get("olate", {})
        for k, n in enumerate(o["vbars"]):
            vm.wait(("v", n)); self.stamp("r2" if k == 0 else ("r3" if n == 0 else "-")); P("s_barrier")
            run(olate.get(k, ""))
            if TV is not None:
                if n == TV:
                    P(f"v_cmp_ne_u32 vcc, s{sNONCE}, v20\nv_cmp_ne_u32 s[48:49], s{sNONCE}, v21\ns_nop 0\ns_or_b64 vcc, vcc, s[48:49]\ns_cbranch_scc1 L_tlate")
                    late = (k, list(vm.q)); t_ld(0, 2)
                if n == TV - 1: t_ld(2, 4)
        P("s_branch L_a2")
        P("@ALIGN")
        if TV is not None:
            P("L_tlate:"); vm.q = late[1]
            for n in o["vbars"][late[0] + 1:]: vm.wait(("v", n)); P("s_barrier")
            P(f"s_cmp_eq_u32 s{sP}, 7\ns_cbranch_scc1 L_g2end")
            self.poll([(18, 0), (19, 0)], 20, sT1)
            t_ld(0, 4)
            P("s_branch L_a2")
        self.pad("roleT"); P("L_roleT:"); vm.q = []
        P(f"v_lshrrev_b32 v18, 3, v0\nv_lshlrev_b32 v18, 7, v18\nv_and_b32 v19, 7, v0\nv_lshl_add_u32 v18, v19, 2, v18\ns_mov_b32 s{sT1}, {WS_TF:#x}")
        P(f"s_cmp_eq_u32 s{sP}, 7\ns_cbranch_scc1 L_epoch")
        if TV is not None: P("s_branch L_rolesdone")
        i_t = len(P.lines)
        P(f"s_lshr_b32 s3, s{sP}, 1\ns_and_b32 s7, s{sP}, 1\nv_lshl_add_u32 v18, s3, 10, v18\nv_lshl_add_u32 v19, s7, 10, v18")
        P(f"s_mul_i32 s{sT0}, s{sRT}, {TST}\ns_lshl_b32 s3, s{sP}, 13\ns_add_u32 s{sT0}, s{sT0}, s3\ns_add_u32 s{sT0}, s{sT0}, {WS_T:#x}")
        P("s_waitcnt vmcnt(0) lgkmcnt(0)" if o.get("tdelay", 0) else "s_waitcnt lgkmcnt(0)")
        self.poll([(18, 0), (19, 0)], 20, sT1)
        self.stamp("r1")
        P("s_barrier")
        tq = [(q, z) for q in range(4) for z in range(4)]; per = o.get("tper", 8)
        for k in range(NV):
            for q, z in tq[k*per:(k+1)*per]:
                if z == 0: P(f"s_mov_b32 m0, {L_TT + q*4096}" + (f"\ns_add_u32 s{sT0}, s{sT0}, 4096" if q else ""))
                P(f"buffer_load_dwordx4 v{vD0}, {sr(sWS,4)}, s{sT0} offen offset:{1024*z} sc1 lds")
            run(olate.get(k, ""))
            if k < NV - 1: P("s_barrier")
        P("s_branch L_a2")
        if TV is not None: P.lines = P.lines[:i_t]
        P("L_roleX:\ns_waitcnt lgkmcnt(0)"); die_ask(); die_check()
        if TV is not None:
            iA = P.lines.index("@ALIGN"); iT = P.lines.index("L_roleT:"); npad = 2 if o["hops"] & 1 else 0
            T.extend(P.lines[iA+1:iT-npad])
            P.lines = P.lines[:iV] + ["s_branch L_roleV"] + P.lines[iT:] + ["s_branch L_rolesdone", "@ALIGN"] + P.lines[iT-npad:iT] + ["L_roleV:"] + P.lines[iV:iA]
        P(f"L_rolesdone:\ns_waitcnt vmcnt(0) lgkmcnt(0)")
        self.stamp("roled")
        for k in range(NV): P("s_barrier"); run(olate.get(k, ""))
        P("L_a2:\ns_setprio 0")
        P(f"s_cmp_eq_u32 s{sP}, 7\ns_cbranch_scc1 L_g2end")
        E = Prog(); E._lab = 800; self.P = E
        E(f"L_epoch:\ns_waitcnt lgkmcnt(0)\n" + "s_barrier\n" * NV + f"s_cmp_lg_u32 s{sRT}, 31\ns_cbranch_scc1 L_g2end")
        self.poll([(18, 0), (18, 1024), (18, 2048), (18, 3072)], 20, sT1)
        E(f"s_atomic_swap s{sNONCE}, s[18:19], {WS_E}\ns_branch L_g2end")
        self.P = P; T.extend(E.lines)
        lg = Cnt(P, "lgkmcnt", 15)
        def tread(s):
            for t in range(2):
                o0 = 8*(s & 3) + 2*t
                P(f"ds_read2st64_b32 {vr(32+4*s+2*t,2)}, v{vTA+(s>>2)} offset0:{o0} offset1:{o0+1}"); lg.add(s)
        P("; 64-point DFT step (output columns 0..447)")
        for k in range(8): P(f"ds_read_b128 {vr(M2+4*k,4)}, v134 offset:{1024*k}")
        nf = o.get("nf", 2)
        wo_frag(0, nf)
        P(f"s_mul_i32 s3, s{sR}, 0x80008000\ns_waitcnt lgkmcnt(0)")
        for k in range(16): P(f"v_xor_b32 v{M2+16+k}, s3, v{M2+16+k}")
        P("s_waitcnt vmcnt(0)\ns_barrier")
        self.stamp("bw")
        for s in range(6): tread(s)
        for s in range(8):
            lg.wait(s); P(MF32(64, 32 + 4*s, M2 + 4*s, 64 if s else "0"))
            if s < 2: tread(s + 6)
            if s == o.get("ba"): P("s_barrier")
        AO = 112
        for h in range(2):
            for i in range(4): P(f"v_cvt_pk_bf16_f32 v{24+4*h+i}, v{64+8*h+2*i}, v{64+8*h+2*i+1}")
            P(f"ds_write_b128 v{vWR+h}, {vr(24+4*h,4)}")
        if not o["g1a"]: P(f"ds_read_b128 {vr(AO,4)}, v{vRD}\nds_read_b128 {vr(AO+4,4)}, v{vRD} offset:1024")
        wo_frag(nf, 7)
        self.stamp("a2")
        P("s_setprio 2\ns_waitcnt lgkmcnt(0)")
        lg = Cnt(P, "lgkmcnt", 15)
        oa = LdsAddr(P, vOR)
        OF = 32
        nm = 0
        def omf():
            nonlocal nm
            q, s = nm >> 2, nm & 3
            lg.wait((q, s))
            P(MF32(64, WF + 4*nm, OF + 16*(q & 1) + 4*s, "0" if nm == 0 else 64)); nm += 1
        for q in range(7):
            P("s_barrier"); self.stamp(f"bo{q}")
            for s in range(4):
                if nm < 4 * q: omf()
                for t in range(2):
                    off = oa.off(L_O(q) + (4*s + t) * 256)
                    P(f"ds_read_b64 {vr(OF + 16*(q&1) + 4*s + 2*t, 2)}, v{vOR} offset:{off}"); lg.add((q, s))
            while nm < 4 * q + 4 - o.get("lago", 3): omf()
            if q - o.get("aout", 3) in (0, 1) and not o["g1a"]:
                h = q - o.get("aout", 3)
                P(f"buffer_store_dwordx4 {vr(AO+4*h,4)}, v{(vA0, vA1)[h]}, {sr(sOUT,4)}, s{sAB} offen {o['outmod']}")
        while nm < 28: omf()
        self.out_epilogue(64, 24, vWR, vRD, vG0, vG1, f"s{sOB}", o["outmod"])
        self.stamp("fin")
        P(f"L_g2end:")
        self.stamp_out()
        P("s_endpgm")
        P("L_p7:")
        fi = p7state["fi"]; vm.q = p7state["q"]; nbar = 99; lgx.q = []
        run(o["sched7"])
        P("s_branch L_p7join\nL_p7b:")
        vm.q = p7state["q2"]; lgx.q = p7state["l2"]; gi = 0
        run(o["sched7b"])
        P("s_branch L_p7join2")

    def g1(self):
        P = self.P; o = self.o; T = self.tail
        vXA, vWK, vWV, vWQ, vKS, vVS, vZ, vDA, vKR, vVR, vOS, vOP, vNON, vFL, vL, vH = 1, 5, 6, 7, 8, 10, 11, 13, 14, 15, 16, 17, 18, 19, 12, 20
        vSA, vSB = 22, 23
        QF, FM = 24, 32
        AK, AV, AQ, CD, WF, XF = 48, 64, 80, 96, 112, 144
        sG, sKO, sVO, sMODE, sFB, sOFo, sOO = sSW, sSW + 1, sSW + 2, sSW + 3, sSW + 4, sSW + 5, sSW + 6
        c = math.log2(math.e) / math.sqrt(28)
        P("L_g1:")
        self.stamp("G.in")
        P(f"s_waitcnt lgkmcnt(0)\ns_load_dword s{sNONCE}, s[18:19], {WS_E}")
        PF = Prog()
        GQ = o.get("g1q", 0); sRO = 64
        if GQ: P(f"s_sub_u32 s10, s{sT0}, 7\ns_cselect_b32 s{sRO}, s{sT0}, s10")
        if not o.get("early", 0): self.g1_first()
        if o["touch"] & 1:
            Lt = P.label("tch")
            srd(P, sOUT, 14, 2048*1792)
            P(f"s_cmp_lg_u32 s{sU}, 0\ns_cbranch_scc1 {Lt}\nv_lshlrev_b32 v40, 21, v0\nv_add_u32 v41, 0x800, v40\ns_mov_b64 exec, {(1 << NPAGE) - 1}")
            P(f"buffer_load_dword v47, v41, {sr(sWS,4)}, 0 offen\nbuffer_load_dword v47, v40, {sr(sXA,4)}, 0 offen")
            if o["touch"] & 4:
                P(f"s_mul_i32 s7, s{sRT}, 1792\nv_mul_u32_u24 v40, {1024*1792 + 512*1792}, v0\nbuffer_load_dword v47, v40, {sr(sOUT,4)}, s7 offen")
            P(f"s_mov_b64 exec, -1\n{Lt}:")
        P(f"v_and_b32 v{vL}, 31, v0\nv_lshrrev_b32 v{vH}, 5, v0\nv_bfe_u32 v42, v0, 1, 3\nv_xor_b32 v42, v42, v{vH}")
        P(f"s_lshl_b32 s3, s{sR}, 12\nv_lshl_add_u32 v43, v{vL}, 7, s3\nv_lshl_add_u32 v{vXA}, v42, 4, v43")
        for s in range(1, 4): P(f"v_xor_b32 v{vXA+s}, {32*s}, v{vXA}")
        P(f"s_lshl_b32 s{sT0}, s{sCI}, 6")
        self.tr_addr(vWK, 42, 43, True, sT0)
        P(f"s_add_u32 s{sT0}, s{sT0}, {L_WV(0)}")
        self.tr_addr(vWV, 42, 43, False, sT0)
        P(f"s_lshl1_add_u32 s{sG}, s{sRT}, s{sR}")
        P(f"s_lshl1_add_u32 s3, s{sP}, s{sCI}\ns_mov_b32 s7, {PAIR - 7*512}\nv_lshl_add_u32 v42, s3, 2, v{vH}")
        for s in range(2):
            P(f"v_mul_u32_u24 v43, 37, v42\nv_lshrrev_b32 v43, 8, v43\nv_mul_lo_u32 v43, v43, s7\nv_lshl_add_u32 v43, v42, 9, v43\nv_lshl_add_u32 v{vKS+s}, v{vL}, 4, v43")
            if s == 0: P("v_add_u32 v42, 2, v42")
        P(f"s_mul_i32 s3, s{sG}, 3584\ns_add_u32 s{sKO}, s3, {WS_K:#x}\ns_add_u32 s{sVO}, s3, {WS_V:#x}")
        P(f"v_mov_b32 v{vZ}, 0\nv_mov_b32 v{vFL}, {L_FLAG}")
        self.stamp("G.set")
        lg = Cnt(P, "lgkmcnt", 15)
        xa = [LdsAddr(P, vXA + s) for s in range(4)]
        wa = {"K": LdsAddr(P, vWK), "V": LdsAddr(P, vWV, L_WV(0)), "Q": LdsAddr(P, vWQ, L_WQ(0))}
        wl = {"K": L_WK, "V": L_WV, "Q": L_WQ}
        acc = {"K": AK, "V": AV, "Q": AQ}
        def pack(a, half):
            for i in range(4): P(f"v_cvt_pk_bf16_f32 v{QF+4*half+i}, v{a+8*half+2*i}, v{a+8*half+2*i+1}")
        def proj(items, pre={}, lagn={}, post={}, mid={}):
            nm = 0
            def mf():
                nonlocal nm
                i, s = nm >> 2, nm & 3; kind, q, _ = items[i]
                lg.wait((i, s))
                w, x, a = WF + 16*(i & 1) + 4*s, XF + 16*q + 4*s, acc[kind]
                cc = "0" if (q == 0 and s == 0) else a
                P(MF32(a, x, w, cc) if kind == "V" else MF32(a, w, x, cc)); nm += 1
            for i, (kind, q, br) in enumerate(items):
                if i in pre: pre[i]()
                if br: P("s_barrier"); self.stamp(f"G.b{kind}{q}")
                for s in range(4):
                    if nm < 4 * i: mf()
                    if kind == "K":
                        off = xa[s].off(L_X(q))
                        P(f"ds_read_b128 {vr(XF + 16*q + 4*s, 4)}, v{vXA+s} offset:{off}"); lg.add((i, s))
                    for t in range(2):
                        off = wa[kind].off(wl[kind](q) + s*2048 + t*512)
                        P(f"ds_read_b64_tr_b16 {vr(WF + 16*(i&1) + 4*s + 2*t, 2)}, v{wa[kind].reg} offset:{off}"); lg.add((i, s))
                    if (i, s) in mid: mid[(i, s)]()
                while nm < 4 * i + 4 - lagn.get(i, 4): mf()
                if i in post: post[i]()
            while nm < 4 * len(items): mf()
        D = Prog()
        vE, vB, vA, vC, vS = 1, 2, 3, 80, 84
        D2 = Prog()
        D2(f"v_lshl_add_u32 v{vA}, v{vL}, 5, s{sRT}\nv_cvt_f32_u32 v{vA}, v{vA}\nv_mul_f32 v{vE}, {fl(1/2048)}, v{vA}")
        D2(f"v_lshl_add_u32 v{vA}, s{sU}, 1, v{vH}\nv_lshlrev_b32 v{vA}, 3, v{vA}\nv_cvt_f32_u32 v{vA}, v{vA}\nv_mul_f32 v{vB}, v{vE}, v{vA}")
        for par in range(2):
            for jj in range(4): D2(f"v_fmamk_f32 v{vS+jj}, v{vE}, {fl(2*jj + par)}, v{vB}")
            for jj in range(4): D2(f"v_cos_f32 v{vC+jj}, v{vS+jj}")
            for jj in range(4): D2(f"v_sin_f32 v{vS+jj}, v{vS+jj}")
            for jj in range(4): D2(f"v_cvt_pk_bf16_f32 v{88+4*par+jj}, v{vC+jj}, -v{vS+jj}")
        MG = D2; D2 = Prog()
        MG(f"s_add_u32 s3, s{sT4}, {L_M}\nv_lshl_add_u32 v46, v0, 4, s3\nds_write_b128 v46, v[88:91]\nds_write_b128 v46, v[92:95] offset:4096")
        keep = P; P = D2; self.P = D2
        P(f"s_mul_i32 s{sT0}, s{sCI}, 48\ns_add_u32 s{sT0}, s{sT0}, {L_WQ(0)}")
        self.tr_addr(vWQ, 42, 43, True, sT0)
        P(f"s_lshl_b32 s3, s{sRT}, 7\nv_lshl_add_u32 v{vOP}, v{vL}, 2, s3")
        P(f"v_lshlrev_b32 v42, 2, v{vH}\nv_sub_u32 v21, v{vL}, v42\ns_mov_b32 s11, {fl(c)}")
        D3 = Prog(); P = D3; self.P = D3
        P(f"s_mov_b32 s3, 0x0b0b0909")
        for k in range(8):
            k0 = 8 * (k >> 1) + 2 * (k & 1)
            P(f"v_subrev_u32 v42, {k0}, v21\nv_subrev_u32 v43, {k0+1}, v21\nv_perm_b32 v{FM+k}, v43, v42, s3")
        P(f"s_mul_i32 s3, s{sR}, 3584\ns_mul_i32 s7, s{sCI}, 1536\ns_add_u32 s3, s3, s7\ns_add_u32 s3, s3, {L_KT}\nv_lshl_add_u32 v{vKR}, v0, 4, s3")
        P(f"v_cmp_gt_u32 vcc, 28, v{vL}\ns_mul_i32 s3, s{sCI}, 28\nv_add_u32 v42, s3, v{vL}\ns_lshl_b32 s7, s{sCI}, 2\ns_sub_u32 s7, 60, s7\nv_mov_b32 v43, s7")
        P(f"v_cndmask_b32 v42, v43, v42, vcc\ns_lshl_b32 s3, s{sR}, 12\nv_lshl_add_u32 v42, v42, 4, s3\nv_lshl_add_u32 v{vVR}, v{vH}, 10, v42")
        P(f"v_cmp_gt_u32 vcc, s{sCI}, v{vH}\nv_cmp_lt_u32 s[26:27], s{sCI}, v{vH}\nv_lshlrev_b32 v42, 3, v{vL}\nv_lshl_add_u32 v{vOS}, v{vH}, 8, v42\nv_mov_b32 v42, {fl(c)}")
        P(f"v_cndmask_b32 v{vSA}, v42, v{vZ}, vcc\nv_cndmask_b32 v{vSB}, v42, v{vZ}, s[26:27]")
        P = D; self.P = D
        P(f"s_lshl1_add_u32 s3, s{sP}, s{sCI}\nv_lshl_add_u32 v42, s3, 5, v{vL}\nv_mul_u32_u24 v43, 1171, v42\nv_lshrrev_b32 v43, 16, v43\ns_mov_b32 s7, {PAIR - 896}")
        P(f"v_mul_lo_u32 v43, v43, s7\nv_lshl_add_u32 v43, v42, 4, v43\nv_mul_u32_u24 v42, 896, v{vH}\nv_add_u32 v{vVS}, v42, v43")
        P(f"s_mul_i32 s3, s3, 1792\ns_mul_i32 s7, s{sG}, 28672\ns_add_u32 s3, s3, s7\ns_add_u32 s{sOO}, s3, {WS_O:#x}")
        P(f"s_lshl3_add_u32 s3, s{sRT}, s{sP}\ns_lshl2_add_u32 s3, s3, s{sU}\ns_lshl_b32 s3, s3, 2\ns_add_u32 s{sOFo}, s3, {WS_OF:#x}\ns_mov_b32 s{sFB}, 0")
        P(f"v_cmp_gt_u32 vcc, 14, v0\nv_lshl_add_u32 v42, v0, 7, s{sOO}\nv_mov_b32 v43, s{sOFo}\nv_cndmask_b32 v45, v43, v42, vcc")
        P = keep; self.P = keep
        if GQ:
            D3(f"v_lshrrev_b32 v42, 3, v0\nv_lshl_add_u32 v42, s{sU}, 3, v42\nv_mul_u32_u24 v42, 2688, v42\nv_lshrrev_b32 v43, 2, v0\nv_and_b32 v43, 4, v43\nv_xor_b32 v43, v43, v0")
            D3(f"v_and_b32 v43, 7, v43\nv_min_u32 v43, 6, v43\ns_mul_i32 s3, s{sP}, 112\nv_lshl_add_u32 v42, v43, 4, v42\nv_add_u32 v40, s3, v42\nv_add_u32 v41, {32*2688}, v40")
        D.extend(D2.lines); D.extend(D3.lines)
        n0 = o["g1f0"]
        P.extend(D.lines[:n0])
        if o["otp"] == -1: P(f"buffer_load_dword v47, v45, {sr(sWS,4)}, 0 offen sc1")
        P(f"s_cmp_eq_u32 s{sP}, 7\ns_cbranch_scc1 L_x7\ns_setprio 1")
        self.stamp("G.set2")
        OT = f"buffer_load_dword v47, v45, {sr(sWS,4)}, 0 offen sc1"; otp = o.get("otp", 6)
        B7 = Prog(); B7._lab = 600
        B7("L_x7:"); B7.extend(D.lines[n0:]); B7.extend([l.replace("s11", "s9") for l in PF.lines]); B7("s_barrier")
        xa7 = [LdsAddr(B7, vXA + s) for s in range(4)]
        for q in range(7):
            for s in range(4):
                off = xa7[s].off(L_X(q))
                B7(f"ds_read_b128 {vr(XF + 16*q + 4*s, 4)}, v{vXA+s} offset:{off}")
        B7(f"s_barrier\n{OT if 0 <= otp < 7 or otp >= 30 else ''}\ns_waitcnt lgkmcnt(0)\ns_branch L_s0")
        T.extend(B7.lines)
        cuts = o["g1cuts"]
        di = n0
        def slot(i):
            nonlocal di
            n = cuts.get(i, 0) if i < max(cuts) else 999
            P.extend(D.lines[di:di + n]); di += n
        P("; K projection")
        proj([("K", q, True) for q in range(7)], lagn=o.get("lagk", {4: 2, 5: 0}), post={i: (lambda i=i: slot(i)) for i in range(7)}, mid={(otp, 1): lambda: P(OT)})
        for h in range(2):
            pack(AK, h)
            P(f"buffer_store_dwordx4 {vr(QF+4*h,4)}, v{vKS+h}, {sr(sWS,4)}, s{sKO} offen sc1")
        self.stamp("G.kst")
        P("L_s0:\ns_barrier\ns_setprio 0")
        if o.get("wlate"):
            P(f"s_lshl1_add_u32 s3, s2, s{sCI}\ns_mulk_i32 s3, 2688\ns_mul_i32 s7, s{sR}, 448\ns_add_u32 s3, s3, s7\nv_min_u32 v42, 55, v0\nv_lshlrev_b32 v42, 3, v42")
            P(f"buffer_load_dword v47, v42, {sr(sWKV,4)}, s3 offen offset:1792")
        if o.get("wlate") or o.get("olate2"):
            P(f"s_lshl2_add_u32 s3, s2, s{sU}\ns_mulk_i32 s3, 392\nv_lshlrev_b32 v42, 3, v0\nbuffer_load_dword v47, v42, {sr(sWO,4)}, s3 offen")
        if otp == 7: P(OT)
        vmq = Cnt(P, "vmcnt", 63)
        def qld(q):
            P(f"s_add_u32 s3, s{sRO}, {q}\ns_sub_u32 s7, s3, 7\ns_min_u32 s3, s3, s7\ns_add_u32 m0, s{sT4}, {L_WQ(q)}\ns_mul_i32 s3, s3, {64*2688}")
            P(f"buffer_load_dwordx4 v40, {sr(sWKV,4)}, s3 offen lds\ns_addk_i32 m0, 4096\nbuffer_load_dwordx4 v41, {sr(sWKV,4)}, s3 offen lds"); vmq.add(q); vmq.add(q)
        if GQ: qld(2)
        P.extend(MG.lines)
        if o["g1a"]:
            P(f"v_lshrrev_b32 v8, 2, v0\nv_lshrrev_b32 v9, 3, v0\nv_xor_b32 v9, v9, v0\nv_and_b32 v9, 3, v9\nv_lshlrev_b32 v9, 4, v9\ns_cmp_eq_u32 s{sCI}, 1\ns_cselect_b64 vcc, -1, 0")
            self.a_addr(4, 5, 8, 9, 42, 10)
            P(f"s_lshl1_add_u32 s3, s{sT4}, {L_OUT}\nv_lshl_add_u32 v3, v0, 4, s3")
            srd(P, sOUT, 14, 2048*1792)
        P(f"v_lshrrev_b32 v42, 2, v{vL}\nv_cmp_ne_u32 s[62:63], s{sP}, v42")
        P(f"{NONCE}\nv_mov_b32 v{vNON}, s{sNONCE}")
        S = lambda n: AV if n == 0 else (AK if n == 8 else XF + 16 * (n - 1))
        def mask(E, dst, far):
            E(f"v_cvt_f32_i32 v42, v21\nv_mul_f32 v42, {fl(-BIG if far else BIG)}, v42")
            for i in range(16):
                k = 8*(i >> 2) + (i & 3)
                E(f"v_add_f32 v{dst+i}, {fl((k-1)*BIG if far else -k*BIG)}, v42")
            for i in range(16): E(f"v_min_f32 v{dst+i}, 0, v{dst+i}")
        mask(P, S(8), False)
        P(f"s_mov_b32 s{sT0}, {WS_OF:#x}\ns_lshl1_add_u32 s3, s{sRT}, s{sCI}\ns_mul_i32 s{sT1}, s3, 28672\ns_lshl_b32 s3, s{sR}, 11\ns_add_u32 s{sT1}, s{sT1}, s3\ns_add_u32 s{sT1}, s{sT1}, {WS_O:#x}")
        P(f"s_lshl_b32 s{sT2}, s{sT4}, 1\nv_lshlrev_b32 v{vDA}, 4, v0\ns_waitcnt lgkmcnt(0)\ns_setprio 1")
        P("L_g1page:"); self.pad("g1p1", True)
        if GQ:
            for q in range(3, 2 + GQ): qld(q)
        self.stamp("G.i1")
        if "bS4" in o["ina1"]: P("s_barrier")
        items = [(t[0], int(t[1]), t.endswith("b")) for t in o["items"].split()]
        QE = []
        for i in range(8):
            sc = f"v{vSA}" if i < 2 else (f"v{vSB}" if i >= 6 else "s11")
            QE.append(f"v_mul_f32 v{AQ+2*i}, {sc}, v{AQ+2*i}\nv_mul_f32 v{AQ+2*i+1}, {sc}, v{AQ+2*i+1}\nv_cvt_pk_bf16_f32 v{QF+i}, v{AQ+2*i}, v{AQ+2*i+1}")
        def q7():
            P(f"s_cmp_eq_u32 s{sP}, 7\ns_cbranch_scc1 L_q7")
            T("L_q7:\ns_waitcnt lgkmcnt(0)")
            for s in range(4): T(MF32(AQ, WF + 4*s, XF + 96 + 4*s, AQ))
            T("s_barrier")
            for t in QE: T(t)
            T("s_branch L_vdone")
        pre = {o["kack"]: lambda: (self.stamp("G.ka0"), P("s_waitcnt vmcnt(0)"), self.stamp("G.ka1"))}
        if GQ:
            nb_ = [i for i in range(14) if items[i][2]]
            pre = {a_: (lambda m=min(b_ - 1, 1 + GQ): vmq.wait(m)) for a_, b_ in zip(nb_, nb_[1:]) if a_ <= 1 + GQ}
            assert nb_[1] > 2
        proj(items, pre=pre, lagn=o.get("lagqv", {1: 0}), post={6: q7},
             mid={**{(9 + (k >> 2), k & 3): (lambda k=k: P(QE[k])) for k in range(8)}, (otp - 30, 1): lambda: P(OT)})
        for h in range(2):
            for i in range(4): P(f"v_cvt_pk_bf16_f32 v{CD+4*h+i}, v{AV+8*h+2*i}, v{AV+8*h+2*i+1}")
            P(f"buffer_store_dwordx4 {vr(CD+4*h,4)}, v{vVS}, {sr(sWS,4)}, s{sVO} offen offset:{1792*h} sc1")
        P(f"L_vdone:")
        self.stamp("G.vst")
        vM = 40
        KB, VB = WF, WF + 16
        pend = []
        def kread(i):
            for s in range(2):
                pend.append((f"ds_read_b128 {vr(KB + 8*((i+2)&3) + 4*s, 4)}, v{vKR} offset:{(8-i)*3584 + s*1024}", ("k", i)))
        def vread(i):
            for s in range(2):
                pend.append((f"ds_read_b128 {vr(S(8-i) + 8*s + 4, 4)}, v{vVR} offset:{(8-i)*4096 + s*2048}", ("v", i)))
        def drain(n=99):
            while pend and n > 0:
                t, tag = pend.pop(0); P(t); lg.add(tag); n -= 1
        if "bS9" in o["sched"]: P("s_barrier")
        P("s_barrier")
        if o["bva"] < 0: P(f"s_waitcnt vmcnt(0)"); self.stamp("G.va"); P("s_barrier")
        self.stamp("G.ck"); kread(0); kread(1); drain()
        def qk(i, s, nd=2):
            n = 8 - i
            lg.wait(("k", i))
            P(MF32(S(n), KB + 8*((i+2) & 3) + 4*s, QF + 4*s, S(n) if (s == 1 or n == 8) else CD)); drain(nd)
        npv = 0
        def pv(nd=2):
            nonlocal npv
            i, s = npv >> 1, npv & 1
            assert not any(t == ("v", i) for _, t in pend)
            lg.wait(("v", i))
            P(MF32(AQ, S(8 - i) + 8*s + 4, S(8 - i) + 8*s, "0" if npv == 0 else AQ)); npv += 1; drain(nd)
        def pvl(s):
            lg.wait(("v", 8)); P(MF32(AQ, KB + 4*s, S(0) + 8*s, AQ))
        kread(2)
        qk(0, 0); qk(0, 1)
        b = S(8)
        P(f"s_mov_b32 s3, {fl(-40.0)}\nv_max_f32 v{vM}, v{b}, v{b+1}\nv_max_f32 v{vM+1}, v{b+2}, v{b+3}")
        for k in range(2, 7): P(f"v_max3_f32 v{vM+(k&1)}, v{vM+(k&1)}, v{b+2*k}, v{b+2*k+1}")
        P(f"v_max3_f32 v{vM+1}, v{vM+1}, v{b+14}, v{b+15}\nv_max_f32 v42, v{vM}, v{vM+1}\nv_max_f32 v{vM+1}, v{vM}, v{vM+1}\nv_permlane32_swap_b32 v42, v{vM+1}\nv_max_f32 v{vM}, v42, v{vM+1}")
        P(f"v_sub_f32 v{vM}, s3, v{vM}")
        if o.get("pka", 1):
            for k in range(8): P(f"v_pk_mul_f32 {vr(CD+2*k,2)}, {vr(vM,2)}, 1.0 op_sel_hi:[0,0]")
            for k in range(8): P(f"v_pk_add_f32 {vr(b+2*k,2)}, {vr(vM,2)}, {vr(b+2*k,2)} op_sel_hi:[0,1]")
        else:
            for k in range(16): P(f"v_mov_b32 v{CD+k}, v{vM}")
            for k in range(16): P(f"v_add_f32 v{b+k}, v{vM}, v{b+k}")
        self.stamp("G.p1")
        knext = 3
        for i in range(9):
            b = S(8 - i)
            if i == o["bva"]: self.stamp("G.va0"); P(f"s_waitcnt vmcnt(0)"); self.stamp("G.va"); P("s_barrier")
            if i == o["bk2"]: P("s_barrier"); self.stamp("G.k2")
            while knext < min(9 if i >= o["bk2"] else o["k1st"], i + 4): kread(knext); knext += 1
            assert knext >= min(9, i + 3)
            mfs = [lambda i=i: qk(i + 1, 0, 3), lambda i=i: qk(i + 1, 1, 3)] if i < 8 else []
            for pos in range(16):
                P(f"v_exp_f32 v{b+pos}, v{b+pos}")
                if pos in (0, 5) and mfs: mfs.pop(0)()
                if pos in (7, 15):
                    h = pos >> 3
                    for k in range(4): P(f"v_cvt_pk_bf16_f32 v{b+8*h+k}, v{b+8*h+2*k}, v{b+8*h+2*k+1}")
                    if i == 8:
                        for k in range(4): P(f"v_and_b32 v{b+8*h+k}, v{b+8*h+k}, v{FM+4*h+k}")
            drain()
        self.stamp("G.ex")
        P("@JUMP2 g1p2"); self.pad("g1p2"); P("L_ja_g1p2:")
        P("; P*V (a column of ones in V gives the row sums)")
        vn = 0
        for k, n in enumerate(o["vbars"]):
            P("s_barrier"); self.stamp("G.fv" if k == 0 else ("G.v2" if n == 0 else "-"))
            if otp == 10 + k or o.get("ot2") == k: P(OT)
            if k == 0: P(f"ds_read_b32 v44, v{vFL} offset:12"); lg.add("m")
            if k == 1: lg.wait("m"); P(f"v_readfirstlane_b32 s{sMODE}, v44")
            old = 2 * vn
            while vn <= 8 - 2*n: vread(vn); vn += 1
            if npv == old: drain()
            while npv < old: pv(4)
            drain()
            while npv < 2 * vn - (o.get("pvk", 2) if n else 0): pv()
        vWR, vRD, vG0, vG1, vTA, MF_, TF_, AE = 1, 3, 4, 5, 8, 176, 144, 64
        P(f"L_onorm:\ns_cmp_eq_u32 s{sMODE}, 0")
        P(f"v_mov_b32 v40, v{AQ+12}\nv_mov_b32 v41, v{AQ+12}\nv_permlane32_swap_b32 v40, v41\nv_rcp_f32 v41, v41\ns_cbranch_scc1 L_oslow")
        def ostore(E, mod):
            for a in range(4):
                for k in range(2): E(f"v_pk_mul_f32 {vr(CD+4*a+2*k,2)}, v[40:41], {vr(AQ+4*a+2*k,2)} op_sel:[1,0]")
                for k in range(2): E(f"v_cvt_pk_bf16_f32 v{VB+2*a+k}, v{CD+4*a+2*k}, v{CD+4*a+2*k+1}")
                if a == 3: E("s_mov_b32 exec_hi, 0")
                E(f"buffer_store_dwordx2 {vr(VB+2*a,2)}, v{vOS}, {sr(sWS,4)}, s{sOO} offen offset:{512*a} {mod}")
            E("s_mov_b64 exec, -1")
        ostore(P, o["omod"])
        P("L_ostored:")
        T("L_oslow:"); ostore(T, "sc1"); T("s_branch L_ostored")
        self.stamp("G.ost")
        P(f"v_mul_f32 v42, {fl(2.0**16)}, v{AQ+12}\nv_mul_f32 v40, 0, v{AQ}\nv_mul_f32 v41, 0, v{AQ+1}\nv_fmac_f32 v40, 0, v42")
        for k in range(2, 16): P(f"v_fmac_f32 v{40+(k&1)}, 0, v{AQ+k}")
        P(f"v_cmp_u_f32 vcc, v40, v41")
        if o["force_fb"]: P("s_mov_b64 vcc, -1")
        P(f"s_cbranch_vccnz L_fallback\nL_ochecked:")
        EP = o.get("epoll", 0)
        if EP: P(f"buffer_load_dword v44, v{vOP}, {sr(sWS,4)}, s{sT0} offen sc1")
        BT = (0 if o.get("ba") is not None else 1) if EP else o.get("btpos", 0)
        if BT == 0: P(f"s_cmp_eq_u32 s{sP}, 7\ns_cbranch_scc1 L_nobt\ns_barrier\nL_nobt:")
        P(f"s_mov_b64 exec, 1\ns_cmp_eq_u32 s{sMODE}, 0\ns_waitcnt vmcnt(0)\ns_cbranch_scc1 L_ofslow")
        P(f"buffer_store_dword v{vNON}, v{vZ}, {sr(sWS,4)}, s{sOFo} offen\nL_oflagged:\ns_mov_b64 exec, -1")
        T(f"L_ofslow:\nbuffer_store_dword v{vNON}, v{vZ}, {sr(sWS,4)}, s{sOFo} offen sc1\ns_branch L_oflagged")
        self.stamp("G.oack")
        P(f"s_cmp_eq_u32 s{sP}, 7\ns_cbranch_scc1 L_g1end\ns_add_u32 m0, s{sT2}, {L_O(0)}")
        if EP == 2: P(f"v_cmp_ne_u32 vcc, s{sNONCE}, v44\ns_mov_b32 s{sT5}, {SPIN}\ns_barrier\ns_and_b32 s61, vcc_lo, s62")
        elif EP: P(f"v_cmp_ne_u32 vcc, s{sNONCE}, v44\ns_barrier\ns_and_b64 vcc, vcc, s[62:63]\ns_cbranch_scc0 L_oall")
        elif BT == 1: P("s_barrier")
        vm = Cnt(P, "vmcnt", 63)
        if EP != 2: self.poll([(vOP, 0)], 44, sT0)
        P("L_oall:")
        self.stamp("G.op")
        nb = 0
        for t in o.get("osched", "0 1 2 3 b 4 5 b 6 b b a b b b").split():
            if t == "b":
                vm.wait(nb); P("s_barrier"); nb += 1
                if nb == 1 and o["g1a"]: P("ds_read_b128 v[24:27], v3\nds_read_b128 v[28:31], v3 offset:1024")
            elif t == "a":
                if o["g1a"]:
                    P("s_waitcnt lgkmcnt(0)")
                    for h in range(2): P(f"buffer_store_dwordx4 {vr(24+4*h,4)}, v{4+h}, {sr(sOUT,4)}, s10 offen {o['outmod']}"); vm.add("a")
            else:
                q = int(t)
                if EP == 2:
                    L = P.label("og"); mk = (0xff << 4*q) & 0xffffffff
                    P(f"s_and_b32 s3, s61, {mk:#x}\ns_cbranch_scc0 {L}_d\n{L}:\nbuffer_load_dword v44, v{vOP}, {sr(sWS,4)}, s{sT0} offen sc1")
                    P(f"s_sub_u32 s{sT5}, s{sT5}, 1\ns_max_i32 s{sT5}, s{sT5}, 0\ns_waitcnt vmcnt(0)\ns_cbranch_scc0 {L}_d\nv_cmp_ne_u32 vcc, s{sNONCE}, v44\ns_nop 0\ns_and_b32 s61, vcc_lo, s62\ns_and_b32 s3, s61, {mk:#x}\ns_cbranch_scc1 {L}\n{L}_d:")
                if q: P(f"s_add_u32 m0, s{sT2}, {L_O(q)}\ns_add_u32 s{sT1}, s{sT1}, 4096")
                for k in range(2):
                    P(f"buffer_load_dwordx4 v{vDA}, {sr(sWS,4)}, s{sT1} offen offset:{1024*k} sc1 lds"); vm.add(q)
        P("L_g1end:")
        self.stamp_out()
        P("L_end:\ns_endpgm")
        P("L_fallback:")
        P(f"s_cmp_lg_u32 s{sFB}, 0\ns_cbranch_scc1 L_ochecked\ns_mov_b32 s{sFB}, 1\ns_waitcnt vmcnt(0)")
        mask(P, S(0), True); mask(P, S(8), False)
        P(f"v_mov_b32 v{vM}, {fl(-BIG)}")
        for n in range(9):
            P(f"ds_read_b128 {vr(KB,4)}, v{vKR} offset:{n*3584}\nds_read_b128 {vr(KB+4,4)}, v{vKR} offset:{n*3584+1024}")
            if n <= 7:
                P(f"s_cmp_lt_u32 s{sG}, {8-n}\ns_cselect_b32 s3, {fl(-BIG)}, 0")
                for k in range(16): P(f"v_mov_b32 v{S(n)+k}, s3" if n else f"v_min_f32 v{S(n)+k}, s3, v{S(n)+k}")
            P("s_waitcnt lgkmcnt(0)")
            for s in range(2): P(MF32(S(n), KB + 4*s, QF + 4*s, S(n)))
            for k in range(8): P(f"v_max3_f32 v{vM}, v{vM}, v{S(n)+2*k}, v{S(n)+2*k+1}")
        P(f"v_mov_b32 v{vM+1}, v{vM}\nv_permlane32_swap_b32 v{vM}, v{vM+1}\nv_max_f32 v{vM}, v{vM}, v{vM+1}")
        for n in range(9):
            b = S(n)
            P(f"ds_read_b128 {vr(VB,4)}, v{vVR} offset:{n*4096}\nds_read_b128 {vr(VB+4,4)}, v{vVR} offset:{n*4096+2048}")
            for k in range(16): P(f"v_sub_f32 v{b+k}, v{b+k}, v{vM}")
            for k in range(16): P(f"v_exp_f32 v{b+k}, v{b+k}")
            for k in range(8): P(f"v_cvt_pk_bf16_f32 v{b+k}, v{b+2*k}, v{b+2*k+1}")
            P("s_waitcnt lgkmcnt(0)")
            for s in range(2): P(MF32(AQ, VB + 4*s, b + 4*s, "0" if (n == 0 and s == 0) else AQ))
        P("s_nop 11\ns_branch L_onorm")

    def addrs(self, lines):
        import subprocess, tempfile
        src = '.amdgcn_target "amdgcn-amd-amdhsa--gfx950"\n.text\n' + "".join(f"Z{i}:\n" + ("" if l.startswith("@") else l) + "\n" for i, l in enumerate(lines))
        with tempfile.TemporaryDirectory() as d:
            open(d + "/a.s", "w").write(src)
            subprocess.run(["clang", "-x", "assembler", "-target", "amdgcn-amd-amdhsa", "-mcpu=gfx950", "-c", d + "/a.s", "-o", d + "/a.o"], check=True)
            out = subprocess.run(["llvm-objdump", "-t", d + "/a.o"], capture_output=True, text=True).stdout
        ad = {}
        for l in out.splitlines():
            w = l.split()
            if len(w) > 3 and w[-1][0] == "Z": ad[int(w[-1][1:])] = int(w[0], 16)
        return [ad[i] for i in range(len(lines))]

    def layout(self, body):
        fill = lambda n: [f".fill {n//4}, 4, 0xbf810000"] if n else []
        on = self.o["align"]; AL = [".p2alignl 12, 0xbf810000"]
        while True:
            k = [i for i, l in enumerate(body) if l.startswith("@JUMPALIGN")]
            if not k: break
            i = k[0]; name = body[i].split()[1]
            a = self.addrs(body)[i] + 4
            body = body[:i] + [f"s_branch L_ja_{name}"] + (AL if on else []) + body[i+1:]
        i = body.index("@ALIGN"); a = self.addrs(body)[i]
        body = body[:i] + (AL if on and -a % 4096 < 1536 else []) + body[i+1:]
        ad = self.addrs(body)
        g = body.index("L_g1:")
        if on:
            n = -ad[body.index("L_g1page:")] % 4096; up = -ad[g] % 4096
            body = body[:g] + (AL + fill(n - up) if up <= n else fill(n)) + body[g:]
        ad = self.addrs(body)
        i = body.index("@JUMP2 g1p2"); a = ad[i] + 4
        if a - ad[body.index("L_g1page:")] > 4096: print("warning: attention page overflows")
        body = body[:i] + [f"s_branch L_ja_g1p2"] + (AL if on else []) + body[i+1:]
        return body

    def build(self):
        self.prologue(); self.g2()
        g2 = list(self.P.lines); self.P.lines = []
        self.g1()
        fb = self.P.lines.index("L_fallback:")
        lines = g2 + self.tail.lines + self.P.lines[:fb] + ["L_codeend:"] + self.P.lines[fb:]
        body, pad = pad_hazards(lines)
        body = self.layout(body)
        hdr = open(os.path.join(os.path.dirname(os.path.abspath(__file__)), "header.txt")).read()
        if self.o["stamps"]: hdr += "; STAMPS " + self.o["stamps"] + (" MIXED" if self.o["mixed"] else "") + (" REALTIME" if self.o.get("rt") else "") + "\n"
        s = hdr + "; @launch grid=(256,1,1) block=(512,1,1) lds=163840\n"
        s += DOC + '.amdgcn_target "amdgcn-amd-amdhsa--gfx950"\n.text\n'
        if self.o["align"]: s += ".p2align 12\n.fill 832, 4, 0xbf810000\n"
        s += f".globl {NAME}\n.p2align 8\n.type {NAME},@function\n{NAME}:\n"
        s += "\n".join(("" if l.endswith(":") else "    ") + l for l in body) + "\n    s_endpgm\n"
        s += f""".section .rodata,"a"
.p2align 6
.amdhsa_kernel {NAME}
  .amdhsa_next_free_vgpr 256
  .amdhsa_next_free_sgpr 102
  .amdhsa_accum_offset 256
  .amdhsa_group_segment_fixed_size 0
  .amdhsa_kernarg_size 88
  .amdhsa_user_sgpr_count 2
  .amdhsa_user_sgpr_kernarg_segment_ptr 1
  .amdhsa_system_sgpr_workgroup_id_x 1
.end_amdhsa_kernel
"""
        return s, pad

if __name__ == "__main__":
    opts = {}
    out = sys.argv[1]
    for a in sys.argv[2:]:
        k, v = a.split("=", 1); opts[k] = v if k in STR_OPTS else eval(v)
    s, pad = Gen(**opts).build()
    open(out, "w").write(s)
    print("written", out, "pad states", pad, "lines", s.count("\n"))
```
